```python
import torch

def _softmax(x, axis=-1):
    return torch.softmax(x, dim=axis)
def _gelu(x):
    return torch.nn.functional.gelu(x, approximate="tanh")
def _silu(x):
    return torch.nn.functional.silu(x)
def _sigmoid(x):
    return torch.sigmoid(x)
def _layernorm(x, axis=-1, eps=1e-5):
    m = x.mean(dim=axis, keepdim=True)
    v = x.var(dim=axis, keepdim=True, unbiased=False)
    return (x - m) / torch.sqrt(v + eps)
def _scatter_add(tgt, idx, src, axis=0):
    return tgt.clone().index_add_(axis, idx, src)
def _segment_sum(src, seg, n):
    out = torch.zeros((n,) + src.shape[1:], dtype=src.dtype)
    return out.index_add_(0, seg, src)
def _pad(x, pw):
    flat = tuple(v for pair in reversed(pw) for v in pair)
    return torch.nn.functional.pad(x, flat)

kernel_name = 'gated_mix__mha_block__moe_arch_mod__prompt'

def setup_inputs():

    _w = (lambda a: (lambda t: t.to(torch.bfloat16) if t.is_floating_point() else t)(torch.as_tensor(a)))
    def _A_setup():
        B, S, D, H = 1, 2048, 512, 32
        return {
            "x": _w((lambda *s: torch.randn(*s, dtype=torch.bfloat16) * 0.05)(B, S, D)),
            "wqkv": _w((lambda *s: torch.randn(*s, dtype=torch.bfloat16) * 0.8)(D, 3 * D)),
            "wo": _w((lambda *s: torch.randn(*s, dtype=torch.bfloat16) * 0.1)(D, D)),
        }
    _A_in = _A_setup()

    def _B_setup():
        B, S, D, F, C = 1, 2048, 512, 1792, 1
        return {
            "x": _w((lambda *s: torch.randn(*s, dtype=torch.bfloat16) * 0.05)(B, S, D)),
            "w_r": _w((lambda *s: torch.randn(*s, dtype=torch.bfloat16) * 1.6)(D)),
            "w_gate": _w((lambda *s: torch.randn(*s, dtype=torch.bfloat16) * 0.2)(D, F)),
            "w_up": _w((lambda *s: torch.randn(*s, dtype=torch.bfloat16) * 0.2)(D, F)),
            "w_down": _w((lambda *s: torch.randn(*s, dtype=torch.bfloat16) * 0.2)(F, D)),
        }
    _B_in = _B_setup()

    return {
        "A_x": _A_in["x"],
        "A_wqkv": _A_in["wqkv"],
        "A_wo": _A_in["wo"],
        "B_x": _B_in["x"],
        "B_w_r": _B_in["w_r"],
        "B_w_gate": _B_in["w_gate"],
        "B_w_up": _B_in["w_up"],
        "B_w_down": _B_in["w_down"],
        "gate_w": _w((lambda *s: torch.randn(*s, dtype=torch.bfloat16) * 0.05)(512) * 16.0),
    }

def reference(A_x, A_wqkv, A_wo, B_x, B_w_r, B_w_gate, B_w_up, B_w_down, gate_w):
    def _A_ref(x, wqkv, wo):
        B, S, D = x.shape
        H = 32
        Dh = D // H
        qkv = (lambda x, *d: x.permute(*d))((x @ wqkv).reshape(B, S, 3, H, Dh), 2, 0, 3, 1, 4)
        q, k, v = qkv[0], qkv[1], qkv[2]
        scores = torch.einsum("bhqd,bhkd->bhqk", q, k) * (Dh ** -0.5)
        p = _softmax(scores, axis=-1)
        o = torch.einsum("bhqk,bhkd->bhqd", p, v)
        return (lambda x, *d: x.permute(*d))(o, 0, 2, 1, 3).reshape(B, S, D) @ wo

    def _B_ref(x, w_r, w_gate, w_up, w_down):
        B, S, D = x.shape
        C = 1
        r = x @ w_r
        idx = torch.argsort(-r, axis=-1)[:, :C]
        idx_e = (lambda x, n, axis: torch.repeat_interleave(x, n, dim=axis))(idx.reshape(B, C, 1), D, axis=2)
        x_sel = (lambda x, i, axis: torch.take_along_dim(x, i, dim=axis))(x, idx_e, axis=1)
        g = _silu(x_sel @ w_gate)
        u = x_sel @ w_up
        y = (g * u) @ w_down
        r_sel = _sigmoid((lambda x, i, axis: torch.take_along_dim(x, i, dim=axis))(r, idx, axis=1))
        y = y * r_sel.reshape(B, C, 1)
        b_off = (torch.arange(B) * S).reshape(B, 1)
        flat_idx = (idx + b_off).reshape(B * C)
        zero = (x * 0.0).reshape(B * S, D)
        upd = _scatter_add(zero, flat_idx, y.reshape(B * C, D), axis=0)
        return x + upd.reshape(B, S, D)

    x = A_x
    g = _sigmoid((x * gate_w).sum(-1, keepdims=True))
    a = _A_ref(x, A_wqkv, A_wo)
    b = _B_ref(x, B_w_r, B_w_gate, B_w_up, B_w_down)
    return g * a + (1 - g) * b
```

```python
import sys, math, struct

NAME = "gated_mix__mha_block__moe_arch_mod__prompt"

WS_KV = 0
WS_Q = 4 << 20
WS_M = 6 << 20
WS_O = 8 << 20
WS_G = 10 << 20
WS_RK = (10 << 20) + 65536
WS_Y = (10 << 20) + 131072
WS_SIZE = 12 << 20

def f32bits(x):
    return struct.unpack("<I", struct.pack("<f", x))[0]

class Asm:
    def __init__(self):
        self.l = []
    def __call__(self, s):
        for line in s.strip("\n").split("\n"):
            self.l.append("    " + line.strip())
    def label(self, s):
        self.l.append(s + ":")
    def raw(self, s):
        self.l.append(s)
    def c(self, s):
        self.l.append("    ; " + s)
    def text(self):
        return "\n".join(self.l) + "\n"

def vr(b, n):
    return "v[%d:%d]" % (b, b + n - 1)
def sr(b, n):
    return "s[%d:%d]" % (b, b + n - 1)

def srd(a, d, base, nbytes):
    a("s_mov_b32 s%d, s%d" % (d, base))
    a("s_and_b32 s%d, s%d, 0xffff" % (d + 1, base + 1))
    a("s_mov_b32 s%d, 0x%x" % (d + 2, nbytes))
    a("s_mov_b32 s%d, 0x00020000" % (d + 3))

def kernel_head(a, name):
    a.raw(".globl %s" % name)
    a.raw(".p2align 8")
    a.raw(".type %s,@function" % name)
    a.label(name)

def kernel_desc(name, vgpr, sgpr=96, accum=None):
    if accum is None:
        accum = (vgpr + 3) // 4 * 4
    return """.p2align 6
.amdhsa_kernel %s
  .amdhsa_next_free_vgpr %d
  .amdhsa_next_free_sgpr %d
  .amdhsa_accum_offset %d
  .amdhsa_group_segment_fixed_size 0
  .amdhsa_kernarg_size 96
  .amdhsa_user_sgpr_count 2
  .amdhsa_user_sgpr_kernarg_segment_ptr 1
  .amdhsa_system_sgpr_workgroup_id_x 1
.end_amdhsa_kernel
""" % (name, vgpr, sgpr, accum)

MF32 = "v_mfma_f32_32x32x16_bf16"
MF16 = "v_mfma_f32_16x16x32_bf16"

def bf16_round_to_f32(a, dst, src, tmp=None):
    a("v_cvt_pk_bf16_f32 v%d, v%d, v%d" % (dst, src, src))
    a("v_lshlrev_b32 v%d, 16, v%d" % (dst, dst))

K1_RING = 2048
K1_SLOT = 28672
K1_NSLOT = 5
K1_LDS = K1_RING + K1_SLOT * K1_NSLOT

def gen_k1(a):
    kernel_head(a, "k1_kernel")
    a("s_cmp_ge_u32 s2, 256")
    a("s_cbranch_scc1 K1_END")
    a("s_load_dwordx4 s[4:7], s[0:1], 0")
    a("s_load_dwordx2 s[8:9], s[0:1], 32")
    a("s_load_dwordx2 s[10:11], s[0:1], 64")
    a("s_load_dwordx2 s[12:13], s[0:1], 88")
    a("s_and_b32 s16, s2, 7")
    a("s_lshr_b32 s17, s2, 3")
    a("s_and_b32 s14, s16, 3")
    a("s_lshl_b32 s14, s14, 2")
    a("s_and_b32 s18, s17, 3")
    a("s_add_u32 s14, s14, s18")
    a("s_lshr_b32 s15, s16, 2")
    a("s_lshl_b32 s15, s15, 3")
    a("s_lshr_b32 s18, s17, 2")
    a("s_add_u32 s15, s15, s18")
    a("v_lshrrev_b32 v1, 6, v0")
    a("v_and_b32 v0, 63, v0")
    a("v_readfirstlane_b32 s19, v1")
    a("v_lshrrev_b32 v2, 3, v0")
    a("v_lshlrev_b32 v2, 10, v2")
    a("v_and_b32 v3, 7, v0")
    a("v_lshrrev_b32 v4, 4, v0")
    a("v_xor_b32 v3, v3, v4")
    a("v_lshl_add_u32 v2, v3, 4, v2")
    a("v_xor_b32 v3, 64, v2")
    a("v_lshrrev_b32 v4, 2, v0")
    a("v_lshl_add_u32 v4, v1, 4, v4")
    a("v_mul_u32_u24 v4, 3072, v4")
    a("v_and_b32 v5, 3, v0")
    a("v_lshl_add_u32 v4, v5, 4, v4")
    a("s_lshl_b32 s18, s15, 6")
    a("v_add_u32 v4, s18, v4")
    a("v_lshlrev_b32 v5, 4, v0")
    a("s_waitcnt lgkmcnt(0)")
    srd(a, 20, 4, 2048 * 512 * 2)
    srd(a, 24, 6, 512 * 1536 * 2)
    srd(a, 28, 8, 1024)
    srd(a, 32, 10, 1024)
    srd(a, 36, 12, WS_SIZE)
    a("s_lshl_b32 s40, s14, 17")
    a("s_lshl_b32 s18, s19, 15")
    a("s_add_u32 s40, s40, s18")
    a("s_add_u32 s41, s40, 8192")
    a("s_add_u32 s42, s40, 16384")
    a("s_add_u32 s43, s40, 24576")
    a("s_lshl_b32 s44, s19, 12")
    a("s_mul_i32 s45, s19, 3072")
    a("s_mov_b32 m0, 0")
    a("s_nop 0")
    a("buffer_load_dwordx4 v5, s[32:35], 0 offen lds")
    a("s_mov_b32 m0, 1024")
    a("s_nop 0")
    a("buffer_load_dwordx4 v5, s[28:31], 0 offen lds")

    def issue_chunk(c):
        slot = c % K1_NSLOT
        base = K1_RING + slot * K1_SLOT
        a("s_mov_b32 s46, %d" % (c * 64 * 3072))
        a("s_add_u32 m0, s45, %d" % (base + 16384))
        a("s_nop 0")
        for t in range(3):
            a("buffer_load_dwordx4 v4, s[24:27], s46 offen offset:%d lds" % (t * 1024))
        for i in range(4):
            a("s_add_u32 m0, s44, %d" % (base + i * 1024 - c * 128))
            a("s_nop 0")
            a("buffer_load_dwordx4 v%d, s[20:23], s%d offen offset:%d lds" % (2 + (i & 1), 40 + i, c * 128))

    for c in range(K1_NSLOT):
        issue_chunk(c)

    XA = 8
    WA = 20
    RA = 23
    a("v_and_b32 v6, 31, v0")
    a("v_lshrrev_b32 v7, 5, v0")
    a("v_lshrrev_b32 v24, 1, v6")
    a("v_and_b32 v24, 7, v24")
    a("v_lshlrev_b32 v25, 7, v6")
    a("v_add_u32 v25, s44, v25")
    for ks in range(4):
        a("v_or_b32 v26, %d, v7" % (2 * ks))
        a("v_xor_b32 v26, v26, v24")
        a("v_lshl_add_u32 v%d, v26, 4, v25" % (XA + ks))
        a("v_add_u32 v%d, %d, v%d" % (XA + 4 + ks, 2 * K1_SLOT, XA + ks))
        a("v_add_u32 v%d, %d, v%d" % (XA + 8 + ks, 4 * K1_SLOT, XA + ks))
    a("v_lshlrev_b32 v24, 9, v7")
    a("v_lshrrev_b32 v25, 2, v0")
    a("v_and_b32 v25, 3, v25")
    a("v_lshl_add_u32 v24, v25, 6, v24")
    a("v_lshrrev_b32 v25, 4, v0")
    a("v_and_b32 v25, 1, v25")
    a("v_lshl_add_u32 v24, v25, 5, v24")
    a("v_and_b32 v25, 3, v0")
    a("v_lshl_add_u32 v%d, v25, 3, v24" % WA)
    a("v_add_u32 v%d, %d, v%d" % (WA + 1, 2 * K1_SLOT, WA))
    a("v_add_u32 v%d, %d, v%d" % (WA + 2, 4 * K1_SLOT, WA))
    a("v_and_b32 v25, 1, v0")
    a("v_lshlrev_b32 v25, 10, v25")
    a("v_lshl_add_u32 v%d, v7, 4, v25" % RA)

    ACC = 32
    FR = 96
    def frag(b, i):
        return FR + b * 20 + i * 4

    def reads(kk):
        c, ks = kk // 4, kk % 4
        slot = c % K1_NSLOT
        b = kk & 1
        off = K1_RING + (slot & 1) * K1_SLOT
        a("ds_read_b128 %s, v%d offset:%d" % (vr(frag(b, 0), 4), XA + (slot // 2) * 4 + ks, off))
        for t in range(3):
            for half in range(2):
                a("ds_read_b64_tr_b16 %s, v%d offset:%d" % (vr(frag(b, 1 + t) + 2 * half, 2), WA + slot // 2,
                                                           off + 16384 + ks * 3072 + t * 1024 + half * 256))
        a("ds_read_b128 %s, v%d offset:%d" % (vr(frag(b, 4), 4), RA, kk * 32))

    def mfmas(kk):
        b = kk & 1
        x = vr(frag(b, 0), 4)
        cz = lambda r: ("0" if kk == 0 else vr(r, 16))
        a("%s %s, %s, %s, %s" % (MF32, vr(ACC, 16), vr(frag(b, 1), 4), x, cz(ACC)))
        a("%s %s, %s, %s, %s" % (MF32, vr(ACC + 16, 16), vr(frag(b, 2), 4), x, cz(ACC + 16)))
        a("%s %s, %s, %s, %s" % (MF32, vr(ACC + 32, 16), x, vr(frag(b, 3), 4), cz(ACC + 32)))
        a("s_cbranch_scc1 K1_NR%d" % kk)
        a("%s %s, %s, %s, %s" % (MF32, vr(ACC + 48, 16), vr(frag(b, 4), 4), x, cz(ACC + 48)))
        a.label("K1_NR%d" % kk)

    vm_before = {0: 28, 1: 21, 2: 21, 3: 21, 4: 21, 5: 14, 6: 7, 7: 0}
    a("s_waitcnt vmcnt(%d)" % vm_before[0])
    a("s_barrier")
    reads(0)
    for kk in range(32):
        nx = kk + 1
        if nx < 32:
            if nx % 4 == 0:
                c = nx // 4
                a("s_waitcnt vmcnt(%d) lgkmcnt(0)" % vm_before[c])
                a("s_barrier")
                if c + 4 < 8:
                    issue_chunk(c + 4)
                reads(nx)
            else:
                reads(nx)
                a("s_waitcnt lgkmcnt(8)")
        else:
            a("s_waitcnt lgkmcnt(0)")
        a("s_cmp_lg_u32 s15, 0")
        mfmas(kk)

    a("s_nop 15")
    CS = math.log2(math.e) * 0.25
    a("s_mov_b32 s46, 0x%08x" % f32bits(CS))
    for r in range(16):
        a("v_mul_f32 v%d, s46, v%d" % (ACC + r, ACC + r))
    PK = FR
    for t in range(3):
        for r in range(8):
            a("v_cvt_pk_bf16_f32 v%d, v%d, v%d" % (PK + t * 8 + r, ACC + t * 16 + 2 * r, ACC + t * 16 + 2 * r + 1))
    a("s_nop 1")
    a("%s %s, %s, %s, 0" % (MF32, vr(ACC, 16), vr(PK + 8, 4), vr(PK, 4)))
    a("%s %s, %s, %s, 0" % (MF32, vr(ACC + 16, 16), vr(PK + 12, 4), vr(PK + 4, 4)))
    a("s_lshl_b32 s47, s14, 2")
    a("s_add_u32 s47, s47, s19")
    a("s_lshl_b32 s48, s15, 18")
    a("s_lshl_b32 s49, s47, 11")
    a("s_add_u32 s48, s48, s49")
    a("s_add_u32 s49, s48, 131072")
    a("buffer_store_dwordx4 %s, v5, s[36:39], s48 offen" % vr(PK + 8, 4))
    a("buffer_store_dwordx4 %s, v5, s[36:39], s49 offen" % vr(PK + 12, 4))
    a("v_lshrrev_b32 v24, 4, v6")
    a("v_lshlrev_b32 v24, 17, v24")
    a("v_lshl_add_u32 v24, v7, 8, v24")
    a("v_and_b32 v25, 15, v0")
    a("v_lshl_add_u32 v24, v25, 4, v24")
    a("buffer_store_dwordx4 %s, v24, s[36:39], s48 offen offset:1024" % vr(PK + 16, 4))
    a("buffer_store_dwordx4 %s, v24, s[36:39], s48 offen offset:1536" % vr(PK + 20, 4))
    a("s_lshl_b32 s50, s15, 17")
    a("s_lshl_b32 s51, s47, 10")
    a("s_add_u32 s50, s50, s51")
    a("s_add_u32 s50, s50, %d" % WS_Q)
    a("s_add_u32 s51, s50, 65536")
    a("buffer_store_dwordx4 %s, v5, s[36:39], s50 offen" % vr(PK, 4))
    a("buffer_store_dwordx4 %s, v5, s[36:39], s51 offen" % vr(PK + 4, 4))
    a("s_lshl_b32 s52, s15, 16")
    a("s_lshl_b32 s53, s47, 9")
    a("s_add_u32 s52, s52, s53")
    a("s_add_u32 s52, s52, %d" % WS_M)
    a("s_add_u32 s53, s52, 32768")
    a("v_lshlrev_b32 v26, 4, v6")
    a("s_nop 7")
    for h in range(2):
        S = ACC + 16 * h
        m = 120 + 4 * h
        a("v_max3_f32 v%d, v%d, v%d, v%d" % (m, S, S + 1, S + 2))
        for r in range(3, 15, 2):
            a("v_max3_f32 v%d, v%d, v%d, v%d" % (m, m, S + r, S + r + 1))
        a("v_max_f32 v%d, v%d, v%d" % (m, m, S + 15))
        a("v_mov_b32 v%d, v%d" % (m + 1, m))
        a("s_nop 1")
        a("v_permlane32_swap_b32 v%d, v%d" % (m, m + 1))
        a("v_max_f32 v%d, v%d, v%d" % (m, m, m + 1))
        a("v_sub_f32 v%d, 0, v%d" % (m, m))
        a("v_mov_b32 v%d, v%d" % (m + 1, m))
        a("v_mov_b32 v%d, v%d" % (m + 2, m))
        a("v_mov_b32 v%d, v%d" % (m + 3, m))
        a("buffer_store_dwordx4 %s, v26, s[36:39], s%d offen" % (vr(m, 4), 52 + h))
    a("s_cmp_lg_u32 s15, 0")
    a("s_cbranch_scc1 K1_END")
    R = ACC + 48
    bf16_round_to_f32(a, 128, R)
    a("v_mul_f32 v128, 0x%08x, v128" % f32bits(-math.log2(math.e)))
    a("v_exp_f32 v128, v128")
    a("s_nop 0")
    a("v_add_f32 v128, 1.0, v128")
    a("v_rcp_f32 v128, v128")
    a("s_nop 0")
    bf16_round_to_f32(a, 128, 128)
    a("v_sub_f32 v129, 1.0, v128")
    bf16_round_to_f32(a, 129, 129)
    a("s_lshl_b32 s54, s47, 8")
    a("s_add_u32 s54, s54, %d" % WS_G)
    a("v_lshlrev_b32 v27, 3, v6")
    a("buffer_store_dwordx2 v[128:129], v27, s[36:39], s54 offen")
    bf16_round_to_f32(a, 130, R + 1)
    a("v_ashrrev_i32 v131, 31, v130")
    a("v_or_b32 v131, 0x80000000, v131")
    a("v_xor_b32 v130, v130, v131")
    a("v_and_b32 v130, 0xffff0000, v130")
    a("s_lshl_b32 s55, s47, 5")
    a("v_add_u32 v131, s55, v6")
    a("v_sub_u32 v131, 0xffff, v131")
    a("v_or_b32 v130, v130, v131")
    for sh in (1, 2, 4, 8):
        a("s_nop 1")
        a("v_max_u32_dpp v130, v130, v130 row_ror:%d row_mask:0xf bank_mask:0xf" % sh)
    a("s_nop 0")
    a("v_readlane_b32 s56, v130, 0")
    a("v_readlane_b32 s57, v130, 16")
    a("s_nop 3")
    a("s_max_u32 s56, s56, s57")
    a("v_mov_b32 v131, s56")
    a("v_mov_b32 v132, 0")
    a("s_lshl_b32 s55, s47, 2")
    a("s_add_u32 s55, s55, %d" % WS_RK)
    a("buffer_store_dword v131, v132, s[36:39], s55 offen")
    a("s_cmp_lg_u32 s47, 0")
    a("s_cbranch_scc1 K1_END")
    a("v_mov_b32 v133, 0")
    a("v_mov_b32 v134, 0")
    a("v_mov_b32 v135, 0")
    a("s_mov_b32 s55, %d" % WS_Y)
    a("buffer_store_dwordx4 v[132:135], v5, s[36:39], s55 offen")
    a("buffer_store_dwordx4 v[132:135], v5, s[36:39], s55 offen offset:1024")
    a.label("K1_END")
    a("s_endpgm")
    return kernel_desc("k1_kernel", 136)

K2_FLAG = 0
K2_MX = 256
K2_FFW = K2_MX + 8192
K2_FFP = K2_FFW + 8 * 2304
K2_CMB = K2_FFP + 1024
K2_LDS = K2_CMB + 32 * 2304

def gen_k2(a):
    kernel_head(a, "k2_kernel")
    Q, C, O, S, P = 8, 24, 88, 152, 184
    KB = [192, 204]
    T = 216
    a("s_cmp_ge_u32 s2, 256")
    a("s_cbranch_scc1 K2_END")
    a("s_load_dwordx2 s[4:5], s[0:1], 88")
    a("s_load_dwordx2 s[6:7], s[0:1], 0")
    a("s_load_dwordx4 s[8:11], s[0:1], 40")
    a("s_load_dwordx2 s[12:13], s[0:1], 56")
    a("v_lshrrev_b32 v1, 6, v0")
    a("v_and_b32 v0, 63, v0")
    a("v_readfirstlane_b32 s19, v1")
    a("s_and_b32 s14, s2, 7")
    a("s_lshl_b32 s14, s14, 2")
    a("s_lshr_b32 s16, s2, 3")
    a("s_and_b32 s16, s16, 3")
    a("s_add_u32 s14, s14, s16")
    a("s_lshr_b32 s15, s2, 5")
    a("v_lshlrev_b32 v2, 4, v0")
    a("v_and_b32 v3, 15, v0")
    a("v_lshlrev_b32 v3, 4, v3")
    a("v_lshrrev_b32 v4, 5, v0")
    a("v_lshl_add_u32 v3, v4, 8, v3")
    a("v_and_b32 v4, 31, v0")
    a("v_lshlrev_b32 v4, 4, v4")
    a("s_lshr_b32 s16, s19, 2")
    a("s_and_b32 s17, s19, 3")
    a("s_lshl_b32 s18, s15, 3")
    a("s_lshl_b32 s20, s16, 2")
    a("s_add_u32 s18, s18, s20")
    a("s_lshl_b32 s20, s14, 16")
    a("s_lshl_b32 s21, s18, 10")
    a("s_add_u32 s20, s20, s21")
    a("s_add_u32 s20, s20, %d" % WS_Q)
    a("s_lshl_b32 s21, s14, 15")
    a("s_lshl_b32 s22, s18, 9")
    a("s_add_u32 s21, s21, s22")
    a("s_add_u32 s21, s21, %d" % WS_M)
    a("s_lshl_b32 s22, s14, 17")
    a("s_lshl_b32 s23, s17, 15")
    a("s_add_u32 s22, s22, s23")
    a("s_mov_b32 s30, 0x0000ffff")
    a("s_mov_b32 s31, 0x0000ffff")
    a("s_mov_b32 s29, 0")
    a("s_mov_b32 s32, 0x15")
    a("s_mov_b32 s23, 0x3f803f80")
    for b in range(2):
        for r in range(4, 12):
            a("v_mov_b32 v%d, s23" % (KB[b] + r))
    a("s_waitcnt lgkmcnt(0)")
    srd(a, 24, 4, WS_SIZE)
    a("buffer_load_dwordx4 %s, v2, s[24:27], s20 offen" % vr(Q, 4))
    for i in range(4):
        a("buffer_load_dwordx4 %s, v4, s[24:27], s21 offen" % vr(C + 4 * i, 4))
    a.label("K2_PASS")
    a("buffer_load_dwordx4 %s, v2, s[24:27], s22 offen" % vr(KB[0], 4))
    a("s_mov_b64 exec, s[30:31]")
    a("buffer_load_dwordx4 %s, v3, s[24:27], s22 offen offset:1024" % vr(KB[0] + 4, 4))
    a("buffer_load_dwordx4 %s, v3, s[24:27], s22 offen offset:1536" % vr(KB[0] + 8, 4))
    a("s_mov_b64 exec, -1")
    a("s_cmp_lg_u32 s29, 0")
    a("s_cbranch_scc1 K2_P1")
    for j in range(1, 4):
        a("buffer_load_dwordx4 %s, v2, s[24:27], s20 offen offset:%d" % (vr(Q + 4 * j, 4), j * 1024))
        for i in range(4):
            a("buffer_load_dwordx4 %s, v4, s[24:27], s21 offen offset:%d" % (vr(C + 16 * j + 4 * i, 4), j * 512))
    a("s_add_u32 s4, s4, %d" % WS_RK)
    a("s_addc_u32 s5, s5, 0")
    for i in range(4):
        a("s_load_dwordx16 %s, s[4:5], %d" % (sr(36 + 16 * i, 16), 64 * i))
    a("v_mov_b32 v5, 0")
    a("ds_write_b32 v5, v5 offset:%d" % K2_FLAG)
    a.label("K2_P1")
    a("buffer_load_dwordx4 %s, v2, s[24:27], s22 offen offset:2048" % vr(KB[1], 4))
    a("v_lshlrev_b32 v5, 7, v0")
    for i in range(4):
        a("s_add_u32 s23, s22, %d" % (i * 8192))
        a("buffer_load_dword v%d, v5, s[24:27], s23 offen" % (T + 36 + i))
    for r in range(64):
        a("v_mov_b32 v%d, 0" % (O + r))
    for r in range(4, 8):
        a("v_mov_b32 v%d, 0" % (P + r))
    a("v_mov_b32 v%d, 0" % (S + 16 + 14))
    a("v_mov_b32 v%d, 0" % (S + 16 + 15))
    a("s_mov_b32 s28, s22")
    a("s_mov_b32 s23, 0")
    a("s_waitcnt vmcnt(5)")
    a("%s %s, %s, %s, %s" % (MF32, vr(S, 16), vr(KB[0], 4), vr(Q, 4), vr(C, 16)))
    a("s_nop 15")
    a("v_exp_f32 v%d, v%d" % (S, S))

    a.raw(".p2align 6")
    a.label("K2_LOOP")
    for tt in range(2):
        for j in range(4):
            cur = S + 16 * (j & 1)
            prv = S + 16 * ((j + 1) & 1)
            nxt = prv
            E = lambda r: a("v_exp_f32 v%d, v%d" % (cur + r, cur + r))
            CV = lambda r: a("v_cvt_pk_bf16_f32 v%d, v%d, v%d" % (P + r // 2, cur + r, cur + r + 1))
            pj = (j + 3) % 4
            pb = KB[tt] if j > 0 else KB[tt ^ 1]
            nj = (j + 1) % 4
            nb = KB[tt] if j < 3 else KB[tt ^ 1]
            a("v_cvt_pk_bf16_f32 v%d, v%d, v%d" % (P + 7, prv + 14, prv + 15))
            if j == 3:
                a("s_waitcnt vmcnt(1)")
                if tt == 0:
                    a("s_bitcmp1_b32 s32, s23")
                    a("s_cbranch_scc1 K2_HOOK")
                    a.label("K2_HRET")
            a("%s %s, %s, %s, %s" % (MF32, vr(nxt, 16), vr(nb, 4), vr(Q + 4 * nj, 4), vr(C + 16 * nj, 16)))
            if j == 2:
                a("buffer_load_dwordx4 %s, v2, s[24:27], s28 offen offset:%d" % (vr(KB[tt], 4), tt * 2048))
            E(1); E(2); CV(0); E(3); E(4); CV(2); E(5)
            a("%s %s, %s, %s, %s" % (MF32, vr(O + 16 * pj, 16), vr(pb + 8, 4), vr(P + 4, 4), vr(O + 16 * pj, 16)))
            if j == 0:
                a("s_mov_b64 exec, s[30:31]")
                off = 3072 if tt == 0 else 1024
                a("buffer_load_dwordx4 %s, v3, s[24:27], s28 offen offset:%d" % (vr(KB[tt ^ 1] + 4, 4), off))
                a("buffer_load_dwordx4 %s, v3, s[24:27], s28 offen offset:%d" % (vr(KB[tt ^ 1] + 8, 4), off + 512))
                a("s_mov_b64 exec, -1")
                if tt == 0:
                    a("s_add_u32 s28, s28, 4096")
            E(6); CV(4); E(7); E(8); CV(6); E(9); E(10)
            a("%s %s, %s, %s, %s" % (MF32, vr(O + 16 * j, 16), vr(KB[tt] + 4, 4), vr(P, 4), vr(O + 16 * j, 16)))
            CV(8); E(11); E(12); CV(10); E(13); E(14); CV(12); E(15)
            a("v_exp_f32 v%d, v%d" % (nxt, nxt))
    a("s_add_u32 s23, s23, 1")
    a("s_cmp_lt_u32 s23, 8")
    a("s_cbranch_scc1 K2_LOOP")
    a("v_cvt_pk_bf16_f32 v%d, v%d, v%d" % (P + 7, S + 16 + 14, S + 16 + 15))
    a("s_nop 1")
    a("%s %s, %s, %s, %s" % (MF32, vr(O + 48, 16), vr(KB[1] + 8, 4), vr(P + 4, 4), vr(O + 48, 16)))
    a("s_lshl_b32 s23, s16, 4")
    a("s_add_u32 s23, s23, s17")
    a("s_mul_i32 s23, s23, 2304")
    a("v_add_u32 v5, s23, v2")
    a("v_lshlrev_b32 v6, 2, v0")
    a("v_add_u32 v6, s23, v6")
    a("s_mov_b32 s23, 0x4f800000")
    a("s_nop 4")
    for j in range(4):
        a("ds_write_b128 v5, %s offset:%d" % (vr(O + 16 * j, 4), K2_CMB + j * 9216))
        a("ds_write_b128 v5, %s offset:%d" % (vr(O + 16 * j + 4, 4), K2_CMB + j * 9216 + 1024))
        a("ds_write_b32 v6, v%d offset:%d" % (O + 16 * j + 8, K2_CMB + j * 9216 + 2048))
    a("v_max3_f32 v7, v%d, v%d, v%d" % (O + 8, O + 24, O + 40))
    a("v_cmp_u_f32 s[56:57], v%d, v%d" % (O + 8, O + 24))
    a("v_cmp_u_f32 s[58:59], v%d, v%d" % (O + 40, O + 56))
    a("v_max_f32 v7, v7, v%d" % (O + 56))
    a("v_cmp_lt_f32 vcc, s23, v7")
    a("s_nop 3")
    a("s_or_b64 s[56:57], s[56:57], s[58:59]")
    a("s_or_b64 s[56:57], s[56:57], vcc")
    a("s_cmp_eq_u64 s[56:57], 0")
    a("s_cbranch_scc1 K2_NOFLAG")
    a("v_mov_b32 v7, 1")
    a("v_mov_b32 v%d, 0" % T)
    a("ds_write_b32 v%d, v7 offset:%d" % (T, K2_FLAG))
    a.label("K2_NOFLAG")
    a("s_waitcnt lgkmcnt(0)")
    a("s_barrier")
    a("s_lshl_b32 s23, s16, 2")
    a("s_add_u32 s23, s23, s17")
    a("s_mul_i32 s23, s23, 9216")
    a("v_add_u32 v5, s23, v2")
    a("v_lshlrev_b32 v6, 2, v0")
    a("v_add_u32 v6, s23, v6")
    a("v_mov_b32 v7, 0")
    a("ds_read_b32 v7, v7 offset:%d" % K2_FLAG)
    for j in range(4):
        a("ds_read_b128 %s, v5 offset:%d" % (vr(O + 16 * j, 4), K2_CMB + j * 2304))
        a("ds_read_b128 %s, v5 offset:%d" % (vr(O + 16 * j + 4, 4), K2_CMB + j * 2304 + 1024))
        a("ds_read_b32 v%d, v6 offset:%d" % (O + 16 * j + 8, K2_CMB + j * 2304 + 2048))
    a("s_waitcnt lgkmcnt(0)")
    a("v_readfirstlane_b32 s23, v7")
    a("s_nop 3")
    a("s_cmp_gt_u32 s23, s29")
    a("s_cbranch_scc1 K2_EXACT")
    for r in range(9):
        a("v_add_f32 v%d, v%d, v%d" % (O + r, O + r, O + 16 + r))
        a("v_add_f32 v%d, v%d, v%d" % (O + 32 + r, O + 32 + r, O + 48 + r))
    for r in range(9):
        a("v_add_f32 v%d, v%d, v%d" % (O + r, O + r, O + 32 + r))
    a("v_rcp_f32 v%d, v%d" % (O + 8, O + 8))
    a("s_nop 0")
    for r in range(8):
        a("v_mul_f32 v%d, v%d, v%d" % (O + r, O + r, O + 8))
    for r in range(4):
        a("v_cvt_pk_bf16_f32 v%d, v%d, v%d" % (O + 16 + r, O + 2 * r, O + 2 * r + 1))
    a("s_add_u32 s23, s18, s17")
    a("s_lshl_b32 s23, s23, 15")
    a("s_lshl_b32 s28, s14, 10")
    a("s_add_u32 s23, s23, s28")
    a("s_add_u32 s23, s23, %d" % WS_O)
    a("buffer_store_dwordx4 %s, v2, s[24:27], s23 offen" % vr(O + 16, 4))
    a.label("K2_END")
    a("s_endpgm")

    a.label("K2_HOOK")
    a("s_cmp_eq_u32 s23, 4")
    a("s_cbranch_scc1 K2_FFN2")
    a("s_cmp_ge_u32 s2, 224")
    a("s_cbranch_scc1 K2_HRET")
    a("s_cmp_eq_u32 s23, 2")
    a("s_cbranch_scc1 K2_FFN1")
    a("s_waitcnt lgkmcnt(0)")
    for i in range(36, 99):
        a("s_max_u32 s99, s99, s%d" % i)
    srd(a, 36, 6, 2048 * 512 * 2)
    srd(a, 40, 8, 512 * 1792 * 2)
    srd(a, 44, 10, 512 * 1792 * 2)
    srd(a, 48, 12, 1792 * 512 * 2)
    a("s_and_b32 s52, s99, 0xffff")
    a("s_sub_u32 s52, 0xffff, s52")
    a("s_and_b32 s52, s52, 2047")
    a("s_lshl_b32 s52, s52, 10")
    a("s_lshl_b32 s53, s19, 7")
    a("s_add_u32 s52, s52, s53")
    a("v_lshl_add_u32 v5, v1, 6, v0")
    a("v_mul_u32_u24 v5, 3584, v5")
    a("s_lshl_b32 s53, s2, 4")
    a("s_mul_i32 s54, s19, 2304")
    a("s_add_u32 m0, s54, %d" % K2_FFW)
    a("v_lshrrev_b32 v6, 4, v0")
    a("buffer_load_dwordx4 v5, s[40:43], s53 offen lds")
    a("s_add_u32 m0, s54, %d" % (K2_FFW + 1152))
    a("v_lshlrev_b32 v6, 4, v6")
    a("buffer_load_dwordx4 v5, s[44:47], s53 offen lds")
    a("buffer_load_dwordx4 %s, v6, s[36:39], s52 offen" % vr(T, 4))
    a("buffer_load_dwordx4 %s, v6, s[36:39], s52 offen offset:64" % vr(T + 4, 4))
    a("s_cmp_ge_u32 s19, 4")
    a("s_cbranch_scc1 K2_HRET")
    a("s_lshl_b32 s52, s2, 13")
    a("s_lshl_b32 s53, s17, 8")
    a("s_add_u32 s52, s52, s53")
    a("v_lshlrev_b32 v6, 2, v0")
    a("s_add_u32 s53, s52, 4096")
    for f in range(8):
        a("buffer_load_dword v%d, v6, s[48:51], s%d offen offset:%d" % (T + 20 + f, 52 + f // 4, (f % 4) * 1024))
    a("s_branch K2_HRET")

    a.label("K2_FFN1")
    a("v_lshrrev_b32 v5, 4, v0")
    a("v_lshlrev_b32 v5, 7, v5")
    a("v_bfe_u32 v6, v0, 2, 2")
    a("v_lshl_add_u32 v5, v6, 4, v5")
    a("v_and_b32 v6, 1, v0")
    a("v_lshl_add_u32 v5, v6, 3, v5")
    a("v_bfe_u32 v6, v0, 1, 1")
    a("v_mul_u32_u24 v6, 1152, v6")
    a("s_mul_i32 s52, s19, 2304")
    a("v_add3_u32 v5, v5, v6, s52")
    for s in range(2):
        for half in range(2):
            a("ds_read_b64_tr_b16 %s, v5 offset:%d" % (vr(T + 8 + 4 * s + 2 * half, 2), K2_FFW + s * 512 + half * 64))
    a("v_and_b32 v5, 15, v0")
    a("v_lshlrev_b32 v5, 5, v5")
    a("s_lshl_b32 s52, s19, 2")
    a("v_add_u32 v5, s52, v5")
    a("s_waitcnt lgkmcnt(0)")
    a("%s %s, %s, %s, 0" % (MF16, vr(T + 16, 4), vr(T, 4), vr(T + 8, 4)))
    a("%s %s, %s, %s, %s" % (MF16, vr(T + 16, 4), vr(T + 4, 4), vr(T + 12, 4), vr(T + 16, 4)))
    a("s_nop 8")
    a("ds_write_b32 v5, v%d offset:%d" % (T + 16, K2_FFP))
    a("s_branch K2_HRET")

    a.label("K2_FFN2")
    a("s_waitcnt lgkmcnt(0)")
    a("s_barrier")
    a("s_cmp_ge_u32 s2, 224")
    a("s_cbranch_scc1 K2_HRET")
    a("s_cmp_ge_u32 s19, 4")
    a("s_cbranch_scc1 K2_HRET")
    a("v_and_b32 v5, 15, v0")
    a("v_lshlrev_b32 v5, 5, v5")
    a("ds_read_b128 %s, v5 offset:%d" % (vr(T, 4), K2_FFP))
    a("ds_read_b128 %s, v5 offset:%d" % (vr(T + 4, 4), K2_FFP + 16))
    a("s_waitcnt lgkmcnt(0)")
    a("v_pk_add_f32 %s, %s, %s" % (vr(T, 2), vr(T, 2), vr(T + 2, 2)))
    a("v_pk_add_f32 %s, %s, %s" % (vr(T + 4, 2), vr(T + 4, 2), vr(T + 6, 2)))
    a("v_pk_add_f32 %s, %s, %s" % (vr(T, 2), vr(T, 2), vr(T + 4, 2)))
    a("v_add_f32 v%d, v%d, v%d" % (T, T, T + 1))
    bf16_round_to_f32(a, T, T)
    a("v_mul_f32 v%d, 0x%08x, v%d" % (T + 1, f32bits(-math.log2(math.e)), T))
    a("v_exp_f32 v%d, v%d" % (T + 1, T + 1))
    a("v_mov_b32_dpp v%d, v%d row_ror:8 row_mask:0xf bank_mask:0xf" % (T + 2, T))
    a("v_add_f32 v%d, 1.0, v%d" % (T + 1, T + 1))
    a("v_rcp_f32 v%d, v%d" % (T + 1, T + 1))
    a("v_mov_b32 v%d, 0" % (T + 4))
    a("v_mul_f32 v%d, v%d, v%d" % (T + 1, T + 1, T))
    bf16_round_to_f32(a, T + 1, T + 1)
    a("v_mul_f32 v%d, v%d, v%d" % (T + 1, T + 1, T + 2))
    a("v_cvt_pk_bf16_f32 v%d, v%d, v%d" % (T + 1, T + 1, T + 4))
    a("v_mov_b32 v%d, 0" % (T + 5))
    for i in range(8):
        a("v_readlane_b32 s%d, v%d, %d" % (60 + i, T + 1, i))
    a("v_lshlrev_b32 v6, 2, v0")
    a("s_lshl_b32 s52, s17, 9")
    a("s_add_u32 s52, s52, %d" % WS_Y)
    for i in range(8):
        a("s_lshl_b32 s%d, s%d, 16" % (68 + i, 60 + i))
    for i in range(8):
        a("v_dot2_f32_bf16 v%d, v%d, s%d, v%d" % (T + 4, T + 20 + i, 60 + i, T + 4))
        a("v_dot2_f32_bf16 v%d, v%d, s%d, v%d" % (T + 5, T + 20 + i, 68 + i, T + 5))
    a("s_nop 3")
    a("buffer_atomic_add_f32 v%d, v6, s[24:27], s52 offen" % (T + 4))
    a("buffer_atomic_add_f32 v%d, v6, s[24:27], s52 offen offset:256" % (T + 5))
    a("s_branch K2_HRET")

    a.label("K2_EXACT")
    a("s_mov_b32 s29, 1")
    a("s_mov_b32 s32, 0")
    a("s_mov_b32 s23, 0xff800000")
    for j in range(4):
        a("v_mov_b32 v%d, s23" % (T + j))
    a("s_mov_b32 s28, s22")
    a("s_mov_b32 s23, 0")
    a.label("K2_EXLOOP")
    a("buffer_load_dwordx4 %s, v2, s[24:27], s28 offen" % vr(KB[0], 4))
    a("s_waitcnt vmcnt(0)")
    for j in range(4):
        a("%s %s, %s, %s, 0" % (MF32, vr(S, 16), vr(KB[0], 4), vr(Q + 4 * j, 4)))
        a("s_nop 15")
        for r in range(0, 16, 2):
            a("v_max3_f32 v%d, v%d, v%d, v%d" % (T + j, T + j, S + r, S + r + 1))
    a("s_add_u32 s28, s28, 2048")
    a("s_add_u32 s23, s23, 1")
    a("s_cmp_lt_u32 s23, 16")
    a("s_cbranch_scc1 K2_EXLOOP")
    a("v_lshlrev_b32 v6, 2, v0")
    a("s_lshl_b32 s23, s19, 10")
    a("v_add_u32 v5, s23, v6")
    for j in range(4):
        a("ds_write_b32 v5, v%d offset:%d" % (T + j, K2_MX + j * 256))
    a("s_waitcnt lgkmcnt(0)")
    a("s_barrier")
    a("v_and_b32 v5, 31, v0")
    a("v_lshlrev_b32 v5, 2, v5")
    a("s_lshl_b32 s23, s16, 12")
    a("v_add_u32 v5, s23, v5")
    for j in range(4):
        for kq in range(4):
            for hh in range(2):
                a("ds_read_b32 v%d, v5 offset:%d" % (S + kq * 2 + hh, K2_MX + kq * 1024 + j * 256 + hh * 128))
        a("s_waitcnt lgkmcnt(0)")
        a("v_max3_f32 v%d, v%d, v%d, v%d" % (S, S, S + 1, S + 2))
        a("v_max3_f32 v%d, v%d, v%d, v%d" % (S, S, S + 3, S + 4))
        a("v_max3_f32 v%d, v%d, v%d, v%d" % (S, S, S + 5, S + 6))
        a("v_max_f32 v%d, v%d, v%d" % (S, S, S + 7))
        for r in range(16):
            a("v_sub_f32 v%d, 0, v%d" % (C + 16 * j + r, S))
    a("s_mov_b32 s23, 0x3f803f80")
    for r in range(4, 12):
        a("v_mov_b32 v%d, s23" % (KB[1] + r))
    a("s_branch K2_PASS")
    return kernel_desc("k2_kernel", 256, sgpr=100)

K3_LDS = 65536

def gen_k3(a):
    kernel_head(a, "k3_kernel")
    OF = 32
    ACC = 16
    WF = 160
    XR = 176
    YR = 184
    a("s_cmp_ge_u32 s2, 256")
    a("s_cbranch_scc1 K3_END")
    a("s_load_dwordx2 s[4:5], s[0:1], 88")
    a("s_load_dwordx2 s[6:7], s[0:1], 0")
    a("s_load_dwordx2 s[8:9], s[0:1], 16")
    a("s_load_dwordx2 s[10:11], s[0:1], 72")
    a("v_lshrrev_b32 v1, 6, v0")
    a("v_and_b32 v0, 63, v0")
    a("v_readfirstlane_b32 s19, v1")
    a("s_and_b32 s14, s2, 7")
    a("s_lshl_b32 s14, s14, 2")
    a("s_lshr_b32 s16, s2, 3")
    a("s_and_b32 s17, s16, 3")
    a("s_add_u32 s14, s14, s17")
    a("s_lshr_b32 s15, s16, 2")
    a("s_and_b32 s16, s19, 1")
    a("s_lshr_b32 s17, s19, 1")
    a("s_lshl_b32 s18, s14, 1")
    a("s_add_u32 s18, s18, s16")
    a("v_lshlrev_b32 v2, 4, v0")
    a("v_lshrrev_b32 v3, 2, v0")
    a("v_lshlrev_b32 v3, 10, v3")
    a("v_and_b32 v4, 3, v0")
    a("v_lshl_add_u32 v3, v4, 4, v3")
    a("s_lshl_b32 s20, s15, 7")
    a("s_lshl_b32 s21, s17, 6")
    a("s_add_u32 s20, s20, s21")
    a("s_lshl_b32 s21, s16, 14")
    a("s_add_u32 s21, s21, s20")
    a("s_lshl_b32 s22, s17, 15")
    a("s_lshl_b32 s23, s16, 10")
    a("s_add_u32 s22, s22, s23")
    a("s_lshl_b32 s23, s18, 15")
    a("s_add_u32 s23, s23, %d" % WS_O)
    a("s_waitcnt lgkmcnt(0)")
    srd(a, 24, 4, WS_SIZE)
    srd(a, 32, 6, 2048 * 512 * 2)
    srd(a, 36, 8, 512 * 512 * 2)
    srd(a, 40, 10, 2048 * 512 * 2)
    a("s_add_u32 s4, s4, %d" % WS_RK)
    a("s_addc_u32 s5, s5, 0")
    a("s_load_dwordx16 s[48:63], s[4:5], 0")
    a("s_load_dwordx16 s[64:79], s[4:5], 64")
    for g in range(4):
        for i in range(4):
            hp = g * 4 + i
            a("s_add_u32 m0, s22, %d" % (hp * 2048))
            a("s_add_u32 s28, s21, %d" % (hp * 32768))
            a("buffer_load_dwordx4 v3, s[36:39], s28 offen lds")
        for i in range(8):
            h = g * 8 + i
            if h % 4 == 0:
                a("s_add_u32 s28, s23, %d" % (h * 1024))
            a("buffer_load_dwordx4 %s, v2, s[24:27], s28 offen offset:%d" % (vr(OF + 4 * h, 4), (h % 4) * 1024))
    a("v_and_b32 v4, 31, v0")
    a("v_lshrrev_b32 v5, 5, v0")
    a("v_lshlrev_b32 v6, 10, v4")
    a("v_lshl_add_u32 v6, v5, 5, v6")
    a("s_lshl_b32 s29, s18, 15")
    a("s_add_u32 s29, s29, s20")
    a("buffer_load_dwordx4 %s, v6, s[32:35], s29 offen" % vr(XR, 4))
    a("buffer_load_dwordx4 %s, v6, s[32:35], s29 offen offset:16" % vr(XR + 4, 4))
    a("v_lshlrev_b32 v7, 3, v4")
    a("s_lshl_b32 s30, s18, 8")
    a("s_add_u32 s30, s30, %d" % WS_G)
    a("buffer_load_dwordx2 v[8:9], v7, s[24:27], s30 offen")
    a("v_lshlrev_b32 v7, 5, v5")
    a("s_lshr_b32 s30, s20, 8")
    a("s_lshl_b32 s30, s30, 9")
    a("s_and_b32 s31, s20, 255")
    a("s_add_u32 s30, s30, s31")
    a("s_add_u32 s30, s30, %d" % WS_Y)
    for i in range(4):
        a("buffer_load_dwordx4 %s, v7, s[24:27], s30 offen offset:%d" % (vr(YR + 4 * i, 4), (i // 2) * 256 + (i % 2) * 16))
    NTAIL = 7
    a("v_lshrrev_b32 v10, 2, v0")
    a("v_and_b32 v10, 3, v10")
    a("v_lshl_add_u32 v10, v5, 2, v10")
    a("v_lshlrev_b32 v10, 6, v10")
    a("v_and_b32 v11, 1, v0")
    a("v_lshl_add_u32 v10, v11, 5, v10")
    a("v_bfe_u32 v11, v0, 1, 1")
    a("v_bfe_u32 v12, v0, 4, 1")
    a("v_lshl_add_u32 v11, v12, 1, v11")
    a("v_lshl_add_u32 v10, v11, 3, v10")
    a("s_lshl_b32 s30, s17, 15")
    a("v_add_u32 v10, s30, v10")
    a("s_waitcnt lgkmcnt(0)")
    for i in range(49, 80):
        a("s_max_u32 s48, s48, s%d" % i)
    a("s_mov_b32 s80, s48")
    a("s_load_dwordx16 s[48:63], s[4:5], 128")
    a("s_load_dwordx16 s[64:79], s[4:5], 192")
    a("s_waitcnt lgkmcnt(0)")
    for i in range(48, 80):
        a("s_max_u32 s80, s80, s%d" % i)
    a("s_and_b32 s81, s80, 0xffff")
    a("s_sub_u32 s81, 0xffff, s81")

    def wreads(h):
        b = WF + 4 * (h % 4)
        a("ds_read_b64_tr_b16 %s, v10 offset:%d" % (vr(b, 2), h * 1024))
        a("ds_read_b64_tr_b16 %s, v10 offset:%d" % (vr(b + 2, 2), h * 1024 + 512))

    for g in range(4):
        rest = (3 - g) * 12 + NTAIL
        a("s_waitcnt vmcnt(%d)" % (rest + 8))
        a("s_barrier")
        for i in range(3):
            wreads(g * 8 + i)
        for i in range(8):
            h = g * 8 + i
            if i + 3 < 8:
                wreads(h + 3)
                a("s_waitcnt vmcnt(%d) lgkmcnt(6)" % (rest + 7 - i))
            else:
                a("s_waitcnt vmcnt(%d) lgkmcnt(%d)" % (rest + 7 - i, 2 * (7 - i)))
            a("%s %s, %s, %s, %s" % (MF32, vr(ACC, 16), vr(WF + 4 * (h % 4), 4), vr(OF + 4 * h, 4), "0" if h == 0 else vr(ACC, 16)))
    a("s_waitcnt vmcnt(0)")
    B = 32
    for i in range(8):
        a("v_lshlrev_b32 v%d, 16, v%d" % (B + 2 * i, XR + i))
        a("v_and_b32 v%d, 0xffff0000, v%d" % (B + 2 * i + 1, XR + i))
    a("s_lshr_b32 s30, s81, 5")
    a("s_cmp_lg_u32 s30, s18")
    a("s_cbranch_scc1 K3_NOSEL")
    a("s_and_b32 s30, s80, 0xffff0000")
    a("s_ashr_i32 s31, s30, 31")
    a("s_not_b32 s31, s31")
    a("s_or_b32 s31, s31, 0x80000000")
    a("s_xor_b32 s30, s30, s31")
    a("s_and_b32 s30, s30, 0xffff0000")
    a("v_mov_b32 v11, s30")
    a("v_mul_f32 v11, 0x%08x, v11" % f32bits(-math.log2(math.e)))
    a("v_exp_f32 v11, v11")
    a("s_nop 0")
    a("v_add_f32 v11, 1.0, v11")
    a("v_rcp_f32 v11, v11")
    a("s_nop 0")
    bf16_round_to_f32(a, 11, 11)
    a("s_and_b32 s30, s81, 31")
    a("v_cmp_eq_u32 vcc, s30, v4")
    a("s_and_saveexec_b64 s[44:45], vcc")
    for i in range(16):
        y = YR + (i % 2) * 8 + i // 2
        bf16_round_to_f32(a, y, y)
        a("v_mul_f32 v%d, v%d, v11" % (y, y))
        bf16_round_to_f32(a, y, y)
        a("v_add_f32 v%d, v%d, v%d" % (B + i, B + i, y))
        bf16_round_to_f32(a, B + i, B + i)
    a("s_mov_b64 exec, s[44:45]")
    a.label("K3_NOSEL")
    for i in range(16):
        a("v_mul_f32 v%d, v%d, v9" % (B + i, B + i))
    for i in range(16):
        a("v_fma_f32 v%d, v%d, v8, v%d" % (B + i, ACC + i, B + i))
    for i in range(8):
        a("v_cvt_pk_bf16_f32 v%d, v%d, v%d" % (XR + i, B + 2 * i, B + 2 * i + 1))
    a("buffer_store_dwordx4 %s, v6, s[40:43], s29 offen" % vr(XR, 4))
    a("buffer_store_dwordx4 %s, v6, s[40:43], s29 offen offset:16" % vr(XR + 4, 4))
    a.label("K3_END")
    a("s_endpgm")
    return kernel_desc("k3_kernel", 200)

def main():
    out = sys.argv[1] if len(sys.argv) > 1 else "cdna_kernels/%s.s" % NAME
    a = Asm()
    hdr = open("cdna_kernels/%s.s.ref" % NAME).read().split("\n")
    keep = [l for l in hdr if l.startswith(";") and "@launch" not in l and "Override launch" not in l and "grid=ceil" not in l]
    for l in keep:
        a.raw(l)
    a.raw("; @launch kernel=k1_kernel grid=(256,1,1) block=(256,1,1) lds=%d" % K1_LDS)
    a.raw("; @launch kernel=k2_kernel grid=(256,1,1) block=(512,1,1) lds=%d" % K2_LDS)
    a.raw("; @launch kernel=k3_kernel grid=(256,1,1) block=(256,1,1) lds=%d" % K3_LDS)
    a.raw('.amdgcn_target "amdgcn-amd-amdhsa--gfx950"')
    a.raw(".text")
    d1 = gen_k1(a)
    d2 = gen_k2(a)
    d3 = gen_k3(a)
    a.raw('.section .rodata,"a"')
    a.raw(d1); a.raw(d2); a.raw(d3)
    open(out, "w").write(a.text())

if __name__ == "__main__":
    main()
```

```python
import sys, math, struct

NAME = "gated_mix__mha_block__moe_arch_mod__prompt"

WS_KV = 0
WS_Q = 4 << 20
WS_M = 6 << 20
WS_O = 8 << 20
WS_G = 10 << 20
WS_RK = (10 << 20) + 65536
WS_Y = (10 << 20) + 131072
WS_ST = 11 << 20
WS_SIZE = 12 << 20
import os
STAMP = int(os.environ.get("STAMP", "0"))

def f32bits(x):
    return struct.unpack("<I", struct.pack("<f", x))[0]

class Asm:
    def __init__(self):
        self.l = []
    def __call__(self, s):
        for line in s.strip("\n").split("\n"):
            self.l.append("    " + line.strip())
    def label(self, s):
        self.l.append(s + ":")
    def raw(self, s):
        self.l.append(s)
    def c(self, s):
        self.l.append("    ; " + s)
    def text(self):
        return "\n".join(self.l) + "\n"

def vr(b, n):
    return "v[%d:%d]" % (b, b + n - 1)
def sr(b, n):
    return "s[%d:%d]" % (b, b + n - 1)

def srd(a, d, base, nbytes):
    a("s_mov_b32 s%d, s%d" % (d, base))
    a("s_and_b32 s%d, s%d, 0xffff" % (d + 1, base + 1))
    a("s_mov_b32 s%d, 0x%x" % (d + 2, nbytes))
    a("s_mov_b32 s%d, 0x00020000" % (d + 3))

def kernel_head(a, name):
    a.raw(".globl %s" % name)
    a.raw(".p2align 8")
    a.raw(".type %s,@function" % name)
    a.label(name)

def kernel_desc(name, vgpr, sgpr=96, accum=None):
    if accum is None:
        accum = (vgpr + 3) // 4 * 4
    return """.p2align 6
.amdhsa_kernel %s
  .amdhsa_next_free_vgpr %d
  .amdhsa_next_free_sgpr %d
  .amdhsa_accum_offset %d
  .amdhsa_group_segment_fixed_size 0
  .amdhsa_kernarg_size 96
  .amdhsa_user_sgpr_count 2
  .amdhsa_user_sgpr_kernarg_segment_ptr 1
  .amdhsa_system_sgpr_workgroup_id_x 1
.end_amdhsa_kernel
""" % (name, vgpr, sgpr, accum)

def stamp(a, idx, srdreg, vtmp, kernel_no, wavereg, nw):
    if not STAMP:
        return
    a("s_memtime s[100:101]")
    a("s_waitcnt lgkmcnt(0)")
    a("v_mov_b32 v%d, s100" % vtmp)
    a("s_mul_i32 s100, s2, %d" % nw)
    a("s_add_u32 s100, s100, s%d" % wavereg)
    a("s_lshl_b32 s100, s100, 6")
    a("s_add_u32 s100, s100, %d" % (WS_ST + kernel_no * 262144 + idx * 4))
    a("v_mov_b32 v%d, 0" % (vtmp + 1))
    a("buffer_store_dword v%d, v%d, %s, s100 offen" % (vtmp, vtmp + 1, sr(srdreg, 4)))

MF32 = "v_mfma_f32_32x32x16_bf16"
MF16 = "v_mfma_f32_16x16x32_bf16"

def bf16_round_to_f32(a, dst, src, tmp=None):
    a("v_cvt_pk_bf16_f32 v%d, v%d, v%d" % (dst, src, src))
    a("v_lshlrev_b32 v%d, 16, v%d" % (dst, dst))

K1_RING = 2048
K1_SLOT = 28672
K1_NSLOT = 5
K1_LDS = K1_RING + K1_SLOT * K1_NSLOT

def gen_k1(a):
    kernel_head(a, "k1_kernel")
    a("s_cmp_ge_u32 s2, 256")
    a("s_cbranch_scc1 K1_END")
    a("s_load_dwordx4 s[4:7], s[0:1], 0")
    a("s_load_dwordx2 s[8:9], s[0:1], 32")
    a("s_load_dwordx2 s[10:11], s[0:1], 64")
    a("s_load_dwordx2 s[12:13], s[0:1], 88")
    a("s_and_b32 s16, s2, 7")
    a("s_lshr_b32 s17, s2, 3")
    a("s_and_b32 s14, s16, 3")
    a("s_lshl_b32 s14, s14, 2")
    a("s_and_b32 s18, s17, 3")
    a("s_add_u32 s14, s14, s18")
    a("s_lshr_b32 s15, s16, 2")
    a("s_lshl_b32 s15, s15, 3")
    a("s_lshr_b32 s18, s17, 2")
    a("s_add_u32 s15, s15, s18")
    a("v_lshrrev_b32 v1, 6, v0")
    a("v_and_b32 v0, 63, v0")
    a("v_readfirstlane_b32 s19, v1")
    a("v_lshrrev_b32 v2, 3, v0")
    a("v_lshlrev_b32 v2, 10, v2")
    a("v_and_b32 v3, 7, v0")
    a("v_lshrrev_b32 v4, 4, v0")
    a("v_xor_b32 v3, v3, v4")
    a("v_lshl_add_u32 v2, v3, 4, v2")
    a("v_xor_b32 v3, 64, v2")
    a("v_lshrrev_b32 v4, 2, v0")
    a("v_lshl_add_u32 v4, v1, 4, v4")
    a("v_mul_u32_u24 v4, 3072, v4")
    a("v_and_b32 v5, 3, v0")
    a("v_lshl_add_u32 v4, v5, 4, v4")
    a("s_lshl_b32 s18, s15, 6")
    a("v_add_u32 v4, s18, v4")
    a("v_lshlrev_b32 v5, 4, v0")
    a("s_waitcnt lgkmcnt(0)")
    srd(a, 20, 4, 2048 * 512 * 2)
    srd(a, 24, 6, 512 * 1536 * 2)
    srd(a, 28, 8, 1024)
    srd(a, 32, 10, 1024)
    srd(a, 36, 12, WS_SIZE)
    stamp(a, 0, 36, 134, 0, 19, 4)
    a("s_lshl_b32 s40, s14, 17")
    a("s_lshl_b32 s18, s19, 15")
    a("s_add_u32 s40, s40, s18")
    a("s_add_u32 s41, s40, 8192")
    a("s_add_u32 s42, s40, 16384")
    a("s_add_u32 s43, s40, 24576")
    a("s_lshl_b32 s44, s19, 12")
    a("s_mul_i32 s45, s19, 3072")
    a("s_mov_b32 m0, 0")
    a("s_nop 0")
    a("buffer_load_dwordx4 v5, s[32:35], 0 offen lds")
    a("s_mov_b32 m0, 1024")
    a("s_nop 0")
    a("buffer_load_dwordx4 v5, s[28:31], 0 offen lds")

    def issue_chunk(c):
        slot = c % K1_NSLOT
        base = K1_RING + slot * K1_SLOT
        a("s_mov_b32 s46, %d" % (c * 64 * 3072))
        a("s_add_u32 m0, s45, %d" % (base + 16384))
        a("s_nop 0")
        for t in range(3):
            a("buffer_load_dwordx4 v4, s[24:27], s46 offen offset:%d lds" % (t * 1024))
        for i in range(4):
            a("s_add_u32 m0, s44, %d" % (base + i * 1024 - c * 128))
            a("s_nop 0")
            a("buffer_load_dwordx4 v%d, s[20:23], s%d offen offset:%d lds" % (2 + (i & 1), 40 + i, c * 128))

    for c in range(K1_NSLOT):
        issue_chunk(c)

    XA = 8
    WA = 20
    RA = 23
    a("v_and_b32 v6, 31, v0")
    a("v_lshrrev_b32 v7, 5, v0")
    a("v_lshrrev_b32 v24, 1, v6")
    a("v_and_b32 v24, 7, v24")
    a("v_lshlrev_b32 v25, 7, v6")
    a("v_add_u32 v25, s44, v25")
    for ks in range(4):
        a("v_or_b32 v26, %d, v7" % (2 * ks))
        a("v_xor_b32 v26, v26, v24")
        a("v_lshl_add_u32 v%d, v26, 4, v25" % (XA + ks))
        a("v_add_u32 v%d, %d, v%d" % (XA + 4 + ks, 2 * K1_SLOT, XA + ks))
        a("v_add_u32 v%d, %d, v%d" % (XA + 8 + ks, 4 * K1_SLOT, XA + ks))
    a("v_lshlrev_b32 v24, 9, v7")
    a("v_lshrrev_b32 v25, 2, v0")
    a("v_and_b32 v25, 3, v25")
    a("v_lshl_add_u32 v24, v25, 6, v24")
    a("v_lshrrev_b32 v25, 4, v0")
    a("v_and_b32 v25, 1, v25")
    a("v_lshl_add_u32 v24, v25, 5, v24")
    a("v_and_b32 v25, 3, v0")
    a("v_lshl_add_u32 v%d, v25, 3, v24" % WA)
    a("v_add_u32 v%d, %d, v%d" % (WA + 1, 2 * K1_SLOT, WA))
    a("v_add_u32 v%d, %d, v%d" % (WA + 2, 4 * K1_SLOT, WA))
    a("v_and_b32 v25, 1, v0")
    a("v_lshlrev_b32 v25, 10, v25")
    a("v_lshl_add_u32 v%d, v7, 4, v25" % RA)

    ACC = 32
    FR = 96
    def frag(b, i):
        return FR + b * 20 + i * 4

    def reads(kk):
        c, ks = kk // 4, kk % 4
        slot = c % K1_NSLOT
        b = kk & 1
        off = K1_RING + (slot & 1) * K1_SLOT
        a("ds_read_b128 %s, v%d offset:%d" % (vr(frag(b, 0), 4), XA + (slot // 2) * 4 + ks, off))
        for t in range(3):
            for half in range(2):
                a("ds_read_b64_tr_b16 %s, v%d offset:%d" % (vr(frag(b, 1 + t) + 2 * half, 2), WA + slot // 2,
                                                           off + 16384 + ks * 3072 + t * 1024 + half * 256))
        a("ds_read_b128 %s, v%d offset:%d" % (vr(frag(b, 4), 4), RA, kk * 32))

    def mfmas(kk):
        b = kk & 1
        x = vr(frag(b, 0), 4)
        cz = lambda r: ("0" if kk == 0 else vr(r, 16))
        a("%s %s, %s, %s, %s" % (MF32, vr(ACC, 16), vr(frag(b, 1), 4), x, cz(ACC)))
        a("%s %s, %s, %s, %s" % (MF32, vr(ACC + 16, 16), vr(frag(b, 2), 4), x, cz(ACC + 16)))
        a("%s %s, %s, %s, %s" % (MF32, vr(ACC + 32, 16), x, vr(frag(b, 3), 4), cz(ACC + 32)))
        a("s_cbranch_scc1 K1_NR%d" % kk)
        a("%s %s, %s, %s, %s" % (MF32, vr(ACC + 48, 16), vr(frag(b, 4), 4), x, cz(ACC + 48)))
        a.label("K1_NR%d" % kk)

    vm_before = {0: 28, 1: 21, 2: 21, 3: 21, 4: 21, 5: 14, 6: 7, 7: 0}
    a("s_waitcnt vmcnt(%d)" % vm_before[0])
    a("s_barrier")
    stamp(a, 1, 36, 134, 0, 19, 4)
    reads(0)
    for kk in range(32):
        nx = kk + 1
        if nx < 32:
            if nx % 4 == 0:
                c = nx // 4
                a("s_waitcnt vmcnt(%d) lgkmcnt(0)" % vm_before[c])
                a("s_barrier")
                if c + 4 < 8:
                    issue_chunk(c + 4)
                reads(nx)
            else:
                reads(nx)
                a("s_waitcnt lgkmcnt(8)")
        else:
            a("s_waitcnt lgkmcnt(0)")
        a("s_cmp_lg_u32 s15, 0")
        mfmas(kk)

    a("s_nop 15")
    stamp(a, 2, 36, 134, 0, 19, 4)
    CS = math.log2(math.e) * 0.25
    a("s_mov_b32 s46, 0x%08x" % f32bits(CS))
    for r in range(16):
        a("v_mul_f32 v%d, s46, v%d" % (ACC + r, ACC + r))
    PK = FR
    for t in range(3):
        for r in range(8):
            a("v_cvt_pk_bf16_f32 v%d, v%d, v%d" % (PK + t * 8 + r, ACC + t * 16 + 2 * r, ACC + t * 16 + 2 * r + 1))
    a("s_nop 1")
    a("%s %s, %s, %s, 0" % (MF32, vr(ACC, 16), vr(PK + 8, 4), vr(PK, 4)))
    a("%s %s, %s, %s, 0" % (MF32, vr(ACC + 16, 16), vr(PK + 12, 4), vr(PK + 4, 4)))
    a("s_lshl_b32 s47, s14, 2")
    a("s_add_u32 s47, s47, s19")
    a("s_lshl_b32 s48, s15, 18")
    a("s_lshl_b32 s49, s47, 11")
    a("s_add_u32 s48, s48, s49")
    a("s_add_u32 s49, s48, 131072")
    a("buffer_store_dwordx4 %s, v5, s[36:39], s48 offen" % vr(PK + 8, 4))
    a("buffer_store_dwordx4 %s, v5, s[36:39], s49 offen" % vr(PK + 12, 4))
    a("v_lshrrev_b32 v24, 4, v6")
    a("v_lshlrev_b32 v24, 17, v24")
    a("v_lshl_add_u32 v24, v7, 8, v24")
    a("v_and_b32 v25, 15, v0")
    a("v_lshl_add_u32 v24, v25, 4, v24")
    a("buffer_store_dwordx4 %s, v24, s[36:39], s48 offen offset:1024" % vr(PK + 16, 4))
    a("buffer_store_dwordx4 %s, v24, s[36:39], s48 offen offset:1536" % vr(PK + 20, 4))
    a("s_lshl_b32 s50, s15, 17")
    a("s_lshl_b32 s51, s47, 10")
    a("s_add_u32 s50, s50, s51")
    a("s_add_u32 s50, s50, %d" % WS_Q)
    a("s_add_u32 s51, s50, 65536")
    a("buffer_store_dwordx4 %s, v5, s[36:39], s50 offen" % vr(PK, 4))
    a("buffer_store_dwordx4 %s, v5, s[36:39], s51 offen" % vr(PK + 4, 4))
    a("s_lshl_b32 s52, s15, 16")
    a("s_lshl_b32 s53, s47, 9")
    a("s_add_u32 s52, s52, s53")
    a("s_add_u32 s52, s52, %d" % WS_M)
    a("s_add_u32 s53, s52, 32768")
    a("v_lshlrev_b32 v26, 4, v6")
    a("s_nop 7")
    for h in range(2):
        S = ACC + 16 * h
        m = 120 + 4 * h
        a("v_max3_f32 v%d, v%d, v%d, v%d" % (m, S, S + 1, S + 2))
        for r in range(3, 15, 2):
            a("v_max3_f32 v%d, v%d, v%d, v%d" % (m, m, S + r, S + r + 1))
        a("v_max_f32 v%d, v%d, v%d" % (m, m, S + 15))
        a("v_mov_b32 v%d, v%d" % (m + 1, m))
        a("s_nop 1")
        a("v_permlane32_swap_b32 v%d, v%d" % (m, m + 1))
        a("v_max_f32 v%d, v%d, v%d" % (m, m, m + 1))
        a("v_sub_f32 v%d, 0, v%d" % (m, m))
        a("v_mov_b32 v%d, v%d" % (m + 1, m))
        a("v_mov_b32 v%d, v%d" % (m + 2, m))
        a("v_mov_b32 v%d, v%d" % (m + 3, m))
        a("buffer_store_dwordx4 %s, v26, s[36:39], s%d offen" % (vr(m, 4), 52 + h))
    stamp(a, 3, 36, 134, 0, 19, 4)
    a("s_cmp_lg_u32 s15, 0")
    a("s_cbranch_scc1 K1_END")
    R = ACC + 48
    bf16_round_to_f32(a, 128, R)
    a("v_mul_f32 v128, 0x%08x, v128" % f32bits(-math.log2(math.e)))
    a("v_exp_f32 v128, v128")
    a("s_nop 0")
    a("v_add_f32 v128, 1.0, v128")
    a("v_rcp_f32 v128, v128")
    a("s_nop 0")
    bf16_round_to_f32(a, 128, 128)
    a("v_sub_f32 v129, 1.0, v128")
    bf16_round_to_f32(a, 129, 129)
    a("s_lshl_b32 s54, s47, 8")
    a("s_add_u32 s54, s54, %d" % WS_G)
    a("v_lshlrev_b32 v27, 3, v6")
    a("buffer_store_dwordx2 v[128:129], v27, s[36:39], s54 offen")
    bf16_round_to_f32(a, 130, R + 1)
    a("v_ashrrev_i32 v131, 31, v130")
    a("v_or_b32 v131, 0x80000000, v131")
    a("v_xor_b32 v130, v130, v131")
    a("v_and_b32 v130, 0xffff0000, v130")
    a("s_lshl_b32 s55, s47, 5")
    a("v_add_u32 v131, s55, v6")
    a("v_sub_u32 v131, 0xffff, v131")
    a("v_or_b32 v130, v130, v131")
    for sh in (1, 2, 4, 8):
        a("s_nop 1")
        a("v_max_u32_dpp v130, v130, v130 row_ror:%d row_mask:0xf bank_mask:0xf" % sh)
    a("s_nop 0")
    a("v_readlane_b32 s56, v130, 0")
    a("v_readlane_b32 s57, v130, 16")
    a("s_nop 3")
    a("s_max_u32 s56, s56, s57")
    a("v_mov_b32 v131, s56")
    a("v_mov_b32 v132, 0")
    a("s_lshl_b32 s55, s47, 2")
    a("s_add_u32 s55, s55, %d" % WS_RK)
    a("buffer_store_dword v131, v132, s[36:39], s55 offen")
    a("s_cmp_lg_u32 s47, 0")
    a("s_cbranch_scc1 K1_END")
    a("v_mov_b32 v133, 0")
    a("v_mov_b32 v134, 0")
    a("v_mov_b32 v135, 0")
    a("s_mov_b32 s55, %d" % WS_Y)
    a("buffer_store_dwordx4 v[132:135], v5, s[36:39], s55 offen")
    a("buffer_store_dwordx4 v[132:135], v5, s[36:39], s55 offen offset:1024")
    a.label("K1_END")
    a("s_endpgm")
    return kernel_desc("k1_kernel", 136, sgpr=102)

K2_FLAG = 0
K2_MX = 256
K2_FFW = K2_MX + 8192
K2_FFP = K2_FFW + 8 * 2304
K2_CMB = K2_FFP + 1024
K2_LDS = K2_CMB + 32 * 2304

def gen_k2(a):
    kernel_head(a, "k2_kernel")
    Q, C, O, S, P = 8, 24, 88, 152, 184
    KB = [192, 204]
    T = 216
    a("s_cmp_ge_u32 s2, 256")
    a("s_cbranch_scc1 K2_END")
    a("s_load_dwordx2 s[4:5], s[0:1], 88")
    a("s_load_dwordx2 s[6:7], s[0:1], 0")
    a("s_load_dwordx4 s[8:11], s[0:1], 40")
    a("s_load_dwordx2 s[12:13], s[0:1], 56")
    a("v_lshrrev_b32 v1, 6, v0")
    a("v_and_b32 v0, 63, v0")
    a("v_readfirstlane_b32 s19, v1")
    a("s_and_b32 s14, s2, 7")
    a("s_lshl_b32 s14, s14, 2")
    a("s_lshr_b32 s16, s2, 3")
    a("s_and_b32 s16, s16, 3")
    a("s_add_u32 s14, s14, s16")
    a("s_lshr_b32 s15, s2, 5")
    a("v_lshlrev_b32 v2, 4, v0")
    a("v_and_b32 v3, 15, v0")
    a("v_lshlrev_b32 v3, 4, v3")
    a("v_lshrrev_b32 v4, 5, v0")
    a("v_lshl_add_u32 v3, v4, 8, v3")
    a("v_and_b32 v4, 31, v0")
    a("v_lshlrev_b32 v4, 4, v4")
    a("s_lshr_b32 s16, s19, 2")
    a("s_and_b32 s17, s19, 3")
    a("s_lshl_b32 s18, s15, 3")
    a("s_lshl_b32 s20, s16, 2")
    a("s_add_u32 s18, s18, s20")
    a("s_lshl_b32 s20, s14, 16")
    a("s_lshl_b32 s21, s18, 10")
    a("s_add_u32 s20, s20, s21")
    a("s_add_u32 s20, s20, %d" % WS_Q)
    a("s_lshl_b32 s21, s14, 15")
    a("s_lshl_b32 s22, s18, 9")
    a("s_add_u32 s21, s21, s22")
    a("s_add_u32 s21, s21, %d" % WS_M)
    a("s_lshl_b32 s22, s14, 17")
    a("s_lshl_b32 s23, s17, 15")
    a("s_add_u32 s22, s22, s23")
    a("s_mov_b32 s30, 0x0000ffff")
    a("s_mov_b32 s31, 0x0000ffff")
    a("s_mov_b32 s29, 0")
    a("s_mov_b32 s32, 0x15")
    a("s_mov_b32 s23, 0x3f803f80")
    for b in range(2):
        for r in range(4, 12):
            a("v_mov_b32 v%d, s23" % (KB[b] + r))
    a("s_waitcnt lgkmcnt(0)")
    srd(a, 24, 4, WS_SIZE)
    stamp(a, 0, 24, 250, 1, 19, 8)
    a("buffer_load_dwordx4 %s, v2, s[24:27], s20 offen" % vr(Q, 4))
    for i in range(4):
        a("buffer_load_dwordx4 %s, v4, s[24:27], s21 offen" % vr(C + 4 * i, 4))
    a.label("K2_PASS")
    a("buffer_load_dwordx4 %s, v2, s[24:27], s22 offen" % vr(KB[0], 4))
    a("s_mov_b64 exec, s[30:31]")
    a("buffer_load_dwordx4 %s, v3, s[24:27], s22 offen offset:1024" % vr(KB[0] + 4, 4))
    a("buffer_load_dwordx4 %s, v3, s[24:27], s22 offen offset:1536" % vr(KB[0] + 8, 4))
    a("s_mov_b64 exec, -1")
    a("s_cmp_lg_u32 s29, 0")
    a("s_cbranch_scc1 K2_P1")
    for j in range(1, 4):
        a("buffer_load_dwordx4 %s, v2, s[24:27], s20 offen offset:%d" % (vr(Q + 4 * j, 4), j * 1024))
        for i in range(4):
            a("buffer_load_dwordx4 %s, v4, s[24:27], s21 offen offset:%d" % (vr(C + 16 * j + 4 * i, 4), j * 512))
    a("s_add_u32 s4, s4, %d" % WS_RK)
    a("s_addc_u32 s5, s5, 0")
    for i in range(4):
        a("s_load_dwordx16 %s, s[4:5], %d" % (sr(36 + 16 * i, 16), 64 * i))
    a("v_mov_b32 v5, 0")
    a("ds_write_b32 v5, v5 offset:%d" % K2_FLAG)
    a.label("K2_P1")
    a("buffer_load_dwordx4 %s, v2, s[24:27], s22 offen offset:2048" % vr(KB[1], 4))
    a("v_lshlrev_b32 v5, 7, v0")
    for i in range(4):
        a("s_add_u32 s23, s22, %d" % (i * 8192))
        a("buffer_load_dword v%d, v5, s[24:27], s23 offen" % (T + 36 + i))
    for r in range(64):
        a("v_mov_b32 v%d, 0" % (O + r))
    for r in range(4, 8):
        a("v_mov_b32 v%d, 0" % (P + r))
    a("v_mov_b32 v%d, 0" % (S + 16 + 14))
    a("v_mov_b32 v%d, 0" % (S + 16 + 15))
    a("s_mov_b32 s28, s22")
    a("s_mov_b32 s23, 0")
    a("s_waitcnt vmcnt(5)")
    a("%s %s, %s, %s, %s" % (MF32, vr(S, 16), vr(KB[0], 4), vr(Q, 4), vr(C, 16)))
    a("s_nop 15")
    a("v_exp_f32 v%d, v%d" % (S, S))
    stamp(a, 1, 24, 250, 1, 19, 8)

    a.raw(".p2align 6")
    a.label("K2_LOOP")
    for tt in range(2):
        for j in range(4):
            cur = S + 16 * (j & 1)
            prv = S + 16 * ((j + 1) & 1)
            nxt = prv
            E = lambda r: a("v_exp_f32 v%d, v%d" % (cur + r, cur + r))
            CV = lambda r: a("v_cvt_pk_bf16_f32 v%d, v%d, v%d" % (P + r // 2, cur + r, cur + r + 1))
            pj = (j + 3) % 4
            pb = KB[tt] if j > 0 else KB[tt ^ 1]
            nj = (j + 1) % 4
            nb = KB[tt] if j < 3 else KB[tt ^ 1]
            a("v_cvt_pk_bf16_f32 v%d, v%d, v%d" % (P + 7, prv + 14, prv + 15))
            if j == 3:
                a("s_waitcnt vmcnt(1)")
                if tt == 0:
                    a("s_bitcmp1_b32 s32, s23")
                    a("s_cbranch_scc1 K2_HOOK")
                    a.label("K2_HRET")
            a("%s %s, %s, %s, %s" % (MF32, vr(nxt, 16), vr(nb, 4), vr(Q + 4 * nj, 4), vr(C + 16 * nj, 16)))
            if j == 2:
                a("buffer_load_dwordx4 %s, v2, s[24:27], s28 offen offset:%d" % (vr(KB[tt], 4), tt * 2048))
            E(1); E(2); CV(0); E(3); E(4); CV(2); E(5)
            a("%s %s, %s, %s, %s" % (MF32, vr(O + 16 * pj, 16), vr(pb + 8, 4), vr(P + 4, 4), vr(O + 16 * pj, 16)))
            if j == 0:
                a("s_mov_b64 exec, s[30:31]")
                off = 3072 if tt == 0 else 1024
                a("buffer_load_dwordx4 %s, v3, s[24:27], s28 offen offset:%d" % (vr(KB[tt ^ 1] + 4, 4), off))
                a("buffer_load_dwordx4 %s, v3, s[24:27], s28 offen offset:%d" % (vr(KB[tt ^ 1] + 8, 4), off + 512))
                a("s_mov_b64 exec, -1")
                if tt == 0:
                    a("s_add_u32 s28, s28, 4096")
            E(6); CV(4); E(7); E(8); CV(6); E(9); E(10)
            a("%s %s, %s, %s, %s" % (MF32, vr(O + 16 * j, 16), vr(KB[tt] + 4, 4), vr(P, 4), vr(O + 16 * j, 16)))
            CV(8); E(11); E(12); CV(10); E(13); E(14); CV(12); E(15)
            a("v_exp_f32 v%d, v%d" % (nxt, nxt))
    if STAMP:
        a("s_memtime s[100:101]")
        a("s_waitcnt lgkmcnt(0)")
        a("v_mov_b32 v250, s100")
        a("s_lshl_b32 s100, s2, 3")
        a("s_add_u32 s100, s100, s19")
        a("s_lshl_b32 s100, s100, 4")
        a("s_add_u32 s100, s100, s23")
        a("s_lshl_b32 s100, s100, 2")
        a("s_add_u32 s100, s100, %d" % (WS_ST + 262144 + 8))
        a("v_mov_b32 v251, 0")
        a("buffer_store_dword v250, v251, s[24:27], s100 offen")
    a("s_add_u32 s23, s23, 1")
    a("s_cmp_lt_u32 s23, 8")
    a("s_cbranch_scc1 K2_LOOP")
    a("v_cvt_pk_bf16_f32 v%d, v%d, v%d" % (P + 7, S + 16 + 14, S + 16 + 15))
    a("s_nop 1")
    a("%s %s, %s, %s, %s" % (MF32, vr(O + 48, 16), vr(KB[1] + 8, 4), vr(P + 4, 4), vr(O + 48, 16)))
    a("s_lshl_b32 s23, s16, 4")
    a("s_add_u32 s23, s23, s17")
    a("s_mul_i32 s23, s23, 2304")
    a("v_add_u32 v5, s23, v2")
    a("v_lshlrev_b32 v6, 2, v0")
    a("v_add_u32 v6, s23, v6")
    a("s_mov_b32 s23, 0x4f800000")
    a("s_nop 4")
    for j in range(4):
        a("ds_write_b128 v5, %s offset:%d" % (vr(O + 16 * j, 4), K2_CMB + j * 9216))
        a("ds_write_b128 v5, %s offset:%d" % (vr(O + 16 * j + 4, 4), K2_CMB + j * 9216 + 1024))
        a("ds_write_b32 v6, v%d offset:%d" % (O + 16 * j + 8, K2_CMB + j * 9216 + 2048))
    a("v_max3_f32 v7, v%d, v%d, v%d" % (O + 8, O + 24, O + 40))
    a("v_cmp_u_f32 s[56:57], v%d, v%d" % (O + 8, O + 24))
    a("v_cmp_u_f32 s[58:59], v%d, v%d" % (O + 40, O + 56))
    a("v_max_f32 v7, v7, v%d" % (O + 56))
    a("v_cmp_lt_f32 vcc, s23, v7")
    a("s_nop 3")
    a("s_or_b64 s[56:57], s[56:57], s[58:59]")
    a("s_or_b64 s[56:57], s[56:57], vcc")
    a("s_cmp_eq_u64 s[56:57], 0")
    a("s_cbranch_scc1 K2_NOFLAG")
    a("v_mov_b32 v7, 1")
    a("v_mov_b32 v%d, 0" % T)
    a("ds_write_b32 v%d, v7 offset:%d" % (T, K2_FLAG))
    a.label("K2_NOFLAG")
    a("s_waitcnt lgkmcnt(0)")
    a("s_barrier")
    a("s_lshl_b32 s23, s16, 2")
    a("s_add_u32 s23, s23, s17")
    a("s_mul_i32 s23, s23, 9216")
    a("v_add_u32 v5, s23, v2")
    a("v_lshlrev_b32 v6, 2, v0")
    a("v_add_u32 v6, s23, v6")
    a("v_mov_b32 v7, 0")
    a("ds_read_b32 v7, v7 offset:%d" % K2_FLAG)
    for j in range(4):
        a("ds_read_b128 %s, v5 offset:%d" % (vr(O + 16 * j, 4), K2_CMB + j * 2304))
        a("ds_read_b128 %s, v5 offset:%d" % (vr(O + 16 * j + 4, 4), K2_CMB + j * 2304 + 1024))
        a("ds_read_b32 v%d, v6 offset:%d" % (O + 16 * j + 8, K2_CMB + j * 2304 + 2048))
    a("s_waitcnt lgkmcnt(0)")
    a("v_readfirstlane_b32 s23, v7")
    a("s_nop 3")
    a("s_cmp_gt_u32 s23, s29")
    a("s_cbranch_scc1 K2_EXACT")
    for r in range(9):
        a("v_add_f32 v%d, v%d, v%d" % (O + r, O + r, O + 16 + r))
        a("v_add_f32 v%d, v%d, v%d" % (O + 32 + r, O + 32 + r, O + 48 + r))
    for r in range(9):
        a("v_add_f32 v%d, v%d, v%d" % (O + r, O + r, O + 32 + r))
    a("v_rcp_f32 v%d, v%d" % (O + 8, O + 8))
    a("s_nop 0")
    for r in range(8):
        a("v_mul_f32 v%d, v%d, v%d" % (O + r, O + r, O + 8))
    for r in range(4):
        a("v_cvt_pk_bf16_f32 v%d, v%d, v%d" % (O + 16 + r, O + 2 * r, O + 2 * r + 1))
    a("s_add_u32 s23, s18, s17")
    a("s_lshl_b32 s23, s23, 15")
    a("s_lshl_b32 s28, s14, 10")
    a("s_add_u32 s23, s23, s28")
    a("s_add_u32 s23, s23, %d" % WS_O)
    a("buffer_store_dwordx4 %s, v2, s[24:27], s23 offen" % vr(O + 16, 4))
    stamp(a, 10, 24, 250, 1, 19, 8)
    a.label("K2_END")
    a("s_endpgm")

    a.label("K2_HOOK")
    a("s_cmp_eq_u32 s23, 4")
    a("s_cbranch_scc1 K2_FFN2")
    a("s_cmp_ge_u32 s2, 224")
    a("s_cbranch_scc1 K2_HRET")
    a("s_cmp_eq_u32 s23, 2")
    a("s_cbranch_scc1 K2_FFN1")
    a("s_waitcnt lgkmcnt(0)")
    for i in range(36, 99):
        a("s_max_u32 s99, s99, s%d" % i)
    srd(a, 36, 6, 2048 * 512 * 2)
    srd(a, 40, 8, 512 * 1792 * 2)
    srd(a, 44, 10, 512 * 1792 * 2)
    srd(a, 48, 12, 1792 * 512 * 2)
    a("s_and_b32 s52, s99, 0xffff")
    a("s_sub_u32 s52, 0xffff, s52")
    a("s_and_b32 s52, s52, 2047")
    a("s_lshl_b32 s52, s52, 10")
    a("s_lshl_b32 s53, s19, 7")
    a("s_add_u32 s52, s52, s53")
    a("v_lshl_add_u32 v5, v1, 6, v0")
    a("v_mul_u32_u24 v5, 3584, v5")
    a("s_lshl_b32 s53, s2, 4")
    a("s_mul_i32 s54, s19, 2304")
    a("s_add_u32 m0, s54, %d" % K2_FFW)
    a("v_lshrrev_b32 v6, 4, v0")
    a("buffer_load_dwordx4 v5, s[40:43], s53 offen lds")
    a("s_add_u32 m0, s54, %d" % (K2_FFW + 1152))
    a("v_lshlrev_b32 v6, 4, v6")
    a("buffer_load_dwordx4 v5, s[44:47], s53 offen lds")
    a("buffer_load_dwordx4 %s, v6, s[36:39], s52 offen" % vr(T, 4))
    a("buffer_load_dwordx4 %s, v6, s[36:39], s52 offen offset:64" % vr(T + 4, 4))
    a("s_cmp_ge_u32 s19, 4")
    a("s_cbranch_scc1 K2_HRET")
    a("s_lshl_b32 s52, s2, 13")
    a("s_lshl_b32 s53, s17, 8")
    a("s_add_u32 s52, s52, s53")
    a("v_lshlrev_b32 v6, 2, v0")
    a("s_add_u32 s53, s52, 4096")
    for f in range(8):
        a("buffer_load_dword v%d, v6, s[48:51], s%d offen offset:%d" % (T + 20 + f, 52 + f // 4, (f % 4) * 1024))
    a("s_branch K2_HRET")

    a.label("K2_FFN1")
    a("v_lshrrev_b32 v5, 4, v0")
    a("v_lshlrev_b32 v5, 7, v5")
    a("v_bfe_u32 v6, v0, 2, 2")
    a("v_lshl_add_u32 v5, v6, 4, v5")
    a("v_and_b32 v6, 1, v0")
    a("v_lshl_add_u32 v5, v6, 3, v5")
    a("v_bfe_u32 v6, v0, 1, 1")
    a("v_mul_u32_u24 v6, 1152, v6")
    a("s_mul_i32 s52, s19, 2304")
    a("v_add3_u32 v5, v5, v6, s52")
    for s in range(2):
        for half in range(2):
            a("ds_read_b64_tr_b16 %s, v5 offset:%d" % (vr(T + 8 + 4 * s + 2 * half, 2), K2_FFW + s * 512 + half * 64))
    a("v_and_b32 v5, 15, v0")
    a("v_lshlrev_b32 v5, 5, v5")
    a("s_lshl_b32 s52, s19, 2")
    a("v_add_u32 v5, s52, v5")
    a("s_waitcnt lgkmcnt(0)")
    a("%s %s, %s, %s, 0" % (MF16, vr(T + 16, 4), vr(T, 4), vr(T + 8, 4)))
    a("%s %s, %s, %s, %s" % (MF16, vr(T + 16, 4), vr(T + 4, 4), vr(T + 12, 4), vr(T + 16, 4)))
    a("s_nop 8")
    a("ds_write_b32 v5, v%d offset:%d" % (T + 16, K2_FFP))
    a("s_branch K2_HRET")

    a.label("K2_FFN2")
    a("s_waitcnt lgkmcnt(0)")
    a("s_barrier")
    a("s_cmp_ge_u32 s2, 224")
    a("s_cbranch_scc1 K2_HRET")
    a("s_cmp_ge_u32 s19, 4")
    a("s_cbranch_scc1 K2_HRET")
    a("v_and_b32 v5, 15, v0")
    a("v_lshlrev_b32 v5, 5, v5")
    a("ds_read_b128 %s, v5 offset:%d" % (vr(T, 4), K2_FFP))
    a("ds_read_b128 %s, v5 offset:%d" % (vr(T + 4, 4), K2_FFP + 16))
    a("s_waitcnt lgkmcnt(0)")
    a("v_pk_add_f32 %s, %s, %s" % (vr(T, 2), vr(T, 2), vr(T + 2, 2)))
    a("v_pk_add_f32 %s, %s, %s" % (vr(T + 4, 2), vr(T + 4, 2), vr(T + 6, 2)))
    a("v_pk_add_f32 %s, %s, %s" % (vr(T, 2), vr(T, 2), vr(T + 4, 2)))
    a("v_add_f32 v%d, v%d, v%d" % (T, T, T + 1))
    bf16_round_to_f32(a, T, T)
    a("v_mul_f32 v%d, 0x%08x, v%d" % (T + 1, f32bits(-math.log2(math.e)), T))
    a("v_exp_f32 v%d, v%d" % (T + 1, T + 1))
    a("v_mov_b32_dpp v%d, v%d row_ror:8 row_mask:0xf bank_mask:0xf" % (T + 2, T))
    a("v_add_f32 v%d, 1.0, v%d" % (T + 1, T + 1))
    a("v_rcp_f32 v%d, v%d" % (T + 1, T + 1))
    a("v_mov_b32 v%d, 0" % (T + 4))
    a("v_mul_f32 v%d, v%d, v%d" % (T + 1, T + 1, T))
    bf16_round_to_f32(a, T + 1, T + 1)
    a("v_mul_f32 v%d, v%d, v%d" % (T + 1, T + 1, T + 2))
    a("v_cvt_pk_bf16_f32 v%d, v%d, v%d" % (T + 1, T + 1, T + 4))
    a("v_mov_b32 v%d, 0" % (T + 5))
    for i in range(8):
        a("v_readlane_b32 s%d, v%d, %d" % (60 + i, T + 1, i))
    a("v_lshlrev_b32 v6, 2, v0")
    a("s_lshl_b32 s52, s17, 9")
    a("s_add_u32 s52, s52, %d" % WS_Y)
    for i in range(8):
        a("s_lshl_b32 s%d, s%d, 16" % (68 + i, 60 + i))
    for i in range(8):
        a("v_dot2_f32_bf16 v%d, v%d, s%d, v%d" % (T + 4, T + 20 + i, 60 + i, T + 4))
        a("v_dot2_f32_bf16 v%d, v%d, s%d, v%d" % (T + 5, T + 20 + i, 68 + i, T + 5))
    a("s_nop 3")
    a("buffer_atomic_add_f32 v%d, v6, s[24:27], s52 offen" % (T + 4))
    a("buffer_atomic_add_f32 v%d, v6, s[24:27], s52 offen offset:256" % (T + 5))
    a("s_branch K2_HRET")

    a.label("K2_EXACT")
    a("s_mov_b32 s29, 1")
    a("s_mov_b32 s32, 0")
    a("s_mov_b32 s23, 0xff800000")
    for j in range(4):
        a("v_mov_b32 v%d, s23" % (T + j))
    a("s_mov_b32 s28, s22")
    a("s_mov_b32 s23, 0")
    a.label("K2_EXLOOP")
    a("buffer_load_dwordx4 %s, v2, s[24:27], s28 offen" % vr(KB[0], 4))
    a("s_waitcnt vmcnt(0)")
    for j in range(4):
        a("%s %s, %s, %s, 0" % (MF32, vr(S, 16), vr(KB[0], 4), vr(Q + 4 * j, 4)))
        a("s_nop 15")
        for r in range(0, 16, 2):
            a("v_max3_f32 v%d, v%d, v%d, v%d" % (T + j, T + j, S + r, S + r + 1))
    a("s_add_u32 s28, s28, 2048")
    a("s_add_u32 s23, s23, 1")
    a("s_cmp_lt_u32 s23, 16")
    a("s_cbranch_scc1 K2_EXLOOP")
    a("v_lshlrev_b32 v6, 2, v0")
    a("s_lshl_b32 s23, s19, 10")
    a("v_add_u32 v5, s23, v6")
    for j in range(4):
        a("ds_write_b32 v5, v%d offset:%d" % (T + j, K2_MX + j * 256))
    a("s_waitcnt lgkmcnt(0)")
    a("s_barrier")
    a("v_and_b32 v5, 31, v0")
    a("v_lshlrev_b32 v5, 2, v5")
    a("s_lshl_b32 s23, s16, 12")
    a("v_add_u32 v5, s23, v5")
    for j in range(4):
        for kq in range(4):
            for hh in range(2):
                a("ds_read_b32 v%d, v5 offset:%d" % (S + kq * 2 + hh, K2_MX + kq * 1024 + j * 256 + hh * 128))
        a("s_waitcnt lgkmcnt(0)")
        a("v_max3_f32 v%d, v%d, v%d, v%d" % (S, S, S + 1, S + 2))
        a("v_max3_f32 v%d, v%d, v%d, v%d" % (S, S, S + 3, S + 4))
        a("v_max3_f32 v%d, v%d, v%d, v%d" % (S, S, S + 5, S + 6))
        a("v_max_f32 v%d, v%d, v%d" % (S, S, S + 7))
        for r in range(16):
            a("v_sub_f32 v%d, 0, v%d" % (C + 16 * j + r, S))
    a("s_mov_b32 s23, 0x3f803f80")
    for r in range(4, 12):
        a("v_mov_b32 v%d, s23" % (KB[1] + r))
    a("s_branch K2_PASS")
    return kernel_desc("k2_kernel", 256, sgpr=102)

K3_LDS = 65536

def gen_k3(a):
    kernel_head(a, "k3_kernel")
    OF = 32
    ACC = 16
    WF = 160
    XR = 176
    YR = 184
    a("s_cmp_ge_u32 s2, 256")
    a("s_cbranch_scc1 K3_END")
    a("s_load_dwordx2 s[4:5], s[0:1], 88")
    a("s_load_dwordx2 s[6:7], s[0:1], 0")
    a("s_load_dwordx2 s[8:9], s[0:1], 16")
    a("s_load_dwordx2 s[10:11], s[0:1], 72")
    a("v_lshrrev_b32 v1, 6, v0")
    a("v_and_b32 v0, 63, v0")
    a("v_readfirstlane_b32 s19, v1")
    a("s_and_b32 s14, s2, 7")
    a("s_lshl_b32 s14, s14, 2")
    a("s_lshr_b32 s16, s2, 3")
    a("s_and_b32 s17, s16, 3")
    a("s_add_u32 s14, s14, s17")
    a("s_lshr_b32 s15, s16, 2")
    a("s_and_b32 s16, s19, 1")
    a("s_lshr_b32 s17, s19, 1")
    a("s_lshl_b32 s18, s14, 1")
    a("s_add_u32 s18, s18, s16")
    a("v_lshlrev_b32 v2, 4, v0")
    a("v_lshrrev_b32 v3, 2, v0")
    a("v_lshlrev_b32 v3, 10, v3")
    a("v_and_b32 v4, 3, v0")
    a("v_lshl_add_u32 v3, v4, 4, v3")
    a("s_lshl_b32 s20, s15, 7")
    a("s_lshl_b32 s21, s17, 6")
    a("s_add_u32 s20, s20, s21")
    a("s_lshl_b32 s21, s16, 14")
    a("s_add_u32 s21, s21, s20")
    a("s_lshl_b32 s22, s17, 15")
    a("s_lshl_b32 s23, s16, 10")
    a("s_add_u32 s22, s22, s23")
    a("s_lshl_b32 s23, s18, 15")
    a("s_add_u32 s23, s23, %d" % WS_O)
    a("s_waitcnt lgkmcnt(0)")
    srd(a, 24, 4, WS_SIZE)
    srd(a, 32, 6, 2048 * 512 * 2)
    srd(a, 36, 8, 512 * 512 * 2)
    srd(a, 40, 10, 2048 * 512 * 2)
    stamp(a, 0, 24, 14, 2, 19, 4)
    a("s_add_u32 s4, s4, %d" % WS_RK)
    a("s_addc_u32 s5, s5, 0")
    a("s_load_dwordx16 s[48:63], s[4:5], 0")
    a("s_load_dwordx16 s[64:79], s[4:5], 64")
    for g in range(4):
        for i in range(4):
            hp = g * 4 + i
            a("s_add_u32 m0, s22, %d" % (hp * 2048))
            a("s_add_u32 s28, s21, %d" % (hp * 32768))
            a("buffer_load_dwordx4 v3, s[36:39], s28 offen lds")
        for i in range(8):
            h = g * 8 + i
            if h % 4 == 0:
                a("s_add_u32 s28, s23, %d" % (h * 1024))
            a("buffer_load_dwordx4 %s, v2, s[24:27], s28 offen offset:%d" % (vr(OF + 4 * h, 4), (h % 4) * 1024))
    a("v_and_b32 v4, 31, v0")
    a("v_lshrrev_b32 v5, 5, v0")
    a("v_lshlrev_b32 v6, 10, v4")
    a("v_lshl_add_u32 v6, v5, 5, v6")
    a("s_lshl_b32 s29, s18, 15")
    a("s_add_u32 s29, s29, s20")
    a("buffer_load_dwordx4 %s, v6, s[32:35], s29 offen" % vr(XR, 4))
    a("buffer_load_dwordx4 %s, v6, s[32:35], s29 offen offset:16" % vr(XR + 4, 4))
    a("v_lshlrev_b32 v7, 3, v4")
    a("s_lshl_b32 s30, s18, 8")
    a("s_add_u32 s30, s30, %d" % WS_G)
    a("buffer_load_dwordx2 v[8:9], v7, s[24:27], s30 offen")
    a("v_lshlrev_b32 v7, 5, v5")
    a("s_lshr_b32 s30, s20, 8")
    a("s_lshl_b32 s30, s30, 9")
    a("s_and_b32 s31, s20, 255")
    a("s_add_u32 s30, s30, s31")
    a("s_add_u32 s30, s30, %d" % WS_Y)
    for i in range(4):
        a("buffer_load_dwordx4 %s, v7, s[24:27], s30 offen offset:%d" % (vr(YR + 4 * i, 4), (i // 2) * 256 + (i % 2) * 16))
    NTAIL = 7
    a("v_lshrrev_b32 v10, 2, v0")
    a("v_and_b32 v10, 3, v10")
    a("v_lshl_add_u32 v10, v5, 2, v10")
    a("v_lshlrev_b32 v10, 6, v10")
    a("v_and_b32 v11, 1, v0")
    a("v_lshl_add_u32 v10, v11, 5, v10")
    a("v_bfe_u32 v11, v0, 1, 1")
    a("v_bfe_u32 v12, v0, 4, 1")
    a("v_lshl_add_u32 v11, v12, 1, v11")
    a("v_lshl_add_u32 v10, v11, 3, v10")
    a("s_lshl_b32 s30, s17, 15")
    a("v_add_u32 v10, s30, v10")
    a("s_waitcnt lgkmcnt(0)")
    for i in range(49, 80):
        a("s_max_u32 s48, s48, s%d" % i)
    a("s_mov_b32 s80, s48")
    a("s_load_dwordx16 s[48:63], s[4:5], 128")
    a("s_load_dwordx16 s[64:79], s[4:5], 192")
    a("s_waitcnt lgkmcnt(0)")
    for i in range(48, 80):
        a("s_max_u32 s80, s80, s%d" % i)
    a("s_and_b32 s81, s80, 0xffff")
    a("s_sub_u32 s81, 0xffff, s81")

    stamp(a, 1, 24, 14, 2, 19, 4)
    def wreads(h):
        b = WF + 4 * (h % 4)
        a("ds_read_b64_tr_b16 %s, v10 offset:%d" % (vr(b, 2), h * 1024))
        a("ds_read_b64_tr_b16 %s, v10 offset:%d" % (vr(b + 2, 2), h * 1024 + 512))

    for g in range(4):
        rest = (3 - g) * 12 + NTAIL
        a("s_waitcnt vmcnt(%d)" % (rest + 8))
        a("s_barrier")
        for i in range(3):
            wreads(g * 8 + i)
        for i in range(8):
            h = g * 8 + i
            if i + 3 < 8:
                wreads(h + 3)
                a("s_waitcnt vmcnt(%d) lgkmcnt(6)" % (rest + 7 - i))
            else:
                a("s_waitcnt vmcnt(%d) lgkmcnt(%d)" % (rest + 7 - i, 2 * (7 - i)))
            a("%s %s, %s, %s, %s" % (MF32, vr(ACC, 16), vr(WF + 4 * (h % 4), 4), vr(OF + 4 * h, 4), "0" if h == 0 else vr(ACC, 16)))
    a("s_waitcnt vmcnt(0)")
    stamp(a, 2, 24, 14, 2, 19, 4)
    B = 32
    for i in range(8):
        a("v_lshlrev_b32 v%d, 16, v%d" % (B + 2 * i, XR + i))
        a("v_and_b32 v%d, 0xffff0000, v%d" % (B + 2 * i + 1, XR + i))
    a("s_lshr_b32 s30, s81, 5")
    a("s_cmp_lg_u32 s30, s18")
    a("s_cbranch_scc1 K3_NOSEL")
    a("s_and_b32 s30, s80, 0xffff0000")
    a("s_ashr_i32 s31, s30, 31")
    a("s_not_b32 s31, s31")
    a("s_or_b32 s31, s31, 0x80000000")
    a("s_xor_b32 s30, s30, s31")
    a("s_and_b32 s30, s30, 0xffff0000")
    a("v_mov_b32 v11, s30")
    a("v_mul_f32 v11, 0x%08x, v11" % f32bits(-math.log2(math.e)))
    a("v_exp_f32 v11, v11")
    a("s_nop 0")
    a("v_add_f32 v11, 1.0, v11")
    a("v_rcp_f32 v11, v11")
    a("s_nop 0")
    bf16_round_to_f32(a, 11, 11)
    a("s_and_b32 s30, s81, 31")
    a("v_cmp_eq_u32 vcc, s30, v4")
    a("s_and_saveexec_b64 s[44:45], vcc")
    for i in range(16):
        y = YR + (i % 2) * 8 + i // 2
        bf16_round_to_f32(a, y, y)
        a("v_mul_f32 v%d, v%d, v11" % (y, y))
        bf16_round_to_f32(a, y, y)
        a("v_add_f32 v%d, v%d, v%d" % (B + i, B + i, y))
        bf16_round_to_f32(a, B + i, B + i)
    a("s_mov_b64 exec, s[44:45]")
    a.label("K3_NOSEL")
    for i in range(16):
        a("v_mul_f32 v%d, v%d, v9" % (B + i, B + i))
    for i in range(16):
        a("v_fma_f32 v%d, v%d, v8, v%d" % (B + i, ACC + i, B + i))
    for i in range(8):
        a("v_cvt_pk_bf16_f32 v%d, v%d, v%d" % (XR + i, B + 2 * i, B + 2 * i + 1))
    a("buffer_store_dwordx4 %s, v6, s[40:43], s29 offen" % vr(XR, 4))
    a("buffer_store_dwordx4 %s, v6, s[40:43], s29 offen offset:16" % vr(XR + 4, 4))
    stamp(a, 3, 24, 14, 2, 19, 4)
    a.label("K3_END")
    a("s_endpgm")
    return kernel_desc("k3_kernel", 200, sgpr=102)

def main():
    out = sys.argv[1] if len(sys.argv) > 1 else "cdna_kernels/%s.s" % NAME
    a = Asm()
    hdr = open("cdna_kernels/%s.s.ref" % NAME).read().split("\n")
    keep = [l for l in hdr if l.startswith(";") and "@launch" not in l and "Override launch" not in l and "grid=ceil" not in l]
    for l in keep:
        a.raw(l)
    a.raw("; @launch kernel=k1_kernel grid=(256,1,1) block=(256,1,1) lds=%d" % K1_LDS)
    a.raw("; @launch kernel=k2_kernel grid=(256,1,1) block=(512,1,1) lds=%d" % K2_LDS)
    a.raw("; @launch kernel=k3_kernel grid=(256,1,1) block=(256,1,1) lds=%d" % K3_LDS)
    a.raw('.amdgcn_target "amdgcn-amd-amdhsa--gfx950"')
    a.raw(".text")
    d1 = gen_k1(a)
    d2 = gen_k2(a)
    d3 = gen_k3(a)
    a.raw('.section .rodata,"a"')
    a.raw(d1); a.raw(d2); a.raw(d3)
    open(out, "w").write(a.text())

if __name__ == "__main__":
    main()
```

```python
import sys, math, struct

NAME = "gated_mix__mha_block__moe_arch_mod__prompt"

WS_KV = 0
WS_Q = 4 << 20
WS_M = 6 << 20
WS_O = 8 << 20
WS_G = 10 << 20
WS_RK = (10 << 20) + 65536
WS_Y = (10 << 20) + 131072
WS_ST = 11 << 20
WS_SIZE = 12 << 20
import os
STAMP = int(os.environ.get("STAMP", "0"))

def f32bits(x):
    return struct.unpack("<I", struct.pack("<f", x))[0]

class Asm:
    def __init__(self):
        self.l = []
    def __call__(self, s):
        for line in s.strip("\n").split("\n"):
            self.l.append("    " + line.strip())
    def label(self, s):
        self.l.append(s + ":")
    def raw(self, s):
        self.l.append(s)
    def c(self, s):
        self.l.append("    ; " + s)
    def text(self):
        return "\n".join(self.l) + "\n"

def vr(b, n):
    return "v[%d:%d]" % (b, b + n - 1)
def sr(b, n):
    return "s[%d:%d]" % (b, b + n - 1)

def srd(a, d, base, nbytes):
    a("s_mov_b32 s%d, s%d" % (d, base))
    a("s_and_b32 s%d, s%d, 0xffff" % (d + 1, base + 1))
    a("s_mov_b32 s%d, 0x%x" % (d + 2, nbytes))
    a("s_mov_b32 s%d, 0x00020000" % (d + 3))

def kernel_head(a, name):
    a.raw(".globl %s" % name)
    a.raw(".p2align 8")
    a.raw(".type %s,@function" % name)
    a.label(name)

def kernel_desc(name, vgpr, sgpr=96, accum=None):
    if accum is None:
        accum = (vgpr + 3) // 4 * 4
    return """.p2align 6
.amdhsa_kernel %s
  .amdhsa_next_free_vgpr %d
  .amdhsa_next_free_sgpr %d
  .amdhsa_accum_offset %d
  .amdhsa_group_segment_fixed_size 0
  .amdhsa_kernarg_size 96
  .amdhsa_user_sgpr_count 2
  .amdhsa_user_sgpr_kernarg_segment_ptr 1
  .amdhsa_system_sgpr_workgroup_id_x 1
.end_amdhsa_kernel
""" % (name, vgpr, sgpr, accum)

def stamp(a, idx, srdreg, vtmp, kernel_no, wavereg, nw):
    if not STAMP:
        return
    a("s_memtime s[100:101]")
    a("s_waitcnt lgkmcnt(0)")
    a("v_mov_b32 v%d, s100" % vtmp)
    a("s_mul_i32 s100, s2, %d" % nw)
    a("s_add_u32 s100, s100, s%d" % wavereg)
    a("s_lshl_b32 s100, s100, 6")
    a("s_add_u32 s100, s100, %d" % (WS_ST + kernel_no * 262144 + idx * 4))
    a("v_mov_b32 v%d, 0" % (vtmp + 1))
    a("buffer_store_dword v%d, v%d, %s, s100 offen" % (vtmp, vtmp + 1, sr(srdreg, 4)))

DBG = int(os.environ.get("DBG", "0"))
def dstamp(a, kernel_no, idx, vtmp, neg=False):
    if not DBG:
        return
    a("s_load_dwordx2 s[96:97], s[0:1], 80")
    a("s_memrealtime s[100:101]")
    a("s_waitcnt lgkmcnt(0)")
    if neg:
        a("s_not_b32 s100, s100")
    a("s_sub_u32 s96, s96, %d" % (512 * kernel_no))
    a("s_subb_u32 s97, s97, 0")
    a("v_mov_b32 v%d, s100" % vtmp)
    a("v_mov_b32 v%d, %d" % (vtmp + 1, idx * 4))
    a("s_mov_b64 s[98:99], exec")
    a("s_mov_b64 exec, 1")
    a("global_atomic_umax v%d, v%d, s[96:97]" % (vtmp + 1, vtmp))
    a("s_mov_b64 exec, s[98:99]")

MF32 = "v_mfma_f32_32x32x16_bf16"
MF16 = "v_mfma_f32_16x16x32_bf16"

def bf16_round_to_f32(a, dst, src, tmp=None):
    a("v_cvt_pk_bf16_f32 v%d, v%d, v%d" % (dst, src, src))
    a("v_lshlrev_b32 v%d, 16, v%d" % (dst, dst))

K1_RING = 2048
K1_SLOT = 28672
K1_NSLOT = 5
K1_LDS = K1_RING + K1_SLOT * K1_NSLOT

def gen_k1(a):
    kernel_head(a, "k1_kernel")
    a("s_cmp_ge_u32 s2, 256")
    a("s_cbranch_scc1 K1_END")
    dstamp(a, 0, 0, 134, True)
    dstamp(a, 0, 1, 134)
    a("s_load_dwordx4 s[4:7], s[0:1], 0")
    a("s_load_dwordx2 s[8:9], s[0:1], 32")
    a("s_load_dwordx2 s[10:11], s[0:1], 64")
    a("s_load_dwordx2 s[12:13], s[0:1], 88")
    a("s_and_b32 s16, s2, 7")
    a("s_lshr_b32 s17, s2, 3")
    a("s_and_b32 s14, s16, 3")
    a("s_lshl_b32 s14, s14, 2")
    a("s_and_b32 s18, s17, 3")
    a("s_add_u32 s14, s14, s18")
    a("s_lshr_b32 s15, s16, 2")
    a("s_lshl_b32 s15, s15, 3")
    a("s_lshr_b32 s18, s17, 2")
    a("s_add_u32 s15, s15, s18")
    a("v_lshrrev_b32 v1, 6, v0")
    a("v_and_b32 v0, 63, v0")
    a("v_readfirstlane_b32 s19, v1")
    a("v_lshrrev_b32 v2, 3, v0")
    a("v_lshlrev_b32 v2, 10, v2")
    a("v_and_b32 v3, 7, v0")
    a("v_lshrrev_b32 v4, 4, v0")
    a("v_xor_b32 v3, v3, v4")
    a("v_lshl_add_u32 v2, v3, 4, v2")
    a("v_xor_b32 v3, 64, v2")
    a("v_lshrrev_b32 v4, 2, v0")
    a("v_lshl_add_u32 v4, v1, 4, v4")
    a("v_mul_u32_u24 v4, 3072, v4")
    a("v_and_b32 v5, 3, v0")
    a("v_lshl_add_u32 v4, v5, 4, v4")
    a("s_lshl_b32 s18, s15, 6")
    a("v_add_u32 v4, s18, v4")
    a("v_lshlrev_b32 v5, 4, v0")
    a("s_waitcnt lgkmcnt(0)")
    srd(a, 20, 4, 2048 * 512 * 2)
    srd(a, 24, 6, 512 * 1536 * 2)
    srd(a, 28, 8, 1024)
    srd(a, 32, 10, 1024)
    srd(a, 36, 12, WS_SIZE)
    stamp(a, 0, 36, 134, 0, 19, 4)
    a("s_lshl_b32 s40, s14, 17")
    a("s_lshl_b32 s18, s19, 15")
    a("s_add_u32 s40, s40, s18")
    a("s_add_u32 s41, s40, 8192")
    a("s_add_u32 s42, s40, 16384")
    a("s_add_u32 s43, s40, 24576")
    a("s_lshl_b32 s44, s19, 12")
    a("s_mul_i32 s45, s19, 3072")
    a("s_mov_b32 m0, 0")
    a("s_nop 0")
    a("buffer_load_dwordx4 v5, s[32:35], 0 offen lds")
    a("s_mov_b32 m0, 1024")
    a("s_nop 0")
    a("buffer_load_dwordx4 v5, s[28:31], 0 offen lds")

    def issue_chunk(c):
        slot = c % K1_NSLOT
        base = K1_RING + slot * K1_SLOT
        a("s_mov_b32 s46, %d" % (c * 64 * 3072))
        a("s_add_u32 m0, s45, %d" % (base + 16384))
        a("s_nop 0")
        for t in range(3):
            a("buffer_load_dwordx4 v4, s[24:27], s46 offen offset:%d lds" % (t * 1024))
        for i in range(4):
            a("s_add_u32 m0, s44, %d" % (base + i * 1024 - c * 128))
            a("s_nop 0")
            a("buffer_load_dwordx4 v%d, s[20:23], s%d offen offset:%d lds" % (2 + (i & 1), 40 + i, c * 128))

    for c in range(K1_NSLOT):
        issue_chunk(c)

    XA = 8
    WA = 20
    RA = 23
    a("v_and_b32 v6, 31, v0")
    a("v_lshrrev_b32 v7, 5, v0")
    a("v_lshrrev_b32 v24, 1, v6")
    a("v_and_b32 v24, 7, v24")
    a("v_lshlrev_b32 v25, 7, v6")
    a("v_add_u32 v25, s44, v25")
    for ks in range(4):
        a("v_or_b32 v26, %d, v7" % (2 * ks))
        a("v_xor_b32 v26, v26, v24")
        a("v_lshl_add_u32 v%d, v26, 4, v25" % (XA + ks))
        a("v_add_u32 v%d, %d, v%d" % (XA + 4 + ks, 2 * K1_SLOT, XA + ks))
        a("v_add_u32 v%d, %d, v%d" % (XA + 8 + ks, 4 * K1_SLOT, XA + ks))
    a("v_lshlrev_b32 v24, 9, v7")
    a("v_lshrrev_b32 v25, 2, v0")
    a("v_and_b32 v25, 3, v25")
    a("v_lshl_add_u32 v24, v25, 6, v24")
    a("v_lshrrev_b32 v25, 4, v0")
    a("v_and_b32 v25, 1, v25")
    a("v_lshl_add_u32 v24, v25, 5, v24")
    a("v_and_b32 v25, 3, v0")
    a("v_lshl_add_u32 v%d, v25, 3, v24" % WA)
    a("v_add_u32 v%d, %d, v%d" % (WA + 1, 2 * K1_SLOT, WA))
    a("v_add_u32 v%d, %d, v%d" % (WA + 2, 4 * K1_SLOT, WA))
    a("v_and_b32 v25, 1, v0")
    a("v_lshlrev_b32 v25, 10, v25")
    a("v_lshl_add_u32 v%d, v7, 4, v25" % RA)

    ACC = 32
    FR = 96
    def frag(b, i):
        return FR + b * 20 + i * 4

    def reads(kk):
        c, ks = kk // 4, kk % 4
        slot = c % K1_NSLOT
        b = kk & 1
        off = K1_RING + (slot & 1) * K1_SLOT
        a("ds_read_b128 %s, v%d offset:%d" % (vr(frag(b, 0), 4), XA + (slot // 2) * 4 + ks, off))
        for t in range(3):
            for half in range(2):
                a("ds_read_b64_tr_b16 %s, v%d offset:%d" % (vr(frag(b, 1 + t) + 2 * half, 2), WA + slot // 2,
                                                           off + 16384 + ks * 3072 + t * 1024 + half * 256))
        a("ds_read_b128 %s, v%d offset:%d" % (vr(frag(b, 4), 4), RA, kk * 32))

    def mfmas(kk):
        b = kk & 1
        x = vr(frag(b, 0), 4)
        cz = lambda r: ("0" if kk == 0 else vr(r, 16))
        a("%s %s, %s, %s, %s" % (MF32, vr(ACC, 16), vr(frag(b, 1), 4), x, cz(ACC)))
        a("%s %s, %s, %s, %s" % (MF32, vr(ACC + 16, 16), vr(frag(b, 2), 4), x, cz(ACC + 16)))
        a("%s %s, %s, %s, %s" % (MF32, vr(ACC + 32, 16), x, vr(frag(b, 3), 4), cz(ACC + 32)))
        a("s_cbranch_scc1 K1_NR%d" % kk)
        a("%s %s, %s, %s, %s" % (MF32, vr(ACC + 48, 16), vr(frag(b, 4), 4), x, cz(ACC + 48)))
        a.label("K1_NR%d" % kk)

    vm_before = {0: 28, 1: 21, 2: 21, 3: 21, 4: 21, 5: 14, 6: 7, 7: 0}
    a("s_waitcnt vmcnt(%d)" % vm_before[0])
    a("s_barrier")
    stamp(a, 1, 36, 134, 0, 19, 4)
    dstamp(a, 0, 2, 134)
    reads(0)
    for kk in range(32):
        nx = kk + 1
        if nx < 32:
            if nx % 4 == 0:
                c = nx // 4
                a("s_waitcnt vmcnt(%d) lgkmcnt(0)" % vm_before[c])
                a("s_barrier")
                if c + 4 < 8:
                    issue_chunk(c + 4)
                reads(nx)
            else:
                reads(nx)
                a("s_waitcnt lgkmcnt(8)")
        else:
            a("s_waitcnt lgkmcnt(0)")
        a("s_cmp_lg_u32 s15, 0")
        mfmas(kk)

    a("s_nop 15")
    stamp(a, 2, 36, 134, 0, 19, 4)
    CS = math.log2(math.e) * 0.25
    a("s_mov_b32 s46, 0x%08x" % f32bits(CS))
    for r in range(16):
        a("v_mul_f32 v%d, s46, v%d" % (ACC + r, ACC + r))
    PK = FR
    for t in range(3):
        for r in range(8):
            a("v_cvt_pk_bf16_f32 v%d, v%d, v%d" % (PK + t * 8 + r, ACC + t * 16 + 2 * r, ACC + t * 16 + 2 * r + 1))
    a("s_nop 1")
    a("%s %s, %s, %s, 0" % (MF32, vr(ACC, 16), vr(PK + 8, 4), vr(PK, 4)))
    a("%s %s, %s, %s, 0" % (MF32, vr(ACC + 16, 16), vr(PK + 12, 4), vr(PK + 4, 4)))
    a("s_lshl_b32 s47, s14, 2")
    a("s_add_u32 s47, s47, s19")
    a("s_lshl_b32 s48, s15, 18")
    a("s_lshl_b32 s49, s47, 11")
    a("s_add_u32 s48, s48, s49")
    a("s_add_u32 s49, s48, 131072")
    a("buffer_store_dwordx4 %s, v5, s[36:39], s48 offen" % vr(PK + 8, 4))
    a("buffer_store_dwordx4 %s, v5, s[36:39], s49 offen" % vr(PK + 12, 4))
    a("v_lshrrev_b32 v24, 4, v6")
    a("v_lshlrev_b32 v24, 17, v24")
    a("v_lshl_add_u32 v24, v7, 8, v24")
    a("v_and_b32 v25, 15, v0")
    a("v_lshl_add_u32 v24, v25, 4, v24")
    a("buffer_store_dwordx4 %s, v24, s[36:39], s48 offen offset:1024" % vr(PK + 16, 4))
    a("buffer_store_dwordx4 %s, v24, s[36:39], s48 offen offset:1536" % vr(PK + 20, 4))
    a("s_lshl_b32 s50, s15, 17")
    a("s_lshl_b32 s51, s47, 10")
    a("s_add_u32 s50, s50, s51")
    a("s_add_u32 s50, s50, %d" % WS_Q)
    a("s_add_u32 s51, s50, 65536")
    a("buffer_store_dwordx4 %s, v5, s[36:39], s50 offen" % vr(PK, 4))
    a("buffer_store_dwordx4 %s, v5, s[36:39], s51 offen" % vr(PK + 4, 4))
    a("s_lshl_b32 s52, s15, 16")
    a("s_lshl_b32 s53, s47, 9")
    a("s_add_u32 s52, s52, s53")
    a("s_add_u32 s52, s52, %d" % WS_M)
    a("s_add_u32 s53, s52, 32768")
    a("v_lshlrev_b32 v26, 4, v6")
    a("s_nop 7")
    for h in range(2):
        S = ACC + 16 * h
        m = 120 + 4 * h
        a("v_max3_f32 v%d, v%d, v%d, v%d" % (m, S, S + 1, S + 2))
        for r in range(3, 15, 2):
            a("v_max3_f32 v%d, v%d, v%d, v%d" % (m, m, S + r, S + r + 1))
        a("v_max_f32 v%d, v%d, v%d" % (m, m, S + 15))
        a("v_mov_b32 v%d, v%d" % (m + 1, m))
        a("s_nop 1")
        a("v_permlane32_swap_b32 v%d, v%d" % (m, m + 1))
        a("v_max_f32 v%d, v%d, v%d" % (m, m, m + 1))
        a("v_sub_f32 v%d, 0, v%d" % (m, m))
        a("v_mov_b32 v%d, v%d" % (m + 1, m))
        a("v_mov_b32 v%d, v%d" % (m + 2, m))
        a("v_mov_b32 v%d, v%d" % (m + 3, m))
        a("buffer_store_dwordx4 %s, v26, s[36:39], s%d offen" % (vr(m, 4), 52 + h))
    stamp(a, 3, 36, 134, 0, 19, 4)
    dstamp(a, 0, 3, 134)
    a("s_cmp_lg_u32 s15, 0")
    a("s_cbranch_scc1 K1_END")
    R = ACC + 48
    bf16_round_to_f32(a, 128, R)
    a("v_mul_f32 v128, 0x%08x, v128" % f32bits(-math.log2(math.e)))
    a("v_exp_f32 v128, v128")
    a("s_nop 0")
    a("v_add_f32 v128, 1.0, v128")
    a("v_rcp_f32 v128, v128")
    a("s_nop 0")
    bf16_round_to_f32(a, 128, 128)
    a("v_sub_f32 v129, 1.0, v128")
    bf16_round_to_f32(a, 129, 129)
    a("s_lshl_b32 s54, s47, 8")
    a("s_add_u32 s54, s54, %d" % WS_G)
    a("v_lshlrev_b32 v27, 3, v6")
    a("buffer_store_dwordx2 v[128:129], v27, s[36:39], s54 offen")
    bf16_round_to_f32(a, 130, R + 1)
    a("v_ashrrev_i32 v131, 31, v130")
    a("v_or_b32 v131, 0x80000000, v131")
    a("v_xor_b32 v130, v130, v131")
    a("v_and_b32 v130, 0xffff0000, v130")
    a("s_lshl_b32 s55, s47, 5")
    a("v_add_u32 v131, s55, v6")
    a("v_sub_u32 v131, 0xffff, v131")
    a("v_or_b32 v130, v130, v131")
    for sh in (1, 2, 4, 8):
        a("s_nop 1")
        a("v_max_u32_dpp v130, v130, v130 row_ror:%d row_mask:0xf bank_mask:0xf" % sh)
    a("s_nop 0")
    a("v_readlane_b32 s56, v130, 0")
    a("v_readlane_b32 s57, v130, 16")
    a("s_nop 3")
    a("s_max_u32 s56, s56, s57")
    a("v_mov_b32 v131, s56")
    a("v_mov_b32 v132, 0")
    a("s_lshl_b32 s55, s47, 2")
    a("s_add_u32 s55, s55, %d" % WS_RK)
    a("buffer_store_dword v131, v132, s[36:39], s55 offen")
    a("s_cmp_lg_u32 s47, 0")
    a("s_cbranch_scc1 K1_END")
    a("v_mov_b32 v133, 0")
    a("v_mov_b32 v134, 0")
    a("v_mov_b32 v135, 0")
    a("s_mov_b32 s55, %d" % WS_Y)
    a("buffer_store_dwordx4 v[132:135], v5, s[36:39], s55 offen")
    a("buffer_store_dwordx4 v[132:135], v5, s[36:39], s55 offen offset:1024")
    a.label("K1_END")
    a("s_endpgm")
    return kernel_desc("k1_kernel", 136, sgpr=102)

K2_FLAG = 0
K2_MX = 256
K2_FFW = K2_MX + 8192
K2_FFP = K2_FFW + 8 * 2304
K2_CMB = K2_FFP + 1024
K2_LDS = K2_CMB + 32 * 2304

def gen_k2(a):
    kernel_head(a, "k2_kernel")
    Q, C, O, S, P = 8, 24, 88, 152, 184
    KB = [192, 204]
    T = 216
    a("s_cmp_ge_u32 s2, 256")
    a("s_cbranch_scc1 K2_END")
    dstamp(a, 1, 4, 250, True)
    dstamp(a, 1, 5, 250)
    a("s_load_dwordx2 s[4:5], s[0:1], 88")
    a("s_load_dwordx2 s[6:7], s[0:1], 0")
    a("s_load_dwordx4 s[8:11], s[0:1], 40")
    a("s_load_dwordx2 s[12:13], s[0:1], 56")
    a("v_lshrrev_b32 v1, 6, v0")
    a("v_and_b32 v0, 63, v0")
    a("v_readfirstlane_b32 s19, v1")
    a("s_and_b32 s14, s2, 7")
    a("s_lshl_b32 s14, s14, 2")
    a("s_lshr_b32 s16, s2, 3")
    a("s_and_b32 s16, s16, 3")
    a("s_add_u32 s14, s14, s16")
    a("s_lshr_b32 s15, s2, 5")
    a("v_lshlrev_b32 v2, 4, v0")
    a("v_and_b32 v3, 15, v0")
    a("v_lshlrev_b32 v3, 4, v3")
    a("v_lshrrev_b32 v4, 5, v0")
    a("v_lshl_add_u32 v3, v4, 8, v3")
    a("v_and_b32 v4, 31, v0")
    a("v_lshlrev_b32 v4, 4, v4")
    a("s_lshr_b32 s16, s19, 2")
    a("s_and_b32 s17, s19, 3")
    a("s_lshl_b32 s18, s15, 3")
    a("s_lshl_b32 s20, s16, 2")
    a("s_add_u32 s18, s18, s20")
    a("s_lshl_b32 s20, s14, 16")
    a("s_lshl_b32 s21, s18, 10")
    a("s_add_u32 s20, s20, s21")
    a("s_add_u32 s20, s20, %d" % WS_Q)
    a("s_lshl_b32 s21, s14, 15")
    a("s_lshl_b32 s22, s18, 9")
    a("s_add_u32 s21, s21, s22")
    a("s_add_u32 s21, s21, %d" % WS_M)
    a("s_lshl_b32 s22, s14, 17")
    a("s_lshl_b32 s23, s17, 15")
    a("s_add_u32 s22, s22, s23")
    a("s_mov_b32 s30, 0x0000ffff")
    a("s_mov_b32 s31, 0x0000ffff")
    a("s_mov_b32 s29, 0")
    a("s_mov_b32 s32, 0x15")
    a("s_mov_b32 s23, 0x3f803f80")
    for b in range(2):
        for r in range(4, 12):
            a("v_mov_b32 v%d, s23" % (KB[b] + r))
    a("s_waitcnt lgkmcnt(0)")
    srd(a, 24, 4, WS_SIZE)
    stamp(a, 0, 24, 250, 1, 19, 8)
    a("buffer_load_dwordx4 %s, v2, s[24:27], s20 offen" % vr(Q, 4))
    for i in range(4):
        a("buffer_load_dwordx4 %s, v4, s[24:27], s21 offen" % vr(C + 4 * i, 4))
    a.label("K2_PASS")
    a("buffer_load_dwordx4 %s, v2, s[24:27], s22 offen" % vr(KB[0], 4))
    a("s_mov_b64 exec, s[30:31]")
    a("buffer_load_dwordx4 %s, v3, s[24:27], s22 offen offset:1024" % vr(KB[0] + 4, 4))
    a("buffer_load_dwordx4 %s, v3, s[24:27], s22 offen offset:1536" % vr(KB[0] + 8, 4))
    a("s_mov_b64 exec, -1")
    a("s_cmp_lg_u32 s29, 0")
    a("s_cbranch_scc1 K2_P1")
    for j in range(1, 4):
        a("buffer_load_dwordx4 %s, v2, s[24:27], s20 offen offset:%d" % (vr(Q + 4 * j, 4), j * 1024))
        for i in range(4):
            a("buffer_load_dwordx4 %s, v4, s[24:27], s21 offen offset:%d" % (vr(C + 16 * j + 4 * i, 4), j * 512))
    a("s_add_u32 s4, s4, %d" % WS_RK)
    a("s_addc_u32 s5, s5, 0")
    for i in range(4):
        a("s_load_dwordx16 %s, s[4:5], %d" % (sr(36 + 16 * i, 16), 64 * i))
    a("v_mov_b32 v5, 0")
    a("ds_write_b32 v5, v5 offset:%d" % K2_FLAG)
    a.label("K2_P1")
    a("buffer_load_dwordx4 %s, v2, s[24:27], s22 offen offset:2048" % vr(KB[1], 4))
    a("v_lshlrev_b32 v5, 7, v0")
    for i in range(4):
        a("s_add_u32 s23, s22, %d" % (i * 8192))
        a("buffer_load_dword v%d, v5, s[24:27], s23 offen" % (T + 36 + i))
    for r in range(64):
        a("v_mov_b32 v%d, 0" % (O + r))
    for r in range(4, 8):
        a("v_mov_b32 v%d, 0" % (P + r))
    a("v_mov_b32 v%d, 0" % (S + 16 + 14))
    a("v_mov_b32 v%d, 0" % (S + 16 + 15))
    a("s_mov_b32 s28, s22")
    a("s_mov_b32 s23, 0")
    a("s_waitcnt vmcnt(5)")
    a("%s %s, %s, %s, %s" % (MF32, vr(S, 16), vr(KB[0], 4), vr(Q, 4), vr(C, 16)))
    a("s_nop 15")
    a("v_exp_f32 v%d, v%d" % (S, S))
    stamp(a, 1, 24, 250, 1, 19, 8)

    a.raw(".p2align 6")
    a.label("K2_LOOP")
    for tt in range(2):
        for j in range(4):
            cur = S + 16 * (j & 1)
            prv = S + 16 * ((j + 1) & 1)
            nxt = prv
            E = lambda r: a("v_exp_f32 v%d, v%d" % (cur + r, cur + r))
            CV = lambda r: a("v_cvt_pk_bf16_f32 v%d, v%d, v%d" % (P + r // 2, cur + r, cur + r + 1))
            pj = (j + 3) % 4
            pb = KB[tt] if j > 0 else KB[tt ^ 1]
            nj = (j + 1) % 4
            nb = KB[tt] if j < 3 else KB[tt ^ 1]
            a("v_cvt_pk_bf16_f32 v%d, v%d, v%d" % (P + 7, prv + 14, prv + 15))
            if j == 3:
                a("s_waitcnt vmcnt(1)")
                if tt == 0:
                    a("s_bitcmp1_b32 s32, s23")
                    a("s_cbranch_scc1 K2_HOOK")
                    a.label("K2_HRET")
            a("%s %s, %s, %s, %s" % (MF32, vr(nxt, 16), vr(nb, 4), vr(Q + 4 * nj, 4), vr(C + 16 * nj, 16)))
            if j == 2:
                a("buffer_load_dwordx4 %s, v2, s[24:27], s28 offen offset:%d" % (vr(KB[tt], 4), tt * 2048))
            E(1); E(2); CV(0); E(3); E(4); CV(2); E(5)
            a("%s %s, %s, %s, %s" % (MF32, vr(O + 16 * pj, 16), vr(pb + 8, 4), vr(P + 4, 4), vr(O + 16 * pj, 16)))
            if j == 0:
                a("s_mov_b64 exec, s[30:31]")
                off = 3072 if tt == 0 else 1024
                a("buffer_load_dwordx4 %s, v3, s[24:27], s28 offen offset:%d" % (vr(KB[tt ^ 1] + 4, 4), off))
                a("buffer_load_dwordx4 %s, v3, s[24:27], s28 offen offset:%d" % (vr(KB[tt ^ 1] + 8, 4), off + 512))
                a("s_mov_b64 exec, -1")
                if tt == 0:
                    a("s_add_u32 s28, s28, 4096")
            E(6); CV(4); E(7); E(8); CV(6); E(9); E(10)
            a("%s %s, %s, %s, %s" % (MF32, vr(O + 16 * j, 16), vr(KB[tt] + 4, 4), vr(P, 4), vr(O + 16 * j, 16)))
            CV(8); E(11); E(12); CV(10); E(13); E(14); CV(12); E(15)
            a("v_exp_f32 v%d, v%d" % (nxt, nxt))
    if STAMP:
        a("s_memtime s[100:101]")
        a("s_waitcnt lgkmcnt(0)")
        a("v_mov_b32 v250, s100")
        a("s_lshl_b32 s100, s2, 3")
        a("s_add_u32 s100, s100, s19")
        a("s_lshl_b32 s100, s100, 4")
        a("s_add_u32 s100, s100, s23")
        a("s_lshl_b32 s100, s100, 2")
        a("s_add_u32 s100, s100, %d" % (WS_ST + 262144 + 8))
        a("v_mov_b32 v251, 0")
        a("buffer_store_dword v250, v251, s[24:27], s100 offen")
    a("s_add_u32 s23, s23, 1")
    a("s_cmp_lt_u32 s23, 8")
    a("s_cbranch_scc1 K2_LOOP")
    a("v_cvt_pk_bf16_f32 v%d, v%d, v%d" % (P + 7, S + 16 + 14, S + 16 + 15))
    a("s_nop 1")
    a("%s %s, %s, %s, %s" % (MF32, vr(O + 48, 16), vr(KB[1] + 8, 4), vr(P + 4, 4), vr(O + 48, 16)))
    a("s_lshl_b32 s23, s16, 4")
    a("s_add_u32 s23, s23, s17")
    a("s_mul_i32 s23, s23, 2304")
    a("v_add_u32 v5, s23, v2")
    a("v_lshlrev_b32 v6, 2, v0")
    a("v_add_u32 v6, s23, v6")
    a("s_mov_b32 s23, 0x4f800000")
    a("s_nop 4")
    for j in range(4):
        a("ds_write_b128 v5, %s offset:%d" % (vr(O + 16 * j, 4), K2_CMB + j * 9216))
        a("ds_write_b128 v5, %s offset:%d" % (vr(O + 16 * j + 4, 4), K2_CMB + j * 9216 + 1024))
        a("ds_write_b32 v6, v%d offset:%d" % (O + 16 * j + 8, K2_CMB + j * 9216 + 2048))
    a("v_max3_f32 v7, v%d, v%d, v%d" % (O + 8, O + 24, O + 40))
    a("v_cmp_u_f32 s[56:57], v%d, v%d" % (O + 8, O + 24))
    a("v_cmp_u_f32 s[58:59], v%d, v%d" % (O + 40, O + 56))
    a("v_max_f32 v7, v7, v%d" % (O + 56))
    a("v_cmp_lt_f32 vcc, s23, v7")
    a("s_nop 3")
    a("s_or_b64 s[56:57], s[56:57], s[58:59]")
    a("s_or_b64 s[56:57], s[56:57], vcc")
    a("s_cmp_eq_u64 s[56:57], 0")
    a("s_cbranch_scc1 K2_NOFLAG")
    a("v_mov_b32 v7, 1")
    a("v_mov_b32 v%d, 0" % T)
    a("ds_write_b32 v%d, v7 offset:%d" % (T, K2_FLAG))
    a.label("K2_NOFLAG")
    a("s_waitcnt lgkmcnt(0)")
    a("s_barrier")
    a("s_lshl_b32 s23, s16, 2")
    a("s_add_u32 s23, s23, s17")
    a("s_mul_i32 s23, s23, 9216")
    a("v_add_u32 v5, s23, v2")
    a("v_lshlrev_b32 v6, 2, v0")
    a("v_add_u32 v6, s23, v6")
    a("v_mov_b32 v7, 0")
    a("ds_read_b32 v7, v7 offset:%d" % K2_FLAG)
    for j in range(4):
        a("ds_read_b128 %s, v5 offset:%d" % (vr(O + 16 * j, 4), K2_CMB + j * 2304))
        a("ds_read_b128 %s, v5 offset:%d" % (vr(O + 16 * j + 4, 4), K2_CMB + j * 2304 + 1024))
        a("ds_read_b32 v%d, v6 offset:%d" % (O + 16 * j + 8, K2_CMB + j * 2304 + 2048))
    a("s_waitcnt lgkmcnt(0)")
    a("v_readfirstlane_b32 s23, v7")
    a("s_nop 3")
    a("s_cmp_gt_u32 s23, s29")
    a("s_cbranch_scc1 K2_EXACT")
    for r in range(9):
        a("v_add_f32 v%d, v%d, v%d" % (O + r, O + r, O + 16 + r))
        a("v_add_f32 v%d, v%d, v%d" % (O + 32 + r, O + 32 + r, O + 48 + r))
    for r in range(9):
        a("v_add_f32 v%d, v%d, v%d" % (O + r, O + r, O + 32 + r))
    a("v_rcp_f32 v%d, v%d" % (O + 8, O + 8))
    a("s_nop 0")
    for r in range(8):
        a("v_mul_f32 v%d, v%d, v%d" % (O + r, O + r, O + 8))
    for r in range(4):
        a("v_cvt_pk_bf16_f32 v%d, v%d, v%d" % (O + 16 + r, O + 2 * r, O + 2 * r + 1))
    a("s_add_u32 s23, s18, s17")
    a("s_lshl_b32 s23, s23, 15")
    a("s_lshl_b32 s28, s14, 10")
    a("s_add_u32 s23, s23, s28")
    a("s_add_u32 s23, s23, %d" % WS_O)
    a("buffer_store_dwordx4 %s, v2, s[24:27], s23 offen" % vr(O + 16, 4))
    stamp(a, 10, 24, 250, 1, 19, 8)
    dstamp(a, 1, 7, 250)
    a.label("K2_END")
    a("s_endpgm")

    a.label("K2_HOOK")
    a("s_cmp_eq_u32 s23, 4")
    a("s_cbranch_scc1 K2_FFN2")
    a("s_cmp_ge_u32 s2, 224")
    a("s_cbranch_scc1 K2_HRET")
    a("s_cmp_eq_u32 s23, 2")
    a("s_cbranch_scc1 K2_FFN1")
    a("s_waitcnt lgkmcnt(0)")
    for i in range(36, 99):
        a("s_max_u32 s99, s99, s%d" % i)
    srd(a, 36, 6, 2048 * 512 * 2)
    srd(a, 40, 8, 512 * 1792 * 2)
    srd(a, 44, 10, 512 * 1792 * 2)
    srd(a, 48, 12, 1792 * 512 * 2)
    a("s_and_b32 s52, s99, 0xffff")
    a("s_sub_u32 s52, 0xffff, s52")
    a("s_and_b32 s52, s52, 2047")
    a("s_lshl_b32 s52, s52, 10")
    a("s_lshl_b32 s53, s19, 7")
    a("s_add_u32 s52, s52, s53")
    a("v_lshl_add_u32 v5, v1, 6, v0")
    a("v_mul_u32_u24 v5, 3584, v5")
    a("s_lshl_b32 s53, s2, 4")
    a("s_mul_i32 s54, s19, 2304")
    a("s_add_u32 m0, s54, %d" % K2_FFW)
    a("v_lshrrev_b32 v6, 4, v0")
    a("buffer_load_dwordx4 v5, s[40:43], s53 offen lds")
    a("s_add_u32 m0, s54, %d" % (K2_FFW + 1152))
    a("v_lshlrev_b32 v6, 4, v6")
    a("buffer_load_dwordx4 v5, s[44:47], s53 offen lds")
    a("buffer_load_dwordx4 %s, v6, s[36:39], s52 offen" % vr(T, 4))
    a("buffer_load_dwordx4 %s, v6, s[36:39], s52 offen offset:64" % vr(T + 4, 4))
    a("s_cmp_ge_u32 s19, 4")
    a("s_cbranch_scc1 K2_HRET")
    a("s_lshl_b32 s52, s2, 13")
    a("s_lshl_b32 s53, s17, 8")
    a("s_add_u32 s52, s52, s53")
    a("v_lshlrev_b32 v6, 2, v0")
    a("s_add_u32 s53, s52, 4096")
    for f in range(8):
        a("buffer_load_dword v%d, v6, s[48:51], s%d offen offset:%d" % (T + 20 + f, 52 + f // 4, (f % 4) * 1024))
    a("s_branch K2_HRET")

    a.label("K2_FFN1")
    a("v_lshrrev_b32 v5, 4, v0")
    a("v_lshlrev_b32 v5, 7, v5")
    a("v_bfe_u32 v6, v0, 2, 2")
    a("v_lshl_add_u32 v5, v6, 4, v5")
    a("v_and_b32 v6, 1, v0")
    a("v_lshl_add_u32 v5, v6, 3, v5")
    a("v_bfe_u32 v6, v0, 1, 1")
    a("v_mul_u32_u24 v6, 1152, v6")
    a("s_mul_i32 s52, s19, 2304")
    a("v_add3_u32 v5, v5, v6, s52")
    for s in range(2):
        for half in range(2):
            a("ds_read_b64_tr_b16 %s, v5 offset:%d" % (vr(T + 8 + 4 * s + 2 * half, 2), K2_FFW + s * 512 + half * 64))
    a("v_and_b32 v5, 15, v0")
    a("v_lshlrev_b32 v5, 5, v5")
    a("s_lshl_b32 s52, s19, 2")
    a("v_add_u32 v5, s52, v5")
    a("s_waitcnt lgkmcnt(0)")
    a("%s %s, %s, %s, 0" % (MF16, vr(T + 16, 4), vr(T, 4), vr(T + 8, 4)))
    a("%s %s, %s, %s, %s" % (MF16, vr(T + 16, 4), vr(T + 4, 4), vr(T + 12, 4), vr(T + 16, 4)))
    a("s_nop 8")
    a("ds_write_b32 v5, v%d offset:%d" % (T + 16, K2_FFP))
    a("s_branch K2_HRET")

    a.label("K2_FFN2")
    a("s_waitcnt lgkmcnt(0)")
    a("s_barrier")
    a("s_cmp_ge_u32 s2, 224")
    a("s_cbranch_scc1 K2_HRET")
    a("s_cmp_ge_u32 s19, 4")
    a("s_cbranch_scc1 K2_HRET")
    a("v_and_b32 v5, 15, v0")
    a("v_lshlrev_b32 v5, 5, v5")
    a("ds_read_b128 %s, v5 offset:%d" % (vr(T, 4), K2_FFP))
    a("ds_read_b128 %s, v5 offset:%d" % (vr(T + 4, 4), K2_FFP + 16))
    a("s_waitcnt lgkmcnt(0)")
    a("v_pk_add_f32 %s, %s, %s" % (vr(T, 2), vr(T, 2), vr(T + 2, 2)))
    a("v_pk_add_f32 %s, %s, %s" % (vr(T + 4, 2), vr(T + 4, 2), vr(T + 6, 2)))
    a("v_pk_add_f32 %s, %s, %s" % (vr(T, 2), vr(T, 2), vr(T + 4, 2)))
    a("v_add_f32 v%d, v%d, v%d" % (T, T, T + 1))
    bf16_round_to_f32(a, T, T)
    a("v_mul_f32 v%d, 0x%08x, v%d" % (T + 1, f32bits(-math.log2(math.e)), T))
    a("v_exp_f32 v%d, v%d" % (T + 1, T + 1))
    a("v_mov_b32_dpp v%d, v%d row_ror:8 row_mask:0xf bank_mask:0xf" % (T + 2, T))
    a("v_add_f32 v%d, 1.0, v%d" % (T + 1, T + 1))
    a("v_rcp_f32 v%d, v%d" % (T + 1, T + 1))
    a("v_mov_b32 v%d, 0" % (T + 4))
    a("v_mul_f32 v%d, v%d, v%d" % (T + 1, T + 1, T))
    bf16_round_to_f32(a, T + 1, T + 1)
    a("v_mul_f32 v%d, v%d, v%d" % (T + 1, T + 1, T + 2))
    a("v_cvt_pk_bf16_f32 v%d, v%d, v%d" % (T + 1, T + 1, T + 4))
    a("v_mov_b32 v%d, 0" % (T + 5))
    for i in range(8):
        a("v_readlane_b32 s%d, v%d, %d" % (60 + i, T + 1, i))
    a("v_lshlrev_b32 v6, 2, v0")
    a("s_lshl_b32 s52, s17, 9")
    a("s_add_u32 s52, s52, %d" % WS_Y)
    for i in range(8):
        a("s_lshl_b32 s%d, s%d, 16" % (68 + i, 60 + i))
    for i in range(8):
        a("v_dot2_f32_bf16 v%d, v%d, s%d, v%d" % (T + 4, T + 20 + i, 60 + i, T + 4))
        a("v_dot2_f32_bf16 v%d, v%d, s%d, v%d" % (T + 5, T + 20 + i, 68 + i, T + 5))
    a("s_nop 3")
    a("buffer_atomic_add_f32 v%d, v6, s[24:27], s52 offen" % (T + 4))
    a("buffer_atomic_add_f32 v%d, v6, s[24:27], s52 offen offset:256" % (T + 5))
    a("s_branch K2_HRET")

    a.label("K2_EXACT")
    a("s_mov_b32 s29, 1")
    a("s_mov_b32 s32, 0")
    a("s_mov_b32 s23, 0xff800000")
    for j in range(4):
        a("v_mov_b32 v%d, s23" % (T + j))
    a("s_mov_b32 s28, s22")
    a("s_mov_b32 s23, 0")
    a.label("K2_EXLOOP")
    a("buffer_load_dwordx4 %s, v2, s[24:27], s28 offen" % vr(KB[0], 4))
    a("s_waitcnt vmcnt(0)")
    for j in range(4):
        a("%s %s, %s, %s, 0" % (MF32, vr(S, 16), vr(KB[0], 4), vr(Q + 4 * j, 4)))
        a("s_nop 15")
        for r in range(0, 16, 2):
            a("v_max3_f32 v%d, v%d, v%d, v%d" % (T + j, T + j, S + r, S + r + 1))
    a("s_add_u32 s28, s28, 2048")
    a("s_add_u32 s23, s23, 1")
    a("s_cmp_lt_u32 s23, 16")
    a("s_cbranch_scc1 K2_EXLOOP")
    a("v_lshlrev_b32 v6, 2, v0")
    a("s_lshl_b32 s23, s19, 10")
    a("v_add_u32 v5, s23, v6")
    for j in range(4):
        a("ds_write_b32 v5, v%d offset:%d" % (T + j, K2_MX + j * 256))
    a("s_waitcnt lgkmcnt(0)")
    a("s_barrier")
    a("v_and_b32 v5, 31, v0")
    a("v_lshlrev_b32 v5, 2, v5")
    a("s_lshl_b32 s23, s16, 12")
    a("v_add_u32 v5, s23, v5")
    for j in range(4):
        for kq in range(4):
            for hh in range(2):
                a("ds_read_b32 v%d, v5 offset:%d" % (S + kq * 2 + hh, K2_MX + kq * 1024 + j * 256 + hh * 128))
        a("s_waitcnt lgkmcnt(0)")
        a("v_max3_f32 v%d, v%d, v%d, v%d" % (S, S, S + 1, S + 2))
        a("v_max3_f32 v%d, v%d, v%d, v%d" % (S, S, S + 3, S + 4))
        a("v_max3_f32 v%d, v%d, v%d, v%d" % (S, S, S + 5, S + 6))
        a("v_max_f32 v%d, v%d, v%d" % (S, S, S + 7))
        for r in range(16):
            a("v_sub_f32 v%d, 0, v%d" % (C + 16 * j + r, S))
    a("s_mov_b32 s23, 0x3f803f80")
    for r in range(4, 12):
        a("v_mov_b32 v%d, s23" % (KB[1] + r))
    a("s_branch K2_PASS")
    return kernel_desc("k2_kernel", 256, sgpr=102)

K3_LDS = 65536

def gen_k3(a):
    kernel_head(a, "k3_kernel")
    OF = 32
    ACC = 16
    WF = 160
    XR = 176
    YR = 184
    a("s_cmp_ge_u32 s2, 256")
    a("s_cbranch_scc1 K3_END")
    dstamp(a, 2, 8, 14, True)
    dstamp(a, 2, 9, 14)
    a("s_load_dwordx2 s[4:5], s[0:1], 88")
    a("s_load_dwordx2 s[6:7], s[0:1], 0")
    a("s_load_dwordx2 s[8:9], s[0:1], 16")
    a("s_load_dwordx2 s[10:11], s[0:1], 72")
    a("v_lshrrev_b32 v1, 6, v0")
    a("v_and_b32 v0, 63, v0")
    a("v_readfirstlane_b32 s19, v1")
    a("s_and_b32 s14, s2, 7")
    a("s_lshl_b32 s14, s14, 2")
    a("s_lshr_b32 s16, s2, 3")
    a("s_and_b32 s17, s16, 3")
    a("s_add_u32 s14, s14, s17")
    a("s_lshr_b32 s15, s16, 2")
    a("s_and_b32 s16, s19, 1")
    a("s_lshr_b32 s17, s19, 1")
    a("s_lshl_b32 s18, s14, 1")
    a("s_add_u32 s18, s18, s16")
    a("v_lshlrev_b32 v2, 4, v0")
    a("v_lshrrev_b32 v3, 2, v0")
    a("v_lshlrev_b32 v3, 10, v3")
    a("v_and_b32 v4, 3, v0")
    a("v_lshl_add_u32 v3, v4, 4, v3")
    a("s_lshl_b32 s20, s15, 7")
    a("s_lshl_b32 s21, s17, 6")
    a("s_add_u32 s20, s20, s21")
    a("s_lshl_b32 s21, s16, 14")
    a("s_add_u32 s21, s21, s20")
    a("s_lshl_b32 s22, s17, 15")
    a("s_lshl_b32 s23, s16, 10")
    a("s_add_u32 s22, s22, s23")
    a("s_lshl_b32 s23, s18, 15")
    a("s_add_u32 s23, s23, %d" % WS_O)
    a("s_waitcnt lgkmcnt(0)")
    srd(a, 24, 4, WS_SIZE)
    srd(a, 32, 6, 2048 * 512 * 2)
    srd(a, 36, 8, 512 * 512 * 2)
    srd(a, 40, 10, 2048 * 512 * 2)
    stamp(a, 0, 24, 14, 2, 19, 4)
    a("s_add_u32 s4, s4, %d" % WS_RK)
    a("s_addc_u32 s5, s5, 0")
    a("s_load_dwordx16 s[48:63], s[4:5], 0")
    a("s_load_dwordx16 s[64:79], s[4:5], 64")
    for g in range(4):
        for i in range(4):
            hp = g * 4 + i
            a("s_add_u32 m0, s22, %d" % (hp * 2048))
            a("s_add_u32 s28, s21, %d" % (hp * 32768))
            a("buffer_load_dwordx4 v3, s[36:39], s28 offen lds")
        for i in range(8):
            h = g * 8 + i
            if h % 4 == 0:
                a("s_add_u32 s28, s23, %d" % (h * 1024))
            a("buffer_load_dwordx4 %s, v2, s[24:27], s28 offen offset:%d" % (vr(OF + 4 * h, 4), (h % 4) * 1024))
    a("v_and_b32 v4, 31, v0")
    a("v_lshrrev_b32 v5, 5, v0")
    a("v_lshlrev_b32 v6, 10, v4")
    a("v_lshl_add_u32 v6, v5, 5, v6")
    a("s_lshl_b32 s29, s18, 15")
    a("s_add_u32 s29, s29, s20")
    a("buffer_load_dwordx4 %s, v6, s[32:35], s29 offen" % vr(XR, 4))
    a("buffer_load_dwordx4 %s, v6, s[32:35], s29 offen offset:16" % vr(XR + 4, 4))
    a("v_lshlrev_b32 v7, 3, v4")
    a("s_lshl_b32 s30, s18, 8")
    a("s_add_u32 s30, s30, %d" % WS_G)
    a("buffer_load_dwordx2 v[8:9], v7, s[24:27], s30 offen")
    a("v_lshlrev_b32 v7, 5, v5")
    a("s_lshr_b32 s30, s20, 8")
    a("s_lshl_b32 s30, s30, 9")
    a("s_and_b32 s31, s20, 255")
    a("s_add_u32 s30, s30, s31")
    a("s_add_u32 s30, s30, %d" % WS_Y)
    for i in range(4):
        a("buffer_load_dwordx4 %s, v7, s[24:27], s30 offen offset:%d" % (vr(YR + 4 * i, 4), (i // 2) * 256 + (i % 2) * 16))
    NTAIL = 7
    a("v_lshrrev_b32 v10, 2, v0")
    a("v_and_b32 v10, 3, v10")
    a("v_lshl_add_u32 v10, v5, 2, v10")
    a("v_lshlrev_b32 v10, 6, v10")
    a("v_and_b32 v11, 1, v0")
    a("v_lshl_add_u32 v10, v11, 5, v10")
    a("v_bfe_u32 v11, v0, 1, 1")
    a("v_bfe_u32 v12, v0, 4, 1")
    a("v_lshl_add_u32 v11, v12, 1, v11")
    a("v_lshl_add_u32 v10, v11, 3, v10")
    a("s_lshl_b32 s30, s17, 15")
    a("v_add_u32 v10, s30, v10")
    a("s_waitcnt lgkmcnt(0)")
    for i in range(49, 80):
        a("s_max_u32 s48, s48, s%d" % i)
    a("s_mov_b32 s80, s48")
    a("s_load_dwordx16 s[48:63], s[4:5], 128")
    a("s_load_dwordx16 s[64:79], s[4:5], 192")
    a("s_waitcnt lgkmcnt(0)")
    for i in range(48, 80):
        a("s_max_u32 s80, s80, s%d" % i)
    a("s_and_b32 s81, s80, 0xffff")
    a("s_sub_u32 s81, 0xffff, s81")

    stamp(a, 1, 24, 14, 2, 19, 4)
    def wreads(h):
        b = WF + 4 * (h % 4)
        a("ds_read_b64_tr_b16 %s, v10 offset:%d" % (vr(b, 2), h * 1024))
        a("ds_read_b64_tr_b16 %s, v10 offset:%d" % (vr(b + 2, 2), h * 1024 + 512))

    for g in range(4):
        rest = (3 - g) * 12 + NTAIL
        a("s_waitcnt vmcnt(%d)" % (rest + 8))
        a("s_barrier")
        for i in range(3):
            wreads(g * 8 + i)
        for i in range(8):
            h = g * 8 + i
            if i + 3 < 8:
                wreads(h + 3)
                a("s_waitcnt vmcnt(%d) lgkmcnt(6)" % (rest + 7 - i))
            else:
                a("s_waitcnt vmcnt(%d) lgkmcnt(%d)" % (rest + 7 - i, 2 * (7 - i)))
            a("%s %s, %s, %s, %s" % (MF32, vr(ACC, 16), vr(WF + 4 * (h % 4), 4), vr(OF + 4 * h, 4), "0" if h == 0 else vr(ACC, 16)))
    a("s_waitcnt vmcnt(0)")
    stamp(a, 2, 24, 14, 2, 19, 4)
    B = 32
    for i in range(8):
        a("v_lshlrev_b32 v%d, 16, v%d" % (B + 2 * i, XR + i))
        a("v_and_b32 v%d, 0xffff0000, v%d" % (B + 2 * i + 1, XR + i))
    a("s_lshr_b32 s30, s81, 5")
    a("s_cmp_lg_u32 s30, s18")
    a("s_cbranch_scc1 K3_NOSEL")
    a("s_and_b32 s30, s80, 0xffff0000")
    a("s_ashr_i32 s31, s30, 31")
    a("s_not_b32 s31, s31")
    a("s_or_b32 s31, s31, 0x80000000")
    a("s_xor_b32 s30, s30, s31")
    a("s_and_b32 s30, s30, 0xffff0000")
    a("v_mov_b32 v11, s30")
    a("v_mul_f32 v11, 0x%08x, v11" % f32bits(-math.log2(math.e)))
    a("v_exp_f32 v11, v11")
    a("s_nop 0")
    a("v_add_f32 v11, 1.0, v11")
    a("v_rcp_f32 v11, v11")
    a("s_nop 0")
    bf16_round_to_f32(a, 11, 11)
    a("s_and_b32 s30, s81, 31")
    a("v_cmp_eq_u32 vcc, s30, v4")
    a("s_and_saveexec_b64 s[44:45], vcc")
    for i in range(16):
        y = YR + (i % 2) * 8 + i // 2
        bf16_round_to_f32(a, y, y)
        a("v_mul_f32 v%d, v%d, v11" % (y, y))
        bf16_round_to_f32(a, y, y)
        a("v_add_f32 v%d, v%d, v%d" % (B + i, B + i, y))
        bf16_round_to_f32(a, B + i, B + i)
    a("s_mov_b64 exec, s[44:45]")
    a.label("K3_NOSEL")
    for i in range(16):
        a("v_mul_f32 v%d, v%d, v9" % (B + i, B + i))
    for i in range(16):
        a("v_fma_f32 v%d, v%d, v8, v%d" % (B + i, ACC + i, B + i))
    for i in range(8):
        a("v_cvt_pk_bf16_f32 v%d, v%d, v%d" % (XR + i, B + 2 * i, B + 2 * i + 1))
    a("buffer_store_dwordx4 %s, v6, s[40:43], s29 offen" % vr(XR, 4))
    a("buffer_store_dwordx4 %s, v6, s[40:43], s29 offen offset:16" % vr(XR + 4, 4))
    stamp(a, 3, 24, 14, 2, 19, 4)
    dstamp(a, 2, 11, 14)
    a.label("K3_END")
    a("s_endpgm")
    return kernel_desc("k3_kernel", 200, sgpr=102)

def main():
    out = sys.argv[1] if len(sys.argv) > 1 else "cdna_kernels/%s.s" % NAME
    a = Asm()
    hdr = open("cdna_kernels/%s.s.ref" % NAME).read().split("\n")
    keep = [l for l in hdr if l.startswith(";") and "@launch" not in l and "Override launch" not in l and "grid=ceil" not in l]
    for l in keep:
        a.raw(l)
    a.raw("; @launch kernel=k1_kernel grid=(256,1,1) block=(256,1,1) lds=%d" % K1_LDS)
    a.raw("; @launch kernel=k2_kernel grid=(256,1,1) block=(512,1,1) lds=%d" % K2_LDS)
    a.raw("; @launch kernel=k3_kernel grid=(256,1,1) block=(256,1,1) lds=%d" % K3_LDS)
    a.raw('.amdgcn_target "amdgcn-amd-amdhsa--gfx950"')
    a.raw(".text")
    d1 = gen_k1(a)
    d2 = gen_k2(a)
    d3 = gen_k3(a)
    a.raw('.section .rodata,"a"')
    a.raw(d1); a.raw(d2); a.raw(d3)
    open(out, "w").write(a.text())

if __name__ == "__main__":
    main()
```

```python
import sys, math, struct

NAME = "gated_mix__mha_block__moe_arch_mod__prompt"

WS_KV = 0
WS_Q = 4 << 20
WS_M = 6 << 20
WS_O = 8 << 20
WS_G = 10 << 20
WS_RK = (10 << 20) + 65536
WS_Y = (10 << 20) + 131072
WS_ST = 11 << 20
WS_SIZE = 12 << 20
import os
STAMP = int(os.environ.get("STAMP", "0"))

def f32bits(x):
    return struct.unpack("<I", struct.pack("<f", x))[0]

class Asm:
    def __init__(self):
        self.l = []
    def __call__(self, s):
        for line in s.strip("\n").split("\n"):
            self.l.append("    " + line.strip())
    def label(self, s):
        self.l.append(s + ":")
    def raw(self, s):
        self.l.append(s)
    def c(self, s):
        self.l.append("    ; " + s)
    def text(self):
        return "\n".join(self.l) + "\n"

def vr(b, n):
    return "v[%d:%d]" % (b, b + n - 1)
def sr(b, n):
    return "s[%d:%d]" % (b, b + n - 1)

def srd(a, d, base, nbytes):
    a("s_mov_b32 s%d, s%d" % (d, base))
    a("s_and_b32 s%d, s%d, 0xffff" % (d + 1, base + 1))
    a("s_mov_b32 s%d, 0x%x" % (d + 2, nbytes))
    a("s_mov_b32 s%d, 0x00020000" % (d + 3))

def kernel_head(a, name):
    a.raw(".globl %s" % name)
    a.raw(".p2align 8")
    a.raw(".type %s,@function" % name)
    a.label(name)

def kernel_desc(name, vgpr, sgpr=96, accum=None):
    if accum is None:
        accum = (vgpr + 3) // 4 * 4
    return """.p2align 6
.amdhsa_kernel %s
  .amdhsa_next_free_vgpr %d
  .amdhsa_next_free_sgpr %d
  .amdhsa_accum_offset %d
  .amdhsa_group_segment_fixed_size 0
  .amdhsa_kernarg_size 96
  .amdhsa_user_sgpr_count 2
  .amdhsa_user_sgpr_kernarg_segment_ptr 1
  .amdhsa_system_sgpr_workgroup_id_x 1
.end_amdhsa_kernel
""" % (name, vgpr, sgpr, accum)

def stamp(a, idx, srdreg, vtmp, kernel_no, wavereg, nw):
    if not STAMP:
        return
    a("s_memtime s[100:101]")
    a("s_waitcnt lgkmcnt(0)")
    a("v_mov_b32 v%d, s100" % vtmp)
    a("s_mul_i32 s100, s2, %d" % nw)
    a("s_add_u32 s100, s100, s%d" % wavereg)
    a("s_lshl_b32 s100, s100, 6")
    a("s_add_u32 s100, s100, %d" % (WS_ST + kernel_no * 262144 + idx * 4))
    a("v_mov_b32 v%d, 0" % (vtmp + 1))
    a("buffer_store_dword v%d, v%d, %s, s100 offen" % (vtmp, vtmp + 1, sr(srdreg, 4)))

DBG = int(os.environ.get("DBG", "0"))
_dn = [0]
def dstamp(a, kernel_no, idx, vtmp, neg=False):
    if not DBG:
        return
    _dn[0] += 1
    a("s_and_b32 s96, s2, 0x1b")
    a("s_cmp_lg_u32 s96, 0")
    a("s_cbranch_scc1 DS%d" % _dn[0])
    a("s_load_dwordx2 s[96:97], s[0:1], 80")
    a("s_memrealtime s[100:101]")
    a("s_waitcnt lgkmcnt(0)")
    if neg:
        a("s_not_b32 s100, s100")
    a("s_add_u32 s96, s96, %d" % (512 * (NK - 1 - kernel_no)))
    a("s_addc_u32 s97, s97, 0")
    a("v_mov_b32 v%d, s100" % vtmp)
    a("v_mov_b32 v%d, %d" % (vtmp + 1, idx * 4))
    a("s_mov_b64 s[98:99], exec")
    a("s_mov_b64 exec, 1")
    a("global_atomic_umax v%d, v%d, s[96:97]" % (vtmp + 1, vtmp))
    a("s_mov_b64 exec, s[98:99]")
    a.label("DS%d" % _dn[0])

NK = 3
MF32 = "v_mfma_f32_32x32x16_bf16"
MF16 = "v_mfma_f32_16x16x32_bf16"

def bf16_round_to_f32(a, dst, src, tmp=None):
    a("v_cvt_pk_bf16_f32 v%d, v%d, v%d" % (dst, src, src))
    a("v_lshlrev_b32 v%d, 16, v%d" % (dst, dst))

K1_RING = 2048
K1_SLOT = 28672
K1_NSLOT = 5
K1_LDS = K1_RING + K1_SLOT * K1_NSLOT

def gen_k1(a):
    kernel_head(a, "k1_kernel")
    a("s_cmp_ge_u32 s2, 256")
    a("s_cbranch_scc1 K1_END")
    dstamp(a, 0, 0, 134, True)
    dstamp(a, 0, 1, 134)
    a("s_load_dwordx4 s[4:7], s[0:1], 0")
    a("s_load_dwordx2 s[8:9], s[0:1], 32")
    a("s_load_dwordx2 s[10:11], s[0:1], 64")
    a("s_load_dwordx2 s[12:13], s[0:1], 88")
    a("s_and_b32 s16, s2, 7")
    a("s_lshr_b32 s17, s2, 3")
    a("s_and_b32 s14, s16, 3")
    a("s_lshl_b32 s14, s14, 2")
    a("s_and_b32 s18, s17, 3")
    a("s_add_u32 s14, s14, s18")
    a("s_lshr_b32 s15, s16, 2")
    a("s_lshl_b32 s15, s15, 3")
    a("s_lshr_b32 s18, s17, 2")
    a("s_add_u32 s15, s15, s18")
    a("v_lshrrev_b32 v1, 6, v0")
    a("v_and_b32 v0, 63, v0")
    a("v_readfirstlane_b32 s19, v1")
    a("v_lshrrev_b32 v2, 3, v0")
    a("v_lshlrev_b32 v2, 10, v2")
    a("v_and_b32 v3, 7, v0")
    a("v_lshrrev_b32 v4, 4, v0")
    a("v_xor_b32 v3, v3, v4")
    a("v_lshl_add_u32 v2, v3, 4, v2")
    a("v_xor_b32 v3, 64, v2")
    a("v_lshrrev_b32 v4, 2, v0")
    a("v_lshl_add_u32 v4, v1, 4, v4")
    a("v_mul_u32_u24 v4, 3072, v4")
    a("v_and_b32 v5, 3, v0")
    a("v_lshl_add_u32 v4, v5, 4, v4")
    a("s_lshl_b32 s18, s15, 6")
    a("v_add_u32 v4, s18, v4")
    a("v_lshlrev_b32 v5, 4, v0")
    a("s_waitcnt lgkmcnt(0)")
    srd(a, 20, 4, 2048 * 512 * 2)
    srd(a, 24, 6, 512 * 1536 * 2)
    srd(a, 28, 8, 1024)
    srd(a, 32, 10, 1024)
    srd(a, 36, 12, WS_SIZE)
    stamp(a, 0, 36, 134, 0, 19, 4)
    a("s_lshl_b32 s40, s14, 17")
    a("s_lshl_b32 s18, s19, 15")
    a("s_add_u32 s40, s40, s18")
    a("s_add_u32 s41, s40, 8192")
    a("s_add_u32 s42, s40, 16384")
    a("s_add_u32 s43, s40, 24576")
    a("s_lshl_b32 s44, s19, 12")
    a("s_mul_i32 s45, s19, 3072")
    a("s_mov_b32 m0, 0")
    a("s_nop 0")
    a("buffer_load_dwordx4 v5, s[32:35], 0 offen lds")
    a("s_mov_b32 m0, 1024")
    a("s_nop 0")
    a("buffer_load_dwordx4 v5, s[28:31], 0 offen lds")

    def issue_chunk(c):
        slot = c % K1_NSLOT
        base = K1_RING + slot * K1_SLOT
        a("s_mov_b32 s46, %d" % (c * 64 * 3072))
        a("s_add_u32 m0, s45, %d" % (base + 16384))
        a("s_nop 0")
        for t in range(3):
            a("buffer_load_dwordx4 v4, s[24:27], s46 offen offset:%d lds" % (t * 1024))
        for i in range(4):
            a("s_add_u32 m0, s44, %d" % (base + i * 1024 - c * 128))
            a("s_nop 0")
            a("buffer_load_dwordx4 v%d, s[20:23], s%d offen offset:%d lds" % (2 + (i & 1), 40 + i, c * 128))

    for c in range(K1_NSLOT):
        issue_chunk(c)

    XA = 8
    WA = 20
    RA = 23
    a("v_and_b32 v6, 31, v0")
    a("v_lshrrev_b32 v7, 5, v0")
    a("v_lshrrev_b32 v24, 1, v6")
    a("v_and_b32 v24, 7, v24")
    a("v_lshlrev_b32 v25, 7, v6")
    a("v_add_u32 v25, s44, v25")
    for ks in range(4):
        a("v_or_b32 v26, %d, v7" % (2 * ks))
        a("v_xor_b32 v26, v26, v24")
        a("v_lshl_add_u32 v%d, v26, 4, v25" % (XA + ks))
        a("v_add_u32 v%d, %d, v%d" % (XA + 4 + ks, 2 * K1_SLOT, XA + ks))
        a("v_add_u32 v%d, %d, v%d" % (XA + 8 + ks, 4 * K1_SLOT, XA + ks))
    a("v_lshlrev_b32 v24, 9, v7")
    a("v_lshrrev_b32 v25, 2, v0")
    a("v_and_b32 v25, 3, v25")
    a("v_lshl_add_u32 v24, v25, 6, v24")
    a("v_lshrrev_b32 v25, 4, v0")
    a("v_and_b32 v25, 1, v25")
    a("v_lshl_add_u32 v24, v25, 5, v24")
    a("v_and_b32 v25, 3, v0")
    a("v_lshl_add_u32 v%d, v25, 3, v24" % WA)
    a("v_add_u32 v%d, %d, v%d" % (WA + 1, 2 * K1_SLOT, WA))
    a("v_add_u32 v%d, %d, v%d" % (WA + 2, 4 * K1_SLOT, WA))
    a("v_and_b32 v25, 1, v0")
    a("v_lshlrev_b32 v25, 10, v25")
    a("v_lshl_add_u32 v%d, v7, 4, v25" % RA)

    ACC = 32
    FR = 96
    def frag(b, i):
        return FR + b * 20 + i * 4

    def reads(kk):
        c, ks = kk // 4, kk % 4
        slot = c % K1_NSLOT
        b = kk & 1
        off = K1_RING + (slot & 1) * K1_SLOT
        a("ds_read_b128 %s, v%d offset:%d" % (vr(frag(b, 0), 4), XA + (slot // 2) * 4 + ks, off))
        for t in range(3):
            for half in range(2):
                a("ds_read_b64_tr_b16 %s, v%d offset:%d" % (vr(frag(b, 1 + t) + 2 * half, 2), WA + slot // 2,
                                                           off + 16384 + ks * 3072 + t * 1024 + half * 256))
        a("ds_read_b128 %s, v%d offset:%d" % (vr(frag(b, 4), 4), RA, kk * 32))

    def mfmas(kk):
        b = kk & 1
        x = vr(frag(b, 0), 4)
        cz = lambda r: ("0" if kk == 0 else vr(r, 16))
        a("%s %s, %s, %s, %s" % (MF32, vr(ACC, 16), vr(frag(b, 1), 4), x, cz(ACC)))
        a("%s %s, %s, %s, %s" % (MF32, vr(ACC + 16, 16), vr(frag(b, 2), 4), x, cz(ACC + 16)))
        a("%s %s, %s, %s, %s" % (MF32, vr(ACC + 32, 16), x, vr(frag(b, 3), 4), cz(ACC + 32)))
        a("s_cbranch_scc1 K1_NR%d" % kk)
        a("%s %s, %s, %s, %s" % (MF32, vr(ACC + 48, 16), vr(frag(b, 4), 4), x, cz(ACC + 48)))
        a.label("K1_NR%d" % kk)

    vm_before = {0: 28, 1: 21, 2: 21, 3: 21, 4: 21, 5: 14, 6: 7, 7: 0}
    a("s_waitcnt vmcnt(%d)" % vm_before[0])
    a("s_barrier")
    stamp(a, 1, 36, 134, 0, 19, 4)
    dstamp(a, 0, 2, 134)
    reads(0)
    for kk in range(32):
        nx = kk + 1
        if nx < 32:
            if nx % 4 == 0:
                c = nx // 4
                a("s_waitcnt vmcnt(%d) lgkmcnt(0)" % vm_before[c])
                a("s_barrier")
                if c + 4 < 8:
                    issue_chunk(c + 4)
                reads(nx)
            else:
                reads(nx)
                a("s_waitcnt lgkmcnt(8)")
        else:
            a("s_waitcnt lgkmcnt(0)")
        a("s_cmp_lg_u32 s15, 0")
        mfmas(kk)

    a("s_nop 15")
    stamp(a, 2, 36, 134, 0, 19, 4)
    CS = math.log2(math.e) * 0.25
    a("s_mov_b32 s46, 0x%08x" % f32bits(CS))
    for r in range(16):
        a("v_mul_f32 v%d, s46, v%d" % (ACC + r, ACC + r))
    PK = FR
    for t in range(3):
        for r in range(8):
            a("v_cvt_pk_bf16_f32 v%d, v%d, v%d" % (PK + t * 8 + r, ACC + t * 16 + 2 * r, ACC + t * 16 + 2 * r + 1))
    a("s_nop 1")
    a("%s %s, %s, %s, 0" % (MF32, vr(ACC, 16), vr(PK + 8, 4), vr(PK, 4)))
    a("%s %s, %s, %s, 0" % (MF32, vr(ACC + 16, 16), vr(PK + 12, 4), vr(PK + 4, 4)))
    a("s_lshl_b32 s47, s14, 2")
    a("s_add_u32 s47, s47, s19")
    a("s_lshl_b32 s48, s15, 18")
    a("s_lshl_b32 s49, s47, 11")
    a("s_add_u32 s48, s48, s49")
    a("s_add_u32 s49, s48, 131072")
    a("buffer_store_dwordx4 %s, v5, s[36:39], s48 offen" % vr(PK + 8, 4))
    a("buffer_store_dwordx4 %s, v5, s[36:39], s49 offen" % vr(PK + 12, 4))
    a("v_lshrrev_b32 v24, 4, v6")
    a("v_lshlrev_b32 v24, 17, v24")
    a("v_lshl_add_u32 v24, v7, 8, v24")
    a("v_and_b32 v25, 15, v0")
    a("v_lshl_add_u32 v24, v25, 4, v24")
    a("buffer_store_dwordx4 %s, v24, s[36:39], s48 offen offset:1024" % vr(PK + 16, 4))
    a("buffer_store_dwordx4 %s, v24, s[36:39], s48 offen offset:1536" % vr(PK + 20, 4))
    a("s_lshl_b32 s50, s15, 17")
    a("s_lshl_b32 s51, s47, 10")
    a("s_add_u32 s50, s50, s51")
    a("s_add_u32 s50, s50, %d" % WS_Q)
    a("s_add_u32 s51, s50, 65536")
    a("buffer_store_dwordx4 %s, v5, s[36:39], s50 offen" % vr(PK, 4))
    a("buffer_store_dwordx4 %s, v5, s[36:39], s51 offen" % vr(PK + 4, 4))
    a("s_lshl_b32 s52, s15, 16")
    a("s_lshl_b32 s53, s47, 9")
    a("s_add_u32 s52, s52, s53")
    a("s_add_u32 s52, s52, %d" % WS_M)
    a("s_add_u32 s53, s52, 32768")
    a("v_lshlrev_b32 v26, 4, v6")
    a("s_nop 7")
    for h in range(2):
        S = ACC + 16 * h
        m = 120 + 4 * h
        a("v_max3_f32 v%d, v%d, v%d, v%d" % (m, S, S + 1, S + 2))
        for r in range(3, 15, 2):
            a("v_max3_f32 v%d, v%d, v%d, v%d" % (m, m, S + r, S + r + 1))
        a("v_max_f32 v%d, v%d, v%d" % (m, m, S + 15))
        a("v_mov_b32 v%d, v%d" % (m + 1, m))
        a("s_nop 1")
        a("v_permlane32_swap_b32 v%d, v%d" % (m, m + 1))
        a("v_max_f32 v%d, v%d, v%d" % (m, m, m + 1))
        a("v_sub_f32 v%d, 0, v%d" % (m, m))
        a("v_mov_b32 v%d, v%d" % (m + 1, m))
        a("v_mov_b32 v%d, v%d" % (m + 2, m))
        a("v_mov_b32 v%d, v%d" % (m + 3, m))
        a("buffer_store_dwordx4 %s, v26, s[36:39], s%d offen" % (vr(m, 4), 52 + h))
    stamp(a, 3, 36, 134, 0, 19, 4)
    dstamp(a, 0, 3, 134)
    a("s_cmp_lg_u32 s15, 0")
    a("s_cbranch_scc1 K1_END")
    R = ACC + 48
    bf16_round_to_f32(a, 128, R)
    a("v_mul_f32 v128, 0x%08x, v128" % f32bits(-math.log2(math.e)))
    a("v_exp_f32 v128, v128")
    a("s_nop 0")
    a("v_add_f32 v128, 1.0, v128")
    a("v_rcp_f32 v128, v128")
    a("s_nop 0")
    bf16_round_to_f32(a, 128, 128)
    a("v_sub_f32 v129, 1.0, v128")
    bf16_round_to_f32(a, 129, 129)
    a("s_lshl_b32 s54, s47, 8")
    a("s_add_u32 s54, s54, %d" % WS_G)
    a("v_lshlrev_b32 v27, 3, v6")
    a("buffer_store_dwordx2 v[128:129], v27, s[36:39], s54 offen")
    bf16_round_to_f32(a, 130, R + 1)
    a("v_ashrrev_i32 v131, 31, v130")
    a("v_or_b32 v131, 0x80000000, v131")
    a("v_xor_b32 v130, v130, v131")
    a("v_and_b32 v130, 0xffff0000, v130")
    a("s_lshl_b32 s55, s47, 5")
    a("v_add_u32 v131, s55, v6")
    a("v_sub_u32 v131, 0xffff, v131")
    a("v_or_b32 v130, v130, v131")
    for sh in (1, 2, 4, 8):
        a("s_nop 1")
        a("v_max_u32_dpp v130, v130, v130 row_ror:%d row_mask:0xf bank_mask:0xf" % sh)
    a("s_nop 0")
    a("v_readlane_b32 s56, v130, 0")
    a("v_readlane_b32 s57, v130, 16")
    a("s_nop 3")
    a("s_max_u32 s56, s56, s57")
    a("v_mov_b32 v131, s56")
    a("v_mov_b32 v132, 0")
    a("s_lshl_b32 s55, s47, 2")
    a("s_add_u32 s55, s55, %d" % WS_RK)
    a("buffer_store_dword v131, v132, s[36:39], s55 offen")
    a("s_cmp_lg_u32 s47, 0")
    a("s_cbranch_scc1 K1_END")
    a("v_mov_b32 v133, 0")
    a("v_mov_b32 v134, 0")
    a("v_mov_b32 v135, 0")
    a("s_mov_b32 s55, %d" % WS_Y)
    a("buffer_store_dwordx4 v[132:135], v5, s[36:39], s55 offen")
    a("buffer_store_dwordx4 v[132:135], v5, s[36:39], s55 offen offset:1024")
    a.label("K1_END")
    a("s_endpgm")
    return kernel_desc("k1_kernel", 136, sgpr=102)

K2_FLAG = 0
K2_MX = 256
K2_FFW = K2_MX + 8192
K2_FFP = K2_FFW + 8 * 2304
K2_CMB = K2_FFP + 1024
K2_LDS = K2_CMB + 32 * 2304

def gen_k2(a):
    kernel_head(a, "k2_kernel")
    Q, C, O, S, P = 8, 24, 88, 152, 184
    KB = [192, 204]
    T = 216
    a("s_cmp_ge_u32 s2, 256")
    a("s_cbranch_scc1 K2_END")
    dstamp(a, 1, 4, 250, True)
    dstamp(a, 1, 5, 250)
    a("s_load_dwordx2 s[4:5], s[0:1], 88")
    a("s_load_dwordx2 s[6:7], s[0:1], 0")
    a("s_load_dwordx4 s[8:11], s[0:1], 40")
    a("s_load_dwordx2 s[12:13], s[0:1], 56")
    a("v_lshrrev_b32 v1, 6, v0")
    a("v_and_b32 v0, 63, v0")
    a("v_readfirstlane_b32 s19, v1")
    a("s_and_b32 s14, s2, 7")
    a("s_lshl_b32 s14, s14, 2")
    a("s_lshr_b32 s16, s2, 3")
    a("s_and_b32 s16, s16, 3")
    a("s_add_u32 s14, s14, s16")
    a("s_lshr_b32 s15, s2, 5")
    a("v_lshlrev_b32 v2, 4, v0")
    a("v_and_b32 v3, 15, v0")
    a("v_lshlrev_b32 v3, 4, v3")
    a("v_lshrrev_b32 v4, 5, v0")
    a("v_lshl_add_u32 v3, v4, 8, v3")
    a("v_and_b32 v4, 31, v0")
    a("v_lshlrev_b32 v4, 4, v4")
    a("s_lshr_b32 s16, s19, 2")
    a("s_and_b32 s17, s19, 3")
    a("s_lshl_b32 s18, s15, 3")
    a("s_lshl_b32 s20, s16, 2")
    a("s_add_u32 s18, s18, s20")
    a("s_lshl_b32 s20, s14, 16")
    a("s_lshl_b32 s21, s18, 10")
    a("s_add_u32 s20, s20, s21")
    a("s_add_u32 s20, s20, %d" % WS_Q)
    a("s_lshl_b32 s21, s14, 15")
    a("s_lshl_b32 s22, s18, 9")
    a("s_add_u32 s21, s21, s22")
    a("s_add_u32 s21, s21, %d" % WS_M)
    a("s_lshl_b32 s22, s14, 17")
    a("s_lshl_b32 s23, s17, 15")
    a("s_add_u32 s22, s22, s23")
    a("s_mov_b32 s30, 0x0000ffff")
    a("s_mov_b32 s31, 0x0000ffff")
    a("s_mov_b32 s29, 0")
    a("s_mov_b32 s32, 0x15")
    a("s_mov_b32 s23, 0x3f803f80")
    for b in range(2):
        for r in range(4, 12):
            a("v_mov_b32 v%d, s23" % (KB[b] + r))
    a("s_waitcnt lgkmcnt(0)")
    srd(a, 24, 4, WS_SIZE)
    stamp(a, 0, 24, 250, 1, 19, 8)
    a("buffer_load_dwordx4 %s, v2, s[24:27], s20 offen" % vr(Q, 4))
    for i in range(4):
        a("buffer_load_dwordx4 %s, v4, s[24:27], s21 offen" % vr(C + 4 * i, 4))
    a.label("K2_PASS")
    a("buffer_load_dwordx4 %s, v2, s[24:27], s22 offen" % vr(KB[0], 4))
    a("s_mov_b64 exec, s[30:31]")
    a("buffer_load_dwordx4 %s, v3, s[24:27], s22 offen offset:1024" % vr(KB[0] + 4, 4))
    a("buffer_load_dwordx4 %s, v3, s[24:27], s22 offen offset:1536" % vr(KB[0] + 8, 4))
    a("s_mov_b64 exec, -1")
    a("s_cmp_lg_u32 s29, 0")
    a("s_cbranch_scc1 K2_P1")
    for j in range(1, 4):
        a("buffer_load_dwordx4 %s, v2, s[24:27], s20 offen offset:%d" % (vr(Q + 4 * j, 4), j * 1024))
        for i in range(4):
            a("buffer_load_dwordx4 %s, v4, s[24:27], s21 offen offset:%d" % (vr(C + 16 * j + 4 * i, 4), j * 512))
    a("s_add_u32 s4, s4, %d" % WS_RK)
    a("s_addc_u32 s5, s5, 0")
    for i in range(4):
        a("s_load_dwordx16 %s, s[4:5], %d" % (sr(36 + 16 * i, 16), 64 * i))
    a("v_mov_b32 v5, 0")
    a("ds_write_b32 v5, v5 offset:%d" % K2_FLAG)
    a.label("K2_P1")
    a("buffer_load_dwordx4 %s, v2, s[24:27], s22 offen offset:2048" % vr(KB[1], 4))
    a("v_lshlrev_b32 v5, 7, v0")
    for i in range(4):
        a("s_add_u32 s23, s22, %d" % (i * 8192))
        a("buffer_load_dword v%d, v5, s[24:27], s23 offen" % (T + 36 + i))
    for r in range(64):
        a("v_mov_b32 v%d, 0" % (O + r))
    for r in range(4, 8):
        a("v_mov_b32 v%d, 0" % (P + r))
    a("v_mov_b32 v%d, 0" % (S + 16 + 14))
    a("v_mov_b32 v%d, 0" % (S + 16 + 15))
    a("s_mov_b32 s28, s22")
    a("s_mov_b32 s23, 0")
    a("s_waitcnt vmcnt(5)")
    a("%s %s, %s, %s, %s" % (MF32, vr(S, 16), vr(KB[0], 4), vr(Q, 4), vr(C, 16)))
    a("s_nop 15")
    a("v_exp_f32 v%d, v%d" % (S, S))
    stamp(a, 1, 24, 250, 1, 19, 8)

    a.raw(".p2align 6")
    a.label("K2_LOOP")
    for tt in range(2):
        for j in range(4):
            cur = S + 16 * (j & 1)
            prv = S + 16 * ((j + 1) & 1)
            nxt = prv
            E = lambda r: a("v_exp_f32 v%d, v%d" % (cur + r, cur + r))
            CV = lambda r: a("v_cvt_pk_bf16_f32 v%d, v%d, v%d" % (P + r // 2, cur + r, cur + r + 1))
            pj = (j + 3) % 4
            pb = KB[tt] if j > 0 else KB[tt ^ 1]
            nj = (j + 1) % 4
            nb = KB[tt] if j < 3 else KB[tt ^ 1]
            a("v_cvt_pk_bf16_f32 v%d, v%d, v%d" % (P + 7, prv + 14, prv + 15))
            if j == 3:
                a("s_waitcnt vmcnt(1)")
                if tt == 0:
                    a("s_bitcmp1_b32 s32, s23")
                    a("s_cbranch_scc1 K2_HOOK")
                    a.label("K2_HRET")
            a("%s %s, %s, %s, %s" % (MF32, vr(nxt, 16), vr(nb, 4), vr(Q + 4 * nj, 4), vr(C + 16 * nj, 16)))
            if j == 2:
                a("buffer_load_dwordx4 %s, v2, s[24:27], s28 offen offset:%d" % (vr(KB[tt], 4), tt * 2048))
            E(1); E(2); CV(0); E(3); E(4); CV(2); E(5)
            a("%s %s, %s, %s, %s" % (MF32, vr(O + 16 * pj, 16), vr(pb + 8, 4), vr(P + 4, 4), vr(O + 16 * pj, 16)))
            if j == 0:
                a("s_mov_b64 exec, s[30:31]")
                off = 3072 if tt == 0 else 1024
                a("buffer_load_dwordx4 %s, v3, s[24:27], s28 offen offset:%d" % (vr(KB[tt ^ 1] + 4, 4), off))
                a("buffer_load_dwordx4 %s, v3, s[24:27], s28 offen offset:%d" % (vr(KB[tt ^ 1] + 8, 4), off + 512))
                a("s_mov_b64 exec, -1")
                if tt == 0:
                    a("s_add_u32 s28, s28, 4096")
            E(6); CV(4); E(7); E(8); CV(6); E(9); E(10)
            a("%s %s, %s, %s, %s" % (MF32, vr(O + 16 * j, 16), vr(KB[tt] + 4, 4), vr(P, 4), vr(O + 16 * j, 16)))
            CV(8); E(11); E(12); CV(10); E(13); E(14); CV(12); E(15)
            a("v_exp_f32 v%d, v%d" % (nxt, nxt))
    if STAMP:
        a("s_memtime s[100:101]")
        a("s_waitcnt lgkmcnt(0)")
        a("v_mov_b32 v250, s100")
        a("s_lshl_b32 s100, s2, 3")
        a("s_add_u32 s100, s100, s19")
        a("s_lshl_b32 s100, s100, 4")
        a("s_add_u32 s100, s100, s23")
        a("s_lshl_b32 s100, s100, 2")
        a("s_add_u32 s100, s100, %d" % (WS_ST + 262144 + 8))
        a("v_mov_b32 v251, 0")
        a("buffer_store_dword v250, v251, s[24:27], s100 offen")
    a("s_add_u32 s23, s23, 1")
    a("s_cmp_lt_u32 s23, 8")
    a("s_cbranch_scc1 K2_LOOP")
    a("v_cvt_pk_bf16_f32 v%d, v%d, v%d" % (P + 7, S + 16 + 14, S + 16 + 15))
    a("s_nop 1")
    a("%s %s, %s, %s, %s" % (MF32, vr(O + 48, 16), vr(KB[1] + 8, 4), vr(P + 4, 4), vr(O + 48, 16)))
    a("s_lshl_b32 s23, s16, 4")
    a("s_add_u32 s23, s23, s17")
    a("s_mul_i32 s23, s23, 2304")
    a("v_add_u32 v5, s23, v2")
    a("v_lshlrev_b32 v6, 2, v0")
    a("v_add_u32 v6, s23, v6")
    a("s_mov_b32 s23, 0x4f800000")
    a("s_nop 4")
    for j in range(4):
        a("ds_write_b128 v5, %s offset:%d" % (vr(O + 16 * j, 4), K2_CMB + j * 9216))
        a("ds_write_b128 v5, %s offset:%d" % (vr(O + 16 * j + 4, 4), K2_CMB + j * 9216 + 1024))
        a("ds_write_b32 v6, v%d offset:%d" % (O + 16 * j + 8, K2_CMB + j * 9216 + 2048))
    a("v_max3_f32 v7, v%d, v%d, v%d" % (O + 8, O + 24, O + 40))
    a("v_cmp_u_f32 s[56:57], v%d, v%d" % (O + 8, O + 24))
    a("v_cmp_u_f32 s[58:59], v%d, v%d" % (O + 40, O + 56))
    a("v_max_f32 v7, v7, v%d" % (O + 56))
    a("v_cmp_lt_f32 vcc, s23, v7")
    a("s_nop 3")
    a("s_or_b64 s[56:57], s[56:57], s[58:59]")
    a("s_or_b64 s[56:57], s[56:57], vcc")
    a("s_cmp_eq_u64 s[56:57], 0")
    a("s_cbranch_scc1 K2_NOFLAG")
    a("v_mov_b32 v7, 1")
    a("v_mov_b32 v%d, 0" % T)
    a("ds_write_b32 v%d, v7 offset:%d" % (T, K2_FLAG))
    a.label("K2_NOFLAG")
    a("s_waitcnt lgkmcnt(0)")
    a("s_barrier")
    a("s_lshl_b32 s23, s16, 2")
    a("s_add_u32 s23, s23, s17")
    a("s_mul_i32 s23, s23, 9216")
    a("v_add_u32 v5, s23, v2")
    a("v_lshlrev_b32 v6, 2, v0")
    a("v_add_u32 v6, s23, v6")
    a("v_mov_b32 v7, 0")
    a("ds_read_b32 v7, v7 offset:%d" % K2_FLAG)
    for j in range(4):
        a("ds_read_b128 %s, v5 offset:%d" % (vr(O + 16 * j, 4), K2_CMB + j * 2304))
        a("ds_read_b128 %s, v5 offset:%d" % (vr(O + 16 * j + 4, 4), K2_CMB + j * 2304 + 1024))
        a("ds_read_b32 v%d, v6 offset:%d" % (O + 16 * j + 8, K2_CMB + j * 2304 + 2048))
    a("s_waitcnt lgkmcnt(0)")
    a("v_readfirstlane_b32 s23, v7")
    a("s_nop 3")
    a("s_cmp_gt_u32 s23, s29")
    a("s_cbranch_scc1 K2_EXACT")
    for r in range(9):
        a("v_add_f32 v%d, v%d, v%d" % (O + r, O + r, O + 16 + r))
        a("v_add_f32 v%d, v%d, v%d" % (O + 32 + r, O + 32 + r, O + 48 + r))
    for r in range(9):
        a("v_add_f32 v%d, v%d, v%d" % (O + r, O + r, O + 32 + r))
    a("v_rcp_f32 v%d, v%d" % (O + 8, O + 8))
    a("s_nop 0")
    for r in range(8):
        a("v_mul_f32 v%d, v%d, v%d" % (O + r, O + r, O + 8))
    for r in range(4):
        a("v_cvt_pk_bf16_f32 v%d, v%d, v%d" % (O + 16 + r, O + 2 * r, O + 2 * r + 1))
    a("s_add_u32 s23, s18, s17")
    a("s_lshl_b32 s23, s23, 15")
    a("s_lshl_b32 s28, s14, 10")
    a("s_add_u32 s23, s23, s28")
    a("s_add_u32 s23, s23, %d" % WS_O)
    a("buffer_store_dwordx4 %s, v2, s[24:27], s23 offen" % vr(O + 16, 4))
    stamp(a, 10, 24, 250, 1, 19, 8)
    dstamp(a, 1, 7, 250)
    a.label("K2_END")
    a("s_endpgm")

    a.label("K2_HOOK")
    a("s_cmp_eq_u32 s23, 4")
    a("s_cbranch_scc1 K2_FFN2")
    a("s_cmp_ge_u32 s2, 224")
    a("s_cbranch_scc1 K2_HRET")
    a("s_cmp_eq_u32 s23, 2")
    a("s_cbranch_scc1 K2_FFN1")
    a("s_waitcnt lgkmcnt(0)")
    for i in range(36, 99):
        a("s_max_u32 s99, s99, s%d" % i)
    srd(a, 36, 6, 2048 * 512 * 2)
    srd(a, 40, 8, 512 * 1792 * 2)
    srd(a, 44, 10, 512 * 1792 * 2)
    srd(a, 48, 12, 1792 * 512 * 2)
    a("s_and_b32 s52, s99, 0xffff")
    a("s_sub_u32 s52, 0xffff, s52")
    a("s_and_b32 s52, s52, 2047")
    a("s_lshl_b32 s52, s52, 10")
    a("s_lshl_b32 s53, s19, 7")
    a("s_add_u32 s52, s52, s53")
    a("v_lshl_add_u32 v5, v1, 6, v0")
    a("v_mul_u32_u24 v5, 3584, v5")
    a("s_lshl_b32 s53, s2, 4")
    a("s_mul_i32 s54, s19, 2304")
    a("s_add_u32 m0, s54, %d" % K2_FFW)
    a("v_lshrrev_b32 v6, 4, v0")
    a("buffer_load_dwordx4 v5, s[40:43], s53 offen lds")
    a("s_add_u32 m0, s54, %d" % (K2_FFW + 1152))
    a("v_lshlrev_b32 v6, 4, v6")
    a("buffer_load_dwordx4 v5, s[44:47], s53 offen lds")
    a("buffer_load_dwordx4 %s, v6, s[36:39], s52 offen" % vr(T, 4))
    a("buffer_load_dwordx4 %s, v6, s[36:39], s52 offen offset:64" % vr(T + 4, 4))
    a("s_cmp_ge_u32 s19, 4")
    a("s_cbranch_scc1 K2_HRET")
    a("s_lshl_b32 s52, s2, 13")
    a("s_lshl_b32 s53, s17, 8")
    a("s_add_u32 s52, s52, s53")
    a("v_lshlrev_b32 v6, 2, v0")
    a("s_add_u32 s53, s52, 4096")
    for f in range(8):
        a("buffer_load_dword v%d, v6, s[48:51], s%d offen offset:%d" % (T + 20 + f, 52 + f // 4, (f % 4) * 1024))
    a("s_branch K2_HRET")

    a.label("K2_FFN1")
    a("v_lshrrev_b32 v5, 4, v0")
    a("v_lshlrev_b32 v5, 7, v5")
    a("v_bfe_u32 v6, v0, 2, 2")
    a("v_lshl_add_u32 v5, v6, 4, v5")
    a("v_and_b32 v6, 1, v0")
    a("v_lshl_add_u32 v5, v6, 3, v5")
    a("v_bfe_u32 v6, v0, 1, 1")
    a("v_mul_u32_u24 v6, 1152, v6")
    a("s_mul_i32 s52, s19, 2304")
    a("v_add3_u32 v5, v5, v6, s52")
    for s in range(2):
        for half in range(2):
            a("ds_read_b64_tr_b16 %s, v5 offset:%d" % (vr(T + 8 + 4 * s + 2 * half, 2), K2_FFW + s * 512 + half * 64))
    a("v_and_b32 v5, 15, v0")
    a("v_lshlrev_b32 v5, 5, v5")
    a("s_lshl_b32 s52, s19, 2")
    a("v_add_u32 v5, s52, v5")
    a("s_waitcnt lgkmcnt(0)")
    a("%s %s, %s, %s, 0" % (MF16, vr(T + 16, 4), vr(T, 4), vr(T + 8, 4)))
    a("%s %s, %s, %s, %s" % (MF16, vr(T + 16, 4), vr(T + 4, 4), vr(T + 12, 4), vr(T + 16, 4)))
    a("s_nop 8")
    a("ds_write_b32 v5, v%d offset:%d" % (T + 16, K2_FFP))
    a("s_branch K2_HRET")

    a.label("K2_FFN2")
    a("s_waitcnt lgkmcnt(0)")
    a("s_barrier")
    a("s_cmp_ge_u32 s2, 224")
    a("s_cbranch_scc1 K2_HRET")
    a("s_cmp_ge_u32 s19, 4")
    a("s_cbranch_scc1 K2_HRET")
    a("v_and_b32 v5, 15, v0")
    a("v_lshlrev_b32 v5, 5, v5")
    a("ds_read_b128 %s, v5 offset:%d" % (vr(T, 4), K2_FFP))
    a("ds_read_b128 %s, v5 offset:%d" % (vr(T + 4, 4), K2_FFP + 16))
    a("s_waitcnt lgkmcnt(0)")
    a("v_pk_add_f32 %s, %s, %s" % (vr(T, 2), vr(T, 2), vr(T + 2, 2)))
    a("v_pk_add_f32 %s, %s, %s" % (vr(T + 4, 2), vr(T + 4, 2), vr(T + 6, 2)))
    a("v_pk_add_f32 %s, %s, %s" % (vr(T, 2), vr(T, 2), vr(T + 4, 2)))
    a("v_add_f32 v%d, v%d, v%d" % (T, T, T + 1))
    bf16_round_to_f32(a, T, T)
    a("v_mul_f32 v%d, 0x%08x, v%d" % (T + 1, f32bits(-math.log2(math.e)), T))
    a("v_exp_f32 v%d, v%d" % (T + 1, T + 1))
    a("v_mov_b32_dpp v%d, v%d row_ror:8 row_mask:0xf bank_mask:0xf" % (T + 2, T))
    a("v_add_f32 v%d, 1.0, v%d" % (T + 1, T + 1))
    a("v_rcp_f32 v%d, v%d" % (T + 1, T + 1))
    a("v_mov_b32 v%d, 0" % (T + 4))
    a("v_mul_f32 v%d, v%d, v%d" % (T + 1, T + 1, T))
    bf16_round_to_f32(a, T + 1, T + 1)
    a("v_mul_f32 v%d, v%d, v%d" % (T + 1, T + 1, T + 2))
    a("v_cvt_pk_bf16_f32 v%d, v%d, v%d" % (T + 1, T + 1, T + 4))
    a("v_mov_b32 v%d, 0" % (T + 5))
    for i in range(8):
        a("v_readlane_b32 s%d, v%d, %d" % (60 + i, T + 1, i))
    a("v_lshlrev_b32 v6, 2, v0")
    a("s_lshl_b32 s52, s17, 9")
    a("s_add_u32 s52, s52, %d" % WS_Y)
    for i in range(8):
        a("s_lshl_b32 s%d, s%d, 16" % (68 + i, 60 + i))
    for i in range(8):
        a("v_dot2_f32_bf16 v%d, v%d, s%d, v%d" % (T + 4, T + 20 + i, 60 + i, T + 4))
        a("v_dot2_f32_bf16 v%d, v%d, s%d, v%d" % (T + 5, T + 20 + i, 68 + i, T + 5))
    a("s_nop 3")
    a("buffer_atomic_add_f32 v%d, v6, s[24:27], s52 offen" % (T + 4))
    a("buffer_atomic_add_f32 v%d, v6, s[24:27], s52 offen offset:256" % (T + 5))
    a("s_branch K2_HRET")

    a.label("K2_EXACT")
    a("s_mov_b32 s29, 1")
    a("s_mov_b32 s32, 0")
    a("s_mov_b32 s23, 0xff800000")
    for j in range(4):
        a("v_mov_b32 v%d, s23" % (T + j))
    a("s_mov_b32 s28, s22")
    a("s_mov_b32 s23, 0")
    a.label("K2_EXLOOP")
    a("buffer_load_dwordx4 %s, v2, s[24:27], s28 offen" % vr(KB[0], 4))
    a("s_waitcnt vmcnt(0)")
    for j in range(4):
        a("%s %s, %s, %s, 0" % (MF32, vr(S, 16), vr(KB[0], 4), vr(Q + 4 * j, 4)))
        a("s_nop 15")
        for r in range(0, 16, 2):
            a("v_max3_f32 v%d, v%d, v%d, v%d" % (T + j, T + j, S + r, S + r + 1))
    a("s_add_u32 s28, s28, 2048")
    a("s_add_u32 s23, s23, 1")
    a("s_cmp_lt_u32 s23, 16")
    a("s_cbranch_scc1 K2_EXLOOP")
    a("v_lshlrev_b32 v6, 2, v0")
    a("s_lshl_b32 s23, s19, 10")
    a("v_add_u32 v5, s23, v6")
    for j in range(4):
        a("ds_write_b32 v5, v%d offset:%d" % (T + j, K2_MX + j * 256))
    a("s_waitcnt lgkmcnt(0)")
    a("s_barrier")
    a("v_and_b32 v5, 31, v0")
    a("v_lshlrev_b32 v5, 2, v5")
    a("s_lshl_b32 s23, s16, 12")
    a("v_add_u32 v5, s23, v5")
    for j in range(4):
        for kq in range(4):
            for hh in range(2):
                a("ds_read_b32 v%d, v5 offset:%d" % (S + kq * 2 + hh, K2_MX + kq * 1024 + j * 256 + hh * 128))
        a("s_waitcnt lgkmcnt(0)")
        a("v_max3_f32 v%d, v%d, v%d, v%d" % (S, S, S + 1, S + 2))
        a("v_max3_f32 v%d, v%d, v%d, v%d" % (S, S, S + 3, S + 4))
        a("v_max3_f32 v%d, v%d, v%d, v%d" % (S, S, S + 5, S + 6))
        a("v_max_f32 v%d, v%d, v%d" % (S, S, S + 7))
        for r in range(16):
            a("v_sub_f32 v%d, 0, v%d" % (C + 16 * j + r, S))
    a("s_mov_b32 s23, 0x3f803f80")
    for r in range(4, 12):
        a("v_mov_b32 v%d, s23" % (KB[1] + r))
    a("s_branch K2_PASS")
    return kernel_desc("k2_kernel", 256, sgpr=102)

K3_LDS = 65536

def gen_k3(a):
    kernel_head(a, "k3_kernel")
    OF = 32
    ACC = 16
    WF = 160
    XR = 176
    YR = 184
    a("s_cmp_ge_u32 s2, 256")
    a("s_cbranch_scc1 K3_END")
    dstamp(a, 2, 8, 14, True)
    dstamp(a, 2, 9, 14)
    a("s_load_dwordx2 s[4:5], s[0:1], 88")
    a("s_load_dwordx2 s[6:7], s[0:1], 0")
    a("s_load_dwordx2 s[8:9], s[0:1], 16")
    a("s_load_dwordx2 s[10:11], s[0:1], 72")
    a("v_lshrrev_b32 v1, 6, v0")
    a("v_and_b32 v0, 63, v0")
    a("v_readfirstlane_b32 s19, v1")
    a("s_and_b32 s14, s2, 7")
    a("s_lshl_b32 s14, s14, 2")
    a("s_lshr_b32 s16, s2, 3")
    a("s_and_b32 s17, s16, 3")
    a("s_add_u32 s14, s14, s17")
    a("s_lshr_b32 s15, s16, 2")
    a("s_and_b32 s16, s19, 1")
    a("s_lshr_b32 s17, s19, 1")
    a("s_lshl_b32 s18, s14, 1")
    a("s_add_u32 s18, s18, s16")
    a("v_lshlrev_b32 v2, 4, v0")
    a("v_lshrrev_b32 v3, 2, v0")
    a("v_lshlrev_b32 v3, 10, v3")
    a("v_and_b32 v4, 3, v0")
    a("v_lshl_add_u32 v3, v4, 4, v3")
    a("s_lshl_b32 s20, s15, 7")
    a("s_lshl_b32 s21, s17, 6")
    a("s_add_u32 s20, s20, s21")
    a("s_lshl_b32 s21, s16, 14")
    a("s_add_u32 s21, s21, s20")
    a("s_lshl_b32 s22, s17, 15")
    a("s_lshl_b32 s23, s16, 10")
    a("s_add_u32 s22, s22, s23")
    a("s_lshl_b32 s23, s18, 15")
    a("s_add_u32 s23, s23, %d" % WS_O)
    a("s_waitcnt lgkmcnt(0)")
    srd(a, 24, 4, WS_SIZE)
    srd(a, 32, 6, 2048 * 512 * 2)
    srd(a, 36, 8, 512 * 512 * 2)
    srd(a, 40, 10, 2048 * 512 * 2)
    stamp(a, 0, 24, 14, 2, 19, 4)
    a("s_add_u32 s4, s4, %d" % WS_RK)
    a("s_addc_u32 s5, s5, 0")
    a("s_load_dwordx16 s[48:63], s[4:5], 0")
    a("s_load_dwordx16 s[64:79], s[4:5], 64")
    for g in range(4):
        for i in range(4):
            hp = g * 4 + i
            a("s_add_u32 m0, s22, %d" % (hp * 2048))
            a("s_add_u32 s28, s21, %d" % (hp * 32768))
            a("buffer_load_dwordx4 v3, s[36:39], s28 offen lds")
        for i in range(8):
            h = g * 8 + i
            if h % 4 == 0:
                a("s_add_u32 s28, s23, %d" % (h * 1024))
            a("buffer_load_dwordx4 %s, v2, s[24:27], s28 offen offset:%d" % (vr(OF + 4 * h, 4), (h % 4) * 1024))
    a("v_and_b32 v4, 31, v0")
    a("v_lshrrev_b32 v5, 5, v0")
    a("v_lshlrev_b32 v6, 10, v4")
    a("v_lshl_add_u32 v6, v5, 5, v6")
    a("s_lshl_b32 s29, s18, 15")
    a("s_add_u32 s29, s29, s20")
    a("buffer_load_dwordx4 %s, v6, s[32:35], s29 offen" % vr(XR, 4))
    a("buffer_load_dwordx4 %s, v6, s[32:35], s29 offen offset:16" % vr(XR + 4, 4))
    a("v_lshlrev_b32 v7, 3, v4")
    a("s_lshl_b32 s30, s18, 8")
    a("s_add_u32 s30, s30, %d" % WS_G)
    a("buffer_load_dwordx2 v[8:9], v7, s[24:27], s30 offen")
    a("v_lshlrev_b32 v7, 5, v5")
    a("s_lshr_b32 s30, s20, 8")
    a("s_lshl_b32 s30, s30, 9")
    a("s_and_b32 s31, s20, 255")
    a("s_add_u32 s30, s30, s31")
    a("s_add_u32 s30, s30, %d" % WS_Y)
    for i in range(4):
        a("buffer_load_dwordx4 %s, v7, s[24:27], s30 offen offset:%d" % (vr(YR + 4 * i, 4), (i // 2) * 256 + (i % 2) * 16))
    NTAIL = 7
    a("v_lshrrev_b32 v10, 2, v0")
    a("v_and_b32 v10, 3, v10")
    a("v_lshl_add_u32 v10, v5, 2, v10")
    a("v_lshlrev_b32 v10, 6, v10")
    a("v_and_b32 v11, 1, v0")
    a("v_lshl_add_u32 v10, v11, 5, v10")
    a("v_bfe_u32 v11, v0, 1, 1")
    a("v_bfe_u32 v12, v0, 4, 1")
    a("v_lshl_add_u32 v11, v12, 1, v11")
    a("v_lshl_add_u32 v10, v11, 3, v10")
    a("s_lshl_b32 s30, s17, 15")
    a("v_add_u32 v10, s30, v10")
    a("s_waitcnt lgkmcnt(0)")
    for i in range(49, 80):
        a("s_max_u32 s48, s48, s%d" % i)
    a("s_mov_b32 s80, s48")
    a("s_load_dwordx16 s[48:63], s[4:5], 128")
    a("s_load_dwordx16 s[64:79], s[4:5], 192")
    a("s_waitcnt lgkmcnt(0)")
    for i in range(48, 80):
        a("s_max_u32 s80, s80, s%d" % i)
    a("s_and_b32 s81, s80, 0xffff")
    a("s_sub_u32 s81, 0xffff, s81")

    stamp(a, 1, 24, 14, 2, 19, 4)
    def wreads(h):
        b = WF + 4 * (h % 4)
        a("ds_read_b64_tr_b16 %s, v10 offset:%d" % (vr(b, 2), h * 1024))
        a("ds_read_b64_tr_b16 %s, v10 offset:%d" % (vr(b + 2, 2), h * 1024 + 512))

    for g in range(4):
        rest = (3 - g) * 12 + NTAIL
        a("s_waitcnt vmcnt(%d)" % (rest + 8))
        a("s_barrier")
        for i in range(3):
            wreads(g * 8 + i)
        for i in range(8):
            h = g * 8 + i
            if i + 3 < 8:
                wreads(h + 3)
                a("s_waitcnt vmcnt(%d) lgkmcnt(6)" % (rest + 7 - i))
            else:
                a("s_waitcnt vmcnt(%d) lgkmcnt(%d)" % (rest + 7 - i, 2 * (7 - i)))
            a("%s %s, %s, %s, %s" % (MF32, vr(ACC, 16), vr(WF + 4 * (h % 4), 4), vr(OF + 4 * h, 4), "0" if h == 0 else vr(ACC, 16)))
    a("s_waitcnt vmcnt(0)")
    stamp(a, 2, 24, 14, 2, 19, 4)
    B = 32
    for i in range(8):
        a("v_lshlrev_b32 v%d, 16, v%d" % (B + 2 * i, XR + i))
        a("v_and_b32 v%d, 0xffff0000, v%d" % (B + 2 * i + 1, XR + i))
    a("s_lshr_b32 s30, s81, 5")
    a("s_cmp_lg_u32 s30, s18")
    a("s_cbranch_scc1 K3_NOSEL")
    a("s_and_b32 s30, s80, 0xffff0000")
    a("s_ashr_i32 s31, s30, 31")
    a("s_not_b32 s31, s31")
    a("s_or_b32 s31, s31, 0x80000000")
    a("s_xor_b32 s30, s30, s31")
    a("s_and_b32 s30, s30, 0xffff0000")
    a("v_mov_b32 v11, s30")
    a("v_mul_f32 v11, 0x%08x, v11" % f32bits(-math.log2(math.e)))
    a("v_exp_f32 v11, v11")
    a("s_nop 0")
    a("v_add_f32 v11, 1.0, v11")
    a("v_rcp_f32 v11, v11")
    a("s_nop 0")
    bf16_round_to_f32(a, 11, 11)
    a("s_and_b32 s30, s81, 31")
    a("v_cmp_eq_u32 vcc, s30, v4")
    a("s_and_saveexec_b64 s[44:45], vcc")
    for i in range(16):
        y = YR + (i % 2) * 8 + i // 2
        bf16_round_to_f32(a, y, y)
        a("v_mul_f32 v%d, v%d, v11" % (y, y))
        bf16_round_to_f32(a, y, y)
        a("v_add_f32 v%d, v%d, v%d" % (B + i, B + i, y))
        bf16_round_to_f32(a, B + i, B + i)
    a("s_mov_b64 exec, s[44:45]")
    a.label("K3_NOSEL")
    for i in range(16):
        a("v_mul_f32 v%d, v%d, v9" % (B + i, B + i))
    for i in range(16):
        a("v_fma_f32 v%d, v%d, v8, v%d" % (B + i, ACC + i, B + i))
    for i in range(8):
        a("v_cvt_pk_bf16_f32 v%d, v%d, v%d" % (XR + i, B + 2 * i, B + 2 * i + 1))
    a("buffer_store_dwordx4 %s, v6, s[40:43], s29 offen" % vr(XR, 4))
    a("buffer_store_dwordx4 %s, v6, s[40:43], s29 offen offset:16" % vr(XR + 4, 4))
    stamp(a, 3, 24, 14, 2, 19, 4)
    dstamp(a, 2, 11, 14)
    a.label("K3_END")
    a("s_endpgm")
    return kernel_desc("k3_kernel", 200, sgpr=102)

def main():
    out = sys.argv[1] if len(sys.argv) > 1 else "cdna_kernels/%s.s" % NAME
    a = Asm()
    hdr = open("cdna_kernels/%s.s.ref" % NAME).read().split("\n")
    keep = [l for l in hdr if l.startswith(";") and "@launch" not in l and "Override launch" not in l and "grid=ceil" not in l]
    for l in keep:
        a.raw(l)
    a.raw("; @launch kernel=k1_kernel grid=(256,1,1) block=(256,1,1) lds=%d" % K1_LDS)
    a.raw("; @launch kernel=k2_kernel grid=(256,1,1) block=(512,1,1) lds=%d" % K2_LDS)
    a.raw("; @launch kernel=k3_kernel grid=(256,1,1) block=(256,1,1) lds=%d" % K3_LDS)
    a.raw('.amdgcn_target "amdgcn-amd-amdhsa--gfx950"')
    a.raw(".text")
    d1 = gen_k1(a)
    d2 = gen_k2(a)
    d3 = gen_k3(a)
    a.raw('.section .rodata,"a"')
    a.raw(d1); a.raw(d2); a.raw(d3)
    open(out, "w").write(a.text())

if __name__ == "__main__":
    main()
```

```python
import sys, math, struct

NAME = "gated_mix__mha_block__moe_arch_mod__prompt"

WS_KV = 0
WS_Q = 4 << 20
WS_M = 6 << 20
WS_O = 8 << 20
WS_G = 10 << 20
WS_RK = (10 << 20) + 65536
WS_Y = (10 << 20) + 131072
WS_ST = 11 << 20
WS_SIZE = 12 << 20
import os
STAMP = int(os.environ.get("STAMP", "0"))

def f32bits(x):
    return struct.unpack("<I", struct.pack("<f", x))[0]

class Asm:
    def __init__(self):
        self.l = []
    def __call__(self, s):
        for line in s.strip("\n").split("\n"):
            self.l.append("    " + line.strip())
    def label(self, s):
        self.l.append(s + ":")
    def raw(self, s):
        self.l.append(s)
    def c(self, s):
        self.l.append("    ; " + s)
    def text(self):
        return "\n".join(self.l) + "\n"

def vr(b, n):
    return "v[%d:%d]" % (b, b + n - 1)
def sr(b, n):
    return "s[%d:%d]" % (b, b + n - 1)

def srd(a, d, base, nbytes):
    a("s_mov_b32 s%d, s%d" % (d, base))
    a("s_and_b32 s%d, s%d, 0xffff" % (d + 1, base + 1))
    a("s_mov_b32 s%d, 0x%x" % (d + 2, nbytes))
    a("s_mov_b32 s%d, 0x00020000" % (d + 3))

def kernel_head(a, name):
    a.raw(".globl %s" % name)
    a.raw(".p2align 8")
    a.raw(".type %s,@function" % name)
    a.label(name)

def kernel_desc(name, vgpr, sgpr=96, accum=None):
    if accum is None:
        accum = (vgpr + 3) // 4 * 4
    return """.p2align 6
.amdhsa_kernel %s
  .amdhsa_next_free_vgpr %d
  .amdhsa_next_free_sgpr %d
  .amdhsa_accum_offset %d
  .amdhsa_group_segment_fixed_size 0
  .amdhsa_kernarg_size 96
  .amdhsa_user_sgpr_count 2
  .amdhsa_user_sgpr_kernarg_segment_ptr 1
  .amdhsa_system_sgpr_workgroup_id_x 1
.end_amdhsa_kernel
""" % (name, vgpr, sgpr, accum)

def stamp(a, idx, srdreg, vtmp, kernel_no, wavereg, nw):
    if not STAMP:
        return
    a("s_memrealtime s[100:101]" if idx >= 12 else "s_memtime s[100:101]")
    a("s_waitcnt lgkmcnt(0)")
    a("v_mov_b32 v%d, s100" % vtmp)
    a("s_mul_i32 s100, s2, %d" % nw)
    a("s_add_u32 s100, s100, s%d" % wavereg)
    a("s_lshl_b32 s100, s100, 6")
    a("s_add_u32 s100, s100, %d" % (WS_ST + kernel_no * 262144 + idx * 4))
    a("v_mov_b32 v%d, 0" % (vtmp + 1))
    a("buffer_store_dword v%d, v%d, %s, s100 offen" % (vtmp, vtmp + 1, sr(srdreg, 4)))

DBG = int(os.environ.get("DBG", "0"))
_dn = [0]
def dstamp(a, kernel_no, idx, vtmp, neg=False):
    if not DBG:
        return
    _dn[0] += 1
    a("s_and_b32 s96, s2, 0x1b")
    a("s_cmp_lg_u32 s96, 0")
    a("s_cbranch_scc1 DS%d" % _dn[0])
    a("s_load_dwordx2 s[96:97], s[0:1], 80")
    a("s_memrealtime s[100:101]")
    a("s_waitcnt lgkmcnt(0)")
    if neg:
        a("s_not_b32 s100, s100")
    a("s_add_u32 s96, s96, %d" % (512 * (NK - 1 - kernel_no)))
    a("s_addc_u32 s97, s97, 0")
    a("v_mov_b32 v%d, s100" % vtmp)
    a("v_mov_b32 v%d, %d" % (vtmp + 1, idx * 4))
    a("s_mov_b64 s[98:99], exec")
    a("s_mov_b64 exec, 1")
    a("global_atomic_umax v%d, v%d, s[96:97]" % (vtmp + 1, vtmp))
    a("s_mov_b64 exec, s[98:99]")
    a.label("DS%d" % _dn[0])

NK = 3
SPAN = os.environ.get("SPAN", "")
def rstamp(a, idx, vtmp):
    if not SPAN:
        return
    _dn[0] += 1
    a("s_cmp_lg_u32 s2, 0")
    a("s_cbranch_scc1 DS%d" % _dn[0])
    a("s_load_dwordx2 s[96:97], s[0:1], 88")
    a("s_memrealtime s[100:101]")
    a("s_waitcnt lgkmcnt(0)")
    a("v_mov_b32 v%d, s100" % vtmp)
    a("v_mov_b32 v%d, %d" % (vtmp + 1, WS_ST + idx * 4))
    a("global_store_dword v%d, v%d, s[96:97]" % (vtmp + 1, vtmp))
    a.label("DS%d" % _dn[0])

def gen_span(a):
    kernel_head(a, "span_kernel")
    i0, i1 = [int(x) for x in SPAN.split(",")]
    a("s_cmp_lg_u32 s2, 0")
    a("s_cbranch_scc1 SP_END")
    a("s_load_dwordx2 s[4:5], s[0:1], 88")
    a("s_memrealtime s[20:21]")
    a("s_waitcnt lgkmcnt(0)")
    a("s_add_u32 s4, s4, %d" % WS_ST)
    a("s_addc_u32 s5, s5, 0")
    a("s_load_dwordx8 s[8:15], s[4:5], 0")
    a("s_waitcnt lgkmcnt(0)")
    a("s_mov_b32 s15, s20")
    a("s_sub_u32 s16, s%d, s%d" % (8 + i1, 8 + i0))
    a("s_min_u32 s16, s16, 20000")
    a("s_mul_i32 s16, s16, 10")
    a.label("SP_LOOP")
    a("s_memrealtime s[22:23]")
    a("s_waitcnt lgkmcnt(0)")
    a("s_sub_u32 s17, s22, s20")
    a("s_cmp_lt_u32 s17, s16")
    a("s_cbranch_scc1 SP_LOOP")
    a.label("SP_END")
    a("s_endpgm")
    return kernel_desc("span_kernel", 8, sgpr=32)
MF32 = "v_mfma_f32_32x32x16_bf16"
MF16 = "v_mfma_f32_16x16x32_bf16"

def bf16_round_to_f32(a, dst, src, tmp=None):
    a("v_cvt_pk_bf16_f32 v%d, v%d, v%d" % (dst, src, src))
    a("v_lshlrev_b32 v%d, 16, v%d" % (dst, dst))

K1_SLOT = 32768
K1_NSLOT = 4
K1_RT = K1_SLOT * K1_NSLOT
K1_LDS = K1_RT + 2048

def gen_k1(a):
    kernel_head(a, "k1_kernel")
    a("s_cmp_ge_u32 s2, 256")
    a("s_cbranch_scc1 K1_END")
    rstamp(a, 0, 100)
    a("s_load_dwordx4 s[4:7], s[0:1], 0")
    a("s_load_dwordx2 s[8:9], s[0:1], 32")
    a("s_load_dwordx2 s[10:11], s[0:1], 64")
    a("s_load_dwordx2 s[12:13], s[0:1], 88")
    a("v_lshrrev_b32 v1, 6, v0")
    a("v_and_b32 v0, 63, v0")
    a("v_readfirstlane_b32 s19, v1")
    a("s_and_b32 s16, s2, 7")
    a("s_lshr_b32 s17, s2, 3")
    a("s_and_b32 s14, s16, 3")
    a("s_lshl_b32 s14, s14, 3")
    a("s_and_b32 s18, s17, 7")
    a("s_add_u32 s14, s14, s18")
    a("s_lshr_b32 s15, s16, 2")
    a("s_lshl_b32 s15, s15, 2")
    a("s_lshr_b32 s17, s17, 3")
    a("s_add_u32 s15, s15, s17")
    a("s_lshl_b32 s17, s17, 1")
    a("s_add_u32 s16, s17, s18")
    a("s_and_b32 s16, s16, 7")
    a("v_lshlrev_b32 v5, 4, v0")
    a("v_and_b32 v6, 31, v0")
    a("v_lshrrev_b32 v7, 5, v0")
    a("s_and_b32 s20, s19, 1")
    XA = 8
    a("v_bfe_u32 v24, v6, 1, 3")
    a("v_lshlrev_b32 v25, 7, v6")
    a("s_lshl_b32 s18, s20, 12")
    a("v_add_u32 v25, s18, v25")
    for ks in range(4):
        a("v_or_b32 v26, %d, v7" % (2 * ks))
        a("v_xor_b32 v26, v26, v24")
        a("v_lshl_add_u32 v%d, v26, 4, v25" % (XA + ks))
        a("v_add_u32 v%d, %d, v%d" % (XA + 4 + ks, 2 * K1_SLOT, XA + ks))
    a("s_cmp_ge_u32 s19, 4")
    a("s_cbranch_scc1 K1_COMPUTE")

    a("v_lshrrev_b32 v4, 3, v0")
    a("v_lshlrev_b32 v2, 10, v4")
    a("v_and_b32 v3, 7, v0")
    a("v_lshrrev_b32 v16, 4, v0")
    a("v_xor_b32 v17, v3, v16")
    a("v_lshl_add_u32 v2, v17, 4, v2")
    a("v_mul_u32_u24 v4, 3072, v4")
    a("v_and_b32 v16, 1, v16")
    a("v_lshlrev_b32 v16, 2, v16")
    a("v_xor_b32 v17, v3, v16")
    a("v_lshl_add_u32 v4, v17, 4, v4")
    a("s_lshl_b32 s18, s15, 7")
    a("v_add_u32 v4, s18, v4")
    a("v_xor_b32 v3, 64, v2")
    a("s_lshl_b32 s18, s16, 7")
    a("v_add_u32 v16, s18, v5")
    a("v_and_b32 v16, 1023, v16")
    a("s_lshl_b32 s40, s14, 16")
    a("s_lshl_b32 s18, s19, 14")
    a("s_add_u32 s40, s40, s18")
    a("s_mul_i32 s41, s19, 49152")
    a("s_lshl_b32 s44, s19, 11")
    a("s_mul_i32 s45, s19, 6144")
    a("s_waitcnt lgkmcnt(0)")
    srd(a, 20, 4, 2048 * 512 * 2)
    srd(a, 24, 6, 512 * 1536 * 2)
    srd(a, 28, 8, 1024)
    srd(a, 32, 10, 1024)
    srd(a, 36, 12, WS_SIZE)
    stamp(a, 0, 36, 100, 0, 19, 8)

    def issue_chunk(c):
        base = (c % K1_NSLOT) * K1_SLOT
        a("s_lshl_b32 s46, s16, 7")
        a("s_add_u32 s46, s46, s40")
        a("s_mul_i32 s47, s16, %d" % (64 * 3072))
        a("s_add_u32 s47, s47, s41")
        a("s_add_u32 m0, s44, %d" % base)
        a("s_add_u32 s48, s46, 8192")
        a("buffer_load_dwordx4 v2, s[20:23], s46 offen lds")
        a("s_add_u32 m0, s44, %d" % (base + 1024))
        a("s_add_u32 s49, s47, %d" % (8 * 3072))
        a("buffer_load_dwordx4 v3, s[20:23], s48 offen lds")
        for rh in range(2):
            a("s_add_u32 m0, s45, %d" % (base + 8192 + rh * 3072))
            a("s_add_u32 s16, s16, 1" if rh == 0 else "s_and_b32 s16, s16, 7")
            for t in range(3):
                a("buffer_load_dwordx4 v4, s[24:27], s%d offen offset:%d lds" % (47 + 2 * rh, t * 1024))

    a("s_mov_b32 m0, %d" % K1_RT)
    a("s_nop 0")
    a("buffer_load_dwordx4 v16, s[32:35], 0 offen lds")
    a("s_mov_b32 m0, %d" % (K1_RT + 1024))
    a("s_nop 0")
    a("buffer_load_dwordx4 v16, s[28:31], 0 offen lds")
    for c in range(3):
        issue_chunk(c)
    a("s_lshr_b32 s50, s19, 1")
    a("s_or_b32 s50, s50, s15")
    a("v_and_b32 v25, 1, v0")
    a("v_lshlrev_b32 v25, 10, v25")
    a("v_lshl_add_u32 v17, v7, 4, v25")
    a("v_add_u32 v17, %d, v17" % K1_RT)
    RACC, RF = 32, 48
    for r in range(16):
        a("v_mov_b32 v%d, 0" % (RACC + r))
    for c in range(8):
        a("s_waitcnt vmcnt(%d) lgkmcnt(0)" % (16 if c <= 5 else (8 if c == 6 else 0)))
        a("s_barrier")
        if c == 0:
            stamp(a, 1, 36, 100, 0, 19, 8)
        if c + 3 < 8:
            issue_chunk(c + 3)
        a("s_cmp_lg_u32 s50, 0")
        a("s_cbranch_scc1 K1_NR%d" % c)
        slot = c % K1_NSLOT
        for ks in range(4):
            a("ds_read_b128 %s, v%d offset:%d" % (vr(RF + 8 * ks, 4), XA + (slot // 2) * 4 + ks, (slot & 1) * K1_SLOT))
            a("ds_read_b128 %s, v17 offset:%d" % (vr(RF + 8 * ks + 4, 4), c * 128 + ks * 32))
        for ks in range(4):
            a("s_waitcnt lgkmcnt(%d)" % (6 - 2 * ks))
            a("%s %s, %s, %s, %s" % (MF32, vr(RACC, 16), vr(RF + 8 * ks + 4, 4), vr(RF + 8 * ks, 4), vr(RACC, 16)))
        a.label("K1_NR%d" % c)
    a("s_cmp_lg_u32 s50, 0")
    a("s_cbranch_scc1 K1_END")
    a("s_nop 15")
    a("s_lshl_b32 s47, s14, 1")
    a("s_add_u32 s47, s47, s19")
    R = RACC
    bf16_round_to_f32(a, 80, R)
    a("v_mul_f32 v80, 0x%08x, v80" % f32bits(-math.log2(math.e)))
    a("v_exp_f32 v80, v80")
    a("s_nop 0")
    a("v_add_f32 v80, 1.0, v80")
    a("v_rcp_f32 v80, v80")
    a("s_nop 0")
    bf16_round_to_f32(a, 80, 80)
    a("v_sub_f32 v81, 1.0, v80")
    bf16_round_to_f32(a, 81, 81)
    a("s_lshl_b32 s54, s47, 8")
    a("s_add_u32 s54, s54, %d" % WS_G)
    a("v_lshlrev_b32 v27, 3, v6")
    a("buffer_store_dwordx2 v[80:81], v27, s[36:39], s54 offen")
    bf16_round_to_f32(a, 82, R + 1)
    a("v_ashrrev_i32 v83, 31, v82")
    a("v_or_b32 v83, 0x80000000, v83")
    a("v_xor_b32 v82, v82, v83")
    a("v_and_b32 v82, 0xffff0000, v82")
    a("s_lshl_b32 s55, s47, 5")
    a("v_add_u32 v83, s55, v6")
    a("v_sub_u32 v83, 0xffff, v83")
    a("v_or_b32 v82, v82, v83")
    for sh in (1, 2, 4, 8):
        a("s_nop 1")
        a("v_max_u32_dpp v82, v82, v82 row_ror:%d row_mask:0xf bank_mask:0xf" % sh)
    a("s_nop 0")
    a("v_readlane_b32 s56, v82, 0")
    a("v_readlane_b32 s57, v82, 16")
    a("s_nop 3")
    a("s_max_u32 s56, s56, s57")
    a("v_mov_b32 v83, s56")
    a("v_mov_b32 v84, 0")
    a("v_mov_b32 v85, 0")
    a("s_lshl_b32 s55, s47, 2")
    a("s_add_u32 s55, s55, %d" % WS_RK)
    a("buffer_store_dword v83, v84, s[36:39], s55 offen")
    a("v_lshlrev_b32 v27, 3, v0")
    a("s_lshl_b32 s55, s47, 9")
    a("s_add_u32 s55, s55, %d" % WS_Y)
    a("buffer_store_dwordx2 v[84:85], v27, s[36:39], s55 offen")
    a("s_endpgm")

    a.label("K1_COMPUTE")
    WA = 16
    a("s_bfe_u32 s21, s19, 0x10001")
    a("v_mul_u32_u24 v24, 3072, v7")
    a("v_bfe_u32 v25, v0, 2, 2")
    a("v_lshl_add_u32 v24, v25, 7, v24")
    a("v_lshrrev_b32 v25, 1, v25")
    a("v_xor_b32 v25, s21, v25")
    a("v_lshl_add_u32 v24, v25, 6, v24")
    a("v_bfe_u32 v25, v0, 4, 1")
    a("v_lshl_add_u32 v24, v25, 5, v24")
    a("v_and_b32 v25, 3, v0")
    a("v_lshl_add_u32 v%d, v25, 3, v24" % WA)
    a("v_add_u32 v%d, %d, v%d" % (WA + 1, 2 * K1_SLOT, WA))
    a("s_waitcnt lgkmcnt(0)")
    srd(a, 36, 12, WS_SIZE)
    stamp(a, 0, 36, 100, 0, 19, 8)
    ACC = 32
    FR = 80
    def frag(kk, i):
        return FR + (kk % 3) * 16 + i * 4
    def rd_x(kk):
        c, ks = kk // 4, kk % 4
        slot = c % K1_NSLOT
        a("ds_read_b128 %s, v%d offset:%d" % (vr(frag(kk, 0), 4), XA + (slot // 2) * 4 + ks, (slot & 1) * K1_SLOT))
    def rd_w(kk, t):
        c, ks = kk // 4, kk % 4
        slot = c % K1_NSLOT
        for half in range(2):
            a("ds_read_b64_tr_b16 %s, v%d offset:%d" % (vr(frag(kk, 1 + t) + 2 * half, 2), WA + slot // 2,
                                                       (slot & 1) * K1_SLOT + 8192 + ks * 6144 + t * 1024 + half * 512))
    a("s_barrier")
    stamp(a, 1, 36, 100, 0, 19, 8)
    for kk in range(2):
        rd_x(kk); rd_w(kk, 0); rd_w(kk, 1); rd_w(kk, 2)
    pend = [(kk, p) for kk in range(2) for p in ("x", "q", "q", "k", "k", "v", "v")]
    def wait_for(kk, parts):
        last = max([i for i, (k2, p) in enumerate(pend) if k2 == kk and p in parts], default=-1)
        if last >= 0:
            a("s_waitcnt lgkmcnt(%d)" % (len(pend) - 1 - last))
            del pend[:last + 1]
    for kk in range(32):
        nx = kk + 2
        if nx < 32 and nx % 4 == 0:
            a("s_waitcnt lgkmcnt(0)")
            del pend[:]
            a("s_barrier")
        x = vr(frag(kk, 0), 4)
        cz = lambda r: ("0" if kk == 0 else vr(r, 16))
        wait_for(kk, "xq")
        a("%s %s, %s, %s, %s" % (MF32, vr(ACC, 16), vr(frag(kk, 1), 4), x, cz(ACC)))
        if nx < 32:
            rd_x(nx); rd_w(nx, 0); pend += [(nx, "x"), (nx, "q"), (nx, "q")]
        wait_for(kk, "k")
        a("%s %s, %s, %s, %s" % (MF32, vr(ACC + 16, 16), vr(frag(kk, 2), 4), x, cz(ACC + 16)))
        if nx < 32:
            rd_w(nx, 1); pend += [(nx, "k"), (nx, "k")]
        wait_for(kk, "v")
        a("%s %s, %s, %s, %s" % (MF32, vr(ACC + 32, 16), x, vr(frag(kk, 3), 4), cz(ACC + 32)))
        if nx < 32:
            rd_w(nx, 2); pend += [(nx, "v"), (nx, "v")]

    a("s_lshl_b32 s47, s14, 1")
    a("s_add_u32 s47, s47, s20")
    a("s_lshl_b32 s46, s15, 1")
    a("s_add_u32 s46, s46, s21")
    a("s_lshl_b32 s48, s46, 18")
    a("s_lshl_b32 s49, s47, 11")
    a("s_add_u32 s48, s48, s49")
    a("s_add_u32 s49, s48, 131072")
    a("s_lshl_b32 s50, s46, 17")
    a("s_lshl_b32 s51, s47, 10")
    a("s_add_u32 s50, s50, s51")
    a("s_add_u32 s50, s50, %d" % WS_Q)
    a("s_add_u32 s51, s50, 65536")
    a("s_lshl_b32 s52, s46, 15")
    a("s_lshl_b32 s53, s47, 8")
    a("s_add_u32 s52, s52, s53")
    a("s_add_u32 s52, s52, %d" % WS_M)
    stamp(a, 2, 36, 100, 0, 19, 8)
    CS = math.log2(math.e) * 0.25
    a("s_mov_b32 s54, 0x%08x" % f32bits(CS))
    a("s_mov_b32 s55, 0x%08x" % f32bits(CS))
    for r in range(0, 16, 2):
        a("v_pk_mul_f32 %s, %s, s[54:55]" % (vr(ACC + r, 2), vr(ACC + r, 2)))
    PK = FR
    for t in range(2):
        for r in range(8):
            a("v_cvt_pk_bf16_f32 v%d, v%d, v%d" % (PK + t * 8 + r, ACC + t * 16 + 2 * r, ACC + t * 16 + 2 * r + 1))
    a("v_lshrrev_b32 v24, 4, v6")
    a("v_lshlrev_b32 v24, 17, v24")
    a("%s %s, %s, %s, 0" % (MF32, vr(ACC, 16), vr(PK + 8, 4), vr(PK, 4)))
    a("%s %s, %s, %s, 0" % (MF32, vr(ACC + 16, 16), vr(PK + 12, 4), vr(PK + 4, 4)))
    a("buffer_store_dwordx4 %s, v5, s[36:39], s48 offen" % vr(PK + 8, 4))
    a("buffer_store_dwordx4 %s, v5, s[36:39], s49 offen" % vr(PK + 12, 4))
    for r in range(8):
        a("v_cvt_pk_bf16_f32 v%d, v%d, v%d" % (PK + 16 + r, ACC + 32 + 2 * r, ACC + 32 + 2 * r + 1))
    a("v_lshl_add_u32 v24, v7, 8, v24")
    a("v_and_b32 v25, 15, v0")
    a("v_lshl_add_u32 v24, v25, 4, v24")
    a("buffer_store_dwordx4 %s, v24, s[36:39], s48 offen offset:1024" % vr(PK + 16, 4))
    a("buffer_store_dwordx4 %s, v24, s[36:39], s48 offen offset:1536" % vr(PK + 20, 4))
    a("buffer_store_dwordx4 %s, v5, s[36:39], s50 offen" % vr(PK, 4))
    a("buffer_store_dwordx4 %s, v5, s[36:39], s51 offen" % vr(PK + 4, 4))
    m0, m1 = 104, 105
    for h, m in ((0, m0), (1, m1)):
        S = ACC + 16 * h
        a("v_max3_f32 v%d, v%d, v%d, v%d" % (m, S, S + 1, S + 2))
        for r in range(3, 15, 2):
            a("v_max3_f32 v%d, v%d, v%d, v%d" % (m, m, S + r, S + r + 1))
        a("v_max_f32 v%d, v%d, v%d" % (m, m, S + 15))
    a("v_lshlrev_b32 v26, 3, v6")
    a("v_lshl_add_u32 v26, v7, 14, v26")
    a("v_permlane32_swap_b32 v%d, v%d" % (m0, m1))
    a("v_max_f32 v%d, v%d, v%d" % (m0, m0, m1))
    a("v_sub_f32 v%d, 0, v%d" % (m0, m0))
    bf16_round_to_f32(a, 106, m0)
    a("v_sub_f32 v107, v%d, v106" % m0)
    a("v_cvt_pk_bf16_f32 v108, v%d, v107" % m0)
    a("v_and_b32 v106, 0xffff0000, v108")
    a("v_sub_f32 v107, v107, v106")
    a("v_mov_b32 v106, 0")
    a("v_cvt_pk_bf16_f32 v109, v107, v106")
    a("buffer_store_dwordx2 v[108:109], v26, s[36:39], s52 offen")
    stamp(a, 3, 36, 100, 0, 19, 8)
    a.label("K1_END")
    a("s_endpgm")
    return kernel_desc("k1_kernel", 128, sgpr=102)

K2_FFW = 131072
K2_FFP = K2_FFW + 8 * 2304
K2_FLAG = K2_FFP + 512
K2_LDS = K2_FLAG + 256

def gen_k2(a):
    kernel_head(a, "k2_kernel")
    Q, C, O, S, P = 8, 24, 88, 152, 184
    KB = [192, 204]
    T = 216
    VK, VV, VX = 252, 253, 254
    a("s_cmp_ge_u32 s2, 256")
    a("s_cbranch_scc1 K2_END")
    rstamp(a, 1, 250)
    a("s_load_dwordx2 s[4:5], s[0:1], 88")
    a("s_load_dwordx2 s[6:7], s[0:1], 0")
    a("s_load_dwordx4 s[8:11], s[0:1], 40")
    a("s_load_dwordx2 s[12:13], s[0:1], 56")
    a("v_lshrrev_b32 v1, 6, v0")
    a("v_and_b32 v0, 63, v0")
    a("v_readfirstlane_b32 s19, v1")
    a("s_and_b32 s14, s2, 7")
    a("s_lshl_b32 s14, s14, 2")
    a("s_lshr_b32 s16, s2, 3")
    a("s_and_b32 s16, s16, 3")
    a("s_add_u32 s14, s14, s16")
    a("s_lshr_b32 s15, s2, 5")
    a("v_lshlrev_b32 v2, 4, v0")
    a("v_and_b32 v3, 15, v0")
    a("v_lshlrev_b32 v3, 4, v3")
    a("v_lshrrev_b32 v4, 5, v0")
    a("v_lshl_add_u32 v3, v4, 8, v3")
    a("v_and_b32 v4, 31, v0")
    a("v_lshlrev_b32 v4, 3, v4")
    a("s_lshr_b32 s16, s19, 2")
    a("s_and_b32 s17, s19, 3")
    a("s_lshl_b32 s18, s15, 3")
    a("s_lshl_b32 s20, s16, 2")
    a("s_add_u32 s18, s18, s20")
    a("s_lshl_b32 s20, s14, 16")
    a("s_lshl_b32 s21, s18, 10")
    a("s_add_u32 s20, s20, s21")
    a("s_add_u32 s20, s20, %d" % WS_Q)
    a("s_lshl_b32 s21, s14, 14")
    a("s_lshl_b32 s22, s18, 8")
    a("s_add_u32 s21, s21, s22")
    a("s_add_u32 s21, s21, %d" % WS_M)
    a("s_lshl_b32 s22, s14, 17")
    a("s_lshl_b32 s33, s17, 15")
    a("s_add_u32 s22, s22, s33")
    a("s_lshl_b32 s23, s16, 10")
    a("s_add_u32 s34, s22, s23")
    a("s_add_u32 s35, s33, s23")
    a("s_mov_b32 s30, 0x0000ffff")
    a("s_mov_b32 s31, 0x0000ffff")
    a("s_mov_b32 s29, 0")
    a("s_mov_b32 s32, 0x35")
    a("v_mov_b32 v%d, %d" % (VX, K2_FFW))
    a("s_waitcnt lgkmcnt(0)")
    srd(a, 24, 4, WS_SIZE)
    stamp(a, 0, 24, 250, 1, 19, 8)
    stamp(a, 12, 24, 250, 1, 19, 8)
    for j in range(4):
        a("buffer_load_dwordx2 %s, v4, s[24:27], s21 offen offset:%d" % (vr(T + 4 * j, 2), j * 256))
    for j in range(4):
        a("buffer_load_dwordx4 %s, v2, s[24:27], s20 offen offset:%d" % (vr(Q + 4 * j, 4), j * 1024))
    a("s_add_u32 s4, s4, %d" % WS_RK)
    a("s_addc_u32 s5, s5, 0")
    for i in range(4):
        a("s_load_dwordx16 %s, s[4:5], %d" % (sr(36 + 16 * i, 16), 64 * i))
    a.label("K2_PASS")
    a("s_lshl_b32 s28, s15, 12")
    for i in range(16):
        a("s_add_u32 m0, s35, %d" % (i * 2048))
        a("s_add_u32 s23, s34, s28")
        a("buffer_load_dwordx4 v2, s[24:27], s23 offen lds")
        if i < 15:
            a("s_add_u32 s28, s28, 2048")
            a("s_and_b32 s28, s28, 32767")
    a("v_add_u32 v%d, s33, v2" % VK)
    a("v_add_u32 v%d, s33, v3" % VV)
    a("s_mov_b32 s23, 0x3f803f80")
    for b in range(2):
        for r in range(4, 12):
            a("v_mov_b32 v%d, s23" % (KB[b] + r))
    for r in range(0, 64, 2):
        a("v_mov_b64 %s, 0" % vr(O + r, 2))
    a("v_mov_b64 %s, 0" % vr(P + 4, 2))
    a("v_mov_b64 %s, 0" % vr(P + 6, 2))
    a("v_mov_b64 %s, 0" % vr(S + 16 + 14, 2))
    a("s_cmp_lg_u32 s29, 0")
    a("s_cbranch_scc1 K2_P1")
    a("v_mov_b32 v5, 0")
    a("ds_write_b32 v%d, v5 offset:%d" % (VX, K2_FLAG - K2_FFW))
    a("s_mov_b32 s23, 0x3f003f00")
    for r in range(4):
        a("v_mov_b32 v%d, s23" % (T + 16 + r))
    for j in range(4):
        a("v_mov_b64 %s, 0" % vr(T + 4 * j + 2, 2))
    a("s_waitcnt lgkmcnt(0)")
    for i in range(36, 99):
        a("s_max_u32 s99, s99, s%d" % i)
    a("s_waitcnt vmcnt(20)")
    for j in range(4):
        a("%s %s, %s, %s, 0" % (MF32, vr(C + 16 * j, 16), vr(T + 16, 4), vr(T + 4 * j, 4)))
    a.label("K2_P1")
    a("s_mov_b32 s23, 0")
    a("s_waitcnt vmcnt(13)")
    a("s_barrier")
    a("ds_read_b128 %s, v%d" % (vr(KB[0], 4), VK))
    a("s_mov_b64 exec, s[30:31]")
    a("ds_read_b128 %s, v%d offset:1024" % (vr(KB[0] + 4, 4), VV))
    a("ds_read_b128 %s, v%d offset:1536" % (vr(KB[0] + 8, 4), VV))
    a("s_mov_b64 exec, -1")
    a("ds_read_b128 %s, v%d offset:2048" % (vr(KB[1], 4), VK))
    a("s_waitcnt lgkmcnt(3)")
    a("%s %s, %s, %s, %s" % (MF32, vr(S, 16), vr(KB[0], 4), vr(Q, 4), vr(C, 16)))
    a("s_waitcnt lgkmcnt(1)")
    a("s_nop 11")
    a("v_exp_f32 v%d, v%d" % (S, S))
    stamp(a, 1, 24, 250, 1, 19, 8)

    a.raw(".p2align 6")
    a.label("K2_LOOP")
    for tt in range(2):
        for j in range(4):
            cur = S + 16 * (j & 1)
            prv = S + 16 * ((j + 1) & 1)
            nxt = prv
            E = lambda r: a("v_exp_f32 v%d, v%d" % (cur + r, cur + r))
            CV = lambda r: a("v_cvt_pk_bf16_f32 v%d, v%d, v%d" % (P + r // 2, cur + r, cur + r + 1))
            pj = (j + 3) % 4
            pb = KB[tt] if j > 0 else KB[tt ^ 1]
            nj = (j + 1) % 4
            nb = KB[tt] if j < 3 else KB[tt ^ 1]
            a("v_cvt_pk_bf16_f32 v%d, v%d, v%d" % (P + 7, prv + 14, prv + 15))
            if j == 3:
                a("s_waitcnt lgkmcnt(1)")
                if tt == 0:
                    a("s_bitcmp1_b32 s32, s23")
                    a("s_cbranch_scc1 K2_HOOK")
                    a.label("K2_HRET")
            a("%s %s, %s, %s, %s" % (MF32, vr(nxt, 16), vr(nb, 4), vr(Q + 4 * nj, 4), vr(C + 16 * nj, 16)))
            if j == 2:
                a("ds_read_b128 %s, v%d offset:%d" % (vr(KB[tt], 4), VK, 4096 + tt * 2048))
            E(1); E(2); CV(0); E(3); E(4); CV(2); E(5)
            a("%s %s, %s, %s, %s" % (MF32, vr(O + 16 * pj, 16), vr(pb + 8, 4), vr(P + 4, 4), vr(O + 16 * pj, 16)))
            if j == 0:
                a("s_mov_b64 exec, s[30:31]")
                off = 3072 + tt * 2048
                a("ds_read_b128 %s, v%d offset:%d" % (vr(KB[tt ^ 1] + 4, 4), VV, off))
                a("ds_read_b128 %s, v%d offset:%d" % (vr(KB[tt ^ 1] + 8, 4), VV, off + 512))
                a("s_mov_b64 exec, -1")
            E(6); CV(4); E(7); E(8); CV(6); E(9); E(10)
            a("%s %s, %s, %s, %s" % (MF32, vr(O + 16 * j, 16), vr(KB[tt] + 4, 4), vr(P, 4), vr(O + 16 * j, 16)))
            CV(8); E(11); E(12); CV(10); E(13); E(14); CV(12); E(15)
            a("v_exp_f32 v%d, v%d" % (nxt, nxt))
    if STAMP == 1:
        a("s_memtime s[100:101]")
        a("s_waitcnt lgkmcnt(0)")
        a("v_mov_b32 v250, s100")
        a("s_lshl_b32 s100, s2, 3")
        a("s_add_u32 s100, s100, s19")
        a("s_lshl_b32 s100, s100, 4")
        a("s_add_u32 s100, s100, s23")
        a("s_lshl_b32 s100, s100, 2")
        a("s_add_u32 s100, s100, %d" % (WS_ST + 262144 + 8))
        a("v_mov_b32 v251, 0")
        a("buffer_store_dword v250, v251, s[24:27], s100 offen")
    a("v_add_u32 v%d, 4096, v%d" % (VK, VK))
    a("v_add_u32 v%d, 4096, v%d" % (VV, VV))
    a("s_add_u32 s23, s23, 1")
    a("s_cmp_lt_u32 s23, 8")
    a("s_cbranch_scc1 K2_LOOP")
    a("v_cvt_pk_bf16_f32 v%d, v%d, v%d" % (P + 7, S + 16 + 14, S + 16 + 15))
    a("s_lshl_b32 s23, s16, 16")
    a("s_mul_i32 s28, s17, 2304")
    a("%s %s, %s, %s, %s" % (MF32, vr(O + 48, 16), vr(KB[1] + 8, 4), vr(P + 4, 4), vr(O + 48, 16)))
    a("s_add_u32 s23, s23, s28")
    a("v_add_u32 v5, s23, v2")
    a("v_lshlrev_b32 v6, 2, v0")
    a("v_add_u32 v6, s23, v6")
    a("s_mov_b32 s23, 0x4f800000")
    for j in range(4):
        off = (j >> 1) * 32768 + (j & 1) * 9216
        if j == 3:
            a("s_nop 1")
        a("ds_write_b128 v5, %s offset:%d" % (vr(O + 16 * j, 4), off))
        a("ds_write_b128 v5, %s offset:%d" % (vr(O + 16 * j + 4, 4), off + 1024))
        a("ds_write_b32 v6, v%d offset:%d" % (O + 16 * j + 8, off + 2048))
    a("v_max3_f32 v7, v%d, v%d, v%d" % (O + 8, O + 24, O + 40))
    a("v_cmp_u_f32 s[56:57], v%d, v%d" % (O + 8, O + 24))
    a("v_cmp_u_f32 s[58:59], v%d, v%d" % (O + 40, O + 56))
    a("v_max_f32 v7, v7, v%d" % (O + 56))
    a("v_cmp_lt_f32 vcc, s23, v7")
    a("s_lshl_b32 s23, s16, 16")
    a("s_lshr_b32 s28, s17, 1")
    a("s_lshl_b32 s28, s28, 15")
    a("s_add_u32 s23, s23, s28")
    a("s_and_b32 s28, s17, 1")
    a("s_mul_i32 s28, s28, 9216")
    a("s_add_u32 s23, s23, s28")
    a("v_add_u32 v5, s23, v2")
    a("v_lshlrev_b32 v6, 2, v0")
    a("v_add_u32 v6, s23, v6")
    a("s_or_b64 s[56:57], s[56:57], s[58:59]")
    a("s_or_b64 s[56:57], s[56:57], vcc")
    a("s_cmp_eq_u64 s[56:57], 0")
    a("s_cbranch_scc1 K2_NOFLAG")
    a("v_mov_b32 v7, 1")
    a("ds_write_b32 v%d, v7 offset:%d" % (VX, K2_FLAG - K2_FFW))
    a.label("K2_NOFLAG")
    a("s_add_u32 s28, s18, s17")
    a("s_lshl_b32 s28, s28, 15")
    a("s_lshl_b32 s23, s14, 10")
    a("s_add_u32 s28, s28, s23")
    a("s_add_u32 s28, s28, %d" % WS_O)
    a("s_waitcnt lgkmcnt(0)")
    a("s_barrier")
    a("ds_read_b32 v7, v%d offset:%d" % (VX, K2_FLAG - K2_FFW))
    for j in range(4):
        a("ds_read_b32 v%d, v6 offset:%d" % (O + 16 * j + 8, j * 2304 + 2048))
    for j in range(4):
        a("ds_read_b128 %s, v5 offset:%d" % (vr(O + 16 * j, 4), j * 2304))
        a("ds_read_b128 %s, v5 offset:%d" % (vr(O + 16 * j + 4, 4), j * 2304 + 1024))
    a("s_waitcnt lgkmcnt(8)")
    a("v_readfirstlane_b32 s23, v7")
    a("v_add_f32 v%d, v%d, v%d" % (O + 8, O + 8, O + 24))
    a("v_add_f32 v%d, v%d, v%d" % (O + 40, O + 40, O + 56))
    a("v_add_f32 v%d, v%d, v%d" % (O + 8, O + 8, O + 40))
    a("v_rcp_f32 v%d, v%d" % (O + 8, O + 8))
    a("s_cmp_gt_u32 s23, s29")
    a("s_cbranch_scc1 K2_EXACT")
    a("v_mov_b32 v%d, v%d" % (O + 9, O + 8))
    a("s_waitcnt lgkmcnt(4)")
    for r in range(0, 8, 2):
        a("v_pk_add_f32 %s, %s, %s" % (vr(O + r, 2), vr(O + r, 2), vr(O + 16 + r, 2)))
    a("s_waitcnt lgkmcnt(0)")
    for r in range(0, 8, 2):
        a("v_pk_add_f32 %s, %s, %s" % (vr(O + 32 + r, 2), vr(O + 32 + r, 2), vr(O + 48 + r, 2)))
    for r in range(0, 8, 2):
        a("v_pk_add_f32 %s, %s, %s" % (vr(O + r, 2), vr(O + r, 2), vr(O + 32 + r, 2)))
    for r in range(0, 8, 2):
        a("v_pk_mul_f32 %s, %s, %s" % (vr(O + r, 2), vr(O + r, 2), vr(O + 8, 2)))
    for r in range(4):
        a("v_cvt_pk_bf16_f32 v%d, v%d, v%d" % (O + 16 + r, O + 2 * r, O + 2 * r + 1))
    a("buffer_store_dwordx4 %s, v2, s[24:27], s28 offen" % vr(O + 16, 4))
    stamp(a, 10, 24, 250, 1, 19, 8)
    stamp(a, 13, 24, 250, 1, 19, 8)
    a.label("K2_END")
    a("s_endpgm")

    a.label("K2_HOOK")
    a("s_cmp_eq_u32 s23, 4")
    a("s_cbranch_scc1 K2_FFN1")
    a("s_cmp_eq_u32 s23, 5")
    a("s_cbranch_scc1 K2_FFN2")
    a("s_cmp_eq_u32 s23, 2")
    a("s_cbranch_scc1 K2_FFN0")
    a("s_waitcnt vmcnt(9)")
    a("s_barrier")
    a("s_branch K2_HRET")

    a.label("K2_FFN0")
    a("s_waitcnt vmcnt(0) lgkmcnt(0)")
    a("s_barrier")
    a("s_cmp_ge_u32 s2, 224")
    a("s_cbranch_scc1 K2_HRET")
    a("s_cmp_lg_u32 s29, 0")
    a("s_cbranch_scc1 K2_HRET")
    srd(a, 36, 6, 2048 * 512 * 2)
    srd(a, 40, 8, 512 * 1792 * 2)
    srd(a, 44, 10, 512 * 1792 * 2)
    srd(a, 48, 12, 1792 * 512 * 2)
    a("s_and_b32 s52, s99, 0xffff")
    a("s_sub_u32 s52, 0xffff, s52")
    a("s_and_b32 s52, s52, 2047")
    a("s_lshl_b32 s52, s52, 10")
    a("s_lshl_b32 s53, s19, 7")
    a("s_add_u32 s52, s52, s53")
    a("s_and_b32 s55, s2, 7")
    a("s_mul_i32 s55, s55, 28")
    a("s_lshr_b32 s53, s2, 3")
    a("s_add_u32 s55, s55, s53")
    a("v_lshl_add_u32 v5, v1, 6, v0")
    a("v_mul_u32_u24 v5, 3584, v5")
    a("s_lshl_b32 s53, s55, 4")
    a("s_mul_i32 s54, s19, 2304")
    a("s_add_u32 m0, s54, %d" % K2_FFW)
    a("v_lshrrev_b32 v6, 4, v0")
    a("buffer_load_dwordx4 v5, s[40:43], s53 offen lds")
    a("s_add_u32 m0, s54, %d" % (K2_FFW + 1152))
    a("v_lshlrev_b32 v6, 4, v6")
    a("buffer_load_dwordx4 v5, s[44:47], s53 offen lds")
    a("buffer_load_dwordx4 %s, v6, s[36:39], s52 offen" % vr(T, 4))
    a("buffer_load_dwordx4 %s, v6, s[36:39], s52 offen offset:64" % vr(T + 4, 4))
    a("s_cmp_ge_u32 s19, 4")
    a("s_cbranch_scc1 K2_HRET")
    a("s_lshl_b32 s52, s55, 13")
    a("s_lshl_b32 s53, s17, 8")
    a("s_add_u32 s52, s52, s53")
    a("v_lshlrev_b32 v6, 2, v0")
    a("s_add_u32 s53, s52, 4096")
    for f in range(8):
        a("buffer_load_dword v%d, v6, s[48:51], s%d offen offset:%d" % (T + 20 + f, 52 + f // 4, (f % 4) * 1024))
    a("s_branch K2_HRET")

    a.label("K2_FFN1")
    a("s_cmp_ge_u32 s2, 224")
    a("s_cbranch_scc1 K2_HRET")
    a("s_cmp_lg_u32 s29, 0")
    a("s_cbranch_scc1 K2_HRET")
    a("v_lshrrev_b32 v5, 4, v0")
    a("v_lshl_add_u32 v5, v5, 7, v%d" % VX)
    a("v_bfe_u32 v6, v0, 2, 2")
    a("v_lshl_add_u32 v5, v6, 4, v5")
    a("v_and_b32 v6, 1, v0")
    a("v_lshl_add_u32 v5, v6, 3, v5")
    a("v_bfe_u32 v6, v0, 1, 1")
    a("v_mul_u32_u24 v6, 1152, v6")
    a("s_mul_i32 s52, s19, 2304")
    a("v_add3_u32 v5, v5, v6, s52")
    a("s_waitcnt vmcnt(0)")
    for s in range(2):
        for half in range(2):
            a("ds_read_b64_tr_b16 %s, v5 offset:%d" % (vr(T + 8 + 4 * s + 2 * half, 2), s * 512 + half * 64))
    a("v_and_b32 v5, 15, v0")
    a("v_lshl_add_u32 v5, v5, 5, v%d" % VX)
    a("s_lshl_b32 s52, s19, 2")
    a("v_add_u32 v5, s52, v5")
    a("s_waitcnt lgkmcnt(0)")
    a("%s %s, %s, %s, 0" % (MF16, vr(T + 16, 4), vr(T, 4), vr(T + 8, 4)))
    a("%s %s, %s, %s, %s" % (MF16, vr(T + 16, 4), vr(T + 4, 4), vr(T + 12, 4), vr(T + 16, 4)))
    a("s_nop 8")
    a("ds_write_b32 v5, v%d offset:%d" % (T + 16, K2_FFP - K2_FFW))
    a("s_waitcnt lgkmcnt(0)")
    a("s_branch K2_HRET")

    a.label("K2_FFN2")
    a("s_waitcnt lgkmcnt(0)")
    a("s_barrier")
    a("s_cmp_ge_u32 s2, 224")
    a("s_cbranch_scc1 K2_HRET")
    a("s_cmp_lg_u32 s29, 0")
    a("s_cbranch_scc1 K2_HRET")
    a("s_cmp_ge_u32 s19, 4")
    a("s_cbranch_scc1 K2_HRET")
    a("v_and_b32 v5, 15, v0")
    a("v_lshl_add_u32 v5, v5, 5, v%d" % VX)
    a("ds_read_b128 %s, v5 offset:%d" % (vr(T, 4), K2_FFP - K2_FFW))
    a("ds_read_b128 %s, v5 offset:%d" % (vr(T + 4, 4), K2_FFP - K2_FFW + 16))
    a("s_waitcnt lgkmcnt(0)")
    a("v_pk_add_f32 %s, %s, %s" % (vr(T, 2), vr(T, 2), vr(T + 2, 2)))
    a("v_pk_add_f32 %s, %s, %s" % (vr(T + 4, 2), vr(T + 4, 2), vr(T + 6, 2)))
    a("v_pk_add_f32 %s, %s, %s" % (vr(T, 2), vr(T, 2), vr(T + 4, 2)))
    a("v_add_f32 v%d, v%d, v%d" % (T, T, T + 1))
    bf16_round_to_f32(a, T, T)
    a("v_mul_f32 v%d, 0x%08x, v%d" % (T + 1, f32bits(-math.log2(math.e)), T))
    a("v_exp_f32 v%d, v%d" % (T + 1, T + 1))
    a("v_mov_b32_dpp v%d, v%d row_ror:8 row_mask:0xf bank_mask:0xf" % (T + 2, T))
    a("v_add_f32 v%d, 1.0, v%d" % (T + 1, T + 1))
    a("v_rcp_f32 v%d, v%d" % (T + 1, T + 1))
    a("v_mov_b32 v%d, 0" % (T + 4))
    a("v_mul_f32 v%d, v%d, v%d" % (T + 1, T + 1, T))
    bf16_round_to_f32(a, T + 1, T + 1)
    a("v_mul_f32 v%d, v%d, v%d" % (T + 1, T + 1, T + 2))
    a("v_cvt_pk_bf16_f32 v%d, v%d, v%d" % (T + 1, T + 1, T + 4))
    a("v_mov_b32 v%d, 0" % (T + 5))
    for i in range(8):
        a("v_readlane_b32 s%d, v%d, %d" % (60 + i, T + 1, i))
    a("v_lshlrev_b32 v6, 2, v0")
    a("s_lshl_b32 s52, s17, 9")
    a("s_and_b32 s53, s2, 15")
    a("s_lshl_b32 s53, s53, 11")
    a("s_add_u32 s52, s52, s53")
    a("s_add_u32 s52, s52, %d" % WS_Y)
    for i in range(8):
        a("s_lshl_b32 s%d, s%d, 16" % (68 + i, 60 + i))
    for i in range(8):
        a("v_dot2_f32_bf16 v%d, v%d, s%d, v%d" % (T + 4, T + 20 + i, 60 + i, T + 4))
        a("v_dot2_f32_bf16 v%d, v%d, s%d, v%d" % (T + 5, T + 20 + i, 68 + i, T + 5))
    a("s_nop 3")
    a("buffer_atomic_add_f32 v%d, v6, s[24:27], s52 offen" % (T + 4))
    a("buffer_atomic_add_f32 v%d, v6, s[24:27], s52 offen offset:256" % (T + 5))
    a("s_branch K2_HRET")

    a.label("K2_EXACT")
    a("s_mov_b32 s29, 1")
    a("s_mov_b32 s23, 0xff800000")
    for j in range(4):
        a("v_mov_b32 v%d, s23" % (T + j))
    a("s_mov_b32 s28, s22")
    a("s_mov_b32 s23, 0")
    a("s_waitcnt lgkmcnt(0)")
    a.label("K2_EXLOOP")
    a("buffer_load_dwordx4 %s, v2, s[24:27], s28 offen" % vr(KB[0], 4))
    a("s_waitcnt vmcnt(0)")
    for j in range(4):
        a("%s %s, %s, %s, 0" % (MF32, vr(S, 16), vr(KB[0], 4), vr(Q + 4 * j, 4)))
        a("s_nop 15")
        for r in range(0, 16, 2):
            a("v_max3_f32 v%d, v%d, v%d, v%d" % (T + j, T + j, S + r, S + r + 1))
    a("s_add_u32 s28, s28, 2048")
    a("s_add_u32 s23, s23, 1")
    a("s_cmp_lt_u32 s23, 16")
    a("s_cbranch_scc1 K2_EXLOOP")
    a("v_lshl_add_u32 v6, v0, 2, v%d" % VX)
    a("s_lshl_b32 s23, s19, 10")
    a("v_add_u32 v5, s23, v6")
    for j in range(4):
        a("ds_write_b32 v5, v%d offset:%d" % (T + j, j * 256))
    a("s_waitcnt lgkmcnt(0)")
    a("s_barrier")
    a("v_and_b32 v5, 31, v0")
    a("v_lshl_add_u32 v5, v5, 2, v%d" % VX)
    a("s_lshl_b32 s23, s16, 12")
    a("v_add_u32 v5, s23, v5")
    for j in range(4):
        for kq in range(4):
            for hh in range(2):
                a("ds_read_b32 v%d, v5 offset:%d" % (S + kq * 2 + hh, kq * 1024 + j * 256 + hh * 128))
        a("s_waitcnt lgkmcnt(0)")
        a("v_max3_f32 v%d, v%d, v%d, v%d" % (S, S, S + 1, S + 2))
        a("v_max3_f32 v%d, v%d, v%d, v%d" % (S, S, S + 3, S + 4))
        a("v_max3_f32 v%d, v%d, v%d, v%d" % (S, S, S + 5, S + 6))
        a("v_max_f32 v%d, v%d, v%d" % (S, S, S + 7))
        for r in range(16):
            a("v_sub_f32 v%d, 0, v%d" % (C + 16 * j + r, S))
    a("s_branch K2_PASS")
    return kernel_desc("k2_kernel", 256, sgpr=102)

K3_SC = 131072
K3_LDS = K3_SC + 4 * 2304

def gen_k3(a):
    kernel_head(a, "k3_kernel")
    ACC = 16
    FR = 32
    XR = 64
    YR = 72
    B = 88
    a("s_cmp_ge_u32 s2, 256")
    a("s_cbranch_scc1 K3_END")
    rstamp(a, 2, 14)
    a("s_load_dwordx2 s[4:5], s[0:1], 88")
    a("s_load_dwordx2 s[6:7], s[0:1], 0")
    a("s_load_dwordx2 s[8:9], s[0:1], 16")
    a("s_load_dwordx2 s[10:11], s[0:1], 72")
    a("v_lshrrev_b32 v1, 6, v0")
    a("v_and_b32 v0, 63, v0")
    a("v_readfirstlane_b32 s19, v1")
    a("s_and_b32 s14, s2, 7")
    a("s_lshl_b32 s14, s14, 2")
    a("s_lshr_b32 s16, s2, 3")
    a("s_and_b32 s17, s16, 3")
    a("s_add_u32 s14, s14, s17")
    a("s_lshr_b32 s15, s16, 2")
    a("s_lshl_b32 s17, s17, 1")
    a("s_add_u32 s12, s15, s17")
    a("s_and_b32 s12, s12, 7")
    a("s_and_b32 s16, s19, 1")
    a("s_lshr_b32 s17, s19, 1")
    a("s_lshl_b32 s18, s14, 1")
    a("s_add_u32 s18, s18, s16")
    a("v_lshlrev_b32 v2, 4, v0")
    a("v_lshrrev_b32 v3, 3, v0")
    a("v_lshlrev_b32 v3, 10, v3")
    a("v_and_b32 v4, 7, v0")
    a("v_bfe_u32 v5, v0, 4, 1")
    a("v_lshlrev_b32 v5, 2, v5")
    a("v_xor_b32 v4, v4, v5")
    a("v_lshl_add_u32 v3, v4, 4, v3")
    a("s_lshl_b32 s20, s15, 7")
    a("s_lshl_b32 s21, s19, 14")
    a("s_add_u32 s21, s21, s20")
    a("s_lshl_b32 s22, s17, 6")
    a("s_add_u32 s20, s20, s22")
    a("s_lshl_b32 s22, s19, 12")
    a("s_lshl_b32 s23, s14, 16")
    a("s_lshl_b32 s28, s19, 10")
    a("s_add_u32 s23, s23, s28")
    a("s_add_u32 s23, s23, %d" % WS_O)
    a("v_and_b32 v4, 31, v0")
    a("v_lshrrev_b32 v5, 5, v0")
    a("v_lshlrev_b32 v6, 10, v4")
    a("v_lshl_add_u32 v6, v5, 5, v6")
    a("s_lshl_b32 s29, s18, 15")
    a("s_add_u32 s29, s29, s20")
    a("v_lshrrev_b32 v7, 2, v0")
    a("v_lshlrev_b32 v7, 11, v7")
    a("v_and_b32 v8, 3, v0")
    a("v_lshl_add_u32 v7, v8, 4, v7")
    a("s_lshr_b32 s30, s20, 8")
    a("s_lshl_b32 s30, s30, 9")
    a("s_and_b32 s31, s20, 255")
    a("s_add_u32 s30, s30, s31")
    a("s_add_u32 s30, s30, %d" % WS_Y)
    a("s_waitcnt lgkmcnt(0)")
    srd(a, 24, 4, WS_SIZE)
    srd(a, 32, 6, 2048 * 512 * 2)
    srd(a, 36, 8, 512 * 512 * 2)
    srd(a, 40, 10, 2048 * 512 * 2)
    stamp(a, 0, 24, 14, 2, 19, 4)
    a("s_add_u32 s4, s4, %d" % WS_RK)
    a("s_addc_u32 s5, s5, 0")
    a("s_load_dwordx16 s[44:59], s[4:5], 0")
    a("s_load_dwordx16 s[60:75], s[4:5], 64")
    a("s_load_dwordx16 s[76:91], s[4:5], 128")
    def issue_group(g):
        a("s_lshl_b32 s13, s12, 12")
        a("s_add_u32 s13, s13, s23")
        a("s_lshl_b32 s28, s12, 16")
        a("s_add_u32 s28, s28, s21")
        a("s_add_u32 m0, s22, %d" % (g * 16384))
        a("s_add_u32 s31, s13, 32768")
        a("buffer_load_dwordx4 v2, s[24:27], s13 offen lds")
        a("s_add_u32 m0, s22, %d" % (g * 16384 + 1024))
        a("s_add_u32 s12, s12, 1")
        a("buffer_load_dwordx4 v2, s[24:27], s31 offen lds")
        a("s_add_u32 m0, s22, %d" % (g * 16384 + 2048))
        a("s_add_u32 s31, s28, 8192")
        a("buffer_load_dwordx4 v3, s[36:39], s28 offen lds")
        a("s_add_u32 m0, s22, %d" % (g * 16384 + 3072))
        a("s_and_b32 s12, s12, 7")
        a("buffer_load_dwordx4 v3, s[36:39], s31 offen lds")
    issue_group(0)
    issue_group(1)
    a("buffer_load_dwordx4 %s, v7, s[24:27], s30 offen" % vr(YR, 4))
    a("buffer_load_dwordx4 %s, v7, s[24:27], s30 offen offset:256" % vr(YR + 4, 4))
    for g in range(2, 8):
        issue_group(g)
    a("buffer_load_dwordx4 %s, v6, s[32:35], s29 offen" % vr(XR, 4))
    a("buffer_load_dwordx4 %s, v6, s[32:35], s29 offen offset:16" % vr(XR + 4, 4))
    a("v_lshlrev_b32 v7, 3, v4")
    a("s_lshl_b32 s30, s18, 8")
    a("s_add_u32 s30, s30, %d" % WS_G)
    a("buffer_load_dwordx2 v[8:9], v7, s[24:27], s30 offen")
    NTAIL = 3
    a("v_bfe_u32 v11, v0, 2, 2")
    a("v_lshl_add_u32 v10, v5, 2, v11")
    a("v_lshlrev_b32 v10, 7, v10")
    a("v_lshrrev_b32 v11, 1, v11")
    a("v_xor_b32 v11, s17, v11")
    a("v_lshl_add_u32 v10, v11, 6, v10")
    a("v_and_b32 v11, 1, v0")
    a("v_lshl_add_u32 v10, v11, 5, v10")
    a("v_bfe_u32 v11, v0, 1, 1")
    a("v_bfe_u32 v12, v0, 4, 1")
    a("v_lshl_add_u32 v11, v12, 1, v11")
    a("v_lshl_add_u32 v10, v11, 3, v10")
    a("v_add_u32 v11, 65536, v10")
    a("s_lshl_b32 s30, s16, 10")
    a("v_add_u32 v12, s30, v2")
    a("v_add_u32 v13, 65536, v12")
    a("s_waitcnt lgkmcnt(0)")
    for i in range(44, 91):
        a("s_max_u32 s91, s91, s%d" % i)
    a("s_load_dwordx16 s[44:59], s[4:5], 192")
    a("s_waitcnt lgkmcnt(0)")
    for i in range(44, 60):
        a("s_max_u32 s91, s91, s%d" % i)
    a("s_and_b32 s90, s91, 0xffff")
    a("s_sub_u32 s90, 0xffff, s90")
    a("s_lshr_b32 s30, s90, 5")
    a("s_cmp_lg_u32 s30, s18")
    a("s_cbranch_scc1 K3_NOSEL0")
    a("s_mul_i32 s30, s19, 2304")
    a("s_add_u32 s30, s30, %d" % K3_SC)
    a("v_lshrrev_b32 v14, 2, v0")
    a("v_lshlrev_b32 v14, 7, v14")
    a("v_and_b32 v15, 3, v0")
    a("v_lshl_add_u32 v14, v15, 4, v14")
    a("v_add_u32 v14, s30, v14")
    a("s_waitcnt vmcnt(%d)" % (24 + NTAIL))
    a("ds_write_b128 v14, %s" % vr(YR, 4))
    a("ds_write_b128 v14, %s offset:64" % vr(YR + 4, 4))
    a("v_lshlrev_b32 v14, 10, v5")
    a("v_lshl_add_u32 v14, v4, 2, v14")
    a("v_add_u32 v14, s30, v14")
    a("s_waitcnt lgkmcnt(0)")
    for i in range(8):
        a("ds_read_b32 v%d, v14 offset:%d" % (YR + i, i * 128))
    a("s_and_b32 s31, s91, 0xffff0000")
    a("s_ashr_i32 s28, s31, 31")
    a("s_not_b32 s28, s28")
    a("s_or_b32 s28, s28, 0x80000000")
    a("s_xor_b32 s31, s31, s28")
    a("s_and_b32 s31, s31, 0xffff0000")
    a("v_mov_b32 v15, s31")
    a("v_mul_f32 v15, 0x%08x, v15" % f32bits(-math.log2(math.e)))
    a("v_exp_f32 v15, v15")
    a("s_nop 0")
    a("v_add_f32 v15, 1.0, v15")
    a("v_rcp_f32 v15, v15")
    a("s_nop 0")
    bf16_round_to_f32(a, 15, 15)
    a("s_waitcnt lgkmcnt(0)")
    for i in range(1, 8):
        a("v_add_f32 v%d, v%d, v%d" % (YR, YR, YR + i))
    a("v_mov_b32 v%d, v%d" % (YR + 1, YR))
    a("v_and_b32 v14, 15, v0")
    a("v_lshlrev_b32 v14, 3, v14")
    a("v_permlane32_swap_b32 v%d, v%d" % (YR, YR + 1))
    a("v_add_f32 v%d, v%d, v%d" % (YR, YR, YR + 1))
    bf16_round_to_f32(a, YR, YR)
    a("v_mul_f32 v%d, v%d, v15" % (YR, YR))
    bf16_round_to_f32(a, YR, YR)
    a("v_bfe_u32 v15, v0, 4, 1")
    a("v_lshl_add_u32 v14, v15, 2, v14")
    a("v_add_u32 v14, s30, v14")
    a("ds_write_b32 v14, v%d offset:2048" % YR)
    a("v_lshlrev_b32 v14, 6, v5")
    a("v_add_u32 v14, s30, v14")
    a("s_waitcnt lgkmcnt(0)")
    for i in range(4):
        a("ds_read_b128 %s, v14 offset:%d" % (vr(YR + 4 * i, 4), 2048 + i * 16))
    a("s_waitcnt lgkmcnt(0)")
    a.label("K3_NOSEL0")
    stamp(a, 1, 24, 14, 2, 19, 4)

    def reads(h):
        b = FR + 8 * (h % 4)
        off = (h % 16) * 4096
        a("ds_read_b128 %s, v%d offset:%d" % (vr(b, 4), 12 + h // 16, off))
        a("ds_read_b64_tr_b16 %s, v%d offset:%d" % (vr(b + 4, 2), 10 + h // 16, off + 2048))
        a("ds_read_b64_tr_b16 %s, v%d offset:%d" % (vr(b + 6, 2), 10 + h // 16, off + 3072))

    def vm_after(g):
        return (7 - g) * 4 + NTAIL + (2 if g < 2 else 0)
    LA = 3
    issued = 0
    for h in range(32):
        while issued < 32 and issued <= h + LA:
            if issued % 8 == 0:
                if issued > h + 1 and issued > 0:
                    break
                a("s_waitcnt vmcnt(%d)" % vm_after(issued // 4 + 1))
                a("s_barrier")
            reads(issued)
            issued += 1
        a("s_waitcnt lgkmcnt(%d)" % (3 * (issued - h - 1)))
        b = FR + 8 * (h % 4)
        a("%s %s, %s, %s, %s" % (MF32, vr(ACC, 16), vr(b + 4, 4), vr(b, 4), "0" if h == 0 else vr(ACC, 16)))
    a("s_waitcnt vmcnt(0)")
    stamp(a, 2, 24, 14, 2, 19, 4)
    for i in range(8):
        a("v_lshlrev_b32 v%d, 16, v%d" % (B + 2 * i, XR + i))
        a("v_and_b32 v%d, 0xffff0000, v%d" % (B + 2 * i + 1, XR + i))
    a("s_lshr_b32 s30, s90, 5")
    a("s_cmp_lg_u32 s30, s18")
    a("s_cbranch_scc1 K3_NOSEL")
    a("s_and_b32 s30, s90, 31")
    a("v_cmp_eq_u32 vcc, s30, v4")
    a("s_and_saveexec_b64 s[44:45], vcc")
    for i in range(16):
        a("v_add_f32 v%d, v%d, v%d" % (B + i, B + i, YR + i))
        bf16_round_to_f32(a, B + i, B + i)
    a("s_mov_b64 exec, s[44:45]")
    a.label("K3_NOSEL")
    for i in range(16):
        a("v_mul_f32 v%d, v%d, v9" % (B + i, B + i))
    for i in range(16):
        a("v_fma_f32 v%d, v%d, v8, v%d" % (B + i, ACC + i, B + i))
    for i in range(8):
        a("v_cvt_pk_bf16_f32 v%d, v%d, v%d" % (XR + i, B + 2 * i, B + 2 * i + 1))
    a("buffer_store_dwordx4 %s, v6, s[40:43], s29 offen" % vr(XR, 4))
    a("buffer_store_dwordx4 %s, v6, s[40:43], s29 offen offset:16" % vr(XR + 4, 4))
    stamp(a, 3, 24, 14, 2, 19, 4)
    a.label("K3_END")
    a("s_endpgm")
    return kernel_desc("k3_kernel", 104, sgpr=102)

def main():
    out = sys.argv[1] if len(sys.argv) > 1 else "cdna_kernels/%s.s" % NAME
    a = Asm()
    hdr = open("cdna_kernels/%s.s.ref" % NAME).read().split("\n")
    keep = [l for l in hdr if l.startswith(";") and "@launch" not in l and "Override launch" not in l and "grid=ceil" not in l]
    for l in keep:
        a.raw(l)
    a.raw("; @launch kernel=k1_kernel grid=(256,1,1) block=(512,1,1) lds=%d" % K1_LDS)
    a.raw("; @launch kernel=k2_kernel grid=(256,1,1) block=(512,1,1) lds=%d" % K2_LDS)
    a.raw("; @launch kernel=k3_kernel grid=(256,1,1) block=(256,1,1) lds=%d" % K3_LDS)
    if SPAN:
        a.raw("; @launch kernel=span_kernel grid=(1,1,1) block=(64,1,1) lds=0")
    a.raw('.amdgcn_target "amdgcn-amd-amdhsa--gfx950"')
    a.raw(".text")
    d1 = gen_k1(a)
    d2 = gen_k2(a)
    d3 = gen_k3(a)
    d4 = gen_span(a) if SPAN else ""
    a.raw('.section .rodata,"a"')
    a.raw(d4)
    a.raw(d1); a.raw(d2); a.raw(d3)
    open(out, "w").write(a.text())

if __name__ == "__main__":
    main()
```

```python
import sys, math, struct, os

NAME = "gated_mix__mha_block__moe_arch_mod__prompt"

WS_KV = 0
WS_O = 4 << 20
WS_FL1 = 6 << 20
WS_FL2 = WS_FL1 + 32768
WS_FL3 = WS_FL2 + 32768
WS_RK = WS_FL3 + 32768
WS_PA = WS_RK + 8192
WS_EP = WS_PA + 262144
WS_Y = WS_EP + 1024
WS_ST = 7 << 20
WS_SIZE = 8 << 20

STAMP = int(os.environ.get("STAMP", "0"))
NB = int(os.environ.get("NB", "4"))
CPF = int(os.environ.get("CPF", "1"))
SLEEP = int(os.environ.get("SLEEP", "2"))
MAP = int(os.environ.get("MAP", "2"))
TOUCH = int(os.environ.get("TOUCH", "0"))
ST0 = int(os.environ.get("ST0", "2"))

def f32bits(x):
    return struct.unpack("<I", struct.pack("<f", x))[0]

class Asm:
    def __init__(self):
        self.l = []
    def __call__(self, s):
        for line in s.strip("\n").split("\n"):
            self.l.append("    " + line.strip())
    def label(self, s):
        self.l.append(s + ":")
    def raw(self, s):
        self.l.append(s)
    def text(self):
        return "\n".join(self.l) + "\n"

def vr(b, n):
    return "v[%d:%d]" % (b, b + n - 1)
def sr(b, n):
    return "s[%d:%d]" % (b, b + n - 1)

def srd(a, d, base, nbytes):
    a("s_mov_b32 s%d, s%d" % (d, base))
    a("s_and_b32 s%d, s%d, 0xffff" % (d + 1, base + 1))
    a("s_mov_b32 s%d, 0x%x" % (d + 2, nbytes))
    a("s_mov_b32 s%d, 0x00020000" % (d + 3))

MF32 = "v_mfma_f32_32x32x16_bf16"
MF16 = "v_mfma_f32_16x16x32_bf16"
LOG2E = math.log2(math.e)

P_X, P_WQKV, P_WO, P_WR, P_WG, P_WU, P_WD, P_GW, P_OUT, P_DBG, P_WS = 64, 66, 68, 72, 74, 76, 78, 80, 82, 84, 86
WS = "s[88:91]"
S_TAG, S_KEY = 92, 93

def stamp(a, idx, real=False):
    if not STAMP:
        return
    a("s_memrealtime s[100:101]" if real else "s_memtime s[100:101]")
    a("s_waitcnt lgkmcnt(0)")
    a("v_mov_b32 v255, s100")
    a("s_lshl_b32 s100, s2, 3")
    a("s_add_u32 s100, s100, s19")
    a("s_lshl_b32 s100, s100, 7")
    a("s_add_u32 s100, s100, %d" % (WS_ST + idx * 4))
    a("buffer_store_dword v255, off, %s, s100" % WS)

def bf16_round_to_f32(a, dst, src):
    a("v_cvt_pk_bf16_f32 v%d, v%d, v%d" % (dst, src, src))
    a("v_lshlrev_b32 v%d, 16, v%d" % (dst, dst))

def sigmoid_bf16(a, r):
    a("v_mul_f32 v%d, 0x%08x, v%d" % (r, f32bits(-LOG2E), r))
    a("v_exp_f32 v%d, v%d" % (r, r))
    a("s_nop 0")
    a("v_add_f32 v%d, 1.0, v%d" % (r, r))
    a("v_rcp_f32 v%d, v%d" % (r, r))
    a("s_nop 0")
    bf16_round_to_f32(a, r, r)

def poll(a, name, t0, voff):
    a("s_mov_b32 s94, 0")
    a("s_branch %s_IN" % name)
    a.label(name)
    if SLEEP:
        a("s_sleep %d" % SLEEP)
    a.label(name + "_IN")
    a("buffer_load_dwordx4 %s, v%d, %s, s95 offen sc1" % (vr(t0, 4), voff, WS))
    a("s_add_u32 s94, s94, 1")
    a("s_waitcnt vmcnt(0)")
    for i in range(4):
        a("v_xor_b32 v%d, s%d, v%d" % (t0 + i, S_TAG, t0 + i))
    a("v_or3_b32 v%d, v%d, v%d, v%d" % (t0, t0, t0 + 1, t0 + 2))
    a("v_or_b32 v%d, v%d, v%d" % (t0, t0, t0 + 3))
    a("v_cmp_ne_u32 vcc, 0, v%d" % t0)
    a("s_cmp_ge_u32 s94, 0x8000")
    a("s_cbranch_scc1 %s_OUT" % name)
    a("s_nop 1")
    a("s_cbranch_vccnz %s" % name)
    a.label(name + "_OUT")

def put_flag(a, soff, t0):
    a("v_mov_b32 v%d, s%d" % (t0, S_TAG))
    a("s_mov_b64 exec, 1")
    a("buffer_store_dword v%d, off, %s, s%d sc1" % (t0, WS, soff))
    a("s_mov_b64 exec, -1")

L_X = 0
L_W = 65536
L_FFW = 131072
L_RT = L_FFW + 18432
L_MISC = L_RT + 2048
L_QX = L_MISC + 1024
L_MX = L_QX + 8192
LDS_SIZE = L_MX + 1024

def gen(a):
    kn = NAME + "_kernel"
    a.raw(".globl %s" % kn)
    a.raw(".p2align 8")
    a.raw(".type %s,@function" % kn)
    a.label(kn)
    a("s_cmp_ge_u32 s2, 256")
    a("s_cbranch_scc1 L_END")
    a("s_load_dwordx16 s[64:79], s[0:1], 0")
    a("s_load_dwordx8 s[80:87], s[0:1], 64")
    a("v_lshrrev_b32 v1, 6, v0")
    a("v_and_b32 v0, 63, v0")
    a("v_readfirstlane_b32 s19, v1")
    Q, C, O, S, P, KV, T = 8, 16, 48, 80, 112, 120, 216
    VM = 254
    XS, WD, BF, DD = T, T + 8, T + 16, T + 24
    ntb = 32 // MAP
    lt = ntb.bit_length() - 1
    a("s_and_b32 s16, s2, 7")
    a("s_lshr_b32 s17, s2, 3")
    a("s_and_b32 s14, s16, %d" % (MAP - 1))
    a("s_lshl_b32 s14, s14, %d" % lt)
    a("s_and_b32 s18, s17, %d" % (ntb - 1))
    a("s_mov_b32 s62, s18")
    a("s_add_u32 s14, s14, s18")
    a("s_lshr_b32 s15, s16, %d" % (MAP.bit_length() - 1))
    a("s_mul_i32 s15, s15, %d" % MAP)
    a("s_lshr_b32 s17, s17, %d" % lt)
    a("s_add_u32 s15, s15, s17")
    a("s_mul_i32 s17, s17, %d" % (8 // MAP))
    a("s_add_u32 s16, s17, s18")
    a("s_and_b32 s16, s16, 7")
    a("s_mov_b32 s38, s16")
    a("v_lshlrev_b32 v2, 4, v0")
    a("v_and_b32 v6, 31, v0")
    a("v_lshrrev_b32 v7, 5, v0")
    a("v_mov_b32 v%d, %d" % (VM, L_MISC))
    a("s_and_b32 s20, s19, 1")
    XA = 8
    a("v_bfe_u32 v24, v6, 1, 3")
    a("v_lshlrev_b32 v25, 7, v6")
    a("s_lshl_b32 s18, s20, 12")
    a("v_add_u32 v25, s18, v25")
    for ks in range(4):
        a("v_or_b32 v26, %d, v7" % (2 * ks))
        a("v_xor_b32 v26, v26, v24")
        a("v_lshl_add_u32 v%d, v26, 4, v25" % (XA + ks))
    a("s_lshl_b32 s47, s14, 1")
    a("s_add_u32 s39, s47, s20")
    a("s_cmp_ge_u32 s19, 4")
    a("s_cbranch_scc1 P1_COMPUTE")

    a("v_lshrrev_b32 v4, 3, v0")
    a("v_lshlrev_b32 v5, 10, v4")
    a("v_and_b32 v3, 7, v0")
    a("v_lshrrev_b32 v16, 4, v0")
    a("v_xor_b32 v17, v3, v16")
    a("v_lshl_add_u32 v5, v17, 4, v5")
    a("v_mul_u32_u24 v4, 3072, v4")
    a("v_and_b32 v16, 1, v16")
    a("v_lshlrev_b32 v16, 2, v16")
    a("v_xor_b32 v17, v3, v16")
    a("v_lshl_add_u32 v4, v17, 4, v4")
    a("s_lshl_b32 s18, s15, 7")
    a("v_add_u32 v4, s18, v4")
    a("v_xor_b32 v3, 64, v5")
    a("s_lshl_b32 s18, s16, 7")
    a("v_add_u32 v16, s18, v2")
    a("v_and_b32 v16, 1023, v16")
    a("s_lshl_b32 s40, s14, 16")
    a("s_lshl_b32 s18, s19, 14")
    a("s_add_u32 s40, s40, s18")
    a("s_mul_i32 s41, s19, 49152")
    a("s_lshl_b32 s44, s19, 11")
    a("s_lshl_b32 s45, s19, 12")
    a("s_mul_i32 s42, s20, %d" % (32 * 3072))
    a("s_lshr_b32 s43, s19, 1")
    a("s_waitcnt lgkmcnt(0)")
    srd(a, 20, P_X, 2048 * 512 * 2)
    srd(a, 24, P_WQKV, 512 * 1536 * 2)
    srd(a, 28, P_WR, 1024)
    srd(a, 32, P_GW, 1024)
    srd(a, 88, P_WS, WS_SIZE)
    stamp(a, 0)
    stamp(a, 24, True)

    def issue_step(c):
        wb = L_W + (c % 4) * 16384
        if c < 8:
            a("s_lshl_b32 s46, s16, 7")
            a("s_add_u32 s46, s46, s40")
            a("s_mul_i32 s47, s16, %d" % (64 * 3072))
            a("s_add_u32 s47, s47, s41")
            a("s_add_u32 m0, s44, %d" % (L_X + c * 8192))
            a("s_add_u32 s48, s46, 8192")
            a("buffer_load_dwordx4 v5, s[20:23], s46 offen lds")
            a("s_add_u32 m0, s44, %d" % (L_X + c * 8192 + 1024))
            a("s_add_u32 s49, s47, %d" % (8 * 3072))
            a("buffer_load_dwordx4 v3, s[20:23], s48 offen lds")
            for rh in range(2):
                a("s_add_u32 m0, s45, %d" % (wb + rh * 2048 - 1024))
                a("s_add_u32 s16, s16, 1" if rh == 0 else "s_and_b32 s16, s16, 7")
                for t in (1, 2):
                    a("buffer_load_dwordx4 v4, s[24:27], s%d offen offset:%d lds" % (47 + 2 * rh, t * 1024))
        else:
            a("s_add_u32 s46, s16, s43")
            a("s_and_b32 s46, s46, 7")
            a("s_mul_i32 s47, s46, %d" % (64 * 3072))
            a("s_add_u32 s47, s47, s42")
            a("s_add_u32 s16, s16, 2")
            for i in range(4):
                a("s_add_u32 m0, s45, %d" % (wb + i * 1024))
                a("s_add_u32 s48, s47, %d" % (i * 8 * 3072))
                a("buffer_load_dwordx4 v4, s[24:27], s48 offen lds")
    nops = lambda c: 6 if c < 8 else 4

    a("s_mov_b32 m0, %d" % L_RT)
    a("s_nop 0")
    a("buffer_load_dwordx4 v16, s[32:35], 0 offen lds")
    a("s_mov_b32 m0, %d" % (L_RT + 1024))
    a("s_nop 0")
    a("buffer_load_dwordx4 v16, s[28:31], 0 offen lds")
    for c in range(3):
        issue_step(c)
    a("v_and_b32 v25, 1, v0")
    a("v_lshlrev_b32 v25, 10, v25")
    a("v_lshl_add_u32 v17, v7, 4, v25")
    a("v_add_u32 v17, %d, v17" % L_RT)
    RACC, RF = 32, 48
    for r in range(0, 16, 2):
        a("v_mov_b64 %s, 0" % vr(RACC + r, 2))
    for c in range(12):
        younger = sum(nops(k) for k in range(c + 1, min(c + 3, 12)))
        a("s_waitcnt vmcnt(%d) lgkmcnt(0)" % younger)
        a("s_barrier")
        if c == 0:
            stamp(a, 1)
        if c + 3 < 12:
            issue_step(c + 3)
        if c < 8:
            a("s_cmp_ge_u32 s19, 2")
            a("s_cbranch_scc1 P1_NR%d" % c)
            for ks in range(4):
                a("ds_read_b128 %s, v%d offset:%d" % (vr(RF + 8 * ks, 4), XA + ks, L_X + c * 8192))
                a("ds_read_b128 %s, v17 offset:%d" % (vr(RF + 8 * ks + 4, 4), c * 128 + ks * 32))
            for ks in range(4):
                a("s_waitcnt lgkmcnt(%d)" % (6 - 2 * ks))
                a("%s %s, %s, %s, %s" % (MF32, vr(RACC, 16), vr(RF + 8 * ks + 4, 4), vr(RF + 8 * ks, 4), vr(RACC, 16)))
            a.label("P1_NR%d" % c)
    a("ds_read_b32 v80, v%d" % VM)
    a("s_waitcnt lgkmcnt(0)")
    a("v_readfirstlane_b32 s%d, v80" % S_TAG)
    a("s_cmp_ge_u32 s19, 2")
    a("s_cbranch_scc1 P1_DONE")
    R = RACC
    bf16_round_to_f32(a, 80, R)
    sigmoid_bf16(a, 80)
    a("v_sub_f32 v81, 1.0, v80")
    bf16_round_to_f32(a, 81, 81)
    a("s_lshl_b32 s54, s19, 8")
    a("v_lshl_add_u32 v27, v6, 3, s54")
    a("v_add_u32 v27, v%d, v27" % VM)
    a("ds_write_b64 v27, v[80:81] offset:512")
    a("s_cmp_lg_u32 s15, 0")
    a("s_cbranch_scc1 P1_DONE")
    a("v_mov_b64 v[84:85], 0")
    a("v_lshlrev_b32 v27, 3, v0")
    a("s_lshl_b32 s55, s39, 9")
    a("s_add_u32 s55, s55, %d" % WS_Y)
    a("buffer_store_dwordx2 v[84:85], v27, %s, s55 offen sc1" % WS)
    bf16_round_to_f32(a, 82, R + 1)
    a("v_ashrrev_i32 v83, 31, v82")
    a("v_or_b32 v83, 0x80000000, v83")
    a("v_xor_b32 v82, v82, v83")
    a("v_and_b32 v82, 0xffff0000, v82")
    a("s_lshl_b32 s55, s39, 5")
    a("v_add_u32 v83, s55, v6")
    a("v_sub_u32 v83, 0xffff, v83")
    a("v_or_b32 v82, v82, v83")
    for sh in (1, 2, 4, 8):
        a("s_nop 1")
        a("v_max_u32_dpp v82, v82, v82 row_ror:%d row_mask:0xf bank_mask:0xf" % sh)
    a("s_nop 0")
    a("v_readlane_b32 s56, v82, 0")
    a("v_readlane_b32 s57, v82, 16")
    a("s_lshl_b32 s96, s39, 7")
    a("s_add_u32 s96, s96, %d" % WS_RK)
    a("s_nop 1")
    a("s_max_u32 s56, s56, s57")
    a("v_mov_b32 v252, s56")
    a("v_mov_b32 v253, s%d" % S_TAG)
    a("s_waitcnt lgkmcnt(0)")
    a("s_barrier")
    a("s_waitcnt vmcnt(0)")
    a("s_mov_b64 exec, 1")
    a("buffer_store_dwordx2 v[252:253], off, %s, s96 sc1" % WS)
    a("s_mov_b64 exec, -1")
    a("s_branch P2_SETUP")

    a.label("P1_COMPUTE")
    WA, WQA = 16, 17
    a("s_bfe_u32 s21, s19, 0x10001")
    a("v_bfe_u32 v25, v0, 2, 2")
    a("v_lshlrev_b32 v24, 7, v25")
    a("v_lshrrev_b32 v25, 1, v25")
    a("v_xor_b32 v25, s21, v25")
    a("v_lshl_add_u32 v24, v25, 6, v24")
    a("v_bfe_u32 v25, v0, 4, 1")
    a("v_lshl_add_u32 v24, v25, 5, v24")
    a("v_and_b32 v25, 3, v0")
    a("v_lshl_add_u32 v24, v25, 3, v24")
    a("v_add_u32 v24, %d, v24" % L_W)
    a("v_lshl_add_u32 v%d, v7, 11, v24" % WA)
    a("v_lshl_add_u32 v%d, v7, 10, v24" % WQA)
    a("s_waitcnt lgkmcnt(0)")
    srd(a, 88, P_WS, WS_SIZE)
    stamp(a, 0)
    stamp(a, 24, True)
    srd(a, 24, P_DBG, 256)
    a("s_lshl_b32 s22, s2, 3")
    a("s_add_u32 s22, s22, s19")
    a("s_cmp_lg_u32 s22, 4")
    a("s_cbranch_scc1 P1_NOEP")
    a("s_mov_b32 s22, %d" % WS_EP)
    a("s_mov_b64 exec, 1")
    a("buffer_load_dword v24, off, %s, s22 sc1" % WS)
    a("s_mov_b32 s23, 1664525")
    a("v_mov_b32 v25, 1")
    a("s_waitcnt vmcnt(0)")
    a("v_mul_lo_u32 v24, v24, s23")
    a("v_add_u32 v24, 1013904223, v24")
    a("buffer_store_dwordx2 v[24:25], off, s[24:27], 0 sc1")
    a("buffer_store_dword v24, off, %s, s22 sc1" % WS)
    a("s_mov_b64 exec, -1")
    a.label("P1_NOEP")
    if CPF:
        a("s_cmp_lg_u32 s19, 5")
        a("s_cbranch_scc1 P1_NOPF")
        a("s_getpc_b64 s[22:23]")
        a("v_lshlrev_b32 v24, 7, v0")
        a("global_load_dword v28, v24, s[22:23]")
        a("v_add_u32 v24, 8192, v24")
        a("v_min_u32 v24, L_CODE_END - P1_NOPF, v24")
        a("global_load_dword v29, v24, s[22:23]")
        a.label("P1_NOPF")
    ACC = 32
    FR = 80
    def frag(kk, i):
        return FR + (kk % 3) * 12 + i * 4
    def rd_x(kk):
        k2 = kk % 32
        a("ds_read_b128 %s, v%d offset:%d" % (vr(frag(kk, 0), 4), XA + k2 % 4, L_X + (k2 // 4) * 8192))
    def rd_w(kk, t):
        if kk < 32:
            c, ks = kk // 4, kk % 4
            off = (c % 4) * 16384 + ks * 4096 + t * 1024
            reg = WA
        else:
            c, ks = 8 + (kk - 32) // 8, (kk - 32) % 8
            off = (c % 4) * 16384 + ks * 2048
            reg = WQA
        for half in range(2):
            a("ds_read_b64_tr_b16 %s, v%d offset:%d" % (vr(frag(kk, 1 + t) + 2 * half, 2), reg, off + half * 512))
    pend = []
    def rd_part(kk, part):
        if kk >= 64:
            return
        if part == 0:
            rd_x(kk); rd_w(kk, 0); pend.extend([(kk, 0)] * 3)
        elif kk < 32:
            rd_w(kk, 1); pend.extend([(kk, 1)] * 2)
    def wait_for(kk, part):
        last = max([i for i, (k2, p) in enumerate(pend) if k2 == kk and p == part], default=-1)
        if last >= 0:
            a("s_waitcnt lgkmcnt(%d)" % (len(pend) - 1 - last))
            del pend[:last + 1]
    def step_of(kk):
        return kk // 4 if kk < 32 else 8 + (kk - 32) // 8
    a("s_barrier")
    stamp(a, 1)
    for kk in range(2):
        rd_part(kk, 0); rd_part(kk, 1)
    PK = 120
    for kk in range(64):
        nx = kk + 2
        if nx < 64 and step_of(nx) != step_of(nx - 1):
            if step_of(nx) == 4:
                a("buffer_load_dwordx2 v[24:25], off, s[24:27], 0 sc1")
            if step_of(nx) == 7:
                a("s_mov_b32 s94, 0")
                a.label("P1_TAGL")
                a("s_waitcnt vmcnt(0)")
                a("v_readfirstlane_b32 s95, v25")
                a("s_add_u32 s94, s94, 1")
                a("s_cmp_ge_u32 s94, 0x8000")
                a("s_cbranch_scc1 P1_TAGD")
                a("s_cmp_lg_u32 s95, 0")
                a("s_cbranch_scc1 P1_TAGD")
                a("buffer_load_dwordx2 v[24:25], off, s[24:27], 0 sc1")
                a("s_branch P1_TAGL")
                a.label("P1_TAGD")
                a("v_readfirstlane_b32 s%d, v24" % S_TAG)
                a("v_mov_b32 v25, 0")
                a("v_mov_b64 v[26:27], 0")
                a("ds_write_b128 v%d, v[24:27]" % VM)
            a("s_waitcnt lgkmcnt(0)")
            del pend[:]
            a("s_barrier")
        x = vr(frag(kk, 0), 4)
        if kk < 32:
            cz = lambda r: ("0" if kk == 0 else vr(r, 16))
            wait_for(kk, 0)
            a("%s %s, %s, %s, %s" % (MF32, vr(ACC, 16), vr(frag(kk, 1), 4), x, cz(ACC)))
            rd_part(nx, 0)
            wait_for(kk, 1)
            a("%s %s, %s, %s, %s" % (MF32, vr(ACC + 16, 16), x, vr(frag(kk, 2), 4), cz(ACC + 16)))
            rd_part(nx, 1)
        else:
            wait_for(kk, 0)
            a("%s %s, %s, %s, %s" % (MF32, vr(ACC + 32, 16), vr(frag(kk, 1), 4), x, "0" if kk == 32 else vr(ACC + 32, 16)))
            rd_part(nx, 0)
        if kk == 31:
            a("s_lshl_b32 s46, s15, 1")
            a("s_add_u32 s46, s46, s21")
            a("s_lshl_b32 s48, s46, 18")
            a("s_lshl_b32 s49, s39, 11")
            a("s_add_u32 s48, s48, s49")
            a("s_add_u32 s49, s48, 131072")
            a("s_lshl_b32 s96, s15, 12")
            a("s_lshl_b32 s97, s14, 7")
            a("s_add_u32 s96, s96, s97")
            a("s_lshl_b32 s97, s19, 2")
            a("s_add_u32 s96, s96, s97")
            a("s_add_u32 s96, s96, %d" % (WS_FL1 - 16))
            a("v_lshrrev_b32 v24, 4, v6")
            a("v_lshlrev_b32 v24, 17, v24")
            a("v_lshl_add_u32 v24, v7, 8, v24")
            a("v_and_b32 v25, 15, v0")
            a("v_lshl_add_u32 v24, v25, 4, v24")
            stamp(a, 2)
            if STAMP:
                del pend[:]
            for r in range(8):
                a("v_cvt_pk_bf16_f32 v%d, v%d, v%d" % (PK + r, ACC + 2 * r, ACC + 2 * r + 1))
            a("buffer_store_dwordx4 %s, v2, %s, s48 offen sc1" % (vr(PK, 4), WS))
            a("buffer_store_dwordx4 %s, v2, %s, s49 offen sc1" % (vr(PK + 4, 4), WS))
            for r in range(8):
                a("v_cvt_pk_bf16_f32 v%d, v%d, v%d" % (PK + 8 + r, ACC + 16 + 2 * r, ACC + 16 + 2 * r + 1))
            a("buffer_store_dwordx4 %s, v24, %s, s48 offen offset:1024 sc1" % (vr(PK + 8, 4), WS))
            a("buffer_store_dwordx4 %s, v24, %s, s48 offen offset:1536 sc1" % (vr(PK + 12, 4), WS))
    CS = LOG2E * 0.25
    a("s_mov_b32 s54, 0x%08x" % f32bits(CS))
    a("s_mov_b32 s55, 0x%08x" % f32bits(CS))
    a("s_lshl_b32 s22, s21, 12")
    a("s_lshl_b32 s23, s20, 10")
    a("s_add_u32 s22, s22, s23")
    a("s_add_u32 s22, s22, %d" % L_QX)
    a("v_add_u32 v24, s22, v2")
    a("s_lshl_b32 s22, s21, 9")
    a("s_lshl_b32 s23, s20, 7")
    a("s_add_u32 s22, s22, s23")
    a("s_add_u32 s22, s22, %d" % L_MX)
    a("v_lshl_add_u32 v26, v6, 2, s22")
    a("v_lshl_add_u32 v26, v7, 8, v26")
    stamp(a, 3)
    for r in range(0, 16, 2):
        a("v_pk_mul_f32 %s, %s, s[54:55]" % (vr(ACC + 32 + r, 2), vr(ACC + 32 + r, 2)))
    for r in range(8):
        a("v_cvt_pk_bf16_f32 v%d, v%d, v%d" % (PK + 16 + r, ACC + 32 + 2 * r, ACC + 32 + 2 * r + 1))
    a("s_nop 1")
    a("%s %s, %s, %s, 0" % (MF32, vr(ACC, 16), vr(PK, 4), vr(PK + 16, 4)))
    a("%s %s, %s, %s, 0" % (MF32, vr(ACC + 16, 16), vr(PK + 4, 4), vr(PK + 20, 4)))
    a("ds_write_b128 v24, %s" % vr(PK + 16, 4))
    a("ds_write_b128 v24, %s offset:2048" % vr(PK + 20, 4))
    a("s_waitcnt vmcnt(0)")
    put_flag(a, 96, 80)
    stamp(a, 13)
    a("s_nop 4")
    m0, m1 = 104, 105
    for h, m in ((0, m0), (1, m1)):
        SS = ACC + 16 * h
        a("v_max3_f32 v%d, v%d, v%d, v%d" % (m, SS, SS + 1, SS + 2))
        for r in range(3, 15, 2):
            a("v_max3_f32 v%d, v%d, v%d, v%d" % (m, m, SS + r, SS + r + 1))
        a("v_max_f32 v%d, v%d, v%d" % (m, m, SS + 15))
    a("s_nop 1")
    a("v_permlane32_swap_b32 v%d, v%d" % (m0, m1))
    a("v_max_f32 v%d, v%d, v%d" % (m0, m0, m1))
    a("v_sub_f32 v%d, 0, v%d" % (m0, m0))
    a("ds_write_b32 v26, v%d" % m0)
    a.label("P1_DONE")
    a("s_waitcnt lgkmcnt(0)")
    a("s_barrier")

    a.label("P2_SETUP")
    stamp(a, 4)
    a("s_and_b32 s17, s19, 3")
    a("s_lshr_b32 s16, s19, 2")
    a("s_lshl_b32 s22, s17, 11")
    a("s_add_u32 s22, s22, %d" % L_QX)
    a("v_add_u32 v4, s22, v2")
    a("ds_read_b128 %s, v4" % vr(Q, 4))
    a("ds_read_b128 %s, v4 offset:1024" % vr(Q + 4, 4))
    a("s_lshl_b32 s22, s17, 8")
    a("s_add_u32 s22, s22, %d" % L_MX)
    a("v_lshl_add_u32 v4, v6, 2, s22")
    a("ds_read_b32 v%d, v4" % C)
    a("ds_read_b32 v%d, v4 offset:128" % (C + 16))
    a("v_and_b32 v3, 15, v0")
    a("v_lshlrev_b32 v3, 4, v3")
    a("v_lshl_add_u32 v3, v7, 8, v3")
    a("s_lshl_b32 s18, s15, 2")
    a("s_add_u32 s18, s18, s17")
    a("s_lshl_b32 s22, s18, 17")
    a("s_lshl_b32 s23, s16, 16")
    a("s_add_u32 s22, s22, s23")
    a("s_lshl_b32 s95, s15, 12")
    a("s_add_u32 s95, s95, %d" % WS_FL1)
    a("s_mov_b32 s30, 0x0000ffff")
    a("s_mov_b32 s31, 0x0000ffff")
    a("s_mov_b32 s29, 0")
    NIT = 32 // NB
    a("s_cmp_lt_u32 s19, 4")
    STAGES = tuple(ST0 + x for x in (0, 1, 2, 4, 5)) if NB == 4 else (0, 2, 4, 5, 7)
    a("s_cselect_b32 s32, 0x%x, 0" % sum(1 << x for x in STAGES))
    srd(a, 40, P_WO, 512 * 512 * 2)
    a("v_lshrrev_b32 v4, 3, v0")
    a("v_lshlrev_b32 v4, 10, v4")
    a("v_and_b32 v5, 7, v0")
    a("v_bfe_u32 v252, v0, 4, 1")
    a("v_lshlrev_b32 v252, 2, v252")
    a("v_xor_b32 v5, v5, v252")
    a("v_lshl_add_u32 v4, v5, 4, v4")
    a("s_lshl_b32 s36, s15, 7")
    a("s_lshl_b32 s37, s19, 13")
    a("s_add_u32 s36, s36, s37")
    a("v_lshlrev_b32 v5, 7, v0")
    a("s_waitcnt lgkmcnt(0)")
    for j in range(2):
        a("v_mov_b32 v%d, v%d" % (C + 16 * j + 1, C + 16 * j))
        for r in range(2, 16, 2):
            a("v_mov_b64 %s, %s" % (vr(C + 16 * j + r, 2), vr(C + 16 * j, 2)))
    def kvb(t):
        return KV + 12 * (t % NB)
    def p2_init():
        for b in range(NB):
            for r in range(4, 12, 2):
                a("v_mov_b64 %s, 0" % vr(kvb(b) + r, 2))
        a("s_mov_b32 s34, 0x3f803f80")
        a("s_mov_b32 s35, 0x3f803f80")
        a("s_mov_b32 exec_lo, 0x00110000")
        a("s_mov_b32 exec_hi, 0x00110000")
        for b in range(NB):
            for r in range(4, 12, 2):
                a("v_mov_b64 %s, s[34:35]" % vr(kvb(b) + r, 2))
        a("s_mov_b64 exec, -1")
        for r in range(0, 32, 2):
            a("v_mov_b64 %s, 0" % vr(O + r, 2))
        a("v_mov_b64 %s, 0" % vr(P + 4, 2))
        a("v_mov_b64 %s, 0" % vr(P + 6, 2))
        a("v_mov_b64 %s, 0" % vr(S + 16 + 14, 2))
        a("s_lshl_b32 s37, s19, 10")
        a("s_add_u32 s37, s37, %d" % L_W)
    p2_init()
    a("s_cmp_lg_u32 s19, 7")
    a("s_cbranch_scc1 H1_WAIT")
    a("s_mov_b32 exec_hi, 0")
    poll(a, "H1_POLL", S, 5)
    a("s_mov_b64 exec, -1")
    a.label("H1_WAIT")
    a("s_barrier")
    stamp(a, 5)
    if TOUCH:
        a("s_cmp_lt_u32 s19, 4")
        a("s_cbranch_scc1 P2_START")
        share = 524288 // ntb // 4
        a("s_lshl_b32 s3, s15, 19")
        a("s_lshl_b32 s23, s17, 17")
        a("s_add_u32 s3, s3, s23")
        a("s_mul_i32 s23, s62, %d" % share)
        a("s_add_u32 s3, s3, s23")
        for i in range(share // 8192):
            a("buffer_load_dword v253, v5, %s, s3 offen" % WS)
            if i + 1 < share // 8192:
                a("s_add_u32 s3, s3, 8192")
    a.label("P2_START")
    a("buffer_load_dwordx4 %s, v2, %s, s22 offen sc1" % (vr(kvb(0), 4), WS))
    a("s_mov_b32 s28, s22")
    def ld_k(t):
        a("buffer_load_dwordx4 %s, v2, %s, s28 offen offset:2048 sc1" % (vr(kvb(t), 4), WS))
    def ld_v(t):
        a("s_mov_b64 exec, s[30:31]")
        a("buffer_load_dwordx4 %s, v3, %s, s28 offen offset:1024 sc1" % (vr(kvb(t) + 4, 4), WS))
        a("buffer_load_dwordx4 %s, v3, %s, s28 offen offset:1536 sc1" % (vr(kvb(t) + 8, 4), WS))
        a("s_mov_b64 exec, -1")
        a("s_add_u32 s28, s28, 2048")
    for i in range(1, NB):
        ld_k(i)
        ld_v(i - 1)
        if (i - NB) % 4 == 0:
            a("buffer_load_dword v253, off, %s, s22" % WS)
    a("s_mov_b32 s23, 0")
    a("s_waitcnt vmcnt(%d)" % (3 * (NB - 1)))
    a("%s %s, %s, %s, %s" % (MF32, vr(S, 16), vr(kvb(0), 4), vr(Q, 4), vr(C, 16)))
    a("s_waitcnt vmcnt(%d)" % (3 * (NB - 2)))
    a("s_nop 11")
    a("v_exp_f32 v%d, v%d" % (S, S))
    stamp(a, 6)

    a.raw(".p2align 6")
    a.label("P2_LOOP")
    for t in range(NB):
        for j in range(2):
            cur = S + 16 * j
            prv = S + 16 * (j ^ 1)
            nxt = prv
            E = lambda r: a("v_exp_f32 v%d, v%d" % (cur + r, cur + r))
            CV = lambda r: a("v_cvt_pk_bf16_f32 v%d, v%d, v%d" % (P + r // 2, cur + r, cur + r + 1))
            pb = kvb(t) if j == 1 else kvb(t - 1)
            nb = kvb(t) if j == 0 else kvb(t + 1)
            a("v_cvt_pk_bf16_f32 v%d, v%d, v%d" % (P + 7, prv + 14, prv + 15))
            if j == 1:
                nwo = sum(1 for k in range(t - (NB - 2), t) if k % 4 == 0)
                a("s_waitcnt vmcnt(%d)" % (3 * (NB - 2) + nwo))
                if t % 4 == 0:
                    a("s_lshl_b32 s3, s38, 16")
                    a("s_mov_b32 m0, s37")
                    a("s_add_u32 s3, s3, s36")
                    a("buffer_load_dwordx4 v4, s[40:43], s3 offen lds")
                    a("s_add_u32 s38, s38, 1")
                    a("s_and_b32 s38, s38, 7")
                    a("s_add_u32 s37, s37, 8192")
                    a("s_bitcmp1_b32 s32, s23")
                    a("s_cbranch_scc1 P2_HOOK")
                    a.label("P2_HRET%d" % (t // 4))
                    a("s_add_u32 s23, s23, 1")
            a("%s %s, %s, %s, %s" % (MF32, vr(nxt, 16), vr(nb, 4), vr(Q + 4 * (j ^ 1), 4), vr(C + 16 * (j ^ 1), 16)))
            if j == 0:
                ld_k(t)
            E(1); E(2); CV(0); E(3); E(4); CV(2); E(5)
            a("%s %s, %s, %s, %s" % (MF32, vr(O + 16 * (j ^ 1), 16), vr(pb + 8, 4), vr(P + 4, 4), vr(O + 16 * (j ^ 1), 16)))
            if j == 0:
                ld_v(t - 1)
            E(6); CV(4); E(7); E(8); CV(6); E(9); E(10)
            a("%s %s, %s, %s, %s" % (MF32, vr(O + 16 * j, 16), vr(kvb(t) + 4, 4), vr(P, 4), vr(O + 16 * j, 16)))
            CV(8); E(11); E(12); CV(10); E(13); E(14); CV(12); E(15)
            a("v_exp_f32 v%d, v%d" % (nxt, nxt))
    a("s_cmp_lt_u32 s23, 8")
    a("s_cbranch_scc1 P2_LOOP")
    a("v_cvt_pk_bf16_f32 v%d, v%d, v%d" % (P + 7, S + 16 + 14, S + 16 + 15))
    a("s_mul_i32 s23, s19, 2304")
    a("s_mov_b32 s28, 0x4f800000")
    a("%s %s, %s, %s, %s" % (MF32, vr(O + 16, 16), vr(kvb(NB - 1) + 8, 4), vr(P + 4, 4), vr(O + 16, 16)))
    a("v_add_u32 v5, s23, v2")
    a("v_lshl_add_u32 v252, v0, 2, s23")
    a("s_xor_b32 s23, s19, 4")
    a("s_mul_i32 s23, s23, 2304")
    a("v_add_u32 v253, s23, v2")
    a("v_lshl_add_u32 v3, v0, 2, s23")
    stamp(a, 7)
    a("s_lshl_b32 s23, s14, 1")
    a("s_add_u32 s23, s23, s16")
    a("s_lshl_b32 s33, s23, 15")
    a("s_lshl_b32 s34, s18, 10")
    a("s_add_u32 s33, s33, s34")
    a("s_add_u32 s33, s33, %d" % WS_O)
    a("s_lshl_b32 s96, s14, 10")
    a("s_lshl_b32 s34, s15, 7")
    a("s_add_u32 s96, s96, s34")
    a("s_lshl_b32 s34, s19, 2")
    a("s_add_u32 s96, s96, s34")
    a("s_add_u32 s96, s96, %d" % WS_FL2)
    a("s_cmp_eq_u32 s16, 0")
    a("s_cbranch_scc1 P2_CMB0")
    for r in range(0, 10, 2):
        a("v_mov_b64 %s, %s" % (vr(S + r, 2), vr(O + r, 2)))
        a("v_mov_b64 %s, %s" % (vr(O + r, 2), vr(O + 16 + r, 2)))
        a("v_mov_b64 %s, %s" % (vr(O + 16 + r, 2), vr(S + r, 2)))
    a.label("P2_CMB0")
    a("ds_write_b128 v5, %s" % vr(O + 16, 4))
    a("ds_write_b128 v5, %s offset:1024" % vr(O + 20, 4))
    a("ds_write_b32 v252, v%d offset:2048" % (O + 24))
    a("v_max_f32 v%d, v%d, v%d" % (S, O + 8, O + 24))
    a("v_cmp_u_f32 s[56:57], v%d, v%d" % (O + 8, O + 24))
    a("v_cmp_lt_f32 vcc, s28, v%d" % S)
    a("s_nop 3")
    a("s_or_b64 s[56:57], s[56:57], vcc")
    a("s_cbranch_scc0 P2_NOFLAG")
    a("v_mov_b32 v%d, 1" % S)
    a("ds_write_b32 v%d, v%d offset:8" % (VM, S))
    a.label("P2_NOFLAG")
    a("s_cmp_eq_u32 s32, 0")
    a("s_cbranch_scc1 P2_NOF3")
    a("v_mov_b32 v%d, 1" % S)
    a("s_waitcnt vmcnt(0)")
    a("s_mov_b64 exec, 1")
    a("ds_add_rtn_u32 v%d, v%d, v%d offset:12" % (S, VM, S))
    a("s_mov_b64 exec, -1")
    a("s_waitcnt lgkmcnt(0)")
    a("v_readfirstlane_b32 s52, v%d" % S)
    a("s_lshl_b32 s3, s2, 7")
    a("s_add_u32 s3, s3, %d" % WS_FL3)
    a("s_cmp_lg_u32 s52, 3")
    a("s_cbranch_scc1 P2_NOF3")
    put_flag(a, 3, S + 2)
    a.label("P2_NOF3")
    a("s_waitcnt lgkmcnt(0)")
    a("s_barrier")
    a("ds_read_b64 %s, v%d offset:4" % (vr(S, 2), VM) if False else "ds_read2_b32 %s, v%d offset0:1 offset1:2" % (vr(S, 2), VM))
    a("ds_read_b32 v%d, v3 offset:2048" % (O + 24))
    a("ds_read_b128 %s, v253" % vr(O + 16, 4))
    a("ds_read_b128 %s, v253 offset:1024" % vr(O + 20, 4))
    a("s_waitcnt lgkmcnt(2)")
    a("v_readfirstlane_b32 s23, v%d" % (S + 1))
    a("v_readfirstlane_b32 s%d, v%d" % (S_KEY, S))
    a("v_add_f32 v%d, v%d, v%d" % (O + 8, O + 8, O + 24))
    a("v_rcp_f32 v%d, v%d" % (O + 8, O + 8))
    a("s_cmp_gt_u32 s23, s29")
    a("s_cbranch_scc1 P2_EXACT")
    a("v_mov_b32 v%d, v%d" % (O + 9, O + 8))
    a("s_waitcnt lgkmcnt(0)")
    for r in range(0, 8, 2):
        a("v_pk_add_f32 %s, %s, %s" % (vr(O + r, 2), vr(O + r, 2), vr(O + 16 + r, 2)))
    for r in range(0, 8, 2):
        a("v_pk_mul_f32 %s, %s, %s" % (vr(O + r, 2), vr(O + r, 2), vr(O + 8, 2)))
    for r in range(4):
        a("v_cvt_pk_bf16_f32 v%d, v%d, v%d" % (O + 16 + r, O + 2 * r, O + 2 * r + 1))
    a("buffer_store_dwordx4 %s, v2, %s, s33 offen sc1" % (vr(O + 16, 4), WS))
    stamp(a, 8)

    ACC3, FR3, XR, YR, B = 16, 120, 152, 160, 176
    a("s_and_b32 s16, s19, 1")
    a("s_bfe_u32 s17, s19, 0x10001")
    a("s_lshl_b32 s20, s15, 7")
    a("s_lshl_b32 s22, s17, 6")
    a("s_add_u32 s20, s20, s22")
    a("s_and_b32 s21, s%d, 0xffff" % S_KEY)
    a("s_sub_u32 s21, 0xffff, s21")
    a("s_lshl_b32 s23, s39, 15")
    a("s_lshr_b32 s28, s19, 1")
    a("s_lshl_b32 s28, s28, 10")
    a("s_add_u32 s23, s23, s28")
    a("s_add_u32 s23, s23, %d" % WS_O)
    a("s_lshl_b32 s22, s19, 10")
    a("s_add_u32 s22, s22, %d" % L_X)
    a("s_lshl_b32 s95, s14, 10")
    a("s_add_u32 s95, s95, %d" % WS_FL2)
    a("v_lshrrev_b32 v5, 1, v0")
    a("v_lshlrev_b32 v5, 7, v5")
    a("v_and_b32 v3, 1, v0")
    a("v_lshl_add_u32 v5, v3, 4, v5")
    a("s_waitcnt vmcnt(0)")
    put_flag(a, 96, S)
    stamp(a, 9)
    def issue_o():
        a("s_barrier")
        stamp(a, 10)
        for g in range(8):
            a("s_lshl_b32 s3, s38, 12")
            a("s_add_u32 m0, s22, %d" % (g * 8192))
            a("s_add_u32 s3, s3, s23")
            a("buffer_load_dwordx4 v2, %s, s3 offen sc1 lds" % WS)
            a("s_add_u32 s38, s38, 1")
            a("s_and_b32 s38, s38, 7")
    a("s_cmp_ge_u32 s19, 4")
    a("s_cbranch_scc1 P3_HELP")
    srd(a, 40, P_X, 2048 * 512 * 2)
    srd(a, 44, P_OUT, 2048 * 512 * 2)
    a("v_lshlrev_b32 v3, 10, v6")
    a("v_lshl_add_u32 v3, v7, 5, v3")
    a("s_lshl_b32 s29, s39, 15")
    a("s_add_u32 s29, s29, s20")
    a("buffer_load_dwordx4 %s, v3, s[40:43], s29 offen" % vr(XR, 4))
    a("buffer_load_dwordx4 %s, v3, s[40:43], s29 offen offset:16" % vr(XR + 4, 4))
    a("s_lshl_b32 s30, s16, 8")
    a("v_lshl_add_u32 v10, v6, 3, s30")
    a("v_add_u32 v10, v%d, v10" % VM)
    a("ds_read_b64 v[8:9], v10 offset:512")
    a("v_bfe_u32 v11, v0, 2, 2")
    a("v_lshl_add_u32 v10, v7, 2, v11")
    a("v_lshlrev_b32 v10, 7, v10")
    a("v_lshrrev_b32 v11, 1, v11")
    a("v_xor_b32 v11, s17, v11")
    a("v_lshl_add_u32 v10, v11, 6, v10")
    a("v_and_b32 v11, 1, v0")
    a("v_lshl_add_u32 v10, v11, 5, v10")
    a("v_bfe_u32 v11, v0, 1, 1")
    a("v_bfe_u32 v12, v0, 4, 1")
    a("v_lshl_add_u32 v11, v12, 1, v11")
    a("v_lshl_add_u32 v10, v11, 3, v10")
    a("v_add_u32 v10, %d, v10" % L_W)
    a("s_lshl_b32 s30, s16, 10")
    a("v_add_u32 v12, s30, v2")
    a("s_cmp_lg_u32 s19, 3")
    a("s_cbranch_scc1 H2_WAIT")
    a("s_mov_b64 exec, 0xffff")
    poll(a, "H2_POLL", S, 5)
    a("s_mov_b64 exec, -1")
    a.label("H2_WAIT")
    issue_o()
    def reads(h):
        b = FR3 + 8 * (h % 4)
        a("ds_read_b128 %s, v12 offset:%d" % (vr(b, 4), L_X + h * 2048))
        a("ds_read_b64_tr_b16 %s, v10 offset:%d" % (vr(b + 4, 2), h * 2048))
        a("ds_read_b64_tr_b16 %s, v10 offset:%d" % (vr(b + 6, 2), h * 2048 + 1024))
    a("s_waitcnt vmcnt(8) lgkmcnt(0)")
    for i in range(8):
        a("v_lshlrev_b32 v%d, 16, v%d" % (B + 2 * i, XR + i))
        a("v_and_b32 v%d, 0xffff0000, v%d" % (B + 2 * i + 1, XR + i))
    LA = 3
    issued = 0
    for h in range(32):
        while issued < 32 and issued <= h + LA:
            if issued % 8 == 0:
                if issued > h + 1 and issued > 0:
                    break
                a("s_waitcnt vmcnt(%d)" % (6 - issued // 4))
                a("s_barrier")
            reads(issued)
            issued += 1
        a("s_waitcnt lgkmcnt(%d)" % (3 * (issued - h - 1)))
        b = FR3 + 8 * (h % 4)
        a("%s %s, %s, %s, %s" % (MF32, vr(ACC3, 16), vr(b + 4, 4), vr(b, 4), "0" if h == 0 else vr(ACC3, 16)))
    stamp(a, 11)
    a("s_lshr_b32 s30, s21, 5")
    a("s_cmp_lg_u32 s30, s39")
    a("s_cbranch_scc1 P3_NOSEL")
    a("s_mul_i32 s30, s19, 2304")
    a("s_add_u32 s30, s30, %d" % L_FFW)
    a("v_lshl_add_u32 v14, v7, 6, s30")
    for i in range(4):
        a("ds_read_b128 %s, v14 offset:%d" % (vr(YR + 4 * i, 4), 2048 + i * 16))
    a("s_and_b32 s30, s21, 31")
    a("v_cmp_eq_u32 vcc, s30, v6")
    a("s_waitcnt lgkmcnt(0)")
    a("s_and_saveexec_b64 s[48:49], vcc")
    for i in range(16):
        a("v_add_f32 v%d, v%d, v%d" % (B + i, B + i, YR + i))
        bf16_round_to_f32(a, B + i, B + i)
    a("s_mov_b64 exec, s[48:49]")
    a.label("P3_NOSEL")
    for i in range(16):
        a("v_mul_f32 v%d, v%d, v9" % (B + i, B + i))
    for i in range(16):
        a("v_fma_f32 v%d, v%d, v8, v%d" % (B + i, ACC3 + i, B + i))
    for i in range(8):
        a("v_cvt_pk_bf16_f32 v%d, v%d, v%d" % (XR + i, B + 2 * i, B + 2 * i + 1))
    a("buffer_store_dwordx4 %s, v3, s[44:47], s29 offen" % vr(XR, 4))
    a("buffer_store_dwordx4 %s, v3, s[44:47], s29 offen offset:16" % vr(XR + 4, 4))
    stamp(a, 12)
    stamp(a, 25, True)
    a.label("L_END")
    a("s_endpgm")

    a.label("P3_HELP")
    a("s_lshr_b32 s30, s21, 5")
    a("s_cmp_eq_u32 s30, s39")
    a("s_cbranch_scc1 P3_HSEL")
    issue_o()
    for i in range(4):
        a("s_waitcnt vmcnt(%d)" % (6 - 2 * i))
        a("s_barrier")
    a("s_endpgm")
    a.label("P3_HSEL")
    a("v_lshlrev_b32 v8, 7, v0")
    a("s_mov_b32 s94, 0")
    a.label("P3_ALL")
    a("s_sleep 2")
    for i in range(4):
        a("s_mov_b32 s30, %d" % (WS_FL3 + i * 8192))
        a("buffer_load_dword v%d, v8, %s, s30 offen sc1" % (YR + i, WS))
    a("s_add_u32 s94, s94, 1")
    a("s_waitcnt vmcnt(0)")
    for i in range(4):
        a("v_xor_b32 v%d, s%d, v%d" % (YR + i, S_TAG, YR + i))
    a("v_or3_b32 v%d, v%d, v%d, v%d" % (YR, YR, YR + 1, YR + 2))
    a("v_or_b32 v%d, v%d, v%d" % (YR, YR, YR + 3))
    a("v_cmp_ne_u32 vcc, 0, v%d" % YR)
    a("s_cmp_ge_u32 s94, 0x8000")
    a("s_cbranch_scc1 P3_ALLD")
    a("s_nop 1")
    a("s_cbranch_vccnz P3_ALL")
    a.label("P3_ALLD")
    a("v_lshrrev_b32 v9, 2, v0")
    a("v_and_b32 v8, 3, v0")
    a("v_lshlrev_b32 v14, 7, v9")
    a("v_lshl_add_u32 v14, v8, 4, v14")
    a("v_lshlrev_b32 v9, 11, v9")
    a("v_lshl_add_u32 v9, v8, 4, v9")
    a("s_lshr_b32 s30, s20, 8")
    a("s_lshl_b32 s30, s30, 9")
    a("s_and_b32 s31, s20, 255")
    a("s_add_u32 s30, s30, s31")
    a("s_add_u32 s30, s30, %d" % WS_Y)
    a("buffer_load_dwordx4 %s, v9, %s, s30 offen sc1" % (vr(YR, 4), WS))
    a("buffer_load_dwordx4 %s, v9, %s, s30 offen offset:256 sc1" % (vr(YR + 4, 4), WS))
    issue_o()
    a("s_and_b32 s30, s19, 3")
    a("s_mul_i32 s30, s30, 2304")
    a("s_add_u32 s30, s30, %d" % L_FFW)
    a("v_add_u32 v14, s30, v14")
    a("s_waitcnt vmcnt(8)")
    a("ds_write_b128 v14, %s" % vr(YR, 4))
    a("ds_write_b128 v14, %s offset:64" % vr(YR + 4, 4))
    a("v_lshlrev_b32 v14, 10, v7")
    a("v_lshl_add_u32 v14, v6, 2, v14")
    a("v_add_u32 v14, s30, v14")
    a("s_waitcnt lgkmcnt(0)")
    for i in range(8):
        a("ds_read_b32 v%d, v14 offset:%d" % (YR + i, i * 128))
    a("s_and_b32 s31, s%d, 0xffff0000" % S_KEY)
    a("s_ashr_i32 s28, s31, 31")
    a("s_not_b32 s28, s28")
    a("s_or_b32 s28, s28, 0x80000000")
    a("s_xor_b32 s31, s31, s28")
    a("s_and_b32 s31, s31, 0xffff0000")
    a("v_mov_b32 v15, s31")
    sigmoid_bf16(a, 15)
    a("s_waitcnt lgkmcnt(0)")
    for i in range(1, 8):
        a("v_add_f32 v%d, v%d, v%d" % (YR, YR, YR + i))
    a("v_mov_b32 v%d, v%d" % (YR + 1, YR))
    a("v_and_b32 v14, 15, v0")
    a("v_lshlrev_b32 v14, 3, v14")
    a("v_permlane32_swap_b32 v%d, v%d" % (YR, YR + 1))
    a("v_add_f32 v%d, v%d, v%d" % (YR, YR, YR + 1))
    bf16_round_to_f32(a, YR, YR)
    a("v_mul_f32 v%d, v%d, v15" % (YR, YR))
    bf16_round_to_f32(a, YR, YR)
    a("v_bfe_u32 v15, v0, 4, 1")
    a("v_lshl_add_u32 v14, v15, 2, v14")
    a("v_add_u32 v14, s30, v14")
    a("ds_write_b32 v14, v%d offset:2048" % YR)
    for i in range(4):
        a("s_waitcnt vmcnt(%d) lgkmcnt(0)" % (6 - 2 * i))
        a("s_barrier")
    a("s_endpgm")

    a.label("P2_HRET")
    if NB == 8:
        a("s_bitcmp1_b32 s23, 0")
        a("s_cbranch_scc1 P2_HRET1")
    a("s_branch P2_HRET0")
    a.label("P2_HOOK")
    stages = STAGES
    for i, st in enumerate(stages):
        a("s_cmp_eq_u32 s23, %d" % st)
        a("s_cbranch_scc1 P2_J%d" % i)
    a("s_branch P2_HRET")
    def check_tags(name, regs, reload):
        a("s_mov_b32 s94, 0")
        a.label(name + "L")
        a("v_cmp_ne_u32 vcc, s%d, v%d" % (S_TAG, regs[0]))
        for r in regs[1:]:
            a("v_cmp_ne_u32 s[52:53], s%d, v%d" % (S_TAG, r))
            a("s_nop 1")
            a("s_or_b64 vcc, vcc, s[52:53]")
        a("s_add_u32 s94, s94, 1")
        a("s_cmp_ge_u32 s94, 0x8000")
        a("s_cbranch_scc1 %sD" % name)
        a("s_cbranch_vccz %sD" % name)
        reload()
        a("s_waitcnt vmcnt(0)")
        a("s_branch %sL" % name)
        a.label(name + "D")
    def ld_keys():
        a("v_lshlrev_b32 v5, 7, v0")
        a("s_mov_b32 s3, %d" % WS_RK)
        a("buffer_load_dwordx2 %s, v5, %s, s3 offen sc1" % (vr(DD, 2), WS))
    a.label("P2_J0")
    ld_keys()
    a("s_cmp_ge_u32 s2, 224")
    a("s_cbranch_scc1 P2_HRET")
    a("s_cmp_lt_u32 s19, 2")
    a("s_cselect_b32 s44, s%d, s%d" % (P_WG, P_WU))
    a("s_cselect_b32 s45, s%d, s%d" % (P_WG + 1, P_WU + 1))
    a("s_and_b32 s45, s45, 0xffff")
    a("s_mov_b32 s46, 0x%x" % (512 * 1792 * 2))
    a("s_mov_b32 s47, 0x00020000")
    srd(a, 48, P_WD, 1792 * 512 * 2)
    a("v_lshrrev_b32 v5, 2, v0")
    a("v_mul_u32_u24 v5, 3584, v5")
    a("v_and_b32 v252, 3, v0")
    a("v_lshl_add_u32 v5, v252, 4, v5")
    a("s_and_b32 s52, s2, 7")
    a("s_mul_i32 s52, s52, %d" % (64 * 3584))
    a("s_lshr_b32 s53, s2, 3")
    a("s_lshl_b32 s53, s53, 7")
    a("s_add_u32 s52, s52, s53")
    a("s_and_b32 s53, s19, 1")
    a("s_lshl_b32 s53, s53, 6")
    a("s_add_u32 s52, s52, s53")
    a("s_lshl_b32 s54, s19, 12")
    for i in range(4):
        a("s_add_u32 m0, s54, %d" % (L_FFW + i * 1024))
        a("s_add_u32 s53, s52, %d" % (i * 16 * 3584))
        a("buffer_load_dwordx4 v5, s[44:47], s53 offen lds")
    a("s_lshl_b32 s52, s2, 13")
    a("s_lshl_b32 s53, s19, 8")
    a("s_add_u32 s52, s52, s53")
    a("v_lshlrev_b32 v5, 2, v0")
    a("s_add_u32 s53, s52, 4096")
    for f in range(8):
        a("buffer_load_dword v%d, v5, s[48:51], s%d offen offset:%d" % (WD + f, 52 + f // 4, (f % 4) * 1024))
    a("s_branch P2_HRET")
    a.label("P2_J1")
    check_tags("P2_J1", [DD + 1], ld_keys)
    for sh in (1, 2, 4, 8):
        a("v_max_u32_dpp v%d, v%d, v%d row_ror:%d row_mask:0xf bank_mask:0xf" % (DD, DD, DD, sh))
        a("s_nop 1")
    for i in range(4):
        a("v_readlane_b32 s%d, v%d, %d" % (52 + i, DD, 16 * i))
    srd(a, 44, P_X, 2048 * 512 * 2)
    a("s_max_u32 s52, s52, s53")
    a("s_max_u32 s54, s54, s55")
    a("s_max_u32 s52, s52, s54")
    a("v_mov_b32 v%d, s52" % DD)
    a("ds_write_b32 v%d, v%d offset:4" % (VM, DD))
    a("s_and_b32 s52, s52, 0xffff")
    a("s_sub_u32 s52, 0xffff, s52")
    a("s_and_b32 s52, s52, 2047")
    a("s_lshl_b32 s52, s52, 10")
    a("s_and_b32 s53, s2, 7")
    a("s_lshl_b32 s53, s53, 7")
    a("s_add_u32 s52, s52, s53")
    a("v_lshrrev_b32 v5, 4, v0")
    a("v_lshlrev_b32 v5, 4, v5")
    for s_ in range(2):
        a("buffer_load_dwordx4 %s, v5, s[44:47], s52 offen offset:%d" % (vr(XS + 4 * s_, 4), 64 * s_))
    a("s_cmp_lt_u32 s2, 224")
    a("s_cselect_b32 s32, s32, 0x80000000")
    a("s_branch P2_HRET")
    a.label("P2_J2")
    a("v_lshrrev_b32 v5, 4, v0")
    a("v_lshlrev_b32 v5, 9, v5")
    a("v_bfe_u32 v252, v0, 2, 2")
    a("v_lshl_add_u32 v5, v252, 6, v5")
    a("v_and_b32 v252, 3, v0")
    a("v_lshl_add_u32 v5, v252, 3, v5")
    a("s_lshl_b32 s52, s19, 12")
    a("s_add_u32 s52, s52, %d" % L_FFW)
    a("v_add_u32 v5, s52, v5")
    for ct in range(2):
        for s_ in range(2):
            for half in range(2):
                a("ds_read_b64_tr_b16 %s, v5 offset:%d" % (vr(BF + 4 * s_ + 2 * half, 2), ct * 32 + s_ * 2048 + half * 256))
        a("s_waitcnt lgkmcnt(0)")
        a("%s %s, %s, %s, 0" % (MF16, vr(DD + 4 * ct, 4), vr(XS, 4), vr(BF, 4)))
        a("%s %s, %s, %s, %s" % (MF16, vr(DD + 4 * ct, 4), vr(XS + 4, 4), vr(BF + 4, 4), vr(DD + 4 * ct, 4)))
    a("v_lshlrev_b32 v5, 3, v0")
    a("s_lshl_b32 s52, s2, 10")
    a("s_lshl_b32 s53, s19, 8")
    a("s_add_u32 s52, s52, s53")
    a("s_add_u32 s52, s52, %d" % WS_PA)
    a("s_nop 3")
    a("v_mov_b32 v%d, s%d" % (DD + 1, S_TAG))
    a("s_mov_b32 exec_hi, 0")
    a("s_mov_b32 exec_lo, 0xffff0000")
    a("v_mov_b32 v%d, v%d" % (DD, DD + 4))
    a("s_mov_b32 exec_lo, -1")
    a("buffer_store_dwordx2 %s, v5, %s, s52 offen sc1" % (vr(DD, 2), WS))
    a("s_mov_b64 exec, -1")
    a("s_branch P2_HRET")
    def ld_part():
        a("v_lshrrev_b32 v5, 3, v0")
        a("v_lshlrev_b32 v5, 10, v5")
        a("v_and_b32 v252, 7, v0")
        a("v_lshl_add_u32 v5, v252, 3, v5")
        a("s_lshr_b32 s3, s2, 3")
        a("s_lshl_b32 s3, s3, 13")
        a("s_and_b32 s54, s2, 7")
        a("s_lshl_b32 s54, s54, 6")
        a("s_add_u32 s3, s3, s54")
        a("s_add_u32 s3, s3, %d" % WS_PA)
        a("buffer_load_dwordx2 %s, v5, %s, s3 offen sc1" % (vr(T, 2), WS))
        a("buffer_load_dwordx2 %s, v5, %s, s3 offen offset:512 sc1" % (vr(T + 2, 2), WS))
    a.label("P2_J3")
    ld_part()
    a("s_branch P2_HRET")
    a.label("P2_J4")
    check_tags("P2_J4", [T + 1, T + 3], ld_part)
    G_, U_ = T, T + 2
    for r in (G_, U_):
        a("v_add_f32_dpp v%d, v%d, v%d row_ror:8 row_mask:0xf bank_mask:0xf" % (r, r, r))
    for op in ("v_permlane16_swap_b32", "v_permlane32_swap_b32"):
        for r in (G_, U_):
            a("v_mov_b32 v%d, v%d" % (r + 1, r))
        a("s_nop 0")
        for r in (G_, U_):
            a("%s v%d, v%d" % (op, r, r + 1))
        for r in (G_, U_):
            a("v_add_f32 v%d, v%d, v%d" % (r, r, r + 1))
    bf16_round_to_f32(a, G_, G_)
    bf16_round_to_f32(a, U_, U_)
    a("v_mul_f32 v%d, 0x%08x, v%d" % (T + 1, f32bits(-LOG2E), G_))
    a("v_exp_f32 v%d, v%d" % (T + 1, T + 1))
    a("v_mov_b32 v%d, 0" % (T + 4))
    a("v_add_f32 v%d, 1.0, v%d" % (T + 1, T + 1))
    a("v_rcp_f32 v%d, v%d" % (T + 1, T + 1))
    a("v_mov_b32 v%d, 0" % (T + 5))
    a("v_mul_f32 v%d, v%d, v%d" % (T + 1, T + 1, G_))
    bf16_round_to_f32(a, T + 1, T + 1)
    a("v_mul_f32 v%d, v%d, v%d" % (T + 1, T + 1, U_))
    a("v_cvt_pk_bf16_f32 v%d, v%d, v%d" % (T + 1, T + 1, T + 4))
    a("v_lshlrev_b32 v5, 2, v0")
    for i in range(8):
        a("v_readlane_b32 s%d, v%d, %d" % (44 + i, T + 1, i))
    a("s_lshl_b32 s60, s19, 9")
    a("s_and_b32 s61, s2, 15")
    a("s_lshl_b32 s61, s61, 11")
    a("s_add_u32 s60, s60, s61")
    a("s_add_u32 s60, s60, %d" % WS_Y)
    for i in range(8):
        a("s_lshl_b32 s%d, s%d, 16" % (52 + i, 44 + i))
    for i in range(8):
        a("v_dot2_f32_bf16 v%d, v%d, s%d, v%d" % (T + 4, WD + i, 44 + i, T + 4))
        a("v_dot2_f32_bf16 v%d, v%d, s%d, v%d" % (T + 5, WD + i, 52 + i, T + 5))
    a("s_nop 3")
    a("buffer_atomic_add_f32 v%d, v5, %s, s60 offen" % (T + 4, WS))
    a("buffer_atomic_add_f32 v%d, v5, %s, s60 offen offset:256" % (T + 5, WS))
    a("s_branch P2_HRET")

    a.label("P2_EXACT")
    a("s_mov_b32 s29, 1")
    a("s_mov_b32 s32, 0")
    a("s_mov_b32 s23, 0xff800000")
    for j in range(2):
        a("v_mov_b32 v%d, s23" % (T + j))
    a("s_mov_b32 s28, s22")
    a("s_mov_b32 s23, 0")
    a("s_waitcnt vmcnt(0) lgkmcnt(0)")
    a.label("P2_EXLOOP")
    a("buffer_load_dwordx4 %s, v2, %s, s28 offen sc1" % (vr(KV, 4), WS))
    a("s_waitcnt vmcnt(0)")
    for j in range(2):
        a("%s %s, %s, %s, 0" % (MF32, vr(S, 16), vr(KV, 4), vr(Q + 4 * j, 4)))
        a("s_nop 15")
        for r in range(0, 16, 2):
            a("v_max3_f32 v%d, v%d, v%d, v%d" % (T + j, T + j, S + r, S + r + 1))
    a("s_add_u32 s28, s28, 2048")
    a("s_add_u32 s23, s23, 1")
    a("s_cmp_lt_u32 s23, 32")
    a("s_cbranch_scc1 P2_EXLOOP")
    a("s_lshl_b32 s23, s19, 9")
    a("s_add_u32 s23, s23, %d" % L_FFW)
    a("v_lshl_add_u32 v5, v0, 2, s23")
    for j in range(2):
        a("ds_write_b32 v5, v%d offset:%d" % (T + j, j * 256))
    a("s_waitcnt lgkmcnt(0)")
    a("s_barrier")
    a("s_lshl_b32 s23, s17, 9")
    a("s_add_u32 s23, s23, %d" % L_FFW)
    a("v_lshl_add_u32 v5, v6, 2, s23")
    for j in range(2):
        for kh in range(2):
            for hh in range(2):
                a("ds_read_b32 v%d, v5 offset:%d" % (S + kh * 2 + hh, kh * 2048 + j * 256 + hh * 128))
        a("s_waitcnt lgkmcnt(0)")
        a("v_max3_f32 v%d, v%d, v%d, v%d" % (S, S, S + 1, S + 2))
        a("v_max_f32 v%d, v%d, v%d" % (S, S, S + 3))
        for r in range(16):
            a("v_sub_f32 v%d, 0, v%d" % (C + 16 * j + r, S))
    a("v_and_b32 v3, 15, v0")
    a("v_lshlrev_b32 v3, 4, v3")
    a("v_lshl_add_u32 v3, v7, 8, v3")
    p2_init()
    a("s_branch P2_START")
    a.label("L_CODE_END")

def main():
    out = sys.argv[1] if len(sys.argv) > 1 else "cdna_kernels/%s.s" % NAME
    a = Asm()
    hdr = open("cdna_kernels/%s.s.ref" % NAME).read().split("\n")
    keep = [l for l in hdr if l.startswith(";") and "@launch" not in l and "Override launch" not in l and "grid=ceil" not in l]
    for l in keep:
        a.raw(l)
    a.raw("; @launch grid=(256,1,1) block=(512,1,1) lds=%d" % LDS_SIZE)
    a.raw('.amdgcn_target "amdgcn-amd-amdhsa--gfx950"')
    a.raw(".text")
    gen(a)
    a.raw('.section .rodata,"a"')
    a.raw(""".p2align 6
.amdhsa_kernel %s_kernel
  .amdhsa_next_free_vgpr 256
  .amdhsa_next_free_sgpr 102
  .amdhsa_accum_offset 256
  .amdhsa_group_segment_fixed_size 0
  .amdhsa_kernarg_size 96
  .amdhsa_user_sgpr_count 2
  .amdhsa_user_sgpr_kernarg_segment_ptr 1
  .amdhsa_system_sgpr_workgroup_id_x 1
.end_amdhsa_kernel""" % NAME)
    open(out, "w").write(a.text())

if __name__ == "__main__":
    main()
```

```python
import sys, math, struct, os

NAME = "gated_mix__mha_block__moe_arch_mod__prompt"

WS_KV = 0
WS_O = 4 << 20
WS_FL1 = 6 << 20
WS_FL2 = WS_FL1 + 32768
WS_FL3 = WS_FL2 + 32768
WS_RK = WS_FL3 + 32768
WS_PA = WS_RK + 8192
WS_G = WS_PA + 262144
WS_EP = WS_G + 16384
WS_Y = WS_EP + 1024
WS_ST = 7 << 20
WS_SIZE = 8 << 20

STAMP = int(os.environ.get("STAMP", "0"))
NB = int(os.environ.get("NB", "4"))
CPF = int(os.environ.get("CPF", "0"))
SLEEP = int(os.environ.get("SLEEP", "0"))
MAP = int(os.environ.get("MAP", "1"))
PRIO = int(os.environ.get("PRIO", "3"))
TOUCH = int(os.environ.get("TOUCH", "0"))
HMASK = int(os.environ.get("HMASK", "0xff"), 0)
WARM = int(os.environ.get("WARM", "0"))
PLAN = int(os.environ.get("PLAN", "0"))
QF = int(os.environ.get("QF", "20"))
SPAN = os.environ.get("SPAN", "")
def ev(a, i):
    if not SPAN:
        return
    i0, i1 = [int(x) for x in SPAN.split(",")]
    for k, r in ((i0, 13), (i1, 99)):
        if k == i:
            a("s_memrealtime s[100:101]")
            a("s_waitcnt lgkmcnt(0)")
            a("s_mov_b32 s%d, s100" % r)
NOWO = int(os.environ.get("NOWO", "0"))

def f32bits(x):
    return struct.unpack("<I", struct.pack("<f", x))[0]

class Asm:
    def __init__(self):
        self.l = []
    def __call__(self, s):
        for line in s.strip("\n").split("\n"):
            self.l.append("    " + line.strip())
    def label(self, s):
        self.l.append(s + ":")
    def raw(self, s):
        self.l.append(s)
    def text(self):
        return "\n".join(self.l) + "\n"

def vr(b, n):
    return "v[%d:%d]" % (b, b + n - 1)
def sr(b, n):
    return "s[%d:%d]" % (b, b + n - 1)

def srd(a, d, base, nbytes):
    a("s_mov_b32 s%d, s%d" % (d, base))
    a("s_and_b32 s%d, s%d, 0xffff" % (d + 1, base + 1))
    a("s_mov_b32 s%d, 0x%x" % (d + 2, nbytes))
    a("s_mov_b32 s%d, 0x00020000" % (d + 3))

MF32 = "v_mfma_f32_32x32x16_bf16"
MF16 = "v_mfma_f32_16x16x32_bf16"
LOG2E = math.log2(math.e)

P_X, P_WQKV, P_WO, P_WR, P_WG, P_WU, P_WD, P_GW, P_OUT, P_DBG, P_WS = 64, 66, 68, 72, 74, 76, 78, 80, 82, 84, 86
WS = "s[88:91]"
S_TAG, S_KEY = 92, 93

def stamp(a, idx, real=False):
    if not STAMP:
        return
    a("s_memrealtime s[100:101]" if real else "s_memtime s[100:101]")
    a("s_waitcnt lgkmcnt(0)")
    a("v_mov_b32 v255, s100")
    a("s_lshl_b32 s100, s2, 3")
    a("s_add_u32 s100, s100, s19")
    a("s_lshl_b32 s100, s100, 7")
    a("s_add_u32 s100, s100, %d" % (WS_ST + idx * 4))
    a("buffer_store_dword v255, off, %s, s100" % WS)

def bf16_round_to_f32(a, dst, src):
    a("v_cvt_pk_bf16_f32 v%d, v%d, v%d" % (dst, src, src))
    a("v_lshlrev_b32 v%d, 16, v%d" % (dst, dst))

def sigmoid_bf16(a, r):
    a("v_mul_f32 v%d, 0x%08x, v%d" % (r, f32bits(-LOG2E), r))
    a("v_exp_f32 v%d, v%d" % (r, r))
    a("s_nop 0")
    a("v_add_f32 v%d, 1.0, v%d" % (r, r))
    a("v_rcp_f32 v%d, v%d" % (r, r))
    a("s_nop 0")
    bf16_round_to_f32(a, r, r)

def poll(a, name, t0, voff):
    a("s_mov_b32 s94, 0")
    a("s_branch %s_IN" % name)
    a.label(name)
    if SLEEP:
        a("s_sleep %d" % SLEEP)
    a.label(name + "_IN")
    a("buffer_load_dword v%d, v%d, %s, s95 offen sc1" % (t0, voff, WS))
    a("s_add_u32 s94, s94, 1")
    a("s_waitcnt vmcnt(0)")
    a("v_cmp_ne_u32 vcc, s%d, v%d" % (S_TAG, t0))
    a("s_cmp_ge_u32 s94, 0x8000")
    a("s_cbranch_scc1 %s_OUT" % name)
    a("s_cbranch_vccz %s_OUT" % name)
    a("s_mov_b64 exec, vcc")
    a("s_branch %s" % name)
    a.label(name + "_OUT")

def last_wave_flag(a, name, vm, ldsoff, n, soff, t0):
    a("v_mov_b32 v%d, 1" % t0)
    a("s_mov_b64 exec, 1")
    a("ds_add_rtn_u32 v%d, v%d, v%d offset:%d" % (t0, vm, t0, ldsoff))
    a("s_waitcnt lgkmcnt(0)")
    a("v_readfirstlane_b32 s97, v%d" % t0)
    a("v_mov_b32 v%d, s%d" % (t0, S_TAG))
    a("s_nop 1")
    a("s_cmp_lg_u32 s97, %d" % (n - 1))
    a("s_cbranch_scc1 %s" % name)
    a("buffer_store_dword v%d, off, %s, s%d sc1" % (t0, WS, soff))
    a.label(name)
    a("s_mov_b64 exec, -1")

def get_tag(a, name, t0):
    a("s_mov_b32 s94, 0")
    a.label(name + "L")
    a("s_waitcnt vmcnt(0)")
    a("v_readfirstlane_b32 s95, v%d" % (t0 + 1))
    a("s_add_u32 s94, s94, 1")
    a("s_cmp_ge_u32 s94, 0x8000")
    a("s_cbranch_scc1 %sD" % name)
    a("s_cmp_lg_u32 s95, 0")
    a("s_cbranch_scc1 %sD" % name)
    a("buffer_load_dwordx2 %s, off, s[24:27], 0 sc1" % vr(t0, 2))
    a("s_branch %sL" % name)
    a.label(name + "D")
    a("v_readfirstlane_b32 s%d, v%d" % (S_TAG, t0))

def put_flag(a, soff, t0):
    a("v_mov_b32 v%d, s%d" % (t0, S_TAG))
    a("s_mov_b64 exec, 1")
    a("buffer_store_dword v%d, off, %s, s%d sc1" % (t0, WS, soff))
    a("s_mov_b64 exec, -1")

L_X = 0
L_W = 65536
L_FFW = L_X + 32768
L_EX = L_X
L_CMB = 131072
L_RT = L_CMB + 18432
L_MISC = L_RT + 2048
L_QX = L_MISC + 2048
L_MX = L_QX + 8192
LDS_SIZE = L_MX + 1024

def gen(a):
    kn = NAME + "_kernel"
    a.raw(".globl %s" % kn)
    a.raw(".p2align 8")
    a.raw(".type %s,@function" % kn)
    a.label(kn)
    a("s_cmp_ge_u32 s2, 256")
    a("s_cbranch_scc1 L_END")
    a("s_load_dwordx16 s[64:79], s[0:1], 0")
    a("s_load_dwordx8 s[80:87], s[0:1], 64")
    a("v_lshrrev_b32 v1, 6, v0")
    a("v_and_b32 v0, 63, v0")
    a("v_readfirstlane_b32 s19, v1")
    ev(a, 0)
    Q, C, O, S, P, KV, T = 8, 16, 48, 80, 112, 120, 216
    VM = 254
    XS, WD, BF, DD = T, T + 8, T + 16, T + 24
    ntb = 32 // MAP
    lt = ntb.bit_length() - 1
    a("s_and_b32 s16, s2, 7")
    a("s_lshr_b32 s17, s2, 3")
    a("s_and_b32 s14, s16, %d" % (MAP - 1))
    a("s_lshl_b32 s14, s14, %d" % lt)
    a("s_and_b32 s18, s17, %d" % (ntb - 1))
    a("s_add_u32 s14, s14, s18")
    a("s_lshr_b32 s15, s16, %d" % (MAP.bit_length() - 1))
    a("s_mul_i32 s15, s15, %d" % MAP)
    a("s_lshr_b32 s17, s17, %d" % lt)
    a("s_add_u32 s15, s15, s17")
    a("s_mul_i32 s17, s17, %d" % (8 // MAP))
    a("s_add_u32 s16, s17, s18")
    a("s_and_b32 s16, s16, 7")
    a("s_and_b32 s62, s2, 7")
    a("s_lshl_b32 s62, s62, 2")
    a("s_bfe_u32 s38, s2, 0x20003")
    a("s_add_u32 s62, s62, s38")
    a("s_lshr_b32 s63, s2, 5")
    a("s_lshl_b32 s38, s38, 1")
    a("s_add_u32 s38, s38, s63")
    a("s_and_b32 s38, s38, 7")
    a("v_lshlrev_b32 v2, 4, v0")
    a("v_and_b32 v6, 31, v0")
    a("v_lshrrev_b32 v7, 5, v0")
    a("v_mov_b32 v%d, %d" % (VM, L_MISC))
    a("s_and_b32 s20, s19, 1")
    XA = 8
    a("v_bfe_u32 v24, v6, 1, 3")
    a("v_lshlrev_b32 v25, 7, v6")
    a("s_lshl_b32 s18, s20, 12")
    a("v_add_u32 v25, s18, v25")
    for ks in range(4):
        a("v_or_b32 v26, %d, v7" % (2 * ks))
        a("v_xor_b32 v26, v26, v24")
        a("v_lshl_add_u32 v%d, v26, 4, v25" % (XA + ks))
    a("s_lshl_b32 s47, s14, 1")
    a("s_add_u32 s39, s47, s20")
    a("s_cmp_ge_u32 s19, 4")
    a("s_cbranch_scc1 P1_COMPUTE")

    a("v_lshrrev_b32 v4, 3, v0")
    a("v_lshlrev_b32 v5, 10, v4")
    a("v_and_b32 v3, 7, v0")
    a("v_lshrrev_b32 v16, 4, v0")
    a("v_xor_b32 v17, v3, v16")
    a("v_lshl_add_u32 v5, v17, 4, v5")
    a("v_mul_u32_u24 v4, 3072, v4")
    a("v_and_b32 v16, 1, v16")
    a("v_lshlrev_b32 v16, 2, v16")
    a("v_xor_b32 v17, v3, v16")
    a("v_lshl_add_u32 v4, v17, 4, v4")
    a("s_lshl_b32 s18, s15, 7")
    a("v_add_u32 v4, s18, v4")
    a("v_xor_b32 v3, 64, v5")
    a("s_lshl_b32 s40, s14, 16")
    a("s_lshl_b32 s18, s19, 14")
    a("s_add_u32 s40, s40, s18")
    a("s_lshl_b32 s44, s19, 11")
    a("s_lshl_b32 s18, s16, 7")
    a("v_add_u32 v16, s18, v2")
    a("v_and_b32 v16, 1023, v16")
    a("s_mul_i32 s41, s19, 49152")
    a("s_lshl_b32 s45, s19, 12")
    a("s_mul_i32 s42, s20, %d" % (32 * 3072))
    a("s_lshr_b32 s43, s19, 1")
    a("s_waitcnt lgkmcnt(0)")
    srd(a, 20, P_X, 2048 * 512 * 2)
    srd(a, 24, P_WQKV, 512 * 1536 * 2)
    srd(a, 88, P_WS, WS_SIZE)
    stamp(a, 0)
    stamp(a, 24, True)

    def issue_step(c):
        wb = L_W + (c % 4) * 16384
        if c < 8:
            a("s_lshl_b32 s46, s16, 7")
            a("s_add_u32 s46, s46, s40")
            a("s_mul_i32 s47, s16, %d" % (64 * 3072))
            a("s_add_u32 s47, s47, s41")
            a("s_add_u32 m0, s44, %d" % (L_X + c * 8192))
            a("s_add_u32 s48, s46, 8192")
            a("buffer_load_dwordx4 v5, s[20:23], s46 offen lds")
            a("s_add_u32 m0, s44, %d" % (L_X + c * 8192 + 1024))
            a("s_add_u32 s49, s47, %d" % (8 * 3072))
            a("buffer_load_dwordx4 v3, s[20:23], s48 offen lds")
            for rh in range(2):
                a("s_add_u32 m0, s45, %d" % (wb + rh * 2048 - 1024))
                a("s_add_u32 s16, s16, 1" if rh == 0 else "s_and_b32 s16, s16, 7")
                for t in (1, 2):
                    a("buffer_load_dwordx4 v4, s[24:27], s%d offen offset:%d lds" % (47 + 2 * rh, t * 1024))
        else:
            a("s_add_u32 s46, s16, s43")
            a("s_and_b32 s46, s46, 7")
            a("s_mul_i32 s47, s46, %d" % (64 * 3072))
            a("s_add_u32 s47, s47, s42")
            a("s_add_u32 s16, s16, 2")
            for i in range(4):
                a("s_add_u32 m0, s45, %d" % (wb + i * 1024))
                a("s_add_u32 s48, s47, %d" % (i * 8 * 3072))
                a("buffer_load_dwordx4 v4, s[24:27], s48 offen lds")

    issue_step(0)
    srd(a, 28, P_WR, 1024)
    srd(a, 32, P_GW, 1024)
    a("s_mov_b32 m0, %d" % L_RT)
    a("s_nop 0")
    a("buffer_load_dwordx4 v16, s[32:35], 0 offen lds")
    a("s_mov_b32 m0, %d" % (L_RT + 1024))
    a("s_nop 0")
    a("buffer_load_dwordx4 v16, s[28:31], 0 offen lds")
    for c in range(1, 3):
        issue_step(c)
    a("s_lshr_b32 s50, s19, 1")
    a("s_or_b32 s50, s50, s15")
    a("v_and_b32 v25, 1, v0")
    a("v_lshlrev_b32 v25, 10, v25")
    a("v_lshl_add_u32 v17, v7, 4, v25")
    a("v_add_u32 v17, %d, v17" % L_RT)
    RACC, RF = 32, 48
    for r in range(0, 16, 2):
        a("v_mov_b64 %s, 0" % vr(RACC + r, 2))
    a("ds_write_b128 v%d, %s" % (VM, vr(RACC, 4)))
    for o in (16, 32, 48, 64):
        a("ds_write_b128 v%d, %s offset:%d" % (VM, vr(RACC, 4), o))
    for c in range(12):
        younger = sum(6 if k < 8 else 4 for k in range(c + 1, min(c + 3, 12)))
        a("s_waitcnt vmcnt(%d) lgkmcnt(0)" % younger)
        if STAMP == 3 and c < 8:
            a("s_memtime s[100:101]")
            a("s_waitcnt lgkmcnt(0)")
            a("s_mov_b32 s%d, s100" % (52 + c))
        a("s_barrier")
        if c == 0 and STAMP != 3:
            stamp(a, 1)
        if c + 3 < 12:
            issue_step(c + 3)
        if c < 8:
            a("s_cmp_lg_u32 s50, 0")
            a("s_cbranch_scc1 P1_NR%d" % c)
            for ks in range(4):
                a("ds_read_b128 %s, v%d offset:%d" % (vr(RF + 8 * ks, 4), XA + ks, L_X + c * 8192))
                a("ds_read_b128 %s, v17 offset:%d" % (vr(RF + 8 * ks + 4, 4), c * 128 + ks * 32))
            for ks in range(4):
                a("s_waitcnt lgkmcnt(%d)" % (6 - 2 * ks))
                a("%s %s, %s, %s, %s" % (MF32, vr(RACC, 16), vr(RF + 8 * ks + 4, 4), vr(RF + 8 * ks, 4), vr(RACC, 16)))
            a.label("P1_NR%d" % c)
    if STAMP == 3:
        for c in range(0, 8):
            a("v_mov_b32 v255, s%d" % (52 + c))
            a("s_lshl_b32 s100, s2, 3")
            a("s_add_u32 s100, s100, s19")
            a("s_lshl_b32 s100, s100, 7")
            a("s_add_u32 s100, s100, %d" % (WS_ST + (16 + c) * 4))
            a("buffer_store_dword v255, off, %s, s100" % WS)
    srd(a, 24, P_DBG, 256)
    a("buffer_load_dwordx2 v[28:29], off, s[24:27], 0 sc1")
    get_tag(a, "P1_TAGL", 28)
    a("s_cmp_lg_u32 s50, 0")
    a("s_cbranch_scc1 P1_DONE")
    R = RACC
    bf16_round_to_f32(a, 80, R)
    sigmoid_bf16(a, 80)
    a("v_sub_f32 v81, 1.0, v80")
    bf16_round_to_f32(a, 81, 81)
    a("s_lshl_b32 s54, s39, 8")
    a("s_add_u32 s54, s54, %d" % WS_G)
    a("v_lshlrev_b32 v27, 3, v6")
    a("buffer_store_dwordx2 v[80:81], v27, %s, s54 offen sc1" % WS)
    a("v_mov_b64 v[84:85], 0")
    a("v_lshlrev_b32 v27, 3, v0")
    a("s_lshl_b32 s55, s39, 9")
    a("s_add_u32 s55, s55, %d" % WS_Y)
    a("buffer_store_dwordx2 v[84:85], v27, %s, s55 offen sc1" % WS)
    bf16_round_to_f32(a, 82, R + 1)
    a("v_ashrrev_i32 v83, 31, v82")
    a("v_or_b32 v83, 0x80000000, v83")
    a("v_xor_b32 v82, v82, v83")
    a("v_and_b32 v82, 0xffff0000, v82")
    a("s_lshl_b32 s55, s39, 5")
    a("v_add_u32 v83, s55, v6")
    a("v_sub_u32 v83, 0xffff, v83")
    a("v_or_b32 v82, v82, v83")
    for sh in (1, 2, 4, 8):
        a("s_nop 1")
        a("v_max_u32_dpp v82, v82, v82 row_ror:%d row_mask:0xf bank_mask:0xf" % sh)
    a("s_nop 0")
    a("v_readlane_b32 s56, v82, 0")
    a("v_readlane_b32 s57, v82, 16")
    a("s_lshl_b32 s96, s39, 3")
    a("s_add_u32 s96, s96, %d" % WS_RK)
    a("s_nop 1")
    a("s_max_u32 s56, s56, s57")
    a("v_mov_b32 v82, s56")
    a("v_mov_b32 v83, s%d" % S_TAG)
    a("s_waitcnt vmcnt(0)")
    a("s_mov_b64 exec, 1")
    a("buffer_store_dwordx2 v[82:83], off, %s, s96 sc1" % WS)
    a("s_mov_b64 exec, -1")
    a("s_branch P1_DONE")

    a.label("P1_COMPUTE")
    WA, WQA = 16, 17
    a("s_lshl_b32 s22, s2, 3")
    a("s_add_u32 s22, s22, s19")
    a("s_waitcnt lgkmcnt(0)")
    srd(a, 28, P_WQKV, 512 * 1536 * 2)
    srd(a, 88, P_WS, WS_SIZE)
    stamp(a, 0)
    stamp(a, 24, True)
    a("s_mov_b32 s23, %d" % WS_EP)
    a("s_cmp_lg_u32 s22, 4")
    a("s_cbranch_scc1 P1_NOEP0")
    a("buffer_load_dword v24, off, %s, s23 sc1" % WS)
    a.label("P1_NOEP0")
    a("s_cmp_lg_u32 s19, 5")
    a("s_cbranch_scc1 P1_NOWQ")
    a("s_and_b32 s46, s14, %d" % (ntb - 1))
    a("s_mul_i32 s46, s46, %d" % (512 // ntb * 3072))
    a("s_lshl_b32 s47, s15, 7")
    a("s_add_u32 s46, s46, s47")
    a("v_and_b32 v24, %d, v0" % (512 // ntb - 1))
    a("v_mul_u32_u24 v24, 3072, v24")
    a("buffer_load_dword v28, v24, s[28:31], s46 offen")
    a.label("P1_NOWQ")
    srd(a, 24, P_DBG, 256)
    a("s_bfe_u32 s21, s19, 0x10001")
    a("v_bfe_u32 v27, v0, 2, 2")
    a("v_lshlrev_b32 v26, 7, v27")
    a("v_lshrrev_b32 v27, 1, v27")
    a("v_xor_b32 v27, s21, v27")
    a("v_lshl_add_u32 v26, v27, 6, v26")
    a("v_bfe_u32 v27, v0, 4, 1")
    a("v_lshl_add_u32 v26, v27, 5, v26")
    a("v_and_b32 v27, 3, v0")
    a("v_lshl_add_u32 v26, v27, 3, v26")
    a("v_add_u32 v26, %d, v26" % L_W)
    a("v_lshl_add_u32 v%d, v7, 11, v26" % WA)
    a("v_lshl_add_u32 v%d, v7, 10, v26" % WQA)
    a("s_cmp_lg_u32 s22, 4")
    a("s_cbranch_scc1 P1_NOEP")
    a("s_mov_b32 s22, 1664525")
    a("v_mov_b32 v25, 1")
    a("s_waitcnt vmcnt(0)")
    a("v_mul_lo_u32 v24, v24, s22")
    a("v_add_u32 v24, 1013904223, v24")
    a("s_mov_b64 exec, 1")
    a("buffer_store_dwordx2 v[24:25], off, s[24:27], 0 sc1")
    a("buffer_store_dword v24, off, %s, s23 sc1" % WS)
    a("s_mov_b64 exec, -1")
    a.label("P1_NOEP")
    ACC = 32
    FR = 80
    PK = 104
    XF = 120
    pend = []
    def rd_kv(kk, part):
        if kk >= 32:
            return
        c, ks = kk // 4, kk % 4
        if part == 0:
            a("ds_read_b128 %s, v%d offset:%d" % (vr(XF + 4 * kk, 4), XA + ks, L_X + c * 8192))
            pend.append((kk, 0))
        for half in range(2):
            a("ds_read_b64_tr_b16 %s, v%d offset:%d" % (vr(FR + (kk % 3) * 8 + part * 4 + 2 * half, 2), WA,
                                                       (c % 4) * 16384 + ks * 4096 + part * 1024 + half * 512))
            pend.append((kk, part))
    def rd_q(kk):
        if kk >= 32:
            return
        if kk % 8 == 0 and kk > 0:
            a("s_barrier")
        for half in range(2):
            a("ds_read_b64_tr_b16 %s, v%d offset:%d" % (vr(FR + (kk % 6) * 4 + 2 * half, 2), WQA,
                                                       (kk // 8) * 16384 + (kk % 8) * 2048 + half * 512))
            pend.append((100 + kk, 0))
    def wait_for(kk, part):
        last = max([i for i, (k2, p) in enumerate(pend) if k2 == kk and p == part], default=-1)
        if last >= 0:
            a("s_waitcnt lgkmcnt(%d)" % (len(pend) - 1 - last))
            del pend[:last + 1]
    if STAMP == 3:
        stamp(a, 14)
    a("s_barrier")
    if STAMP != 3:
        stamp(a, 1)
    for kk in range(2):
        rd_kv(kk, 0); rd_kv(kk, 1)
    for kk in range(32):
        nx = kk + 2
        if nx < 32 and nx % 4 == 0:
            c = nx // 4
            a("s_waitcnt lgkmcnt(0)")
            del pend[:]
            if STAMP == 3:
                a("s_memtime s[100:101]")
                a("s_waitcnt lgkmcnt(0)")
                a("s_mov_b32 s%d, s100" % (50 + c))
            a("s_barrier")
        x = vr(XF + 4 * kk, 4)
        cz = lambda r: ("0" if kk == 0 else vr(r, 16))
        wait_for(kk, 0)
        a("%s %s, %s, %s, %s" % (MF32, vr(ACC, 16), vr(FR + (kk % 3) * 8, 4), x, cz(ACC)))
        rd_kv(nx, 0)
        wait_for(kk, 1)
        a("%s %s, %s, %s, %s" % (MF32, vr(ACC + 16, 16), x, vr(FR + (kk % 3) * 8 + 4, 4), cz(ACC + 16)))
        rd_kv(nx, 1)
    a("s_barrier")
    LQ = 5
    for kk in range(LQ):
        rd_q(kk)
    a("s_lshl_b32 s46, s15, 1")
    a("s_add_u32 s46, s46, s21")
    a("s_lshl_b32 s48, s46, 18")
    a("s_lshl_b32 s49, s39, 11")
    a("s_add_u32 s48, s48, s49")
    a("s_add_u32 s49, s48, 131072")
    a("v_lshrrev_b32 v24, 4, v6")
    a("v_lshlrev_b32 v24, 17, v24")
    a("v_lshl_add_u32 v24, v7, 8, v24")
    a("v_and_b32 v25, 15, v0")
    a("v_lshl_add_u32 v24, v25, 4, v24")
    stamp(a, 2)
    for r in range(8):
        a("v_cvt_pk_bf16_f32 v%d, v%d, v%d" % (PK + r, ACC + 2 * r, ACC + 2 * r + 1))
    a("buffer_store_dwordx4 %s, v2, %s, s48 offen sc1" % (vr(PK, 4), WS))
    a("buffer_store_dwordx4 %s, v2, %s, s49 offen sc1" % (vr(PK + 4, 4), WS))
    for r in range(8):
        a("v_cvt_pk_bf16_f32 v%d, v%d, v%d" % (PK + 8 + r, ACC + 16 + 2 * r, ACC + 16 + 2 * r + 1))
    a("buffer_store_dwordx4 %s, v24, %s, s48 offen offset:1024 sc1" % (vr(PK + 8, 4), WS))
    a("buffer_store_dwordx4 %s, v24, %s, s48 offen offset:1536 sc1" % (vr(PK + 12, 4), WS))
    a("buffer_load_dwordx2 v[28:29], off, s[24:27], 0 sc1")
    a("s_lshl_b32 s96, s15, 12")
    a("s_lshl_b32 s97, s14, 7")
    a("s_add_u32 s96, s96, s97")
    a("s_add_u32 s96, s96, %d" % WS_FL1)
    for kk in range(32):
        if kk == QF:
            get_tag(a, "P1_TAGC", 28)
            last_wave_flag(a, "P1_FL", VM, 0, 4, 96, 30)
            del pend[:]
            stamp(a, 13)
            stamp(a, 29, True)
        wait_for(100 + kk, 0)
        a("%s %s, %s, %s, %s" % (MF32, vr(ACC + 32, 16), vr(FR + (kk % 6) * 4, 4), vr(XF + 4 * kk, 4), "0" if kk == 0 else vr(ACC + 32, 16)))
        rd_q(kk + LQ)
    CS = LOG2E * 0.25
    if STAMP != 3:
        a("s_mov_b32 s54, 0x%08x" % f32bits(CS))
        a("s_mov_b32 s55, 0x%08x" % f32bits(CS))
    a("s_lshl_b32 s22, s21, 12")
    a("s_lshl_b32 s23, s20, 10")
    a("s_add_u32 s22, s22, s23")
    a("s_add_u32 s22, s22, %d" % L_QX)
    a("v_add_u32 v24, s22, v2")
    a("s_lshl_b32 s22, s21, 9")
    a("s_lshl_b32 s23, s20, 7")
    a("s_add_u32 s22, s22, s23")
    a("s_add_u32 s22, s22, %d" % L_MX)
    a("v_lshl_add_u32 v26, v6, 2, s22")
    a("v_lshl_add_u32 v26, v7, 8, v26")
    stamp(a, 3)
    if STAMP == 3:
        for c in range(1, 8):
            a("v_mov_b32 v255, s%d" % (50 + c))
            a("s_lshl_b32 s100, s2, 3")
            a("s_add_u32 s100, s100, s19")
            a("s_lshl_b32 s100, s100, 7")
            a("s_add_u32 s100, s100, %d" % (WS_ST + (16 + c) * 4))
            a("buffer_store_dword v255, off, %s, s100" % WS)
        a("s_mov_b32 s54, 0x%08x" % f32bits(CS))
        a("s_mov_b32 s55, 0x%08x" % f32bits(CS))
    PQ = FR
    for r in range(0, 16, 2):
        a("v_pk_mul_f32 %s, %s, s[54:55]" % (vr(ACC + 32 + r, 2), vr(ACC + 32 + r, 2)))
    for r in range(8):
        a("v_cvt_pk_bf16_f32 v%d, v%d, v%d" % (PQ + r, ACC + 32 + 2 * r, ACC + 32 + 2 * r + 1))
    a("s_nop 1")
    a("%s %s, %s, %s, 0" % (MF32, vr(ACC, 16), vr(PK, 4), vr(PQ, 4)))
    a("%s %s, %s, %s, 0" % (MF32, vr(ACC + 16, 16), vr(PK + 4, 4), vr(PQ + 4, 4)))
    a("ds_write_b128 v24, %s" % vr(PQ, 4))
    a("ds_write_b128 v24, %s offset:2048" % vr(PQ + 4, 4))
    a("s_nop 9")
    m0, m1 = 92, 93
    for h, m in ((0, m0), (1, m1)):
        SS = ACC + 16 * h
        a("v_max3_f32 v%d, v%d, v%d, v%d" % (m, SS, SS + 1, SS + 2))
        for r in range(3, 15, 2):
            a("v_max3_f32 v%d, v%d, v%d, v%d" % (m, m, SS + r, SS + r + 1))
        a("v_max_f32 v%d, v%d, v%d" % (m, m, SS + 15))
    a("s_nop 1")
    a("v_permlane32_swap_b32 v%d, v%d" % (m0, m1))
    a("v_max_f32 v%d, v%d, v%d" % (m0, m0, m1))
    a("v_sub_f32 v%d, 0, v%d" % (m0, m0))
    a("ds_write_b32 v26, v%d" % m0)

    a.label("P1_DONE")
    stamp(a, 4)
    a("s_and_b32 s17, s19, 3")
    a("s_lshr_b32 s16, s19, 2")
    a("v_and_b32 v3, 15, v0")
    a("v_lshlrev_b32 v3, 4, v3")
    a("v_lshl_add_u32 v3, v7, 8, v3")
    a("s_lshl_b32 s18, s15, 2")
    a("s_add_u32 s18, s18, s17")
    a("s_lshl_b32 s22, s18, 17")
    a("s_lshl_b32 s23, s16, 16")
    a("s_add_u32 s22, s22, s23")
    a("s_lshl_b32 s95, s15, 12")
    a("s_add_u32 s95, s95, %d" % WS_FL1)
    a("s_mov_b32 s30, 0x0000ffff")
    a("s_mov_b32 s31, 0x0000ffff")
    a("s_mov_b32 s29, 0")
    a("s_cmp_lt_u32 s19, 4")
    a("s_cselect_b32 s32, 0x%x, 0" % HMASK)
    srd(a, 40, P_WO, 512 * 512 * 2)
    a("v_lshrrev_b32 v4, 3, v0")
    a("v_lshlrev_b32 v4, 10, v4")
    a("v_and_b32 v5, 7, v0")
    a("v_bfe_u32 v252, v0, 4, 1")
    a("v_lshlrev_b32 v252, 2, v252")
    a("v_xor_b32 v5, v5, v252")
    a("v_lshl_add_u32 v4, v5, 4, v4")
    a("s_lshl_b32 s36, s63, 7")
    a("s_lshl_b32 s37, s19, 13")
    a("s_add_u32 s36, s36, s37")
    a("v_lshlrev_b32 v5, 7, v0")
    a("s_lshl_b32 s23, s17, 1")
    a("s_add_u32 s23, s23, s16")
    a("s_lshl_b32 s28, s23, 10")
    a("s_add_u32 s28, s28, %d" % L_QX)
    a("v_add_u32 v252, s28, v2")
    a("v_xor_b32 v250, 1024, v252")
    a("s_lshl_b32 s28, s23, 7")
    a("s_add_u32 s28, s28, %d" % L_MX)
    a("v_lshl_add_u32 v253, v6, 2, s28")
    a("v_xor_b32 v251, 128, v253")
    CW16, CW4, CR16, CR4, VXO, VWO, VOF, XR, GR = 168, 169, 170, 171, 172, 173, 174, 176, 184
    a("s_mul_i32 s23, s19, 2304")
    a("s_add_u32 s23, s23, %d" % L_CMB)
    a("v_add_u32 v%d, s23, v2" % CW16)
    a("v_lshl_add_u32 v%d, v0, 2, s23" % CW4)
    a("s_xor_b32 s23, s19, 4")
    a("s_mul_i32 s23, s23, 2304")
    a("s_add_u32 s23, s23, %d" % L_CMB)
    a("v_add_u32 v%d, s23, v2" % CR16)
    a("v_lshl_add_u32 v%d, v0, 2, s23" % CR4)
    a("s_lshl_b32 s23, s14, 1")
    a("s_add_u32 s23, s23, s16")
    a("s_lshl_b32 s33, s23, 15")
    a("s_lshl_b32 s23, s18, 10")
    a("s_add_u32 s33, s33, s23")
    a("s_add_u32 s33, s33, %d" % WS_O)
    a("s_lshl_b32 s98, s14, 10")
    a("s_lshl_b32 s23, s15, 7")
    a("s_add_u32 s98, s98, s23")
    a("s_add_u32 s98, s98, %d" % WS_FL2)
    a("s_and_b32 s8, s19, 1")
    a("s_bfe_u32 s9, s19, 0x10001")
    a("s_lshl_b32 s4, s62, 1")
    a("s_add_u32 s4, s4, s8")
    a("s_lshl_b32 s5, s63, 7")
    a("s_lshl_b32 s23, s9, 6")
    a("s_add_u32 s5, s5, s23")
    a("s_lshl_b32 s6, s4, 15")
    a("s_add_u32 s6, s6, s5")
    a("s_lshl_b32 s7, s4, 8")
    a("s_add_u32 s7, s7, %d" % WS_G)
    a("v_lshlrev_b32 v%d, 10, v6" % VXO)
    a("v_lshl_add_u32 v%d, v7, 5, v%d" % (VXO, VXO))
    a("v_bfe_u32 v11, v0, 2, 2")
    a("v_lshl_add_u32 v10, v7, 2, v11")
    a("v_lshlrev_b32 v10, 7, v10")
    a("v_lshrrev_b32 v11, 1, v11")
    a("v_xor_b32 v11, s9, v11")
    a("v_lshl_add_u32 v10, v11, 6, v10")
    a("v_and_b32 v11, 1, v0")
    a("v_lshl_add_u32 v10, v11, 5, v10")
    a("v_bfe_u32 v11, v0, 1, 1")
    a("v_bfe_u32 v12, v0, 4, 1")
    a("v_lshl_add_u32 v11, v12, 1, v11")
    a("v_lshl_add_u32 v10, v11, 3, v10")
    a("v_add_u32 v%d, %d, v10" % (VWO, L_W))
    a("s_lshl_b32 s23, s8, 10")
    a("v_add_u32 v%d, s23, v2" % VOF)
    def kvb(t):
        return KV + 12 * (t % NB)
    def p2_init():
        for b in range(NB):
            for r in range(4, 12, 2):
                a("v_mov_b64 %s, 0" % vr(kvb(b) + r, 2))
        a("s_mov_b32 s34, 0x3f803f80")
        a("s_mov_b32 s35, 0x3f803f80")
        a("s_mov_b32 exec_lo, 0x00110000")
        a("s_mov_b32 exec_hi, 0x00110000")
        for b in range(NB):
            for r in range(4, 12, 2):
                a("v_mov_b64 %s, s[34:35]" % vr(kvb(b) + r, 2))
        a("s_mov_b64 exec, -1")
        for r in range(0, 32, 2):
            a("v_mov_b64 %s, 0" % vr(O + r, 2))
        a("v_mov_b64 %s, 0" % vr(P + 4, 2))
        a("v_mov_b64 %s, 0" % vr(P + 6, 2))
        a("v_mov_b64 %s, 0" % vr(S + 16 + 14, 2))
        a("s_lshl_b32 s37, s19, 10")
        a("s_add_u32 s37, s37, %d" % L_W)
    a("s_waitcnt lgkmcnt(0)")
    p2_init()
    a("s_cmp_lg_u32 s19, 3")
    a("s_cbranch_scc1 H1_WAIT")
    a("s_mov_b32 exec_hi, 0")
    poll(a, "H1_POLL", S, 5)
    a("s_mov_b64 exec, -1")
    a.label("H1_WAIT")
    a("s_barrier")
    stamp(a, 5)
    stamp(a, 26, True)
    ev(a, 1)
    a("ds_read_b128 %s, v250" % vr(Q, 4))
    a("ds_read_b128 %s, v252" % vr(Q + 4, 4))
    a("ds_read_b32 v%d, v251" % C)
    a("ds_read_b32 v%d, v253" % (C + 16))
    a.label("P2_START")
    a("buffer_load_dwordx4 %s, v2, %s, s22 offen sc1" % (vr(kvb(0), 4), WS))
    a("s_mov_b32 s28, s22")
    def ld_k(t):
        a("buffer_load_dwordx4 %s, v2, %s, s28 offen offset:2048 sc1" % (vr(kvb(t), 4), WS))
    def ld_v(t):
        a("s_mov_b64 exec, s[30:31]")
        a("buffer_load_dwordx4 %s, v3, %s, s28 offen offset:1024 sc1" % (vr(kvb(t) + 4, 4), WS))
        a("buffer_load_dwordx4 %s, v3, %s, s28 offen offset:1536 sc1" % (vr(kvb(t) + 8, 4), WS))
        a("s_mov_b64 exec, -1")
        a("s_add_u32 s28, s28, 2048")
    for i in range(1, NB):
        ld_k(i)
        ld_v(i - 1)
        if (i - NB) % 4 == 0 and not NOWO:
            a("buffer_load_dword v255, off, %s, s22" % WS)
    a("s_mov_b32 s23, 0")
    a("s_mul_i32 s44, s14, 1792")
    a("s_add_u32 s44, s44, s22")
    a("s_add_u32 s44, s44, s%d" % P_WS)
    a("s_addc_u32 s45, s%d, 0" % (P_WS + 1))
    a("s_waitcnt lgkmcnt(0)")
    if TOUCH:
        for i in range(14):
            a("s_load_dword s99, s[44:45], 0x%x" % (8192 + i * 128))
    for j in range(2):
        a("v_mov_b32 v%d, v%d" % (C + 16 * j + 1, C + 16 * j))
        for r in range(2, 16, 2):
            a("v_mov_b64 %s, %s" % (vr(C + 16 * j + r, 2), vr(C + 16 * j, 2)))
    a("s_waitcnt vmcnt(%d)" % (3 * (NB - 1)))
    a("%s %s, %s, %s, %s" % (MF32, vr(S, 16), vr(kvb(0), 4), vr(Q, 4), vr(C, 16)))
    a("s_waitcnt vmcnt(%d)" % (3 * (NB - 2)))
    a("s_nop 11")
    a("v_exp_f32 v%d, v%d" % (S, S))
    if not TOUCH:
        stamp(a, 6)

    def main_loop(sfx, older):
        a.raw(".p2align 6")
        a.label("P2_LOOP" + sfx)
        pos = [0]
        def mark():
            pos[0] += 1
            if older and PRIO and pos[0] % 24 == (24 - PRIO + 1) % 24:
                a("s_setprio 0")
            if older and PRIO and pos[0] % 24 == 1 and pos[0] > 1:
                a("s_setprio 1")
        for t in range(NB):
            for j in range(2):
                cur = S + 16 * j
                prv = S + 16 * (j ^ 1)
                nxt = prv
                E = lambda r: a("v_exp_f32 v%d, v%d" % (cur + r, cur + r))
                CV = lambda r: a("v_cvt_pk_bf16_f32 v%d, v%d, v%d" % (P + r // 2, cur + r, cur + r + 1))
                pb = kvb(t) if j == 1 else kvb(t - 1)
                nb = kvb(t) if j == 0 else kvb(t + 1)
                a("v_cvt_pk_bf16_f32 v%d, v%d, v%d" % (P + 7, prv + 14, prv + 15))
                if j == 1:
                    nwo = 0 if NOWO else sum(1 for k in range(t - (NB - 2), t) if k % 4 == 0)
                    a("s_waitcnt vmcnt(%d)" % (3 * (NB - 2) + nwo))
                    if t % 4 == 0:
                        if not NOWO:
                            a("s_lshl_b32 s3, s38, 13")
                            a("s_add_u32 m0, s3, s37")
                            a("s_lshl3_add_u32 s3, s3, s36")
                            a("buffer_load_dwordx4 v4, s[40:43], s3 offen lds")
                            a("s_add_u32 s38, s38, 1")
                            a("s_and_b32 s38, s38, 7")
                        if older:
                            a("s_bitcmp1_b32 s32, s23")
                            a("s_cbranch_scc1 P2_HOOK")
                            a.label("P2_HRET%d" % (t // 4))
                        a("s_add_u32 s23, s23, 1")
                mark()
                a("%s %s, %s, %s, %s" % (MF32, vr(nxt, 16), vr(nb, 4), vr(Q + 4 * (j ^ 1), 4), vr(C + 16 * (j ^ 1), 16)))
                if j == 0:
                    ld_k(t)
                E(1); E(2); CV(0); E(3); E(4); CV(2); E(5)
                mark()
                a("%s %s, %s, %s, %s" % (MF32, vr(O + 16 * (j ^ 1), 16), vr(pb + 8, 4), vr(P + 4, 4), vr(O + 16 * (j ^ 1), 16)))
                if j == 0:
                    ld_v(t - 1)
                E(6); CV(4); E(7); E(8); CV(6); E(9); E(10)
                mark()
                a("%s %s, %s, %s, %s" % (MF32, vr(O + 16 * j, 16), vr(kvb(t) + 4, 4), vr(P, 4), vr(O + 16 * j, 16)))
                CV(8); E(11); E(12); CV(10); E(13); E(14); CV(12); E(15)
                a("v_exp_f32 v%d, v%d" % (nxt, nxt))
        if older and PRIO:
            a("s_setprio 1")
        if STAMP == 1:
            a("s_memtime s[100:101]")
            a("s_waitcnt lgkmcnt(0)")
            a("v_mov_b32 v255, s100")
            a("s_lshl_b32 s100, s2, 3")
            a("s_add_u32 s100, s100, s19")
            a("s_lshl_b32 s100, s100, 5")
            a("s_add_u32 s100, s100, s23")
            a("s_lshl_b32 s100, s100, 2")
            a("s_add_u32 s100, s100, %d" % (WS_ST + 15 * 4))
            a("buffer_store_dword v255, off, %s, s100" % WS)
        a("s_cmp_lt_u32 s23, 8")
        a("s_cbranch_scc1 P2_LOOP" + sfx)
    if PRIO:
        a("s_setprio 1")
    a("s_cmp_ge_u32 s19, 4")
    a("s_cbranch_scc1 P2_LOOPB")
    main_loop("A", True)
    a("s_branch P2_DRAIN")
    main_loop("B", False)
    a.label("P2_DRAIN")
    a("v_cvt_pk_bf16_f32 v%d, v%d, v%d" % (P + 7, S + 16 + 14, S + 16 + 15))
    a("ds_write_b128 v%d, %s" % (CW16, vr(O, 4)))
    a("ds_write_b32 v%d, v%d offset:2048" % (CW4, O + 8))
    a("%s %s, %s, %s, %s" % (MF32, vr(O + 16, 16), vr(kvb(NB - 1) + 8, 4), vr(P + 4, 4), vr(O + 16, 16)))
    a("ds_write_b128 v%d, %s offset:1024" % (CW16, vr(O + 4, 4)))
    stamp(a, 7)
    stamp(a, 27, True)
    ev(a, 2)
    a("s_mov_b32 s28, 0x4f800000")
    a("s_nop 9")
    a("v_max_f32 v%d, v%d, v%d" % (S, O + 8, O + 24))
    a("v_cmp_u_f32 s[56:57], v%d, v%d" % (O + 8, O + 24))
    a("v_cmp_lt_f32 vcc, s28, v%d" % S)
    a("s_nop 3")
    a("s_or_b64 s[56:57], s[56:57], vcc")
    a("s_cbranch_scc0 P2_NOFLAG")
    a("v_mov_b32 v%d, 1" % S)
    a("ds_write_b32 v%d, v%d offset:8" % (VM, S))
    a.label("P2_NOFLAG")
    a("s_waitcnt lgkmcnt(0)")
    a("s_barrier")
    a("ds_read2_b32 %s, v%d offset0:1 offset1:2" % (vr(S, 2), VM))
    a("ds_read_b32 v%d, v%d offset:2048" % (O + 8, CR4))
    a("ds_read_b128 %s, v%d" % (vr(O, 4), CR16))
    a("ds_read_b128 %s, v%d offset:1024" % (vr(O + 4, 4), CR16))
    a("s_waitcnt lgkmcnt(2)")
    a("v_readfirstlane_b32 s23, v%d" % (S + 1))
    a("v_readfirstlane_b32 s%d, v%d" % (S_KEY, S))
    a("v_add_f32 v%d, v%d, v%d" % (O + 8, O + 8, O + 24))
    a("v_rcp_f32 v%d, v%d" % (O + 8, O + 8))
    a("s_cmp_gt_u32 s23, s29")
    a("s_cbranch_scc1 P2_EXACT")
    a("v_mov_b32 v%d, v%d" % (O + 9, O + 8))
    a("s_waitcnt lgkmcnt(0)")
    for r in range(0, 8, 2):
        a("v_pk_add_f32 %s, %s, %s" % (vr(O + r, 2), vr(O + r, 2), vr(O + 16 + r, 2)))
    for r in range(0, 8, 2):
        a("v_pk_mul_f32 %s, %s, %s" % (vr(O + r, 2), vr(O + r, 2), vr(O + 8, 2)))
    for r in range(4):
        a("v_cvt_pk_bf16_f32 v%d, v%d, v%d" % (O + 16 + r, O + 2 * r, O + 2 * r + 1))
    a("buffer_store_dwordx4 %s, v2, %s, s33 offen sc1" % (vr(O + 16, 4), WS))
    stamp(a, 8)

    a("s_and_b32 s21, s%d, 0xffff" % S_KEY)
    a("s_sub_u32 s21, 0xffff, s21")
    a("s_lshr_b32 s20, s21, 5")
    a("s_cmp_ge_u32 s19, 4")
    a("s_cbranch_scc1 P3_HELP")
    ACC3, OB, B, YR = 16, 32, 80, 96
    def wof(h):
        return (186 + 4 * h) if h < 16 else (120 + 4 * (h - 16)) if h < 28 else (104 + 4 * (h - 28))
    def rd_wo(h):
        a("ds_read_b64_tr_b16 %s, v%d offset:%d" % (vr(wof(h), 2), VWO, h * 2048))
        a("ds_read_b64_tr_b16 %s, v%d offset:%d" % (vr(wof(h) + 2, 2), VWO, h * 2048 + 1024))
    for h in list(range(16)) + list(range(28, 32)):
        rd_wo(h)
    srd(a, 44, P_OUT, 2048 * 512 * 2)
    for i in range(8):
        a("v_lshlrev_b32 v%d, 16, v%d" % (B + 2 * i, XR + i))
        a("v_and_b32 v%d, 0xffff0000, v%d" % (B + 2 * i + 1, XR + i))
    for r in range(0, 16, 2):
        a("v_mov_b64 %s, 0" % vr(ACC3 + r, 2))
    a("v_and_b32 v5, 7, v0")
    a("v_lshl_add_u32 v5, v5, 2, v%d" % VM)
    a("s_waitcnt vmcnt(0)")
    last_wave_flag(a, "P3_FLA", VM, 16, 8, 98, 8)
    stamp(a, 9)
    stamp(a, 30, True)
    for h in range(16, 28):
        rd_wo(h)
    a("s_cmp_eq_u32 s20, s4")
    a("s_cbranch_scc1 P3_KEEPB")
    for i in range(16):
        a("v_mul_f32 v%d, v%d, v%d" % (B + i, B + i, GR + 1))
    a.label("P3_KEEPB")
    a("s_mov_b32 s22, 0")
    a("s_mov_b32 s94, 0")
    a.label("P3_ROUND")
    a("ds_read_b32 v8, v5 offset:32")
    a("s_add_u32 s94, s94, 1")
    a("s_waitcnt lgkmcnt(0)")
    a("v_cmp_ne_u32 vcc, 0, v8")
    a("s_cmp_ge_u32 s94, 0x400000")
    a("s_cbranch_scc1 P3_FIN")
    a("s_and_b32 s23, vcc_lo, 0xff")
    a("s_andn2_b32 s23, s23, s22")
    a("s_cbranch_scc0 P3_ROUND")
    def rd_o(g):
        for i in range(4):
            a("ds_read_b128 %s, v%d offset:%d" % (vr(OB + 16 * (g & 1) + 4 * i, 4), VOF, L_X + (4 * g + i) * 2048))
    for g in range(8):
        a("s_bitcmp1_b32 s23, %d" % g)
        a("s_cbranch_scc0 P3_SK%d" % g)
        if g > 0:
            a("s_bitcmp1_b32 s23, %d" % (g - 1))
            a("s_cbranch_scc1 P3_HV%d" % g)
        rd_o(g)
        a.label("P3_HV%d" % g)
        if g < 7:
            rd_o(g + 1)
        for i in range(4):
            a("s_waitcnt lgkmcnt(%d)" % ((4 if g < 7 else 0) + 3 - i))
            a("%s %s, %s, %s, %s" % (MF32, vr(ACC3, 16), vr(wof(4 * g + i), 4), vr(OB + 16 * (g & 1) + 4 * i, 4), vr(ACC3, 16)))
        a.label("P3_SK%d" % g)
    a("s_or_b32 s22, s22, s23")
    a("s_cmp_lg_u32 s22, 0xff")
    a("s_cbranch_scc1 P3_ROUND")
    a.label("P3_FIN")
    stamp(a, 11)
    a("s_cmp_lg_u32 s20, s4")
    a("s_cbranch_scc1 P3_NOSEL")
    a("s_lshl_b32 s23, s19, 2")
    a("v_add_u32 v5, s23, v%d" % VM)
    a("s_mov_b32 s94, 0")
    a.label("P3_YW")
    a("ds_read_b32 v8, v5 offset:64")
    a("s_add_u32 s94, s94, 1")
    a("s_waitcnt lgkmcnt(0)")
    a("v_readfirstlane_b32 s23, v8")
    a("s_cmp_ge_u32 s94, 0x400000")
    a("s_cbranch_scc1 P3_YD")
    a("s_cmp_eq_u32 s23, 0")
    a("s_cbranch_scc1 P3_YW")
    a.label("P3_YD")
    a("s_mul_i32 s30, s19, 2304")
    a("s_add_u32 s30, s30, %d" % L_QX)
    a("v_lshl_add_u32 v14, v7, 6, s30")
    for i in range(2):
        a("ds_read_b128 %s, v14 offset:%d" % (vr(OB + 4 * i, 4), 2048 + i * 16))
        a("ds_read_b128 %s, v14 offset:%d" % (vr(OB + 8 + 4 * i, 4), 2048 + 32 + i * 16))
    a("s_and_b32 s30, s21, 31")
    a("v_cmp_eq_u32 vcc, s30, v6")
    a("s_waitcnt lgkmcnt(0)")
    a("s_and_saveexec_b64 s[48:49], vcc")
    for i in range(16):
        a("v_add_f32 v%d, v%d, v%d" % (B + i, B + i, OB + i))
        bf16_round_to_f32(a, B + i, B + i)
    a("s_mov_b64 exec, s[48:49]")
    for i in range(16):
        a("v_mul_f32 v%d, v%d, v%d" % (B + i, B + i, GR + 1))
    a.label("P3_NOSEL")
    a("s_nop 8")
    for i in range(16):
        a("v_fma_f32 v%d, v%d, v%d, v%d" % (B + i, ACC3 + i, GR, B + i))
        if i % 2 == 1:
            a("v_cvt_pk_bf16_f32 v%d, v%d, v%d" % (XR + i // 2, B + i - 1, B + i))
        if i == 8:
            a("buffer_store_dwordx4 %s, v%d, s[44:47], s6 offen" % (vr(XR, 4), VXO))
    a("buffer_store_dwordx4 %s, v%d, s[44:47], s6 offen offset:16" % (vr(XR + 4, 4), VXO))
    stamp(a, 12)
    stamp(a, 25, True)
    if SPAN:
        ev(a, 3)
        a("s_lshl_b32 s3, s2, 3")
        a("s_add_u32 s3, s3, s19")
        a("s_cmp_lg_u32 s3, %d" % (77 * 8))
        a("s_cbranch_scc1 L_END")
        a("s_sub_u32 s13, s99, s13")
        a("s_min_u32 s13, s13, 10000")
        a("s_mul_i32 s13, s13, 10")
        a("s_memrealtime s[20:21]")
        a.label("SP_LOOP")
        a("s_memrealtime s[22:23]")
        a("s_waitcnt lgkmcnt(0)")
        a("s_sub_u32 s17, s22, s20")
        a("s_cmp_lt_u32 s17, s13")
        a("s_cbranch_scc1 SP_LOOP")
    a.label("L_END")
    a("s_endpgm")

    a.label("P3_HELP")
    a("s_and_b32 s10, s19, 3")
    a("s_lshl_b32 s95, s62, 10")
    a("s_lshl_b32 s23, s10, 8")
    a("s_add_u32 s95, s95, s23")
    a("s_add_u32 s95, s95, %d" % WS_FL2)
    a("v_and_b32 v5, 1, v0")
    a("v_lshlrev_b32 v5, 7, v5")
    a("buffer_load_dword v8, v5, %s, s95 offen sc1" % WS)
    a("s_lshl_b32 s11, s62, 16")
    a("s_lshl_b32 s23, s10, 13")
    a("s_add_u32 s11, s11, s23")
    a("s_add_u32 s11, s11, %d" % WS_O)
    a("s_lshl_b32 s12, s10, 14")
    a("s_lshl_b32 s23, s10, 3")
    a("v_add_u32 v9, s23, v%d" % VM)
    a("v_mov_b32 v10, 1")
    a("s_cmp_lg_u32 s20, s4")
    a("s_cbranch_scc1 P3_H1")
    a("v_lshlrev_b32 v11, 7, v0")
    def ld_fl3():
        for i in range(4):
            a("s_mov_b32 s30, %d" % (WS_FL3 + i * 8192))
            a("buffer_load_dword v%d, v11, %s, s30 offen sc1" % (YR + i, WS))
    ld_fl3()
    a.label("P3_H1")
    a("s_waitcnt vmcnt(0)")
    last_wave_flag(a, "P3_FLB", VM, 16, 8, 98, 12)
    stamp(a, 9)
    stamp(a, 30, True)
    a("s_cmp_lg_u32 s20, s4")
    a("s_cbranch_scc1 P3_H2")
    a("s_mov_b32 s94, 0")
    a.label("P3_ALL")
    for i in range(4):
        a("v_xor_b32 v%d, s%d, v%d" % (YR + i, S_TAG, YR + i))
    a("v_or3_b32 v%d, v%d, v%d, v%d" % (YR, YR, YR + 1, YR + 2))
    a("v_or_b32 v%d, v%d, v%d" % (YR, YR, YR + 3))
    a("v_cmp_ne_u32 vcc, 0, v%d" % YR)
    a("s_add_u32 s94, s94, 1")
    a("s_cmp_ge_u32 s94, 0x8000")
    a("s_cbranch_scc1 P3_ALLD")
    a("s_cbranch_vccz P3_ALLD")
    ld_fl3()
    a("s_waitcnt vmcnt(0)")
    a("s_branch P3_ALL")
    a.label("P3_ALLD")
    a("v_lshrrev_b32 v12, 2, v0")
    a("v_and_b32 v13, 3, v0")
    a("v_lshlrev_b32 v14, 7, v12")
    a("v_lshl_add_u32 v14, v13, 4, v14")
    a("v_lshlrev_b32 v12, 11, v12")
    a("v_lshl_add_u32 v12, v13, 4, v12")
    a("s_lshr_b32 s30, s5, 8")
    a("s_lshl_b32 s30, s30, 9")
    a("s_and_b32 s31, s5, 255")
    a("s_add_u32 s30, s30, s31")
    a("s_add_u32 s30, s30, %d" % WS_Y)
    a("buffer_load_dwordx4 %s, v12, %s, s30 offen sc1" % (vr(YR, 4), WS))
    a("buffer_load_dwordx4 %s, v12, %s, s30 offen offset:256 sc1" % (vr(YR + 4, 4), WS))
    a.label("P3_H2")
    a("s_mov_b32 s22, 0")
    a("s_mov_b32 s94, 0")
    a.label("P3_HL")
    a("v_cmp_eq_u32 vcc, s%d, v8" % S_TAG)
    a("s_add_u32 s94, s94, 1")
    a("s_cmp_ge_u32 s94, 0x8000")
    a("s_cselect_b32 s23, 3, vcc_lo")
    a("s_and_b32 s23, s23, 3")
    a("s_andn2_b32 s23, s23, s22")
    for q in range(2):
        a("s_bitcmp1_b32 s23, %d" % q)
        a("s_cbranch_scc0 P3_HS%d" % q)
        for i in range(8):
            a("s_add_u32 s28, s63, %d" % i)
            a("s_and_b32 s28, s28, 7")
            a("s_lshl_b32 s3, s28, 10")
            a("s_add_u32 s3, s3, s12")
            a("s_add_u32 m0, s3, %d" % (L_X + q * 8192))
            a("s_lshr_b32 s3, s28, 1")
            a("s_lshl_b32 s3, s3, 10")
            a("s_and_b32 s28, s28, 1")
            a("s_lshl_b32 s28, s28, 15")
            a("s_add_u32 s3, s3, s28")
            a("s_add_u32 s3, s3, s11")
            if q:
                a("s_add_u32 s3, s3, 4096")
            a("buffer_load_dwordx4 v2, %s, s3 offen sc1 lds" % WS)
        a.label("P3_HS%d" % q)
    a("s_or_b32 s22, s22, s23")
    a("s_cmp_eq_u32 s22, 3")
    a("s_cbranch_scc1 P3_HE")
    a("buffer_load_dword v8, v5, %s, s95 offen sc1" % WS)
    a("s_waitcnt vmcnt(0)")
    for q in range(2):
        a("s_bitcmp1_b32 s22, %d" % q)
        a("s_cbranch_scc0 P3_HP%d" % q)
        a("ds_write_b32 v9, v10 offset:%d" % (32 + 4 * q))
        a.label("P3_HP%d" % q)
    a("s_branch P3_HL")
    a.label("P3_HE")
    stamp(a, 10)
    stamp(a, 28, True)
    a("s_cmp_lg_u32 s23, 3")
    a("s_cbranch_scc1 P3_HE1")
    a("s_waitcnt vmcnt(8)")
    a("ds_write_b32 v9, v10 offset:32")
    a.label("P3_HE1")
    a("s_waitcnt vmcnt(0)")
    a("ds_write_b32 v9, v10 offset:32")
    a("ds_write_b32 v9, v10 offset:36")
    a("s_cmp_lg_u32 s20, s4")
    a("s_cbranch_scc1 L_END")
    a("s_mul_i32 s30, s10, 2304")
    a("s_add_u32 s30, s30, %d" % L_QX)
    a("v_add_u32 v14, s30, v14")
    a("ds_write_b128 v14, %s" % vr(YR, 4))
    a("ds_write_b128 v14, %s offset:64" % vr(YR + 4, 4))
    a("v_lshlrev_b32 v14, 10, v7")
    a("v_lshl_add_u32 v14, v6, 2, v14")
    a("v_add_u32 v14, s30, v14")
    a("s_waitcnt lgkmcnt(0)")
    for i in range(8):
        a("ds_read_b32 v%d, v14 offset:%d" % (YR + i, i * 128))
    a("s_and_b32 s31, s%d, 0xffff0000" % S_KEY)
    a("s_ashr_i32 s28, s31, 31")
    a("s_not_b32 s28, s28")
    a("s_or_b32 s28, s28, 0x80000000")
    a("s_xor_b32 s31, s31, s28")
    a("s_and_b32 s31, s31, 0xffff0000")
    a("v_mov_b32 v15, s31")
    sigmoid_bf16(a, 15)
    a("s_waitcnt lgkmcnt(0)")
    for i in range(1, 8):
        a("v_add_f32 v%d, v%d, v%d" % (YR, YR, YR + i))
    a("v_mov_b32 v%d, v%d" % (YR + 1, YR))
    a("v_and_b32 v14, 15, v0")
    a("v_lshlrev_b32 v14, 3, v14")
    a("v_permlane32_swap_b32 v%d, v%d" % (YR, YR + 1))
    a("v_add_f32 v%d, v%d, v%d" % (YR, YR, YR + 1))
    bf16_round_to_f32(a, YR, YR)
    a("v_mul_f32 v%d, v%d, v15" % (YR, YR))
    bf16_round_to_f32(a, YR, YR)
    a("v_bfe_u32 v15, v0, 4, 1")
    a("v_lshl_add_u32 v14, v15, 2, v14")
    a("v_add_u32 v14, s30, v14")
    a("ds_write_b32 v14, v%d offset:2048" % YR)
    a("s_lshl_b32 s23, s10, 2")
    a("v_add_u32 v9, s23, v%d" % VM)
    a("ds_write_b32 v9, v10 offset:64")
    a("s_endpgm")

    a.label("P2_HRET")
    if NB == 8:
        a("s_bitcmp1_b32 s23, 0")
        a("s_cbranch_scc1 P2_HRET1")
    a("s_branch P2_HRET0")
    def gu_base():
        a("s_cmp_lt_u32 s19, 2")
        a("s_cselect_b32 s44, s%d, s%d" % (P_WG, P_WU))
        a("s_cselect_b32 s45, s%d, s%d" % (P_WG + 1, P_WU + 1))
        a("s_and_b32 s52, s2, 7")
        a("s_mul_i32 s52, s52, %d" % (64 * 3584))
        a("s_lshr_b32 s53, s2, 3")
        a("s_lshl_b32 s53, s53, 7")
        a("s_add_u32 s52, s52, s53")
    def warm_gu(lo, hi):
        if not WARM:
            return
        gu_base()
        a("s_and_b32 s53, s19, 1")
        a("s_mul_i32 s53, s53, %d" % (32 * 3584))
        a("s_add_u32 s52, s52, s53")
        a("s_add_u32 s44, s44, s52")
        a("s_addc_u32 s45, s45, 0")
        for i in range(lo, hi):
            a("s_load_dword s99, s[44:45], 0x%x" % (i * 3584))
    def warm_wd(lo, hi):
        if not WARM:
            return
        a("s_lshl_b32 s52, s2, 13")
        a("s_lshl_b32 s53, s19, 8")
        a("s_add_u32 s52, s52, s53")
        a("s_add_u32 s44, s%d, s52" % P_WD)
        a("s_addc_u32 s45, s%d, 0" % (P_WD + 1))
        for i in range(lo, hi):
            a("s_load_dword s99, s[44:45], 0x%x" % ((i // 2) * 1024 + (i % 2) * 128))
    def only_ffn():
        a("s_cmp_ge_u32 s2, 224")
        a("s_cbranch_scc1 P2_HRET")
    def check_tags(name, regs, reload):
        a("s_mov_b32 s94, 0")
        a.label(name + "L")
        a("v_cmp_ne_u32 vcc, s%d, v%d" % (S_TAG, regs[0]))
        for r in regs[1:]:
            a("v_cmp_ne_u32 s[52:53], s%d, v%d" % (S_TAG, r))
            a("s_nop 1")
            a("s_or_b64 vcc, vcc, s[52:53]")
        a("s_add_u32 s94, s94, 1")
        a("s_cmp_ge_u32 s94, 0x8000")
        a("s_cbranch_scc1 %sD" % name)
        a("s_cbranch_vccz %sD" % name)
        reload()
        a("s_waitcnt vmcnt(0)")
        a("s_branch %sL" % name)
        a.label(name + "D")
    def ld_keys():
        a("v_lshlrev_b32 v5, 3, v0")
        a("s_mov_b32 s3, %d" % WS_RK)
        a("buffer_load_dwordx2 %s, v5, %s, s3 offen sc1" % (vr(DD, 2), WS))
    def job_argmax():
        check_tags("P2_CK", [DD + 1], ld_keys)
        for sh in (1, 2, 4, 8):
            a("v_max_u32_dpp v%d, v%d, v%d row_ror:%d row_mask:0xf bank_mask:0xf" % (DD, DD, DD, sh))
            a("s_nop 1")
        for i in range(4):
            a("v_readlane_b32 s%d, v%d, %d" % (52 + i, DD, 16 * i))
        srd(a, 44, P_X, 2048 * 512 * 2)
        a("s_max_u32 s52, s52, s53")
        a("s_max_u32 s54, s54, s55")
        a("s_max_u32 s52, s52, s54")
        a("v_mov_b32 v%d, s52" % DD)
        a("ds_write_b32 v%d, v%d offset:4" % (VM, DD))
        a("s_cmp_lt_u32 s2, 224")
        a("s_cselect_b32 s32, s32, 0x80")
        only_ffn()
        a("s_and_b32 s52, s52, 0xffff")
        a("s_sub_u32 s52, 0xffff, s52")
        a("s_and_b32 s52, s52, 2047")
        a("s_lshl_b32 s52, s52, 10")
        a("s_and_b32 s53, s2, 7")
        a("s_lshl_b32 s53, s53, 7")
        a("s_add_u32 s52, s52, s53")
        a("v_lshrrev_b32 v5, 4, v0")
        a("v_lshlrev_b32 v5, 4, v5")
        for s_ in range(2):
            a("buffer_load_dwordx4 %s, v5, s[44:47], s52 offen offset:%d" % (vr(XS + 4 * s_, 4), 64 * s_))
    def job_gu(lo, hi):
        only_ffn()
        gu_base()
        a("s_and_b32 s45, s45, 0xffff")
        a("s_mov_b32 s46, 0x%x" % (512 * 1792 * 2))
        a("s_mov_b32 s47, 0x00020000")
        a("v_lshrrev_b32 v5, 2, v0")
        a("v_mul_u32_u24 v5, 3584, v5")
        a("v_and_b32 v252, 3, v0")
        a("v_lshl_add_u32 v5, v252, 4, v5")
        a("s_and_b32 s53, s19, 1")
        a("s_lshl_b32 s53, s53, 6")
        a("s_add_u32 s52, s52, s53")
        a("s_lshl_b32 s54, s19, 12")
        for i in range(lo, hi):
            a("s_add_u32 m0, s54, %d" % (L_FFW + i * 1024))
            a("s_add_u32 s53, s52, %d" % (i * 16 * 3584))
            a("buffer_load_dwordx4 v5, s[44:47], s53 offen lds")
    def job_wd():
        srd(a, 48, P_WD, 1792 * 512 * 2)
        a("s_lshl_b32 s52, s2, 13")
        a("s_lshl_b32 s53, s19, 8")
        a("s_add_u32 s52, s52, s53")
        a("v_lshlrev_b32 v5, 2, v0")
        a("s_add_u32 s53, s52, 4096")
        for f in range(8):
            a("buffer_load_dword v%d, v5, s[48:51], s%d offen offset:%d" % (WD + f, 52 + f // 4, (f % 4) * 1024))
    def job_part():
        a("v_lshrrev_b32 v5, 4, v0")
        a("v_lshlrev_b32 v5, 9, v5")
        a("v_bfe_u32 v252, v0, 2, 2")
        a("v_lshl_add_u32 v5, v252, 6, v5")
        a("v_and_b32 v252, 3, v0")
        a("v_lshl_add_u32 v5, v252, 3, v5")
        a("s_lshl_b32 s52, s19, 12")
        a("s_add_u32 s52, s52, %d" % L_FFW)
        a("v_add_u32 v5, s52, v5")
        for ct in range(2):
            for s_ in range(2):
                for half in range(2):
                    a("ds_read_b64_tr_b16 %s, v5 offset:%d" % (vr(BF + 4 * s_ + 2 * half, 2), ct * 32 + s_ * 2048 + half * 256))
            a("s_waitcnt lgkmcnt(0)")
            a("%s %s, %s, %s, 0" % (MF16, vr(DD + 4 * ct, 4), vr(XS, 4), vr(BF, 4)))
            a("%s %s, %s, %s, %s" % (MF16, vr(DD + 4 * ct, 4), vr(XS + 4, 4), vr(BF + 4, 4), vr(DD + 4 * ct, 4)))
        a("v_lshlrev_b32 v5, 3, v0")
        a("s_lshl_b32 s52, s2, 10")
        a("s_lshl_b32 s53, s19, 8")
        a("s_add_u32 s52, s52, s53")
        a("s_add_u32 s52, s52, %d" % WS_PA)
        a("s_nop 3")
        a("v_mov_b32 v%d, s%d" % (DD + 1, S_TAG))
        a("s_mov_b32 exec_hi, 0")
        a("s_mov_b32 exec_lo, 0xffff0000")
        a("v_mov_b32 v%d, v%d" % (DD, DD + 4))
        a("s_mov_b32 exec_lo, -1")
        a("buffer_store_dwordx2 %s, v5, %s, s52 offen sc1" % (vr(DD, 2), WS))
        a("s_mov_b64 exec, -1")
    def ld_part():
        a("v_lshrrev_b32 v5, 3, v0")
        a("v_lshlrev_b32 v5, 10, v5")
        a("v_and_b32 v252, 7, v0")
        a("v_lshl_add_u32 v5, v252, 3, v5")
        a("s_lshr_b32 s3, s2, 3")
        a("s_lshl_b32 s3, s3, 13")
        a("s_and_b32 s54, s2, 7")
        a("s_lshl_b32 s54, s54, 6")
        a("s_add_u32 s3, s3, s54")
        a("s_add_u32 s3, s3, %d" % WS_PA)
        a("buffer_load_dwordx2 %s, v5, %s, s3 offen sc1" % (vr(T, 2), WS))
        a("buffer_load_dwordx2 %s, v5, %s, s3 offen offset:512 sc1" % (vr(T + 2, 2), WS))
    def job_final():
        check_tags("P2_CP", [T + 1, T + 3], ld_part)
        G_, U_ = T, T + 2
        for r in (G_, U_):
            a("v_add_f32_dpp v%d, v%d, v%d row_ror:8 row_mask:0xf bank_mask:0xf" % (r, r, r))
        for op in ("v_permlane16_swap_b32", "v_permlane32_swap_b32"):
            for r in (G_, U_):
                a("v_mov_b32 v%d, v%d" % (r + 1, r))
            a("s_nop 0")
            for r in (G_, U_):
                a("%s v%d, v%d" % (op, r, r + 1))
            for r in (G_, U_):
                a("v_add_f32 v%d, v%d, v%d" % (r, r, r + 1))
        bf16_round_to_f32(a, G_, G_)
        bf16_round_to_f32(a, U_, U_)
        a("v_mul_f32 v%d, 0x%08x, v%d" % (T + 1, f32bits(-LOG2E), G_))
        a("v_exp_f32 v%d, v%d" % (T + 1, T + 1))
        a("v_mov_b32 v%d, 0" % (T + 4))
        a("v_add_f32 v%d, 1.0, v%d" % (T + 1, T + 1))
        a("v_rcp_f32 v%d, v%d" % (T + 1, T + 1))
        a("v_mov_b32 v%d, 0" % (T + 5))
        a("v_mul_f32 v%d, v%d, v%d" % (T + 1, T + 1, G_))
        bf16_round_to_f32(a, T + 1, T + 1)
        a("v_mul_f32 v%d, v%d, v%d" % (T + 1, T + 1, U_))
        a("v_cvt_pk_bf16_f32 v%d, v%d, v%d" % (T + 1, T + 1, T + 4))
        a("v_lshlrev_b32 v5, 2, v0")
        for i in range(8):
            a("v_readlane_b32 s%d, v%d, %d" % (44 + i, T + 1, i))
        a("s_lshl_b32 s60, s19, 9")
        a("s_and_b32 s61, s2, 15")
        a("s_lshl_b32 s61, s61, 11")
        a("s_add_u32 s60, s60, s61")
        a("s_add_u32 s60, s60, %d" % WS_Y)
        for i in range(8):
            a("s_lshl_b32 s%d, s%d, 16" % (52 + i, 44 + i))
        for i in range(8):
            a("v_dot2_f32_bf16 v%d, v%d, s%d, v%d" % (T + 4, WD + i, 44 + i, T + 4))
            a("v_dot2_f32_bf16 v%d, v%d, s%d, v%d" % (T + 5, WD + i, 52 + i, T + 5))
        a("s_nop 3")
        a("buffer_atomic_add_f32 v%d, v5, %s, s60 offen" % (T + 4, WS))
        a("buffer_atomic_add_f32 v%d, v5, %s, s60 offen offset:256" % (T + 5, WS))
    def job_tail():
        a("s_lshl_b32 s3, s2, 7")
        a("s_add_u32 s3, s3, %d" % WS_FL3)
        a("s_waitcnt vmcnt(0)")
        last_wave_flag(a, "P2_FL3", VM, 12, 4, 3, 5)
        srd(a, 44, P_X, 2048 * 512 * 2)
        a("buffer_load_dwordx4 %s, v%d, s[44:47], s6 offen" % (vr(XR, 4), VXO))
        a("buffer_load_dwordx4 %s, v%d, s[44:47], s6 offen offset:16" % (vr(XR + 4, 4), VXO))
        a("v_lshlrev_b32 v252, 3, v6")
        a("buffer_load_dwordx2 %s, v252, %s, s7 offen sc1" % (vr(GR, 2), WS))
    if NB == 4:
        plans = {
            0: {1: [ld_keys, lambda: job_gu(0, 2)], 2: [job_argmax, lambda: job_gu(2, 4)], 3: [job_part], 4: [job_wd], 5: [ld_part], 6: [job_final], 7: [job_tail]},
            1: {1: [ld_keys, lambda: job_gu(0, 1)], 2: [job_argmax, lambda: job_gu(1, 2)], 3: [lambda: job_gu(2, 4)], 4: [job_part], 5: [job_wd], 6: [ld_part], 7: [job_final]},
        }
    else:
        plans = {
            0: {0: [ld_keys], 1: [lambda: job_gu(0, 4)], 2: [job_argmax], 3: [job_wd], 4: [job_part], 5: [ld_part], 7: [job_final]},
        }
    plan = plans[PLAN]
    a.label("P2_HOOK")
    for st in plan:
        a("s_cmp_eq_u32 s23, %d" % st)
        a("s_cbranch_scc1 P2_J%d" % st)
    a("s_branch P2_HRET")
    for st, jobs in plan.items():
        a.label("P2_J%d" % st)
        for jb in jobs:
            jb()
        a("s_branch P2_HRET")

    a.label("P2_EXACT")
    a("s_mov_b32 s29, 1")
    a("s_mov_b32 s32, 0")
    a("s_mov_b32 s23, 0xff800000")
    for j in range(2):
        a("v_mov_b32 v%d, s23" % (T + j))
    a("s_mov_b32 s28, s22")
    a("s_mov_b32 s23, 0")
    a("s_waitcnt vmcnt(0) lgkmcnt(0)")
    a.label("P2_EXLOOP")
    a("buffer_load_dwordx4 %s, v2, %s, s28 offen sc1" % (vr(KV, 4), WS))
    a("s_waitcnt vmcnt(0)")
    for j in range(2):
        a("%s %s, %s, %s, 0" % (MF32, vr(S, 16), vr(KV, 4), vr(Q + 4 * j, 4)))
        a("s_nop 15")
        for r in range(0, 16, 2):
            a("v_max3_f32 v%d, v%d, v%d, v%d" % (T + j, T + j, S + r, S + r + 1))
    a("s_add_u32 s28, s28, 2048")
    a("s_add_u32 s23, s23, 1")
    a("s_cmp_lt_u32 s23, 32")
    a("s_cbranch_scc1 P2_EXLOOP")
    a("s_lshl_b32 s23, s19, 9")
    a("s_lshl_b32 s28, s16, 8")
    a("s_add_u32 s23, s23, %d" % L_EX)
    a("v_lshl_add_u32 v5, v0, 2, s23")
    a("v_add_u32 v252, s28, v5")
    a("v_xor_b32 v253, 256, v252")
    a("ds_write_b32 v253, v%d" % T)
    a("ds_write_b32 v252, v%d" % (T + 1))
    a("s_waitcnt lgkmcnt(0)")
    a("s_barrier")
    a("s_lshl_b32 s23, s17, 9")
    a("s_add_u32 s23, s23, %d" % L_EX)
    a("v_lshl_add_u32 v5, v6, 2, s23")
    a("v_add_u32 v252, s28, v5")
    a("v_xor_b32 v253, 256, v252")
    for j in range(2):
        for kh in range(2):
            for hh in range(2):
                a("ds_read_b32 v%d, v%d offset:%d" % (S + kh * 2 + hh, 253 - j, kh * 2048 + hh * 128))
        a("s_waitcnt lgkmcnt(0)")
        a("v_max3_f32 v%d, v%d, v%d, v%d" % (S, S, S + 1, S + 2))
        a("v_max_f32 v%d, v%d, v%d" % (S, S, S + 3))
        a("v_sub_f32 v%d, 0, v%d" % (C + 16 * j, S))
    p2_init()
    a("s_branch P2_START")
    a.label("L_CODE_END")

def main():
    out = sys.argv[1] if len(sys.argv) > 1 else "cdna_kernels/%s.s" % NAME
    a = Asm()
    hdr = open("cdna_kernels/%s.s.ref" % NAME).read().split("\n")
    keep = [l for l in hdr if l.startswith(";") and "@launch" not in l and "Override launch" not in l and "grid=ceil" not in l]
    for l in keep:
        a.raw(l)
    a.raw("; @launch grid=(256,1,1) block=(512,1,1) lds=%d" % LDS_SIZE)
    a.raw('.amdgcn_target "amdgcn-amd-amdhsa--gfx950"')
    a.raw(".text")
    gen(a)
    a.raw('.section .rodata,"a"')
    a.raw(""".p2align 6
.amdhsa_kernel %s_kernel
  .amdhsa_next_free_vgpr 256
  .amdhsa_next_free_sgpr 102
  .amdhsa_accum_offset 256
  .amdhsa_group_segment_fixed_size 0
  .amdhsa_kernarg_size 96
  .amdhsa_user_sgpr_count 2
  .amdhsa_user_sgpr_kernarg_segment_ptr 1
  .amdhsa_system_sgpr_workgroup_id_x 1
.end_amdhsa_kernel""" % NAME)
    open(out, "w").write(a.text())

if __name__ == "__main__":
    main()
```

```python
import sys, math, struct, os

NAME = "gated_mix__mha_block__moe_arch_mod__prompt"

WS_KV = 0
WS_O = 4 << 20
WS_FL1 = 6 << 20
WS_FL2 = WS_FL1 + 32768
WS_FL3 = WS_FL2 + 32768
WS_RK = WS_FL3 + 32768
WS_PA = WS_RK + 8192
WS_G = WS_PA + 262144
WS_EP = WS_G + 16384
WS_Y = WS_EP + 1024
WS_ST = 7 << 20
WS_SIZE = 8 << 20

STAMP = int(os.environ.get("STAMP", "0"))
NB = int(os.environ.get("NB", "4"))
CPF = int(os.environ.get("CPF", "1"))
SLEEP = int(os.environ.get("SLEEP", "0"))
MAP = int(os.environ.get("MAP", "1"))
PRIO = int(os.environ.get("PRIO", "3"))
TOUCH = int(os.environ.get("TOUCH", "0"))
HMASK = int(os.environ.get("HMASK", "0xff"), 0)
WARM = int(os.environ.get("WARM", "0"))
PLAN = int(os.environ.get("PLAN", "0"))
QF = int(os.environ.get("QF", "20"))
SPAN = os.environ.get("SPAN", "")
def ev(a, i):
    if not SPAN:
        return
    i0, i1 = [int(x) for x in SPAN.split(",")]
    for k, r in ((i0, 13), (i1, 99)):
        if k == i:
            a("s_memrealtime s[100:101]")
            a("s_waitcnt lgkmcnt(0)")
            a("s_mov_b32 s%d, s100" % r)
NOWO = int(os.environ.get("NOWO", "0"))

def f32bits(x):
    return struct.unpack("<I", struct.pack("<f", x))[0]

class Asm:
    def __init__(self):
        self.l = []
    def __call__(self, s):
        for line in s.strip("\n").split("\n"):
            self.l.append("    " + line.strip())
    def label(self, s):
        self.l.append(s + ":")
    def raw(self, s):
        self.l.append(s)
    def text(self):
        return "\n".join(self.l) + "\n"

def vr(b, n):
    return "v[%d:%d]" % (b, b + n - 1)
def sr(b, n):
    return "s[%d:%d]" % (b, b + n - 1)

def srd(a, d, base, nbytes):
    a("s_mov_b32 s%d, s%d" % (d, base))
    a("s_and_b32 s%d, s%d, 0xffff" % (d + 1, base + 1))
    a("s_mov_b32 s%d, 0x%x" % (d + 2, nbytes))
    a("s_mov_b32 s%d, 0x00020000" % (d + 3))

MF32 = "v_mfma_f32_32x32x16_bf16"
MF16 = "v_mfma_f32_16x16x32_bf16"
LOG2E = math.log2(math.e)

P_X, P_WQKV, P_WO, P_WR, P_WG, P_WU, P_WD, P_GW, P_OUT, P_DBG, P_WS = 64, 66, 68, 72, 74, 76, 78, 80, 82, 84, 86
WS = "s[88:91]"
S_TAG, S_KEY = 92, 93

def stamp(a, idx, real=False):
    if not STAMP:
        return
    a("s_memrealtime s[100:101]" if real else "s_memtime s[100:101]")
    a("s_waitcnt lgkmcnt(0)")
    a("v_mov_b32 v255, s100")
    a("s_lshl_b32 s100, s2, 3")
    a("s_add_u32 s100, s100, s19")
    a("s_lshl_b32 s100, s100, 7")
    a("s_add_u32 s100, s100, %d" % (WS_ST + idx * 4))
    a("buffer_store_dword v255, off, %s, s100" % WS)

def bf16_round_to_f32(a, dst, src):
    a("v_cvt_pk_bf16_f32 v%d, v%d, v%d" % (dst, src, src))
    a("v_lshlrev_b32 v%d, 16, v%d" % (dst, dst))

def sigmoid_bf16(a, r):
    a("v_mul_f32 v%d, 0x%08x, v%d" % (r, f32bits(-LOG2E), r))
    a("v_exp_f32 v%d, v%d" % (r, r))
    a("s_nop 0")
    a("v_add_f32 v%d, 1.0, v%d" % (r, r))
    a("v_rcp_f32 v%d, v%d" % (r, r))
    a("s_nop 0")
    bf16_round_to_f32(a, r, r)

def poll(a, name, t0, voff):
    a("s_mov_b32 s94, 0")
    a("s_branch %s_IN" % name)
    a.label(name)
    if SLEEP:
        a("s_sleep %d" % SLEEP)
    a.label(name + "_IN")
    a("buffer_load_dword v%d, v%d, %s, s95 offen sc1" % (t0, voff, WS))
    a("s_add_u32 s94, s94, 1")
    a("s_waitcnt vmcnt(0)")
    a("v_cmp_ne_u32 vcc, s%d, v%d" % (S_TAG, t0))
    a("s_cmp_ge_u32 s94, 0x8000")
    a("s_cbranch_scc1 %s_OUT" % name)
    a("s_cbranch_vccz %s_OUT" % name)
    a("s_mov_b64 exec, vcc")
    a("s_branch %s" % name)
    a.label(name + "_OUT")

def last_wave_flag(a, name, vm, ldsoff, n, soff, t0):
    a("v_mov_b32 v%d, 1" % t0)
    a("s_mov_b64 exec, 1")
    a("ds_add_rtn_u32 v%d, v%d, v%d offset:%d" % (t0, vm, t0, ldsoff))
    a("s_waitcnt lgkmcnt(0)")
    a("v_readfirstlane_b32 s97, v%d" % t0)
    a("v_mov_b32 v%d, s%d" % (t0, S_TAG))
    a("s_nop 1")
    a("s_cmp_lg_u32 s97, %d" % (n - 1))
    a("s_cbranch_scc1 %s" % name)
    a("buffer_store_dword v%d, off, %s, s%d sc1" % (t0, WS, soff))
    a.label(name)
    a("s_mov_b64 exec, -1")

def get_tag(a, name, t0):
    a("s_mov_b32 s94, 0")
    a.label(name + "L")
    a("s_waitcnt vmcnt(0)")
    a("v_readfirstlane_b32 s95, v%d" % (t0 + 1))
    a("s_add_u32 s94, s94, 1")
    a("s_cmp_ge_u32 s94, 0x8000")
    a("s_cbranch_scc1 %sD" % name)
    a("s_cmp_lg_u32 s95, 0")
    a("s_cbranch_scc1 %sD" % name)
    a("buffer_load_dwordx2 %s, off, s[24:27], 0 sc1" % vr(t0, 2))
    a("s_branch %sL" % name)
    a.label(name + "D")
    a("v_readfirstlane_b32 s%d, v%d" % (S_TAG, t0))

def put_flag(a, soff, t0):
    a("v_mov_b32 v%d, s%d" % (t0, S_TAG))
    a("s_mov_b64 exec, 1")
    a("buffer_store_dword v%d, off, %s, s%d sc1" % (t0, WS, soff))
    a("s_mov_b64 exec, -1")

L_X = 0
L_W = 65536
L_FFW = L_X + 32768
L_EX = L_X
L_CMB = 131072
L_RT = L_CMB + 18432
L_MISC = L_RT + 2048
L_QX = L_MISC + 2048
L_MX = L_QX + 8192
LDS_SIZE = L_MX + 1024

def gen(a):
    kn = NAME + "_kernel"
    a.raw(".globl %s" % kn)
    a.raw(".p2align 8")
    a.raw(".type %s,@function" % kn)
    a.label(kn)
    a("s_cmp_ge_u32 s2, 256")
    a("s_cbranch_scc1 L_END")
    a("s_load_dwordx16 s[64:79], s[0:1], 0")
    a("s_load_dwordx8 s[80:87], s[0:1], 64")
    if CPF:
        a("s_getpc_b64 s[22:23]")
        a.label("L_PC")
        a("v_subrev_u32 v2, 256, v0")
        a("v_lshlrev_b32 v2, 7, v2")
        a("v_cmp_gt_u32 vcc, L_CODE_END - L_PC, v2")
        a("s_and_saveexec_b64 s[24:25], vcc")
        a("s_cbranch_execz L_NOPF")
        a("global_load_dword v3, v2, s[22:23]")
        a.label("L_NOPF")
        a("s_mov_b64 exec, -1")
    a("v_lshrrev_b32 v1, 6, v0")
    a("v_and_b32 v0, 63, v0")
    a("v_readfirstlane_b32 s19, v1")
    ev(a, 0)
    Q, C, O, S, P, KV, T = 8, 16, 48, 80, 112, 120, 216
    VM = 254
    XS, WD, BF, DD = T, T + 8, T + 16, T + 24
    ntb = 32 // MAP
    lt = ntb.bit_length() - 1
    a("s_and_b32 s16, s2, 7")
    a("s_lshr_b32 s17, s2, 3")
    a("s_and_b32 s14, s16, %d" % (MAP - 1))
    a("s_lshl_b32 s14, s14, %d" % lt)
    a("s_and_b32 s18, s17, %d" % (ntb - 1))
    a("s_add_u32 s14, s14, s18")
    a("s_lshr_b32 s15, s16, %d" % (MAP.bit_length() - 1))
    a("s_mul_i32 s15, s15, %d" % MAP)
    a("s_lshr_b32 s17, s17, %d" % lt)
    a("s_add_u32 s15, s15, s17")
    a("s_mul_i32 s17, s17, %d" % (8 // MAP))
    a("s_add_u32 s16, s17, s18")
    a("s_and_b32 s16, s16, 7")
    a("s_and_b32 s62, s2, 7")
    a("s_lshl_b32 s62, s62, 2")
    a("s_bfe_u32 s38, s2, 0x20003")
    a("s_add_u32 s62, s62, s38")
    a("s_lshr_b32 s63, s2, 5")
    a("s_lshl_b32 s38, s38, 1")
    a("s_add_u32 s38, s38, s63")
    a("s_and_b32 s38, s38, 7")
    a("v_lshlrev_b32 v2, 4, v0")
    a("v_and_b32 v6, 31, v0")
    a("v_lshrrev_b32 v7, 5, v0")
    a("v_mov_b32 v%d, %d" % (VM, L_MISC))
    a("s_and_b32 s20, s19, 1")
    XA = 8
    a("v_bfe_u32 v24, v6, 1, 3")
    a("v_lshlrev_b32 v25, 7, v6")
    a("s_lshl_b32 s18, s20, 12")
    a("v_add_u32 v25, s18, v25")
    for ks in range(4):
        a("v_or_b32 v26, %d, v7" % (2 * ks))
        a("v_xor_b32 v26, v26, v24")
        a("v_lshl_add_u32 v%d, v26, 4, v25" % (XA + ks))
    a("s_lshl_b32 s47, s14, 1")
    a("s_add_u32 s39, s47, s20")
    a("s_cmp_ge_u32 s19, 4")
    a("s_cbranch_scc1 P1_COMPUTE")

    a("v_lshrrev_b32 v4, 3, v0")
    a("v_lshlrev_b32 v5, 10, v4")
    a("v_and_b32 v3, 7, v0")
    a("v_lshrrev_b32 v16, 4, v0")
    a("v_xor_b32 v17, v3, v16")
    a("v_lshl_add_u32 v5, v17, 4, v5")
    a("v_mul_u32_u24 v4, 3072, v4")
    a("v_and_b32 v16, 1, v16")
    a("v_lshlrev_b32 v16, 2, v16")
    a("v_xor_b32 v17, v3, v16")
    a("v_lshl_add_u32 v4, v17, 4, v4")
    a("s_lshl_b32 s18, s15, 7")
    a("v_add_u32 v4, s18, v4")
    a("v_xor_b32 v3, 64, v5")
    a("s_lshl_b32 s40, s14, 16")
    a("s_lshl_b32 s18, s19, 14")
    a("s_add_u32 s40, s40, s18")
    a("s_lshl_b32 s44, s19, 11")
    a("s_lshl_b32 s18, s16, 7")
    a("v_add_u32 v16, s18, v2")
    a("v_and_b32 v16, 1023, v16")
    a("s_mul_i32 s41, s19, 49152")
    a("s_lshl_b32 s45, s19, 12")
    a("s_mul_i32 s42, s20, %d" % (32 * 3072))
    a("s_lshr_b32 s43, s19, 1")
    a("s_waitcnt lgkmcnt(0)")
    srd(a, 20, P_X, 2048 * 512 * 2)
    srd(a, 24, P_WQKV, 512 * 1536 * 2)
    srd(a, 88, P_WS, WS_SIZE)
    stamp(a, 0)
    stamp(a, 24, True)

    def issue_step(c):
        wb = L_W + (c % 4) * 16384
        if c < 8:
            a("s_lshl_b32 s46, s16, 7")
            a("s_add_u32 s46, s46, s40")
            a("s_mul_i32 s47, s16, %d" % (64 * 3072))
            a("s_add_u32 s47, s47, s41")
            a("s_add_u32 m0, s44, %d" % (L_X + c * 8192))
            a("s_add_u32 s48, s46, 8192")
            a("buffer_load_dwordx4 v5, s[20:23], s46 offen lds")
            a("s_add_u32 m0, s44, %d" % (L_X + c * 8192 + 1024))
            a("s_add_u32 s49, s47, %d" % (8 * 3072))
            a("buffer_load_dwordx4 v3, s[20:23], s48 offen lds")
            for rh in range(2):
                a("s_add_u32 m0, s45, %d" % (wb + rh * 2048 - 1024))
                a("s_add_u32 s16, s16, 1" if rh == 0 else "s_and_b32 s16, s16, 7")
                for t in (1, 2):
                    a("buffer_load_dwordx4 v4, s[24:27], s%d offen offset:%d lds" % (47 + 2 * rh, t * 1024))
        else:
            a("s_add_u32 s46, s16, s43")
            a("s_and_b32 s46, s46, 7")
            a("s_mul_i32 s47, s46, %d" % (64 * 3072))
            a("s_add_u32 s47, s47, s42")
            a("s_add_u32 s16, s16, 2")
            for i in range(4):
                a("s_add_u32 m0, s45, %d" % (wb + i * 1024))
                a("s_add_u32 s48, s47, %d" % (i * 8 * 3072))
                a("buffer_load_dwordx4 v4, s[24:27], s48 offen lds")

    issue_step(0)
    srd(a, 28, P_WR, 1024)
    srd(a, 32, P_GW, 1024)
    a("s_mov_b32 m0, %d" % L_RT)
    a("s_nop 0")
    a("buffer_load_dwordx4 v16, s[32:35], 0 offen lds")
    a("s_mov_b32 m0, %d" % (L_RT + 1024))
    a("s_nop 0")
    a("buffer_load_dwordx4 v16, s[28:31], 0 offen lds")
    for c in range(1, 3):
        issue_step(c)
    a("s_lshr_b32 s50, s19, 1")
    a("s_or_b32 s50, s50, s15")
    a("v_and_b32 v25, 1, v0")
    a("v_lshlrev_b32 v25, 10, v25")
    a("v_lshl_add_u32 v17, v7, 4, v25")
    a("v_add_u32 v17, %d, v17" % L_RT)
    RACC, RF = 32, 48
    for r in range(0, 16, 2):
        a("v_mov_b64 %s, 0" % vr(RACC + r, 2))
    a("ds_write_b128 v%d, %s" % (VM, vr(RACC, 4)))
    for o in (16, 32, 48, 64):
        a("ds_write_b128 v%d, %s offset:%d" % (VM, vr(RACC, 4), o))
    for c in range(12):
        younger = sum(6 if k < 8 else 4 for k in range(c + 1, min(c + 3, 12)))
        a("s_waitcnt vmcnt(%d) lgkmcnt(0)" % younger)
        if STAMP == 3 and c < 8:
            a("s_memtime s[100:101]")
            a("s_waitcnt lgkmcnt(0)")
            a("s_mov_b32 s%d, s100" % (52 + c))
        a("s_barrier")
        if c == 0 and STAMP != 3:
            stamp(a, 1)
        if c + 3 < 12:
            issue_step(c + 3)
        if c < 8:
            a("s_cmp_lg_u32 s50, 0")
            a("s_cbranch_scc1 P1_NR%d" % c)
            for ks in range(4):
                a("ds_read_b128 %s, v%d offset:%d" % (vr(RF + 8 * ks, 4), XA + ks, L_X + c * 8192))
                a("ds_read_b128 %s, v17 offset:%d" % (vr(RF + 8 * ks + 4, 4), c * 128 + ks * 32))
            for ks in range(4):
                a("s_waitcnt lgkmcnt(%d)" % (6 - 2 * ks))
                a("%s %s, %s, %s, %s" % (MF32, vr(RACC, 16), vr(RF + 8 * ks + 4, 4), vr(RF + 8 * ks, 4), vr(RACC, 16)))
            a.label("P1_NR%d" % c)
    if STAMP == 3:
        for c in range(0, 8):
            a("v_mov_b32 v255, s%d" % (52 + c))
            a("s_lshl_b32 s100, s2, 3")
            a("s_add_u32 s100, s100, s19")
            a("s_lshl_b32 s100, s100, 7")
            a("s_add_u32 s100, s100, %d" % (WS_ST + (16 + c) * 4))
            a("buffer_store_dword v255, off, %s, s100" % WS)
    srd(a, 24, P_DBG, 256)
    a("buffer_load_dwordx2 v[28:29], off, s[24:27], 0 sc1")
    get_tag(a, "P1_TAGL", 28)
    a("s_cmp_lg_u32 s50, 0")
    a("s_cbranch_scc1 P1_DONE")
    R = RACC
    bf16_round_to_f32(a, 80, R)
    sigmoid_bf16(a, 80)
    a("v_sub_f32 v81, 1.0, v80")
    bf16_round_to_f32(a, 81, 81)
    a("s_lshl_b32 s54, s39, 8")
    a("s_add_u32 s54, s54, %d" % WS_G)
    a("v_lshlrev_b32 v27, 3, v6")
    a("buffer_store_dwordx2 v[80:81], v27, %s, s54 offen sc1" % WS)
    a("v_mov_b64 v[84:85], 0")
    a("v_lshlrev_b32 v27, 3, v0")
    a("s_lshl_b32 s55, s39, 9")
    a("s_add_u32 s55, s55, %d" % WS_Y)
    a("buffer_store_dwordx2 v[84:85], v27, %s, s55 offen sc1" % WS)
    bf16_round_to_f32(a, 82, R + 1)
    a("v_ashrrev_i32 v83, 31, v82")
    a("v_or_b32 v83, 0x80000000, v83")
    a("v_xor_b32 v82, v82, v83")
    a("v_and_b32 v82, 0xffff0000, v82")
    a("s_lshl_b32 s55, s39, 5")
    a("v_add_u32 v83, s55, v6")
    a("v_sub_u32 v83, 0xffff, v83")
    a("v_or_b32 v82, v82, v83")
    for sh in (1, 2, 4, 8):
        a("s_nop 1")
        a("v_max_u32_dpp v82, v82, v82 row_ror:%d row_mask:0xf bank_mask:0xf" % sh)
    a("s_nop 0")
    a("v_readlane_b32 s56, v82, 0")
    a("v_readlane_b32 s57, v82, 16")
    a("s_lshl_b32 s96, s39, 3")
    a("s_add_u32 s96, s96, %d" % WS_RK)
    a("s_nop 1")
    a("s_max_u32 s56, s56, s57")
    a("v_mov_b32 v82, s56")
    a("v_mov_b32 v83, s%d" % S_TAG)
    a("s_waitcnt vmcnt(0)")
    a("s_mov_b64 exec, 1")
    a("buffer_store_dwordx2 v[82:83], off, %s, s96 sc1" % WS)
    a("s_mov_b64 exec, -1")
    a("s_branch P1_DONE")

    a.label("P1_COMPUTE")
    WA, WQA = 16, 17
    a("s_lshl_b32 s22, s2, 3")
    a("s_add_u32 s22, s22, s19")
    a("s_waitcnt lgkmcnt(0)")
    srd(a, 28, P_WQKV, 512 * 1536 * 2)
    srd(a, 88, P_WS, WS_SIZE)
    stamp(a, 0)
    stamp(a, 24, True)
    a("s_mov_b32 s23, %d" % WS_EP)
    a("s_cmp_lg_u32 s22, 4")
    a("s_cbranch_scc1 P1_NOEP0")
    a("buffer_load_dword v24, off, %s, s23 sc1" % WS)
    a.label("P1_NOEP0")
    a("s_cmp_lg_u32 s19, 5")
    a("s_cbranch_scc1 P1_NOWQ")
    a("s_and_b32 s46, s14, %d" % (ntb - 1))
    a("s_mul_i32 s46, s46, %d" % (512 // ntb * 3072))
    a("s_lshl_b32 s47, s15, 7")
    a("s_add_u32 s46, s46, s47")
    a("v_and_b32 v24, %d, v0" % (512 // ntb - 1))
    a("v_mul_u32_u24 v24, 3072, v24")
    a("buffer_load_dword v28, v24, s[28:31], s46 offen")
    a.label("P1_NOWQ")
    srd(a, 24, P_DBG, 256)
    a("s_bfe_u32 s21, s19, 0x10001")
    a("v_bfe_u32 v27, v0, 2, 2")
    a("v_lshlrev_b32 v26, 7, v27")
    a("v_lshrrev_b32 v27, 1, v27")
    a("v_xor_b32 v27, s21, v27")
    a("v_lshl_add_u32 v26, v27, 6, v26")
    a("v_bfe_u32 v27, v0, 4, 1")
    a("v_lshl_add_u32 v26, v27, 5, v26")
    a("v_and_b32 v27, 3, v0")
    a("v_lshl_add_u32 v26, v27, 3, v26")
    a("v_add_u32 v26, %d, v26" % L_W)
    a("v_lshl_add_u32 v%d, v7, 11, v26" % WA)
    a("v_lshl_add_u32 v%d, v7, 10, v26" % WQA)
    a("s_cmp_lg_u32 s22, 4")
    a("s_cbranch_scc1 P1_NOEP")
    a("s_mov_b32 s22, 1664525")
    a("v_mov_b32 v25, 1")
    a("s_waitcnt vmcnt(0)")
    a("v_mul_lo_u32 v24, v24, s22")
    a("v_add_u32 v24, 1013904223, v24")
    a("s_mov_b64 exec, 1")
    a("buffer_store_dwordx2 v[24:25], off, s[24:27], 0 sc1")
    a("buffer_store_dword v24, off, %s, s23 sc1" % WS)
    a("s_mov_b64 exec, -1")
    a.label("P1_NOEP")
    ACC = 32
    FR = 80
    PK = 104
    XF = 120
    pend = []
    def rd_kv(kk, part):
        if kk >= 32:
            return
        c, ks = kk // 4, kk % 4
        if part == 0:
            a("ds_read_b128 %s, v%d offset:%d" % (vr(XF + 4 * kk, 4), XA + ks, L_X + c * 8192))
            pend.append((kk, 0))
        for half in range(2):
            a("ds_read_b64_tr_b16 %s, v%d offset:%d" % (vr(FR + (kk % 3) * 8 + part * 4 + 2 * half, 2), WA,
                                                       (c % 4) * 16384 + ks * 4096 + part * 1024 + half * 512))
            pend.append((kk, part))
    def rd_q(kk):
        if kk >= 32:
            return
        if kk % 8 == 0 and kk > 0:
            a("s_barrier")
        for half in range(2):
            a("ds_read_b64_tr_b16 %s, v%d offset:%d" % (vr(FR + (kk % 6) * 4 + 2 * half, 2), WQA,
                                                       (kk // 8) * 16384 + (kk % 8) * 2048 + half * 512))
            pend.append((100 + kk, 0))
    def wait_for(kk, part):
        last = max([i for i, (k2, p) in enumerate(pend) if k2 == kk and p == part], default=-1)
        if last >= 0:
            a("s_waitcnt lgkmcnt(%d)" % (len(pend) - 1 - last))
            del pend[:last + 1]
    if STAMP == 3:
        stamp(a, 14)
    a("s_barrier")
    if STAMP != 3:
        stamp(a, 1)
    for kk in range(2):
        rd_kv(kk, 0); rd_kv(kk, 1)
    for kk in range(32):
        nx = kk + 2
        if nx < 32 and nx % 4 == 0:
            c = nx // 4
            a("s_waitcnt lgkmcnt(0)")
            del pend[:]
            if STAMP == 3:
                a("s_memtime s[100:101]")
                a("s_waitcnt lgkmcnt(0)")
                a("s_mov_b32 s%d, s100" % (50 + c))
            a("s_barrier")
        x = vr(XF + 4 * kk, 4)
        cz = lambda r: ("0" if kk == 0 else vr(r, 16))
        wait_for(kk, 0)
        a("%s %s, %s, %s, %s" % (MF32, vr(ACC, 16), vr(FR + (kk % 3) * 8, 4), x, cz(ACC)))
        rd_kv(nx, 0)
        wait_for(kk, 1)
        a("%s %s, %s, %s, %s" % (MF32, vr(ACC + 16, 16), x, vr(FR + (kk % 3) * 8 + 4, 4), cz(ACC + 16)))
        rd_kv(nx, 1)
    a("s_barrier")
    LQ = 5
    for kk in range(LQ):
        rd_q(kk)
    a("s_lshl_b32 s46, s15, 1")
    a("s_add_u32 s46, s46, s21")
    a("s_lshl_b32 s48, s46, 18")
    a("s_lshl_b32 s49, s39, 11")
    a("s_add_u32 s48, s48, s49")
    a("s_add_u32 s49, s48, 131072")
    a("v_lshrrev_b32 v24, 4, v6")
    a("v_lshlrev_b32 v24, 17, v24")
    a("v_lshl_add_u32 v24, v7, 8, v24")
    a("v_and_b32 v25, 15, v0")
    a("v_lshl_add_u32 v24, v25, 4, v24")
    stamp(a, 2)
    for r in range(8):
        a("v_cvt_pk_bf16_f32 v%d, v%d, v%d" % (PK + r, ACC + 2 * r, ACC + 2 * r + 1))
    a("buffer_store_dwordx4 %s, v2, %s, s48 offen sc1" % (vr(PK, 4), WS))
    a("buffer_store_dwordx4 %s, v2, %s, s49 offen sc1" % (vr(PK + 4, 4), WS))
    for r in range(8):
        a("v_cvt_pk_bf16_f32 v%d, v%d, v%d" % (PK + 8 + r, ACC + 16 + 2 * r, ACC + 16 + 2 * r + 1))
    a("buffer_store_dwordx4 %s, v24, %s, s48 offen offset:1024 sc1" % (vr(PK + 8, 4), WS))
    a("buffer_store_dwordx4 %s, v24, %s, s48 offen offset:1536 sc1" % (vr(PK + 12, 4), WS))
    a("buffer_load_dwordx2 v[28:29], off, s[24:27], 0 sc1")
    a("s_lshl_b32 s96, s15, 12")
    a("s_lshl_b32 s97, s14, 7")
    a("s_add_u32 s96, s96, s97")
    a("s_add_u32 s96, s96, %d" % WS_FL1)
    for kk in range(32):
        if kk == QF:
            get_tag(a, "P1_TAGC", 28)
            last_wave_flag(a, "P1_FL", VM, 0, 4, 96, 30)
            del pend[:]
            stamp(a, 13)
            stamp(a, 29, True)
        wait_for(100 + kk, 0)
        a("%s %s, %s, %s, %s" % (MF32, vr(ACC + 32, 16), vr(FR + (kk % 6) * 4, 4), vr(XF + 4 * kk, 4), "0" if kk == 0 else vr(ACC + 32, 16)))
        rd_q(kk + LQ)
    CS = LOG2E * 0.25
    if STAMP != 3:
        a("s_mov_b32 s54, 0x%08x" % f32bits(CS))
        a("s_mov_b32 s55, 0x%08x" % f32bits(CS))
    a("s_lshl_b32 s22, s21, 12")
    a("s_lshl_b32 s23, s20, 10")
    a("s_add_u32 s22, s22, s23")
    a("s_add_u32 s22, s22, %d" % L_QX)
    a("v_add_u32 v24, s22, v2")
    a("s_lshl_b32 s22, s21, 9")
    a("s_lshl_b32 s23, s20, 7")
    a("s_add_u32 s22, s22, s23")
    a("s_add_u32 s22, s22, %d" % L_MX)
    a("v_lshl_add_u32 v26, v6, 2, s22")
    a("v_lshl_add_u32 v26, v7, 8, v26")
    stamp(a, 3)
    if STAMP == 3:
        for c in range(1, 8):
            a("v_mov_b32 v255, s%d" % (50 + c))
            a("s_lshl_b32 s100, s2, 3")
            a("s_add_u32 s100, s100, s19")
            a("s_lshl_b32 s100, s100, 7")
            a("s_add_u32 s100, s100, %d" % (WS_ST + (16 + c) * 4))
            a("buffer_store_dword v255, off, %s, s100" % WS)
        a("s_mov_b32 s54, 0x%08x" % f32bits(CS))
        a("s_mov_b32 s55, 0x%08x" % f32bits(CS))
    PQ = FR
    for r in range(0, 16, 2):
        a("v_pk_mul_f32 %s, %s, s[54:55]" % (vr(ACC + 32 + r, 2), vr(ACC + 32 + r, 2)))
    for r in range(8):
        a("v_cvt_pk_bf16_f32 v%d, v%d, v%d" % (PQ + r, ACC + 32 + 2 * r, ACC + 32 + 2 * r + 1))
    a("s_nop 1")
    a("%s %s, %s, %s, 0" % (MF32, vr(ACC, 16), vr(PK, 4), vr(PQ, 4)))
    a("%s %s, %s, %s, 0" % (MF32, vr(ACC + 16, 16), vr(PK + 4, 4), vr(PQ + 4, 4)))
    a("ds_write_b128 v24, %s" % vr(PQ, 4))
    a("ds_write_b128 v24, %s offset:2048" % vr(PQ + 4, 4))
    a("s_nop 9")
    m0, m1 = 92, 93
    for h, m in ((0, m0), (1, m1)):
        SS = ACC + 16 * h
        a("v_max3_f32 v%d, v%d, v%d, v%d" % (m, SS, SS + 1, SS + 2))
        for r in range(3, 15, 2):
            a("v_max3_f32 v%d, v%d, v%d, v%d" % (m, m, SS + r, SS + r + 1))
        a("v_max_f32 v%d, v%d, v%d" % (m, m, SS + 15))
    a("s_nop 1")
    a("v_permlane32_swap_b32 v%d, v%d" % (m0, m1))
    a("v_max_f32 v%d, v%d, v%d" % (m0, m0, m1))
    a("v_sub_f32 v%d, 0, v%d" % (m0, m0))
    a("ds_write_b32 v26, v%d" % m0)

    a.label("P1_DONE")
    stamp(a, 4)
    a("s_and_b32 s17, s19, 3")
    a("s_lshr_b32 s16, s19, 2")
    a("v_and_b32 v3, 15, v0")
    a("v_lshlrev_b32 v3, 4, v3")
    a("v_lshl_add_u32 v3, v7, 8, v3")
    a("s_lshl_b32 s18, s15, 2")
    a("s_add_u32 s18, s18, s17")
    a("s_lshl_b32 s22, s18, 17")
    a("s_lshl_b32 s23, s16, 16")
    a("s_add_u32 s22, s22, s23")
    a("s_lshl_b32 s95, s15, 12")
    a("s_add_u32 s95, s95, %d" % WS_FL1)
    a("s_mov_b32 s30, 0x0000ffff")
    a("s_mov_b32 s31, 0x0000ffff")
    a("s_mov_b32 s29, 0")
    a("s_cmp_lt_u32 s19, 4")
    a("s_cselect_b32 s32, 0x%x, 0" % HMASK)
    srd(a, 40, P_WO, 512 * 512 * 2)
    a("v_lshrrev_b32 v4, 3, v0")
    a("v_lshlrev_b32 v4, 10, v4")
    a("v_and_b32 v5, 7, v0")
    a("v_bfe_u32 v252, v0, 4, 1")
    a("v_lshlrev_b32 v252, 2, v252")
    a("v_xor_b32 v5, v5, v252")
    a("v_lshl_add_u32 v4, v5, 4, v4")
    a("s_lshl_b32 s36, s63, 7")
    a("s_lshl_b32 s37, s19, 13")
    a("s_add_u32 s36, s36, s37")
    a("v_lshlrev_b32 v5, 7, v0")
    a("s_lshl_b32 s23, s17, 1")
    a("s_add_u32 s23, s23, s16")
    a("s_lshl_b32 s28, s23, 10")
    a("s_add_u32 s28, s28, %d" % L_QX)
    a("v_add_u32 v252, s28, v2")
    a("v_xor_b32 v250, 1024, v252")
    a("s_lshl_b32 s28, s23, 7")
    a("s_add_u32 s28, s28, %d" % L_MX)
    a("v_lshl_add_u32 v253, v6, 2, s28")
    a("v_xor_b32 v251, 128, v253")
    CW16, CW4, CR16, CR4, VXO, VWO, VOF, XR, GR = 168, 169, 170, 171, 172, 173, 174, 176, 184
    a("s_mul_i32 s23, s19, 2304")
    a("s_add_u32 s23, s23, %d" % L_CMB)
    a("v_add_u32 v%d, s23, v2" % CW16)
    a("v_lshl_add_u32 v%d, v0, 2, s23" % CW4)
    a("s_xor_b32 s23, s19, 4")
    a("s_mul_i32 s23, s23, 2304")
    a("s_add_u32 s23, s23, %d" % L_CMB)
    a("v_add_u32 v%d, s23, v2" % CR16)
    a("v_lshl_add_u32 v%d, v0, 2, s23" % CR4)
    a("s_lshl_b32 s23, s14, 1")
    a("s_add_u32 s23, s23, s16")
    a("s_lshl_b32 s33, s23, 15")
    a("s_lshl_b32 s23, s18, 10")
    a("s_add_u32 s33, s33, s23")
    a("s_add_u32 s33, s33, %d" % WS_O)
    a("s_lshl_b32 s98, s14, 10")
    a("s_lshl_b32 s23, s15, 7")
    a("s_add_u32 s98, s98, s23")
    a("s_add_u32 s98, s98, %d" % WS_FL2)
    a("s_and_b32 s8, s19, 1")
    a("s_bfe_u32 s9, s19, 0x10001")
    a("s_lshl_b32 s4, s62, 1")
    a("s_add_u32 s4, s4, s8")
    a("s_lshl_b32 s5, s63, 7")
    a("s_lshl_b32 s23, s9, 6")
    a("s_add_u32 s5, s5, s23")
    a("s_lshl_b32 s6, s4, 15")
    a("s_add_u32 s6, s6, s5")
    a("s_lshl_b32 s7, s4, 8")
    a("s_add_u32 s7, s7, %d" % WS_G)
    a("v_lshlrev_b32 v%d, 10, v6" % VXO)
    a("v_lshl_add_u32 v%d, v7, 5, v%d" % (VXO, VXO))
    a("v_bfe_u32 v11, v0, 2, 2")
    a("v_lshl_add_u32 v10, v7, 2, v11")
    a("v_lshlrev_b32 v10, 7, v10")
    a("v_lshrrev_b32 v11, 1, v11")
    a("v_xor_b32 v11, s9, v11")
    a("v_lshl_add_u32 v10, v11, 6, v10")
    a("v_and_b32 v11, 1, v0")
    a("v_lshl_add_u32 v10, v11, 5, v10")
    a("v_bfe_u32 v11, v0, 1, 1")
    a("v_bfe_u32 v12, v0, 4, 1")
    a("v_lshl_add_u32 v11, v12, 1, v11")
    a("v_lshl_add_u32 v10, v11, 3, v10")
    a("v_add_u32 v%d, %d, v10" % (VWO, L_W))
    a("s_lshl_b32 s23, s8, 10")
    a("v_add_u32 v%d, s23, v2" % VOF)
    def kvb(t):
        return KV + 12 * (t % NB)
    def p2_init():
        for b in range(NB):
            for r in range(4, 12, 2):
                a("v_mov_b64 %s, 0" % vr(kvb(b) + r, 2))
        a("s_mov_b32 s34, 0x3f803f80")
        a("s_mov_b32 s35, 0x3f803f80")
        a("s_mov_b32 exec_lo, 0x00110000")
        a("s_mov_b32 exec_hi, 0x00110000")
        for b in range(NB):
            for r in range(4, 12, 2):
                a("v_mov_b64 %s, s[34:35]" % vr(kvb(b) + r, 2))
        a("s_mov_b64 exec, -1")
        for r in range(0, 32, 2):
            a("v_mov_b64 %s, 0" % vr(O + r, 2))
        a("v_mov_b64 %s, 0" % vr(P + 4, 2))
        a("v_mov_b64 %s, 0" % vr(P + 6, 2))
        a("v_mov_b64 %s, 0" % vr(S + 16 + 14, 2))
        a("s_lshl_b32 s37, s19, 10")
        a("s_add_u32 s37, s37, %d" % L_W)
    a("s_waitcnt lgkmcnt(0)")
    p2_init()
    a("s_cmp_lg_u32 s19, 3")
    a("s_cbranch_scc1 H1_WAIT")
    a("s_mov_b32 exec_hi, 0")
    poll(a, "H1_POLL", S, 5)
    a("s_mov_b64 exec, -1")
    a.label("H1_WAIT")
    a("s_barrier")
    stamp(a, 5)
    stamp(a, 26, True)
    ev(a, 1)
    a("ds_read_b128 %s, v250" % vr(Q, 4))
    a("ds_read_b128 %s, v252" % vr(Q + 4, 4))
    a("ds_read_b32 v%d, v251" % C)
    a("ds_read_b32 v%d, v253" % (C + 16))
    a.label("P2_START")
    a("buffer_load_dwordx4 %s, v2, %s, s22 offen sc1" % (vr(kvb(0), 4), WS))
    a("s_mov_b32 s28, s22")
    def ld_k(t):
        a("buffer_load_dwordx4 %s, v2, %s, s28 offen offset:2048 sc1" % (vr(kvb(t), 4), WS))
    def ld_v(t):
        a("s_mov_b64 exec, s[30:31]")
        a("buffer_load_dwordx4 %s, v3, %s, s28 offen offset:1024 sc1" % (vr(kvb(t) + 4, 4), WS))
        a("buffer_load_dwordx4 %s, v3, %s, s28 offen offset:1536 sc1" % (vr(kvb(t) + 8, 4), WS))
        a("s_mov_b64 exec, -1")
        a("s_add_u32 s28, s28, 2048")
    for i in range(1, NB):
        ld_k(i)
        ld_v(i - 1)
        if (i - NB) % 4 == 0 and not NOWO:
            a("buffer_load_dword v255, off, %s, s22" % WS)
    a("s_mov_b32 s23, 0")
    a("s_mul_i32 s44, s14, 1792")
    a("s_add_u32 s44, s44, s22")
    a("s_add_u32 s44, s44, s%d" % P_WS)
    a("s_addc_u32 s45, s%d, 0" % (P_WS + 1))
    a("s_waitcnt lgkmcnt(0)")
    if TOUCH:
        for i in range(14):
            a("s_load_dword s99, s[44:45], 0x%x" % (8192 + i * 128))
    for j in range(2):
        a("v_mov_b32 v%d, v%d" % (C + 16 * j + 1, C + 16 * j))
        for r in range(2, 16, 2):
            a("v_mov_b64 %s, %s" % (vr(C + 16 * j + r, 2), vr(C + 16 * j, 2)))
    a("s_waitcnt vmcnt(%d)" % (3 * (NB - 1)))
    a("%s %s, %s, %s, %s" % (MF32, vr(S, 16), vr(kvb(0), 4), vr(Q, 4), vr(C, 16)))
    a("s_waitcnt vmcnt(%d)" % (3 * (NB - 2)))
    a("s_nop 11")
    a("v_exp_f32 v%d, v%d" % (S, S))
    if not TOUCH:
        stamp(a, 6)

    def main_loop(sfx, older):
        a.raw(".p2align 6")
        a.label("P2_LOOP" + sfx)
        pos = [0]
        def mark():
            pos[0] += 1
            if older and PRIO and pos[0] % 24 == (24 - PRIO + 1) % 24:
                a("s_setprio 0")
            if older and PRIO and pos[0] % 24 == 1 and pos[0] > 1:
                a("s_setprio 1")
        for t in range(NB):
            for j in range(2):
                cur = S + 16 * j
                prv = S + 16 * (j ^ 1)
                nxt = prv
                E = lambda r: a("v_exp_f32 v%d, v%d" % (cur + r, cur + r))
                CV = lambda r: a("v_cvt_pk_bf16_f32 v%d, v%d, v%d" % (P + r // 2, cur + r, cur + r + 1))
                pb = kvb(t) if j == 1 else kvb(t - 1)
                nb = kvb(t) if j == 0 else kvb(t + 1)
                a("v_cvt_pk_bf16_f32 v%d, v%d, v%d" % (P + 7, prv + 14, prv + 15))
                if j == 1:
                    nwo = 0 if NOWO else sum(1 for k in range(t - (NB - 2), t) if k % 4 == 0)
                    a("s_waitcnt vmcnt(%d)" % (3 * (NB - 2) + nwo))
                    if t % 4 == 0:
                        if not NOWO:
                            a("s_lshl_b32 s3, s38, 13")
                            a("s_add_u32 m0, s3, s37")
                            a("s_lshl3_add_u32 s3, s3, s36")
                            a("buffer_load_dwordx4 v4, s[40:43], s3 offen lds")
                            a("s_add_u32 s38, s38, 1")
                            a("s_and_b32 s38, s38, 7")
                        if older:
                            a("s_bitcmp1_b32 s32, s23")
                            a("s_cbranch_scc1 P2_HOOK")
                            a.label("P2_HRET%d" % (t // 4))
                        a("s_add_u32 s23, s23, 1")
                mark()
                a("%s %s, %s, %s, %s" % (MF32, vr(nxt, 16), vr(nb, 4), vr(Q + 4 * (j ^ 1), 4), vr(C + 16 * (j ^ 1), 16)))
                if j == 0:
                    ld_k(t)
                E(1); E(2); CV(0); E(3); E(4); CV(2); E(5)
                mark()
                a("%s %s, %s, %s, %s" % (MF32, vr(O + 16 * (j ^ 1), 16), vr(pb + 8, 4), vr(P + 4, 4), vr(O + 16 * (j ^ 1), 16)))
                if j == 0:
                    ld_v(t - 1)
                E(6); CV(4); E(7); E(8); CV(6); E(9); E(10)
                mark()
                a("%s %s, %s, %s, %s" % (MF32, vr(O + 16 * j, 16), vr(kvb(t) + 4, 4), vr(P, 4), vr(O + 16 * j, 16)))
                CV(8); E(11); E(12); CV(10); E(13); E(14); CV(12); E(15)
                a("v_exp_f32 v%d, v%d" % (nxt, nxt))
        if older and PRIO:
            a("s_setprio 1")
        if STAMP == 1:
            a("s_memtime s[100:101]")
            a("s_waitcnt lgkmcnt(0)")
            a("v_mov_b32 v255, s100")
            a("s_lshl_b32 s100, s2, 3")
            a("s_add_u32 s100, s100, s19")
            a("s_lshl_b32 s100, s100, 5")
            a("s_add_u32 s100, s100, s23")
            a("s_lshl_b32 s100, s100, 2")
            a("s_add_u32 s100, s100, %d" % (WS_ST + 15 * 4))
            a("buffer_store_dword v255, off, %s, s100" % WS)
        a("s_cmp_lt_u32 s23, 8")
        a("s_cbranch_scc1 P2_LOOP" + sfx)
    if PRIO:
        a("s_setprio 1")
    a("s_cmp_ge_u32 s19, 4")
    a("s_cbranch_scc1 P2_LOOPB")
    main_loop("A", True)
    a("s_branch P2_DRAIN")
    main_loop("B", False)
    a.label("P2_DRAIN")
    a("v_cvt_pk_bf16_f32 v%d, v%d, v%d" % (P + 7, S + 16 + 14, S + 16 + 15))
    a("ds_write_b128 v%d, %s" % (CW16, vr(O, 4)))
    a("ds_write_b32 v%d, v%d offset:2048" % (CW4, O + 8))
    a("%s %s, %s, %s, %s" % (MF32, vr(O + 16, 16), vr(kvb(NB - 1) + 8, 4), vr(P + 4, 4), vr(O + 16, 16)))
    a("ds_write_b128 v%d, %s offset:1024" % (CW16, vr(O + 4, 4)))
    stamp(a, 7)
    stamp(a, 27, True)
    ev(a, 2)
    a("s_mov_b32 s28, 0x4f800000")
    a("s_nop 9")
    a("v_max_f32 v%d, v%d, v%d" % (S, O + 8, O + 24))
    a("v_cmp_u_f32 s[56:57], v%d, v%d" % (O + 8, O + 24))
    a("v_cmp_lt_f32 vcc, s28, v%d" % S)
    a("s_nop 3")
    a("s_or_b64 s[56:57], s[56:57], vcc")
    a("s_cbranch_scc0 P2_NOFLAG")
    a("v_mov_b32 v%d, 1" % S)
    a("ds_write_b32 v%d, v%d offset:8" % (VM, S))
    a.label("P2_NOFLAG")
    a("s_waitcnt lgkmcnt(0)")
    a("s_barrier")
    a("ds_read2_b32 %s, v%d offset0:1 offset1:2" % (vr(S, 2), VM))
    a("ds_read_b32 v%d, v%d offset:2048" % (O + 8, CR4))
    a("ds_read_b128 %s, v%d" % (vr(O, 4), CR16))
    a("ds_read_b128 %s, v%d offset:1024" % (vr(O + 4, 4), CR16))
    a("s_waitcnt lgkmcnt(2)")
    a("v_readfirstlane_b32 s23, v%d" % (S + 1))
    a("v_readfirstlane_b32 s%d, v%d" % (S_KEY, S))
    a("v_add_f32 v%d, v%d, v%d" % (O + 8, O + 8, O + 24))
    a("v_rcp_f32 v%d, v%d" % (O + 8, O + 8))
    a("s_cmp_gt_u32 s23, s29")
    a("s_cbranch_scc1 P2_EXACT")
    a("v_mov_b32 v%d, v%d" % (O + 9, O + 8))
    a("s_waitcnt lgkmcnt(0)")
    for r in range(0, 8, 2):
        a("v_pk_add_f32 %s, %s, %s" % (vr(O + r, 2), vr(O + r, 2), vr(O + 16 + r, 2)))
    for r in range(0, 8, 2):
        a("v_pk_mul_f32 %s, %s, %s" % (vr(O + r, 2), vr(O + r, 2), vr(O + 8, 2)))
    for r in range(4):
        a("v_cvt_pk_bf16_f32 v%d, v%d, v%d" % (O + 16 + r, O + 2 * r, O + 2 * r + 1))
    a("buffer_store_dwordx4 %s, v2, %s, s33 offen sc1" % (vr(O + 16, 4), WS))
    stamp(a, 8)

    a("s_and_b32 s21, s%d, 0xffff" % S_KEY)
    a("s_sub_u32 s21, 0xffff, s21")
    a("s_lshr_b32 s20, s21, 5")
    a("s_cmp_ge_u32 s19, 4")
    a("s_cbranch_scc1 P3_HELP")
    ACC3, OB, B, YR = 16, 32, 80, 96
    def wof(h):
        return (186 + 4 * h) if h < 16 else (120 + 4 * (h - 16)) if h < 28 else (104 + 4 * (h - 28))
    def rd_wo(h):
        a("ds_read_b64_tr_b16 %s, v%d offset:%d" % (vr(wof(h), 2), VWO, h * 2048))
        a("ds_read_b64_tr_b16 %s, v%d offset:%d" % (vr(wof(h) + 2, 2), VWO, h * 2048 + 1024))
    for h in list(range(16)) + list(range(28, 32)):
        rd_wo(h)
    srd(a, 44, P_OUT, 2048 * 512 * 2)
    for i in range(8):
        a("v_lshlrev_b32 v%d, 16, v%d" % (B + 2 * i, XR + i))
        a("v_and_b32 v%d, 0xffff0000, v%d" % (B + 2 * i + 1, XR + i))
    for r in range(0, 16, 2):
        a("v_mov_b64 %s, 0" % vr(ACC3 + r, 2))
    a("v_and_b32 v5, 7, v0")
    a("v_lshl_add_u32 v5, v5, 2, v%d" % VM)
    a("s_waitcnt vmcnt(0)")
    last_wave_flag(a, "P3_FLA", VM, 16, 8, 98, 8)
    stamp(a, 9)
    stamp(a, 30, True)
    for h in range(16, 28):
        rd_wo(h)
    a("s_cmp_eq_u32 s20, s4")
    a("s_cbranch_scc1 P3_KEEPB")
    for i in range(16):
        a("v_mul_f32 v%d, v%d, v%d" % (B + i, B + i, GR + 1))
    a.label("P3_KEEPB")
    a("s_mov_b32 s22, 0")
    a("s_mov_b32 s94, 0")
    a.label("P3_ROUND")
    a("ds_read_b32 v8, v5 offset:32")
    a("s_add_u32 s94, s94, 1")
    a("s_waitcnt lgkmcnt(0)")
    a("v_cmp_ne_u32 vcc, 0, v8")
    a("s_cmp_ge_u32 s94, 0x400000")
    a("s_cbranch_scc1 P3_FIN")
    a("s_and_b32 s23, vcc_lo, 0xff")
    a("s_andn2_b32 s23, s23, s22")
    a("s_cbranch_scc0 P3_ROUND")
    def rd_o(g):
        for i in range(4):
            a("ds_read_b128 %s, v%d offset:%d" % (vr(OB + 16 * (g & 1) + 4 * i, 4), VOF, L_X + (4 * g + i) * 2048))
    for g in range(8):
        a("s_bitcmp1_b32 s23, %d" % g)
        a("s_cbranch_scc0 P3_SK%d" % g)
        if g > 0:
            a("s_bitcmp1_b32 s23, %d" % (g - 1))
            a("s_cbranch_scc1 P3_HV%d" % g)
        rd_o(g)
        a.label("P3_HV%d" % g)
        if g < 7:
            rd_o(g + 1)
        for i in range(4):
            a("s_waitcnt lgkmcnt(%d)" % ((4 if g < 7 else 0) + 3 - i))
            a("%s %s, %s, %s, %s" % (MF32, vr(ACC3, 16), vr(wof(4 * g + i), 4), vr(OB + 16 * (g & 1) + 4 * i, 4), vr(ACC3, 16)))
        a.label("P3_SK%d" % g)
    a("s_or_b32 s22, s22, s23")
    a("s_cmp_lg_u32 s22, 0xff")
    a("s_cbranch_scc1 P3_ROUND")
    a.label("P3_FIN")
    stamp(a, 11)
    a("s_cmp_lg_u32 s20, s4")
    a("s_cbranch_scc1 P3_NOSEL")
    a("s_lshl_b32 s23, s19, 2")
    a("v_add_u32 v5, s23, v%d" % VM)
    a("s_mov_b32 s94, 0")
    a.label("P3_YW")
    a("ds_read_b32 v8, v5 offset:64")
    a("s_add_u32 s94, s94, 1")
    a("s_waitcnt lgkmcnt(0)")
    a("v_readfirstlane_b32 s23, v8")
    a("s_cmp_ge_u32 s94, 0x400000")
    a("s_cbranch_scc1 P3_YD")
    a("s_cmp_eq_u32 s23, 0")
    a("s_cbranch_scc1 P3_YW")
    a.label("P3_YD")
    a("s_mul_i32 s30, s19, 2304")
    a("s_add_u32 s30, s30, %d" % L_QX)
    a("v_lshl_add_u32 v14, v7, 6, s30")
    for i in range(2):
        a("ds_read_b128 %s, v14 offset:%d" % (vr(OB + 4 * i, 4), 2048 + i * 16))
        a("ds_read_b128 %s, v14 offset:%d" % (vr(OB + 8 + 4 * i, 4), 2048 + 32 + i * 16))
    a("s_and_b32 s30, s21, 31")
    a("v_cmp_eq_u32 vcc, s30, v6")
    a("s_waitcnt lgkmcnt(0)")
    a("s_and_saveexec_b64 s[48:49], vcc")
    for i in range(16):
        a("v_add_f32 v%d, v%d, v%d" % (B + i, B + i, OB + i))
        bf16_round_to_f32(a, B + i, B + i)
    a("s_mov_b64 exec, s[48:49]")
    for i in range(16):
        a("v_mul_f32 v%d, v%d, v%d" % (B + i, B + i, GR + 1))
    a.label("P3_NOSEL")
    a("s_nop 8")
    for i in range(16):
        a("v_fma_f32 v%d, v%d, v%d, v%d" % (B + i, ACC3 + i, GR, B + i))
        if i % 2 == 1:
            a("v_cvt_pk_bf16_f32 v%d, v%d, v%d" % (XR + i // 2, B + i - 1, B + i))
        if i == 8:
            a("buffer_store_dwordx4 %s, v%d, s[44:47], s6 offen" % (vr(XR, 4), VXO))
    a("buffer_store_dwordx4 %s, v%d, s[44:47], s6 offen offset:16" % (vr(XR + 4, 4), VXO))
    stamp(a, 12)
    stamp(a, 25, True)
    if SPAN:
        ev(a, 3)
        a("s_lshl_b32 s3, s2, 3")
        a("s_add_u32 s3, s3, s19")
        a("s_cmp_lg_u32 s3, %d" % (77 * 8))
        a("s_cbranch_scc1 L_END")
        a("s_sub_u32 s13, s99, s13")
        a("s_min_u32 s13, s13, 10000")
        a("s_mul_i32 s13, s13, 10")
        a("s_memrealtime s[20:21]")
        a.label("SP_LOOP")
        a("s_memrealtime s[22:23]")
        a("s_waitcnt lgkmcnt(0)")
        a("s_sub_u32 s17, s22, s20")
        a("s_cmp_lt_u32 s17, s13")
        a("s_cbranch_scc1 SP_LOOP")
    a.label("L_END")
    a("s_endpgm")

    a.label("P3_HELP")
    a("s_and_b32 s10, s19, 3")
    a("s_lshl_b32 s95, s62, 10")
    a("s_lshl_b32 s23, s10, 8")
    a("s_add_u32 s95, s95, s23")
    a("s_add_u32 s95, s95, %d" % WS_FL2)
    a("v_and_b32 v5, 1, v0")
    a("v_lshlrev_b32 v5, 7, v5")
    a("buffer_load_dword v8, v5, %s, s95 offen sc1" % WS)
    a("s_lshl_b32 s11, s62, 16")
    a("s_lshl_b32 s23, s10, 13")
    a("s_add_u32 s11, s11, s23")
    a("s_add_u32 s11, s11, %d" % WS_O)
    a("s_lshl_b32 s12, s10, 14")
    a("s_lshl_b32 s23, s10, 3")
    a("v_add_u32 v9, s23, v%d" % VM)
    a("v_mov_b32 v10, 1")
    a("s_cmp_lg_u32 s20, s4")
    a("s_cbranch_scc1 P3_H1")
    a("v_lshlrev_b32 v11, 7, v0")
    def ld_fl3():
        for i in range(4):
            a("s_mov_b32 s30, %d" % (WS_FL3 + i * 8192))
            a("buffer_load_dword v%d, v11, %s, s30 offen sc1" % (YR + i, WS))
    ld_fl3()
    a.label("P3_H1")
    a("s_waitcnt vmcnt(0)")
    last_wave_flag(a, "P3_FLB", VM, 16, 8, 98, 12)
    stamp(a, 9)
    stamp(a, 30, True)
    a("s_cmp_lg_u32 s20, s4")
    a("s_cbranch_scc1 P3_H2")
    a("s_mov_b32 s94, 0")
    a.label("P3_ALL")
    for i in range(4):
        a("v_xor_b32 v%d, s%d, v%d" % (YR + i, S_TAG, YR + i))
    a("v_or3_b32 v%d, v%d, v%d, v%d" % (YR, YR, YR + 1, YR + 2))
    a("v_or_b32 v%d, v%d, v%d" % (YR, YR, YR + 3))
    a("v_cmp_ne_u32 vcc, 0, v%d" % YR)
    a("s_add_u32 s94, s94, 1")
    a("s_cmp_ge_u32 s94, 0x8000")
    a("s_cbranch_scc1 P3_ALLD")
    a("s_cbranch_vccz P3_ALLD")
    ld_fl3()
    a("s_waitcnt vmcnt(0)")
    a("s_branch P3_ALL")
    a.label("P3_ALLD")
    a("v_lshrrev_b32 v12, 2, v0")
    a("v_and_b32 v13, 3, v0")
    a("v_lshlrev_b32 v14, 7, v12")
    a("v_lshl_add_u32 v14, v13, 4, v14")
    a("v_lshlrev_b32 v12, 11, v12")
    a("v_lshl_add_u32 v12, v13, 4, v12")
    a("s_lshr_b32 s30, s5, 8")
    a("s_lshl_b32 s30, s30, 9")
    a("s_and_b32 s31, s5, 255")
    a("s_add_u32 s30, s30, s31")
    a("s_add_u32 s30, s30, %d" % WS_Y)
    a("buffer_load_dwordx4 %s, v12, %s, s30 offen sc1" % (vr(YR, 4), WS))
    a("buffer_load_dwordx4 %s, v12, %s, s30 offen offset:256 sc1" % (vr(YR + 4, 4), WS))
    a.label("P3_H2")
    a("s_mov_b32 s22, 0")
    a("s_mov_b32 s94, 0")
    a.label("P3_HL")
    a("v_cmp_eq_u32 vcc, s%d, v8" % S_TAG)
    a("s_add_u32 s94, s94, 1")
    a("s_cmp_ge_u32 s94, 0x8000")
    a("s_cselect_b32 s23, 3, vcc_lo")
    a("s_and_b32 s23, s23, 3")
    a("s_andn2_b32 s23, s23, s22")
    for q in range(2):
        a("s_bitcmp1_b32 s23, %d" % q)
        a("s_cbranch_scc0 P3_HS%d" % q)
        for i in range(8):
            a("s_add_u32 s28, s63, %d" % i)
            a("s_and_b32 s28, s28, 7")
            a("s_lshl_b32 s3, s28, 10")
            a("s_add_u32 s3, s3, s12")
            a("s_add_u32 m0, s3, %d" % (L_X + q * 8192))
            a("s_lshr_b32 s3, s28, 1")
            a("s_lshl_b32 s3, s3, 10")
            a("s_and_b32 s28, s28, 1")
            a("s_lshl_b32 s28, s28, 15")
            a("s_add_u32 s3, s3, s28")
            a("s_add_u32 s3, s3, s11")
            if q:
                a("s_add_u32 s3, s3, 4096")
            a("buffer_load_dwordx4 v2, %s, s3 offen sc1 lds" % WS)
        a.label("P3_HS%d" % q)
    a("s_or_b32 s22, s22, s23")
    a("s_cmp_eq_u32 s22, 3")
    a("s_cbranch_scc1 P3_HE")
    a("buffer_load_dword v8, v5, %s, s95 offen sc1" % WS)
    a("s_waitcnt vmcnt(0)")
    for q in range(2):
        a("s_bitcmp1_b32 s22, %d" % q)
        a("s_cbranch_scc0 P3_HP%d" % q)
        a("ds_write_b32 v9, v10 offset:%d" % (32 + 4 * q))
        a.label("P3_HP%d" % q)
    a("s_branch P3_HL")
    a.label("P3_HE")
    stamp(a, 10)
    stamp(a, 28, True)
    a("s_cmp_lg_u32 s23, 3")
    a("s_cbranch_scc1 P3_HE1")
    a("s_waitcnt vmcnt(8)")
    a("ds_write_b32 v9, v10 offset:32")
    a.label("P3_HE1")
    a("s_waitcnt vmcnt(0)")
    a("ds_write_b32 v9, v10 offset:32")
    a("ds_write_b32 v9, v10 offset:36")
    a("s_cmp_lg_u32 s20, s4")
    a("s_cbranch_scc1 L_END")
    a("s_mul_i32 s30, s10, 2304")
    a("s_add_u32 s30, s30, %d" % L_QX)
    a("v_add_u32 v14, s30, v14")
    a("ds_write_b128 v14, %s" % vr(YR, 4))
    a("ds_write_b128 v14, %s offset:64" % vr(YR + 4, 4))
    a("v_lshlrev_b32 v14, 10, v7")
    a("v_lshl_add_u32 v14, v6, 2, v14")
    a("v_add_u32 v14, s30, v14")
    a("s_waitcnt lgkmcnt(0)")
    for i in range(8):
        a("ds_read_b32 v%d, v14 offset:%d" % (YR + i, i * 128))
    a("s_and_b32 s31, s%d, 0xffff0000" % S_KEY)
    a("s_ashr_i32 s28, s31, 31")
    a("s_not_b32 s28, s28")
    a("s_or_b32 s28, s28, 0x80000000")
    a("s_xor_b32 s31, s31, s28")
    a("s_and_b32 s31, s31, 0xffff0000")
    a("v_mov_b32 v15, s31")
    sigmoid_bf16(a, 15)
    a("s_waitcnt lgkmcnt(0)")
    for i in range(1, 8):
        a("v_add_f32 v%d, v%d, v%d" % (YR, YR, YR + i))
    a("v_mov_b32 v%d, v%d" % (YR + 1, YR))
    a("v_and_b32 v14, 15, v0")
    a("v_lshlrev_b32 v14, 3, v14")
    a("v_permlane32_swap_b32 v%d, v%d" % (YR, YR + 1))
    a("v_add_f32 v%d, v%d, v%d" % (YR, YR, YR + 1))
    bf16_round_to_f32(a, YR, YR)
    a("v_mul_f32 v%d, v%d, v15" % (YR, YR))
    bf16_round_to_f32(a, YR, YR)
    a("v_bfe_u32 v15, v0, 4, 1")
    a("v_lshl_add_u32 v14, v15, 2, v14")
    a("v_add_u32 v14, s30, v14")
    a("ds_write_b32 v14, v%d offset:2048" % YR)
    a("s_lshl_b32 s23, s10, 2")
    a("v_add_u32 v9, s23, v%d" % VM)
    a("ds_write_b32 v9, v10 offset:64")
    a("s_endpgm")

    a.label("P2_HRET")
    if NB == 8:
        a("s_bitcmp1_b32 s23, 0")
        a("s_cbranch_scc1 P2_HRET1")
    a("s_branch P2_HRET0")
    def gu_base():
        a("s_cmp_lt_u32 s19, 2")
        a("s_cselect_b32 s44, s%d, s%d" % (P_WG, P_WU))
        a("s_cselect_b32 s45, s%d, s%d" % (P_WG + 1, P_WU + 1))
        a("s_and_b32 s52, s2, 7")
        a("s_mul_i32 s52, s52, %d" % (64 * 3584))
        a("s_lshr_b32 s53, s2, 3")
        a("s_lshl_b32 s53, s53, 7")
        a("s_add_u32 s52, s52, s53")
    def warm_gu(lo, hi):
        if not WARM:
            return
        gu_base()
        a("s_and_b32 s53, s19, 1")
        a("s_mul_i32 s53, s53, %d" % (32 * 3584))
        a("s_add_u32 s52, s52, s53")
        a("s_add_u32 s44, s44, s52")
        a("s_addc_u32 s45, s45, 0")
        for i in range(lo, hi):
            a("s_load_dword s99, s[44:45], 0x%x" % (i * 3584))
    def warm_wd(lo, hi):
        if not WARM:
            return
        a("s_lshl_b32 s52, s2, 13")
        a("s_lshl_b32 s53, s19, 8")
        a("s_add_u32 s52, s52, s53")
        a("s_add_u32 s44, s%d, s52" % P_WD)
        a("s_addc_u32 s45, s%d, 0" % (P_WD + 1))
        for i in range(lo, hi):
            a("s_load_dword s99, s[44:45], 0x%x" % ((i // 2) * 1024 + (i % 2) * 128))
    def only_ffn():
        a("s_cmp_ge_u32 s2, 224")
        a("s_cbranch_scc1 P2_HRET")
    def check_tags(name, regs, reload):
        a("s_mov_b32 s94, 0")
        a.label(name + "L")
        a("v_cmp_ne_u32 vcc, s%d, v%d" % (S_TAG, regs[0]))
        for r in regs[1:]:
            a("v_cmp_ne_u32 s[52:53], s%d, v%d" % (S_TAG, r))
            a("s_nop 1")
            a("s_or_b64 vcc, vcc, s[52:53]")
        a("s_add_u32 s94, s94, 1")
        a("s_cmp_ge_u32 s94, 0x8000")
        a("s_cbranch_scc1 %sD" % name)
        a("s_cbranch_vccz %sD" % name)
        reload()
        a("s_waitcnt vmcnt(0)")
        a("s_branch %sL" % name)
        a.label(name + "D")
    def ld_keys():
        a("v_lshlrev_b32 v5, 3, v0")
        a("s_mov_b32 s3, %d" % WS_RK)
        a("buffer_load_dwordx2 %s, v5, %s, s3 offen sc1" % (vr(DD, 2), WS))
    def job_argmax():
        check_tags("P2_CK", [DD + 1], ld_keys)
        for sh in (1, 2, 4, 8):
            a("v_max_u32_dpp v%d, v%d, v%d row_ror:%d row_mask:0xf bank_mask:0xf" % (DD, DD, DD, sh))
            a("s_nop 1")
        for i in range(4):
            a("v_readlane_b32 s%d, v%d, %d" % (52 + i, DD, 16 * i))
        srd(a, 44, P_X, 2048 * 512 * 2)
        a("s_max_u32 s52, s52, s53")
        a("s_max_u32 s54, s54, s55")
        a("s_max_u32 s52, s52, s54")
        a("v_mov_b32 v%d, s52" % DD)
        a("ds_write_b32 v%d, v%d offset:4" % (VM, DD))
        a("s_cmp_lt_u32 s2, 224")
        a("s_cselect_b32 s32, s32, 0x80")
        only_ffn()
        a("s_and_b32 s52, s52, 0xffff")
        a("s_sub_u32 s52, 0xffff, s52")
        a("s_and_b32 s52, s52, 2047")
        a("s_lshl_b32 s52, s52, 10")
        a("s_and_b32 s53, s2, 7")
        a("s_lshl_b32 s53, s53, 7")
        a("s_add_u32 s52, s52, s53")
        a("v_lshrrev_b32 v5, 4, v0")
        a("v_lshlrev_b32 v5, 4, v5")
        for s_ in range(2):
            a("buffer_load_dwordx4 %s, v5, s[44:47], s52 offen offset:%d" % (vr(XS + 4 * s_, 4), 64 * s_))
    def job_gu(lo, hi):
        only_ffn()
        gu_base()
        a("s_and_b32 s45, s45, 0xffff")
        a("s_mov_b32 s46, 0x%x" % (512 * 1792 * 2))
        a("s_mov_b32 s47, 0x00020000")
        a("v_lshrrev_b32 v5, 2, v0")
        a("v_mul_u32_u24 v5, 3584, v5")
        a("v_and_b32 v252, 3, v0")
        a("v_lshl_add_u32 v5, v252, 4, v5")
        a("s_and_b32 s53, s19, 1")
        a("s_lshl_b32 s53, s53, 6")
        a("s_add_u32 s52, s52, s53")
        a("s_lshl_b32 s54, s19, 12")
        for i in range(lo, hi):
            a("s_add_u32 m0, s54, %d" % (L_FFW + i * 1024))
            a("s_add_u32 s53, s52, %d" % (i * 16 * 3584))
            a("buffer_load_dwordx4 v5, s[44:47], s53 offen lds")
    def job_wd():
        srd(a, 48, P_WD, 1792 * 512 * 2)
        a("s_lshl_b32 s52, s2, 13")
        a("s_lshl_b32 s53, s19, 8")
        a("s_add_u32 s52, s52, s53")
        a("v_lshlrev_b32 v5, 2, v0")
        a("s_add_u32 s53, s52, 4096")
        for f in range(8):
            a("buffer_load_dword v%d, v5, s[48:51], s%d offen offset:%d" % (WD + f, 52 + f // 4, (f % 4) * 1024))
    def job_part():
        a("v_lshrrev_b32 v5, 4, v0")
        a("v_lshlrev_b32 v5, 9, v5")
        a("v_bfe_u32 v252, v0, 2, 2")
        a("v_lshl_add_u32 v5, v252, 6, v5")
        a("v_and_b32 v252, 3, v0")
        a("v_lshl_add_u32 v5, v252, 3, v5")
        a("s_lshl_b32 s52, s19, 12")
        a("s_add_u32 s52, s52, %d" % L_FFW)
        a("v_add_u32 v5, s52, v5")
        for ct in range(2):
            for s_ in range(2):
                for half in range(2):
                    a("ds_read_b64_tr_b16 %s, v5 offset:%d" % (vr(BF + 4 * s_ + 2 * half, 2), ct * 32 + s_ * 2048 + half * 256))
            a("s_waitcnt lgkmcnt(0)")
            a("%s %s, %s, %s, 0" % (MF16, vr(DD + 4 * ct, 4), vr(XS, 4), vr(BF, 4)))
            a("%s %s, %s, %s, %s" % (MF16, vr(DD + 4 * ct, 4), vr(XS + 4, 4), vr(BF + 4, 4), vr(DD + 4 * ct, 4)))
        a("v_lshlrev_b32 v5, 3, v0")
        a("s_lshl_b32 s52, s2, 10")
        a("s_lshl_b32 s53, s19, 8")
        a("s_add_u32 s52, s52, s53")
        a("s_add_u32 s52, s52, %d" % WS_PA)
        a("s_nop 3")
        a("v_mov_b32 v%d, s%d" % (DD + 1, S_TAG))
        a("s_mov_b32 exec_hi, 0")
        a("s_mov_b32 exec_lo, 0xffff0000")
        a("v_mov_b32 v%d, v%d" % (DD, DD + 4))
        a("s_mov_b32 exec_lo, -1")
        a("buffer_store_dwordx2 %s, v5, %s, s52 offen sc1" % (vr(DD, 2), WS))
        a("s_mov_b64 exec, -1")
    def ld_part():
        a("v_lshrrev_b32 v5, 3, v0")
        a("v_lshlrev_b32 v5, 10, v5")
        a("v_and_b32 v252, 7, v0")
        a("v_lshl_add_u32 v5, v252, 3, v5")
        a("s_lshr_b32 s3, s2, 3")
        a("s_lshl_b32 s3, s3, 13")
        a("s_and_b32 s54, s2, 7")
        a("s_lshl_b32 s54, s54, 6")
        a("s_add_u32 s3, s3, s54")
        a("s_add_u32 s3, s3, %d" % WS_PA)
        a("buffer_load_dwordx2 %s, v5, %s, s3 offen sc1" % (vr(T, 2), WS))
        a("buffer_load_dwordx2 %s, v5, %s, s3 offen offset:512 sc1" % (vr(T + 2, 2), WS))
    def job_final():
        check_tags("P2_CP", [T + 1, T + 3], ld_part)
        G_, U_ = T, T + 2
        for r in (G_, U_):
            a("v_add_f32_dpp v%d, v%d, v%d row_ror:8 row_mask:0xf bank_mask:0xf" % (r, r, r))
        for op in ("v_permlane16_swap_b32", "v_permlane32_swap_b32"):
            for r in (G_, U_):
                a("v_mov_b32 v%d, v%d" % (r + 1, r))
            a("s_nop 0")
            for r in (G_, U_):
                a("%s v%d, v%d" % (op, r, r + 1))
            for r in (G_, U_):
                a("v_add_f32 v%d, v%d, v%d" % (r, r, r + 1))
        bf16_round_to_f32(a, G_, G_)
        bf16_round_to_f32(a, U_, U_)
        a("v_mul_f32 v%d, 0x%08x, v%d" % (T + 1, f32bits(-LOG2E), G_))
        a("v_exp_f32 v%d, v%d" % (T + 1, T + 1))
        a("v_mov_b32 v%d, 0" % (T + 4))
        a("v_add_f32 v%d, 1.0, v%d" % (T + 1, T + 1))
        a("v_rcp_f32 v%d, v%d" % (T + 1, T + 1))
        a("v_mov_b32 v%d, 0" % (T + 5))
        a("v_mul_f32 v%d, v%d, v%d" % (T + 1, T + 1, G_))
        bf16_round_to_f32(a, T + 1, T + 1)
        a("v_mul_f32 v%d, v%d, v%d" % (T + 1, T + 1, U_))
        a("v_cvt_pk_bf16_f32 v%d, v%d, v%d" % (T + 1, T + 1, T + 4))
        a("v_lshlrev_b32 v5, 2, v0")
        for i in range(8):
            a("v_readlane_b32 s%d, v%d, %d" % (44 + i, T + 1, i))
        a("s_lshl_b32 s60, s19, 9")
        a("s_and_b32 s61, s2, 15")
        a("s_lshl_b32 s61, s61, 11")
        a("s_add_u32 s60, s60, s61")
        a("s_add_u32 s60, s60, %d" % WS_Y)
        for i in range(8):
            a("s_lshl_b32 s%d, s%d, 16" % (52 + i, 44 + i))
        for i in range(8):
            a("v_dot2_f32_bf16 v%d, v%d, s%d, v%d" % (T + 4, WD + i, 44 + i, T + 4))
            a("v_dot2_f32_bf16 v%d, v%d, s%d, v%d" % (T + 5, WD + i, 52 + i, T + 5))
        a("s_nop 3")
        a("buffer_atomic_add_f32 v%d, v5, %s, s60 offen" % (T + 4, WS))
        a("buffer_atomic_add_f32 v%d, v5, %s, s60 offen offset:256" % (T + 5, WS))
    def job_tail():
        a("s_lshl_b32 s3, s2, 7")
        a("s_add_u32 s3, s3, %d" % WS_FL3)
        a("s_waitcnt vmcnt(0)")
        last_wave_flag(a, "P2_FL3", VM, 12, 4, 3, 5)
        srd(a, 44, P_X, 2048 * 512 * 2)
        a("buffer_load_dwordx4 %s, v%d, s[44:47], s6 offen" % (vr(XR, 4), VXO))
        a("buffer_load_dwordx4 %s, v%d, s[44:47], s6 offen offset:16" % (vr(XR + 4, 4), VXO))
        a("v_lshlrev_b32 v252, 3, v6")
        a("buffer_load_dwordx2 %s, v252, %s, s7 offen sc1" % (vr(GR, 2), WS))
    if NB == 4:
        plans = {
            0: {1: [ld_keys, lambda: job_gu(0, 2)], 2: [job_argmax, lambda: job_gu(2, 4)], 3: [job_part], 4: [job_wd], 5: [ld_part], 6: [job_final], 7: [job_tail]},
            1: {1: [ld_keys, lambda: job_gu(0, 1)], 2: [job_argmax, lambda: job_gu(1, 2)], 3: [lambda: job_gu(2, 4)], 4: [job_part], 5: [job_wd], 6: [ld_part], 7: [job_final]},
        }
    else:
        plans = {
            0: {0: [ld_keys], 1: [lambda: job_gu(0, 4)], 2: [job_argmax], 3: [job_wd], 4: [job_part], 5: [ld_part], 7: [job_final]},
        }
    plan = plans[PLAN]
    a.label("P2_HOOK")
    for st in plan:
        a("s_cmp_eq_u32 s23, %d" % st)
        a("s_cbranch_scc1 P2_J%d" % st)
    a("s_branch P2_HRET")
    for st, jobs in plan.items():
        a.label("P2_J%d" % st)
        for jb in jobs:
            jb()
        a("s_branch P2_HRET")

    a.label("P2_EXACT")
    a("s_mov_b32 s29, 1")
    a("s_mov_b32 s32, 0")
    a("s_mov_b32 s23, 0xff800000")
    for j in range(2):
        a("v_mov_b32 v%d, s23" % (T + j))
    a("s_mov_b32 s28, s22")
    a("s_mov_b32 s23, 0")
    a("s_waitcnt vmcnt(0) lgkmcnt(0)")
    a.label("P2_EXLOOP")
    a("buffer_load_dwordx4 %s, v2, %s, s28 offen sc1" % (vr(KV, 4), WS))
    a("s_waitcnt vmcnt(0)")
    for j in range(2):
        a("%s %s, %s, %s, 0" % (MF32, vr(S, 16), vr(KV, 4), vr(Q + 4 * j, 4)))
        a("s_nop 15")
        for r in range(0, 16, 2):
            a("v_max3_f32 v%d, v%d, v%d, v%d" % (T + j, T + j, S + r, S + r + 1))
    a("s_add_u32 s28, s28, 2048")
    a("s_add_u32 s23, s23, 1")
    a("s_cmp_lt_u32 s23, 32")
    a("s_cbranch_scc1 P2_EXLOOP")
    a("s_lshl_b32 s23, s19, 9")
    a("s_lshl_b32 s28, s16, 8")
    a("s_add_u32 s23, s23, %d" % L_EX)
    a("v_lshl_add_u32 v5, v0, 2, s23")
    a("v_add_u32 v252, s28, v5")
    a("v_xor_b32 v253, 256, v252")
    a("ds_write_b32 v253, v%d" % T)
    a("ds_write_b32 v252, v%d" % (T + 1))
    a("s_waitcnt lgkmcnt(0)")
    a("s_barrier")
    a("s_lshl_b32 s23, s17, 9")
    a("s_add_u32 s23, s23, %d" % L_EX)
    a("v_lshl_add_u32 v5, v6, 2, s23")
    a("v_add_u32 v252, s28, v5")
    a("v_xor_b32 v253, 256, v252")
    for j in range(2):
        for kh in range(2):
            for hh in range(2):
                a("ds_read_b32 v%d, v%d offset:%d" % (S + kh * 2 + hh, 253 - j, kh * 2048 + hh * 128))
        a("s_waitcnt lgkmcnt(0)")
        a("v_max3_f32 v%d, v%d, v%d, v%d" % (S, S, S + 1, S + 2))
        a("v_max_f32 v%d, v%d, v%d" % (S, S, S + 3))
        a("v_sub_f32 v%d, 0, v%d" % (C + 16 * j, S))
    p2_init()
    a("s_branch P2_START")
    a.label("L_CODE_END")

def main():
    out = sys.argv[1] if len(sys.argv) > 1 else "cdna_kernels/%s.s" % NAME
    a = Asm()
    hdr = open("cdna_kernels/%s.s.ref" % NAME).read().split("\n")
    keep = [l for l in hdr if l.startswith(";") and "@launch" not in l and "Override launch" not in l and "grid=ceil" not in l]
    for l in keep:
        a.raw(l)
    a.raw("; @launch grid=(256,1,1) block=(512,1,1) lds=%d" % LDS_SIZE)
    a.raw('.amdgcn_target "amdgcn-amd-amdhsa--gfx950"')
    a.raw(".text")
    gen(a)
    a.raw('.section .rodata,"a"')
    a.raw(""".p2align 6
.amdhsa_kernel %s_kernel
  .amdhsa_next_free_vgpr 256
  .amdhsa_next_free_sgpr 102
  .amdhsa_accum_offset 256
  .amdhsa_group_segment_fixed_size 0
  .amdhsa_kernarg_size 96
  .amdhsa_user_sgpr_count 2
  .amdhsa_user_sgpr_kernarg_segment_ptr 1
  .amdhsa_system_sgpr_workgroup_id_x 1
.end_amdhsa_kernel""" % NAME)
    open(out, "w").write(a.text())

if __name__ == "__main__":
    main()
```

```python
import sys, math, struct, os

NAME = "gated_mix__mha_block__moe_arch_mod__prompt"

WS_KV = 0
WS_O = 4 << 20
WS_FL1 = 6 << 20
WS_FL2 = WS_FL1 + 32768
WS_FL3 = WS_FL2 + 32768
WS_RK = WS_FL3 + 32768
WS_PA = WS_RK + 8192
WS_G = WS_PA + 262144
WS_EP = WS_G + 16384
WS_Y = WS_EP + 1024
WS_ST = 7 << 20
WS_SIZE = 8 << 20

STAMP = int(os.environ.get("STAMP", "0"))
NB = int(os.environ.get("NB", "4"))
CPF = int(os.environ.get("CPF", "1"))
SLEEP = int(os.environ.get("SLEEP", "0"))
MAP = int(os.environ.get("MAP", "1"))
PRIO = int(os.environ.get("PRIO", "3"))
TOUCH = int(os.environ.get("TOUCH", "0"))
HMASK = int(os.environ.get("HMASK", "0xff"), 0)
WARM = int(os.environ.get("WARM", "0"))
PLAN = int(os.environ.get("PLAN", "0"))
QF = int(os.environ.get("QF", "20"))
WQT = int(os.environ.get("WQT", "1"))
INIT = int(os.environ.get("INIT", "3"))
ROT = int(os.environ.get("ROT", "1"))
SPAN = os.environ.get("SPAN", "")
def ev(a, i):
    if not SPAN:
        return
    i0, i1 = [int(x) for x in SPAN.split(",")]
    for k, r in ((i0, 13), (i1, 99)):
        if k == i:
            a("s_memrealtime s[100:101]")
            a("s_waitcnt lgkmcnt(0)")
            a("s_mov_b32 s%d, s100" % r)
NOWO = int(os.environ.get("NOWO", "0"))

def f32bits(x):
    return struct.unpack("<I", struct.pack("<f", x))[0]

class Asm:
    def __init__(self):
        self.l = []
    def __call__(self, s):
        for line in s.strip("\n").split("\n"):
            self.l.append("    " + line.strip())
    def label(self, s):
        self.l.append(s + ":")
    def raw(self, s):
        self.l.append(s)
    def text(self):
        return "\n".join(self.l) + "\n"

def vr(b, n):
    return "v[%d:%d]" % (b, b + n - 1)
def sr(b, n):
    return "s[%d:%d]" % (b, b + n - 1)

def srd(a, d, base, nbytes):
    a("s_mov_b32 s%d, s%d" % (d, base))
    a("s_and_b32 s%d, s%d, 0xffff" % (d + 1, base + 1))
    a("s_mov_b32 s%d, 0x%x" % (d + 2, nbytes))
    a("s_mov_b32 s%d, 0x00020000" % (d + 3))

MF32 = "v_mfma_f32_32x32x16_bf16"
MF16 = "v_mfma_f32_16x16x32_bf16"
LOG2E = math.log2(math.e)

P_X, P_WQKV, P_WO, P_WR, P_WG, P_WU, P_WD, P_GW, P_OUT, P_DBG, P_WS = 64, 66, 68, 72, 74, 76, 78, 80, 82, 84, 86
WS = "s[88:91]"
S_TAG, S_KEY = 92, 93

def stamp(a, idx, real=False):
    if not STAMP:
        return
    a("s_memrealtime s[100:101]" if real else "s_memtime s[100:101]")
    a("s_waitcnt lgkmcnt(0)")
    a("v_mov_b32 v255, s100")
    a("s_lshl_b32 s100, s2, 3")
    a("s_add_u32 s100, s100, s19")
    a("s_lshl_b32 s100, s100, 7")
    a("s_add_u32 s100, s100, %d" % (WS_ST + idx * 4))
    a("buffer_store_dword v255, off, %s, s100" % WS)

def bf16_round_to_f32(a, dst, src):
    a("v_cvt_pk_bf16_f32 v%d, v%d, v%d" % (dst, src, src))
    a("v_lshlrev_b32 v%d, 16, v%d" % (dst, dst))

def sigmoid_bf16(a, r):
    a("v_mul_f32 v%d, 0x%08x, v%d" % (r, f32bits(-LOG2E), r))
    a("v_exp_f32 v%d, v%d" % (r, r))
    a("s_nop 0")
    a("v_add_f32 v%d, 1.0, v%d" % (r, r))
    a("v_rcp_f32 v%d, v%d" % (r, r))
    a("s_nop 0")
    bf16_round_to_f32(a, r, r)

def poll(a, name, t0, voff):
    a("s_mov_b32 s94, 0")
    a("s_branch %s_IN" % name)
    a.label(name)
    if SLEEP:
        a("s_sleep %d" % SLEEP)
    a.label(name + "_IN")
    a("buffer_load_dword v%d, v%d, %s, s95 offen sc1" % (t0, voff, WS))
    a("s_add_u32 s94, s94, 1")
    a("s_waitcnt vmcnt(0)")
    a("v_cmp_ne_u32 vcc, s%d, v%d" % (S_TAG, t0))
    a("s_cmp_ge_u32 s94, 0x8000")
    a("s_cbranch_scc1 %s_OUT" % name)
    a("s_cbranch_vccz %s_OUT" % name)
    a("s_mov_b64 exec, vcc")
    a("s_branch %s" % name)
    a.label(name + "_OUT")

def last_wave_flag(a, name, vm, ldsoff, n, soff, t0):
    a("v_mov_b32 v%d, 1" % t0)
    a("s_mov_b64 exec, 1")
    a("ds_add_rtn_u32 v%d, v%d, v%d offset:%d" % (t0, vm, t0, ldsoff))
    a("s_waitcnt lgkmcnt(0)")
    a("v_readfirstlane_b32 s97, v%d" % t0)
    a("v_mov_b32 v%d, s%d" % (t0, S_TAG))
    a("s_nop 1")
    a("s_cmp_lg_u32 s97, %d" % (n - 1))
    a("s_cbranch_scc1 %s" % name)
    a("buffer_store_dword v%d, off, %s, s%d sc1" % (t0, WS, soff))
    a.label(name)
    a("s_mov_b64 exec, -1")

def get_tag(a, name, t0):
    a("s_mov_b32 s94, 0")
    a.label(name + "L")
    a("s_waitcnt vmcnt(0)")
    a("v_readfirstlane_b32 s95, v%d" % (t0 + 1))
    a("s_add_u32 s94, s94, 1")
    a("s_cmp_ge_u32 s94, 0x8000")
    a("s_cbranch_scc1 %sD" % name)
    a("s_cmp_lg_u32 s95, 0")
    a("s_cbranch_scc1 %sD" % name)
    a("buffer_load_dwordx2 %s, off, s[24:27], 0 sc1" % vr(t0, 2))
    a("s_branch %sL" % name)
    a.label(name + "D")
    a("v_readfirstlane_b32 s%d, v%d" % (S_TAG, t0))

def put_flag(a, soff, t0):
    a("v_mov_b32 v%d, s%d" % (t0, S_TAG))
    a("s_mov_b64 exec, 1")
    a("buffer_store_dword v%d, off, %s, s%d sc1" % (t0, WS, soff))
    a("s_mov_b64 exec, -1")

L_X = 0
L_W = 65536
L_FFW = L_X + 32768
L_EX = L_X
L_CMB = 131072
L_RT = L_CMB + 18432
L_MISC = L_RT + 2048
L_QX = L_MISC + 2048
L_MX = L_QX + 8192
LDS_SIZE = L_MX + 1024

def gen(a):
    kn = NAME + "_kernel"
    a.raw(".globl %s" % kn)
    a.raw(".p2align 8")
    a.raw(".type %s,@function" % kn)
    a.label(kn)
    a("s_cmp_ge_u32 s2, 256")
    a("s_cbranch_scc1 L_END")
    a("s_load_dwordx16 s[64:79], s[0:1], 0")
    a("s_load_dwordx8 s[80:87], s[0:1], 64")
    if CPF:
        a("s_getpc_b64 s[22:23]")
        a.label("L_PC")
        a("v_subrev_u32 v2, 256, v0")
        a("v_lshlrev_b32 v2, 7, v2")
        a("v_cmp_gt_u32 vcc, L_CODE_END - L_PC, v2")
        a("s_and_saveexec_b64 s[24:25], vcc")
        a("s_cbranch_execz L_NOPF")
        a("global_load_dword v3, v2, s[22:23]")
        a.label("L_NOPF")
        a("s_mov_b64 exec, -1")
    a("v_lshrrev_b32 v1, 6, v0")
    a("v_and_b32 v0, 63, v0")
    a("v_readfirstlane_b32 s19, v1")
    ev(a, 0)
    Q, C, O, S, P, KV, T = 8, 16, 48, 80, 112, 120, 216
    VM = 254
    XS, WD, BF, DD = T, T + 8, T + 16, T + 24
    ntb = 32 // MAP
    lt = ntb.bit_length() - 1
    a("s_and_b32 s16, s2, 7")
    a("s_lshr_b32 s17, s2, 3")
    a("s_and_b32 s14, s16, %d" % (MAP - 1))
    a("s_lshl_b32 s14, s14, %d" % lt)
    a("s_and_b32 s18, s17, %d" % (ntb - 1))
    a("s_add_u32 s14, s14, s18")
    a("s_lshr_b32 s15, s16, %d" % (MAP.bit_length() - 1))
    a("s_mul_i32 s15, s15, %d" % MAP)
    a("s_lshr_b32 s17, s17, %d" % lt)
    a("s_add_u32 s15, s15, s17")
    if ROT:
        a("s_mul_i32 s17, s15, %d" % ROT)
    else:
        a("s_mul_i32 s17, s17, %d" % (8 // MAP))
    a("s_add_u32 s16, s17, s18")
    a("s_and_b32 s16, s16, 7")
    a("s_and_b32 s62, s2, 7")
    a("s_lshl_b32 s62, s62, 2")
    a("s_bfe_u32 s38, s2, 0x20003")
    a("s_add_u32 s62, s62, s38")
    a("s_lshr_b32 s63, s2, 5")
    a("s_lshl_b32 s38, s38, 1")
    a("s_add_u32 s38, s38, s63")
    a("s_and_b32 s38, s38, 7")
    a("v_lshlrev_b32 v2, 4, v0")
    a("v_and_b32 v6, 31, v0")
    a("v_lshrrev_b32 v7, 5, v0")
    a("v_mov_b32 v%d, %d" % (VM, L_MISC))
    a("s_and_b32 s20, s19, 1")
    XA = 8
    a("v_bfe_u32 v24, v6, 1, 3")
    a("v_lshlrev_b32 v25, 7, v6")
    a("s_lshl_b32 s18, s20, 12")
    a("v_add_u32 v25, s18, v25")
    for ks in range(4):
        a("v_or_b32 v26, %d, v7" % (2 * ks))
        a("v_xor_b32 v26, v26, v24")
        a("v_lshl_add_u32 v%d, v26, 4, v25" % (XA + ks))
    a("s_lshl_b32 s47, s14, 1")
    a("s_add_u32 s39, s47, s20")
    a("s_cmp_ge_u32 s19, 4")
    a("s_cbranch_scc1 P1_COMPUTE")

    a("v_lshrrev_b32 v4, 3, v0")
    a("v_lshlrev_b32 v5, 10, v4")
    a("v_and_b32 v3, 7, v0")
    a("v_lshrrev_b32 v16, 4, v0")
    a("v_xor_b32 v17, v3, v16")
    a("v_lshl_add_u32 v5, v17, 4, v5")
    a("v_mul_u32_u24 v4, 3072, v4")
    a("v_and_b32 v16, 1, v16")
    a("v_lshlrev_b32 v16, 2, v16")
    a("v_xor_b32 v17, v3, v16")
    a("v_lshl_add_u32 v4, v17, 4, v4")
    a("s_lshl_b32 s18, s15, 7")
    a("v_add_u32 v4, s18, v4")
    a("v_xor_b32 v3, 64, v5")
    a("s_lshl_b32 s40, s14, 16")
    a("s_lshl_b32 s18, s19, 14")
    a("s_add_u32 s40, s40, s18")
    a("s_lshl_b32 s44, s19, 11")
    a("s_lshl_b32 s18, s16, 7")
    a("v_add_u32 v16, s18, v2")
    a("v_and_b32 v16, 1023, v16")
    a("s_mul_i32 s41, s19, 49152")
    a("s_lshl_b32 s45, s19, 12")
    a("s_mul_i32 s42, s20, %d" % (32 * 3072))
    a("s_lshr_b32 s43, s19, 1")
    a("s_waitcnt lgkmcnt(0)")
    srd(a, 20, P_X, 2048 * 512 * 2)
    srd(a, 24, P_WQKV, 512 * 1536 * 2)
    srd(a, 88, P_WS, WS_SIZE)
    stamp(a, 0)
    stamp(a, 24, True)

    def issue_step(c):
        wb = L_W + (c % 4) * 16384
        if c < 8:
            a("s_lshl_b32 s46, s16, 7")
            a("s_add_u32 s46, s46, s40")
            a("s_mul_i32 s47, s16, %d" % (64 * 3072))
            a("s_add_u32 s47, s47, s41")
            a("s_add_u32 m0, s44, %d" % (L_X + c * 8192))
            a("s_add_u32 s48, s46, 8192")
            a("buffer_load_dwordx4 v5, s[20:23], s46 offen lds")
            a("s_add_u32 m0, s44, %d" % (L_X + c * 8192 + 1024))
            a("s_add_u32 s49, s47, %d" % (8 * 3072))
            a("buffer_load_dwordx4 v3, s[20:23], s48 offen lds")
            for rh in range(2):
                a("s_add_u32 m0, s45, %d" % (wb + rh * 2048 - 1024))
                a("s_add_u32 s16, s16, 1" if rh == 0 else "s_and_b32 s16, s16, 7")
                for t in (1, 2):
                    a("buffer_load_dwordx4 v4, s[24:27], s%d offen offset:%d lds" % (47 + 2 * rh, t * 1024))
        else:
            a("s_add_u32 s46, s16, s43")
            a("s_and_b32 s46, s46, 7")
            a("s_mul_i32 s47, s46, %d" % (64 * 3072))
            a("s_add_u32 s47, s47, s42")
            a("s_add_u32 s16, s16, 2")
            for i in range(4):
                a("s_add_u32 m0, s45, %d" % (wb + i * 1024))
                a("s_add_u32 s48, s47, %d" % (i * 8 * 3072))
                a("buffer_load_dwordx4 v4, s[24:27], s48 offen lds")

    issue_step(0)
    srd(a, 28, P_WR, 1024)
    srd(a, 32, P_GW, 1024)
    a("s_mov_b32 m0, %d" % L_RT)
    a("s_nop 0")
    a("buffer_load_dwordx4 v16, s[32:35], 0 offen lds")
    a("s_mov_b32 m0, %d" % (L_RT + 1024))
    a("s_nop 0")
    a("buffer_load_dwordx4 v16, s[28:31], 0 offen lds")
    for c in range(1, INIT):
        issue_step(c)
    a("s_and_b32 s50, s14, 7")
    a("s_xor_b32 s50, s50, s15")
    a("s_lshr_b32 s51, s19, 1")
    a("s_or_b32 s50, s50, s51")
    a("v_and_b32 v25, 1, v0")
    a("v_lshlrev_b32 v25, 10, v25")
    a("v_lshl_add_u32 v17, v7, 4, v25")
    a("v_add_u32 v17, %d, v17" % L_RT)
    RACC, RF = 32, 48
    for r in range(0, 16, 2):
        a("v_mov_b64 %s, 0" % vr(RACC + r, 2))
    a("ds_write_b128 v%d, %s" % (VM, vr(RACC, 4)))
    for o in (16, 32, 48, 64):
        a("ds_write_b128 v%d, %s offset:%d" % (VM, vr(RACC, 4), o))
    for c in range(12):
        younger = sum(6 if k < 8 else 4 for k in range(c + 1, min(max(c + 3, INIT), 12))) + (1 if c > 9 else 0)
        a("s_waitcnt vmcnt(%d)%s" % (younger, " lgkmcnt(0)" if c == 0 else ""))
        if STAMP == 3 and c < 8:
            a("s_memtime s[100:101]")
            a("s_waitcnt lgkmcnt(0)")
            a("s_mov_b32 s%d, s100" % (52 + c))
        a("s_barrier")
        if c == 0 and STAMP != 3:
            stamp(a, 1)
        if INIT <= c + 3 < 12:
            issue_step(c + 3)
        if c == 0:
            srd(a, 32, P_DBG, 256)
        if c == 9:
            a("buffer_load_dwordx2 v[28:29], off, s[32:35], 0 sc1")
        if 8 <= c <= 10:
            a("s_cmp_lg_u32 s50, 0")
            a("s_cbranch_scc1 P1_NR%d" % c)
            k0, k1 = (0, 11, 22, 32)[c - 8], (0, 11, 22, 32)[c - 7]
            def rd_r(kk):
                a("ds_read_b128 %s, v%d offset:%d" % (vr(RF + 8 * (kk % 6), 4), XA + kk % 4, L_X + (kk // 4) * 8192))
                a("ds_read_b128 %s, v17 offset:%d" % (vr(RF + 8 * (kk % 6) + 4, 4), kk * 32))
            if c == 8:
                for kk in range(5):
                    rd_r(kk)
            for kk in range(k0, k1):
                a("s_waitcnt lgkmcnt(%d)" % (2 * min(4, 31 - kk)))
                a("%s %s, %s, %s, %s" % (MF32, vr(RACC, 16), vr(RF + 8 * (kk % 6) + 4, 4), vr(RF + 8 * (kk % 6), 4), vr(RACC, 16)))
                if kk + 5 < 32:
                    rd_r(kk + 5)
            a.label("P1_NR%d" % c)
    if STAMP == 3:
        for c in range(0, 8):
            a("v_mov_b32 v255, s%d" % (52 + c))
            a("s_lshl_b32 s100, s2, 3")
            a("s_add_u32 s100, s100, s19")
            a("s_lshl_b32 s100, s100, 7")
            a("s_add_u32 s100, s100, %d" % (WS_ST + (16 + c) * 4))
            a("buffer_store_dword v255, off, %s, s100" % WS)
    srd(a, 24, P_DBG, 256)
    get_tag(a, "P1_TAGL", 28)
    a("s_mov_b32 s39, -1")
    a("s_cmp_lg_u32 s50, 0")
    a("s_cbranch_scc1 P1_DONE")
    R = RACC
    a("s_nop 9")
    a("s_lshl_b32 s39, s14, 1")
    a("s_add_u32 s39, s39, s19")
    bf16_round_to_f32(a, 100, R)
    sigmoid_bf16(a, 100)
    a("v_sub_f32 v101, 1.0, v100")
    bf16_round_to_f32(a, 101, 101)
    bf16_round_to_f32(a, 102, R + 1)
    a("v_ashrrev_i32 v103, 31, v102")
    a("v_or_b32 v103, 0x80000000, v103")
    a("v_xor_b32 v102, v102, v103")
    a("v_and_b32 v102, 0xffff0000, v102")
    a("s_lshl_b32 s55, s39, 5")
    a("v_add_u32 v103, s55, v6")
    a("v_sub_u32 v103, 0xffff, v103")
    a("v_or_b32 v102, v102, v103")
    for sh in (1, 2, 4, 8):
        a("s_nop 1")
        a("v_max_u32_dpp v102, v102, v102 row_ror:%d row_mask:0xf bank_mask:0xf" % sh)
    a("s_nop 0")
    a("v_readlane_b32 s56, v102, 0")
    a("v_readlane_b32 s57, v102, 16")
    a("s_nop 3")
    a("s_max_u32 s%d, s56, s57" % S_KEY)
    a("s_lshl_b32 s54, s39, 8")
    a("s_add_u32 s54, s54, %d" % WS_G)
    a("v_lshlrev_b32 v27, 3, v6")
    a("buffer_store_dwordx2 v[100:101], v27, %s, s54 offen sc1" % WS)
    a("v_mov_b64 v[84:85], 0")
    a("v_lshlrev_b32 v27, 3, v0")
    a("s_lshl_b32 s55, s39, 9")
    a("s_add_u32 s55, s55, %d" % WS_Y)
    a("buffer_store_dwordx2 v[84:85], v27, %s, s55 offen sc1" % WS)
    a("s_branch P1_DONE")

    a.label("P1_COMPUTE")
    WA, WQA = 16, 17
    a("s_lshl_b32 s22, s2, 3")
    a("s_add_u32 s22, s22, s19")
    a("s_waitcnt lgkmcnt(0)")
    srd(a, 28, P_WQKV, 512 * 1536 * 2)
    srd(a, 88, P_WS, WS_SIZE)
    stamp(a, 0)
    stamp(a, 24, True)
    a("s_mov_b32 s23, %d" % WS_EP)
    a("s_cmp_lg_u32 s22, 4")
    a("s_cbranch_scc1 P1_NOEP0")
    a("buffer_load_dword v24, off, %s, s23 sc1" % WS)
    a.label("P1_NOEP0")
    def wq_touch():
        a("s_cmp_lg_u32 s19, 5")
        a("s_cbranch_scc1 P1_NOWQ")
        a("s_and_b32 s46, s14, %d" % (ntb - 1))
        a("s_mul_i32 s46, s46, %d" % (512 // ntb * 3072))
        a("s_lshl_b32 s47, s15, 7")
        a("s_add_u32 s46, s46, s47")
        a("v_and_b32 v24, %d, v0" % (512 // ntb - 1))
        a("v_mul_u32_u24 v24, 3072, v24")
        a("buffer_load_dword v28, v24, s[28:31], s46 offen")
        a.label("P1_NOWQ")
    if WQT == 0:
        wq_touch()
    srd(a, 24, P_DBG, 256)
    a("s_bfe_u32 s21, s19, 0x10001")
    a("v_bfe_u32 v27, v0, 2, 2")
    a("v_lshlrev_b32 v26, 7, v27")
    a("v_lshrrev_b32 v27, 1, v27")
    a("v_xor_b32 v27, s21, v27")
    a("v_lshl_add_u32 v26, v27, 6, v26")
    a("v_bfe_u32 v27, v0, 4, 1")
    a("v_lshl_add_u32 v26, v27, 5, v26")
    a("v_and_b32 v27, 3, v0")
    a("v_lshl_add_u32 v26, v27, 3, v26")
    a("v_add_u32 v26, %d, v26" % L_W)
    a("v_lshl_add_u32 v%d, v7, 11, v26" % WA)
    a("v_lshl_add_u32 v%d, v7, 10, v26" % WQA)
    a("s_cmp_lg_u32 s22, 4")
    a("s_cbranch_scc1 P1_NOEP")
    a("s_mov_b32 s22, 1664525")
    a("v_mov_b32 v25, 1")
    a("s_waitcnt vmcnt(0)")
    a("v_mul_lo_u32 v24, v24, s22")
    a("v_add_u32 v24, 1013904223, v24")
    a("s_mov_b64 exec, 1")
    a("buffer_store_dwordx2 v[24:25], off, s[24:27], 0 sc1")
    a("buffer_store_dword v24, off, %s, s23 sc1" % WS)
    a("s_mov_b64 exec, -1")
    a.label("P1_NOEP")
    ACC = 32
    FR = 80
    PK = 104
    XF = 120
    pend = []
    def rd_kv(kk, part):
        if kk >= 32:
            return
        c, ks = kk // 4, kk % 4
        if part == 0:
            a("ds_read_b128 %s, v%d offset:%d" % (vr(XF + 4 * kk, 4), XA + ks, L_X + c * 8192))
            pend.append((kk, 0))
        for half in range(2):
            a("ds_read_b64_tr_b16 %s, v%d offset:%d" % (vr(FR + (kk % 3) * 8 + part * 4 + 2 * half, 2), WA,
                                                       (c % 4) * 16384 + ks * 4096 + part * 1024 + half * 512))
            pend.append((kk, part))
    def rd_q(kk):
        if kk >= 32:
            return
        if kk % 8 == 0 and kk > 0:
            a("s_barrier")
        for half in range(2):
            a("ds_read_b64_tr_b16 %s, v%d offset:%d" % (vr(FR + (kk % 6) * 4 + 2 * half, 2), WQA,
                                                       (kk // 8) * 16384 + (kk % 8) * 2048 + half * 512))
            pend.append((100 + kk, 0))
    def wait_for(kk, part):
        last = max([i for i, (k2, p) in enumerate(pend) if k2 == kk and p == part], default=-1)
        if last >= 0:
            a("s_waitcnt lgkmcnt(%d)" % (len(pend) - 1 - last))
            del pend[:last + 1]
    if STAMP == 3:
        stamp(a, 14)
    a("s_barrier")
    if STAMP != 3:
        stamp(a, 1)
    for kk in range(2):
        rd_kv(kk, 0); rd_kv(kk, 1)
    if WQT == 1:
        wq_touch()
    for kk in range(32):
        nx = kk + 2
        if nx < 32 and nx % 4 == 0:
            c = nx // 4
            a("s_waitcnt lgkmcnt(0)")
            del pend[:]
            if STAMP == 3:
                a("s_memtime s[100:101]")
                a("s_waitcnt lgkmcnt(0)")
                a("s_mov_b32 s%d, s100" % (50 + c))
            a("s_barrier")
        x = vr(XF + 4 * kk, 4)
        cz = lambda r: ("0" if kk == 0 else vr(r, 16))
        wait_for(kk, 0)
        a("%s %s, %s, %s, %s" % (MF32, vr(ACC, 16), vr(FR + (kk % 3) * 8, 4), x, cz(ACC)))
        rd_kv(nx, 0)
        wait_for(kk, 1)
        a("%s %s, %s, %s, %s" % (MF32, vr(ACC + 16, 16), x, vr(FR + (kk % 3) * 8 + 4, 4), cz(ACC + 16)))
        rd_kv(nx, 1)
    a("s_barrier")
    LQ = 5
    for kk in range(LQ):
        rd_q(kk)
    a("s_lshl_b32 s46, s15, 1")
    a("s_add_u32 s46, s46, s21")
    a("s_lshl_b32 s48, s46, 18")
    a("s_lshl_b32 s49, s39, 11")
    a("s_add_u32 s48, s48, s49")
    a("s_add_u32 s49, s48, 131072")
    a("v_lshrrev_b32 v24, 4, v6")
    a("v_lshlrev_b32 v24, 17, v24")
    a("v_lshl_add_u32 v24, v7, 8, v24")
    a("v_and_b32 v25, 15, v0")
    a("v_lshl_add_u32 v24, v25, 4, v24")
    stamp(a, 2)
    for r in range(8):
        a("v_cvt_pk_bf16_f32 v%d, v%d, v%d" % (PK + r, ACC + 2 * r, ACC + 2 * r + 1))
    a("buffer_store_dwordx4 %s, v2, %s, s48 offen sc1" % (vr(PK, 4), WS))
    a("buffer_store_dwordx4 %s, v2, %s, s49 offen sc1" % (vr(PK + 4, 4), WS))
    for r in range(8):
        a("v_cvt_pk_bf16_f32 v%d, v%d, v%d" % (PK + 8 + r, ACC + 16 + 2 * r, ACC + 16 + 2 * r + 1))
    a("buffer_store_dwordx4 %s, v24, %s, s48 offen offset:1024 sc1" % (vr(PK + 8, 4), WS))
    a("buffer_store_dwordx4 %s, v24, %s, s48 offen offset:1536 sc1" % (vr(PK + 12, 4), WS))
    a("buffer_load_dwordx2 v[28:29], off, s[24:27], 0 sc1")
    a("s_lshl_b32 s96, s15, 12")
    a("s_lshl_b32 s97, s14, 7")
    a("s_add_u32 s96, s96, s97")
    a("s_add_u32 s96, s96, %d" % WS_FL1)
    for kk in range(32):
        if kk == QF:
            get_tag(a, "P1_TAGC", 28)
            last_wave_flag(a, "P1_FL", VM, 0, 4, 96, 30)
            del pend[:]
            stamp(a, 13)
            stamp(a, 29, True)
        wait_for(100 + kk, 0)
        a("%s %s, %s, %s, %s" % (MF32, vr(ACC + 32, 16), vr(FR + (kk % 6) * 4, 4), vr(XF + 4 * kk, 4), "0" if kk == 0 else vr(ACC + 32, 16)))
        rd_q(kk + LQ)
    CS = LOG2E * 0.25
    if STAMP != 3:
        a("s_mov_b32 s54, 0x%08x" % f32bits(CS))
        a("s_mov_b32 s55, 0x%08x" % f32bits(CS))
    a("s_lshl_b32 s22, s21, 12")
    a("s_lshl_b32 s23, s20, 10")
    a("s_add_u32 s22, s22, s23")
    a("s_add_u32 s22, s22, %d" % L_QX)
    a("v_add_u32 v24, s22, v2")
    a("s_lshl_b32 s22, s21, 9")
    a("s_lshl_b32 s23, s20, 7")
    a("s_add_u32 s22, s22, s23")
    a("s_add_u32 s22, s22, %d" % L_MX)
    a("v_lshl_add_u32 v26, v6, 2, s22")
    a("v_lshl_add_u32 v26, v7, 8, v26")
    stamp(a, 3)
    if STAMP == 3:
        for c in range(1, 8):
            a("v_mov_b32 v255, s%d" % (50 + c))
            a("s_lshl_b32 s100, s2, 3")
            a("s_add_u32 s100, s100, s19")
            a("s_lshl_b32 s100, s100, 7")
            a("s_add_u32 s100, s100, %d" % (WS_ST + (16 + c) * 4))
            a("buffer_store_dword v255, off, %s, s100" % WS)
        a("s_mov_b32 s54, 0x%08x" % f32bits(CS))
        a("s_mov_b32 s55, 0x%08x" % f32bits(CS))
    PQ = FR
    for r in range(0, 16, 2):
        a("v_pk_mul_f32 %s, %s, s[54:55]" % (vr(ACC + 32 + r, 2), vr(ACC + 32 + r, 2)))
    for r in range(8):
        a("v_cvt_pk_bf16_f32 v%d, v%d, v%d" % (PQ + r, ACC + 32 + 2 * r, ACC + 32 + 2 * r + 1))
    a("s_nop 1")
    a("%s %s, %s, %s, 0" % (MF32, vr(ACC, 16), vr(PK, 4), vr(PQ, 4)))
    a("%s %s, %s, %s, 0" % (MF32, vr(ACC + 16, 16), vr(PK + 4, 4), vr(PQ + 4, 4)))
    a("ds_write_b128 v24, %s" % vr(PQ, 4))
    a("ds_write_b128 v24, %s offset:2048" % vr(PQ + 4, 4))
    a("s_nop 9")
    m0, m1 = 92, 93
    for h, m in ((0, m0), (1, m1)):
        SS = ACC + 16 * h
        a("v_max3_f32 v%d, v%d, v%d, v%d" % (m, SS, SS + 1, SS + 2))
        for r in range(3, 15, 2):
            a("v_max3_f32 v%d, v%d, v%d, v%d" % (m, m, SS + r, SS + r + 1))
        a("v_max_f32 v%d, v%d, v%d" % (m, m, SS + 15))
    a("s_nop 1")
    a("v_permlane32_swap_b32 v%d, v%d" % (m0, m1))
    a("v_max_f32 v%d, v%d, v%d" % (m0, m0, m1))
    a("v_sub_f32 v%d, 0, v%d" % (m0, m0))
    a("ds_write_b32 v26, v%d" % m0)

    a.label("P1_DONE")
    stamp(a, 4)
    a("s_and_b32 s17, s19, 3")
    a("s_lshr_b32 s16, s19, 2")
    a("v_and_b32 v3, 15, v0")
    a("v_lshlrev_b32 v3, 4, v3")
    a("v_lshl_add_u32 v3, v7, 8, v3")
    a("s_lshl_b32 s18, s15, 2")
    a("s_add_u32 s18, s18, s17")
    a("s_lshl_b32 s22, s18, 17")
    a("s_lshl_b32 s23, s16, 16")
    a("s_add_u32 s22, s22, s23")
    a("s_lshl_b32 s95, s15, 12")
    a("s_add_u32 s95, s95, %d" % WS_FL1)
    a("s_mov_b32 s30, 0x0000ffff")
    a("s_mov_b32 s31, 0x0000ffff")
    a("s_mov_b32 s29, 0")
    a("s_cmp_lt_u32 s19, 4")
    a("s_cselect_b32 s32, 0x%x, 0" % HMASK)
    CW16, CW4, CR16, CR4, VXO, VWO, VOF, XR, GR, HFL, HLD, F3 = 168, 169, 170, 171, 172, 173, 174, 176, 184, 175, 186, 186
    srd(a, 40, P_WO, 512 * 512 * 2)
    a("v_lshrrev_b32 v4, 3, v0")
    a("v_lshlrev_b32 v4, 10, v4")
    a("v_and_b32 v5, 7, v0")
    a("v_bfe_u32 v192, v0, 4, 1")
    a("v_lshlrev_b32 v192, 2, v192")
    a("v_xor_b32 v5, v5, v192")
    a("v_lshl_add_u32 v4, v5, 4, v4")
    a("s_lshl_b32 s36, s63, 7")
    a("s_lshl_b32 s37, s19, 13")
    a("s_add_u32 s36, s36, s37")
    a("s_lshl_b32 s37, s19, 10")
    a("s_add_u32 s37, s37, %d" % L_W)
    a("s_mul_i32 s23, s19, 2304")
    a("s_add_u32 s23, s23, %d" % L_CMB)
    a("v_add_u32 v%d, s23, v2" % CW16)
    a("v_lshl_add_u32 v%d, v0, 2, s23" % CW4)
    a("s_xor_b32 s23, s19, 4")
    a("s_mul_i32 s23, s23, 2304")
    a("s_add_u32 s23, s23, %d" % L_CMB)
    a("v_add_u32 v%d, s23, v2" % CR16)
    a("v_lshl_add_u32 v%d, v0, 2, s23" % CR4)
    a("s_lshl_b32 s23, s14, 1")
    a("s_add_u32 s23, s23, s16")
    a("s_lshl_b32 s33, s23, 15")
    a("s_lshl_b32 s23, s18, 10")
    a("s_add_u32 s33, s33, s23")
    a("s_add_u32 s33, s33, %d" % WS_O)
    a("s_lshl_b32 s98, s14, 10")
    a("s_lshl_b32 s23, s15, 7")
    a("s_add_u32 s98, s98, s23")
    a("s_add_u32 s98, s98, %d" % WS_FL2)
    a("s_and_b32 s8, s19, 1")
    a("s_bfe_u32 s9, s19, 0x10001")
    a("s_lshl_b32 s4, s62, 1")
    a("s_add_u32 s4, s4, s8")
    a("s_lshl_b32 s5, s63, 7")
    a("s_lshl_b32 s23, s9, 6")
    a("s_add_u32 s5, s5, s23")
    a("s_lshl_b32 s6, s4, 15")
    a("s_add_u32 s6, s6, s5")
    a("s_lshl_b32 s7, s4, 8")
    a("s_add_u32 s7, s7, %d" % WS_G)
    a("v_lshlrev_b32 v%d, 10, v6" % VXO)
    a("v_lshl_add_u32 v%d, v7, 5, v%d" % (VXO, VXO))
    a("v_bfe_u32 v193, v0, 2, 2")
    a("v_lshl_add_u32 v192, v7, 2, v193")
    a("v_lshlrev_b32 v192, 7, v192")
    a("v_lshrrev_b32 v193, 1, v193")
    a("v_xor_b32 v193, s9, v193")
    a("v_lshl_add_u32 v192, v193, 6, v192")
    a("v_and_b32 v193, 1, v0")
    a("v_lshl_add_u32 v192, v193, 5, v192")
    a("v_bfe_u32 v193, v0, 1, 1")
    a("v_bfe_u32 v194, v0, 4, 1")
    a("v_lshl_add_u32 v193, v194, 1, v193")
    a("v_lshl_add_u32 v192, v193, 3, v192")
    a("v_add_u32 v%d, %d, v192" % (VWO, L_W))
    a("s_lshl_b32 s23, s8, 12")
    a("v_add_u32 v%d, s23, v2" % VOF)
    a("s_lshl_b32 s10, s62, 10")
    a("s_lshl_b32 s23, s17, 8")
    a("s_add_u32 s10, s10, s23")
    a("s_add_u32 s10, s10, %d" % WS_FL2)
    a("v_and_b32 v%d, 1, v0" % HFL)
    a("v_lshlrev_b32 v%d, 7, v%d" % (HFL, HFL))
    a("s_lshl_b32 s11, s62, 16")
    a("s_lshl_b32 s23, s17, 13")
    a("s_add_u32 s11, s11, s23")
    a("s_add_u32 s11, s11, %d" % WS_O)
    a("s_lshl_b32 s12, s17, 14")
    a("s_lshl_b32 s23, s17, 3")
    a("v_add_u32 v%d, s23, v%d" % (HLD, VM))
    a("v_lshlrev_b32 v5, 7, v0")
    a("s_lshl_b32 s23, s17, 1")
    a("s_add_u32 s23, s23, s16")
    a("s_lshl_b32 s28, s23, 10")
    a("s_add_u32 s28, s28, %d" % L_QX)
    a("v_add_u32 v252, s28, v2")
    a("v_xor_b32 v250, 1024, v252")
    a("s_lshl_b32 s28, s23, 7")
    a("s_add_u32 s28, s28, %d" % L_MX)
    a("v_lshl_add_u32 v253, v6, 2, s28")
    a("v_xor_b32 v251, 128, v253")
    CW16, CW4, CR16, CR4, VXO, VWO, VOF, XR, GR, HFL, HLD, F3 = 168, 169, 170, 171, 172, 173, 174, 176, 184, 175, 186, 186
    def kvb(t):
        return KV + 12 * (t % NB)
    def p2_init():
        for b in range(NB):
            for r in range(4, 12, 2):
                a("v_mov_b64 %s, 0" % vr(kvb(b) + r, 2))
        a("s_mov_b32 s34, 0x3f803f80")
        a("s_mov_b32 s35, 0x3f803f80")
        a("s_mov_b32 exec_lo, 0x00110000")
        a("s_mov_b32 exec_hi, 0x00110000")
        for b in range(NB):
            for r in range(4, 12, 2):
                a("v_mov_b64 %s, s[34:35]" % vr(kvb(b) + r, 2))
        a("s_mov_b64 exec, -1")
        for r in range(0, 32, 2):
            a("v_mov_b64 %s, 0" % vr(O + r, 2))
        a("v_mov_b64 %s, 0" % vr(P + 4, 2))
        a("v_mov_b64 %s, 0" % vr(P + 6, 2))
        a("v_mov_b64 %s, 0" % vr(S + 16 + 14, 2))
    a("s_waitcnt lgkmcnt(0)")
    p2_init()
    a("s_cmp_lg_u32 s19, 3")
    a("s_cbranch_scc1 H1_WAIT")
    a("s_mov_b32 exec_hi, 0")
    poll(a, "H1_POLL", S, 5)
    a("s_mov_b64 exec, -1")
    a.label("H1_WAIT")
    a("s_barrier")
    stamp(a, 5)
    stamp(a, 26, True)
    ev(a, 1)
    a("ds_read_b128 %s, v250" % vr(Q, 4))
    a("ds_read_b128 %s, v252" % vr(Q + 4, 4))
    a("ds_read_b32 v%d, v251" % C)
    a("ds_read_b32 v%d, v253" % (C + 16))
    a.label("P2_START")
    a("buffer_load_dwordx4 %s, v2, %s, s22 offen sc1" % (vr(kvb(0), 4), WS))
    a("s_mov_b32 s28, s22")
    def ld_k(t):
        a("buffer_load_dwordx4 %s, v2, %s, s28 offen offset:2048 sc1" % (vr(kvb(t), 4), WS))
    def ld_v(t):
        a("s_mov_b64 exec, s[30:31]")
        a("buffer_load_dwordx4 %s, v3, %s, s28 offen offset:1024 sc1" % (vr(kvb(t) + 4, 4), WS))
        a("buffer_load_dwordx4 %s, v3, %s, s28 offen offset:1536 sc1" % (vr(kvb(t) + 8, 4), WS))
        a("s_mov_b64 exec, -1")
        a("s_add_u32 s28, s28, 2048")
    for i in range(1, NB):
        ld_k(i)
        ld_v(i - 1)
        if (i - NB) % 4 == 0 and not NOWO:
            a("buffer_load_dword v255, off, %s, s22" % WS)
    a("s_mov_b32 s23, 0")
    a("s_waitcnt lgkmcnt(0)")
    for j in range(2):
        a("v_mov_b32 v%d, v%d" % (C + 16 * j + 1, C + 16 * j))
        for r in range(2, 16, 2):
            a("v_mov_b64 %s, %s" % (vr(C + 16 * j + r, 2), vr(C + 16 * j, 2)))
    a("s_waitcnt vmcnt(%d)" % (3 * (NB - 1)))
    a("%s %s, %s, %s, %s" % (MF32, vr(S, 16), vr(kvb(0), 4), vr(Q, 4), vr(C, 16)))
    a("s_waitcnt vmcnt(%d)" % (3 * (NB - 2)))
    a("s_nop 11")
    a("v_exp_f32 v%d, v%d" % (S, S))
    if not TOUCH:
        stamp(a, 6)

    def main_loop(sfx, older):
        a.raw(".p2align 6")
        a.label("P2_LOOP" + sfx)
        pos = [0]
        def mark():
            pos[0] += 1
            if older and PRIO and pos[0] % 24 == (24 - PRIO + 1) % 24:
                a("s_setprio 0")
            if older and PRIO and pos[0] % 24 == 1 and pos[0] > 1:
                a("s_setprio 1")
        for t in range(NB):
            for j in range(2):
                cur = S + 16 * j
                prv = S + 16 * (j ^ 1)
                nxt = prv
                E = lambda r: a("v_exp_f32 v%d, v%d" % (cur + r, cur + r))
                CV = lambda r: a("v_cvt_pk_bf16_f32 v%d, v%d, v%d" % (P + r // 2, cur + r, cur + r + 1))
                pb = kvb(t) if j == 1 else kvb(t - 1)
                nb = kvb(t) if j == 0 else kvb(t + 1)
                a("v_cvt_pk_bf16_f32 v%d, v%d, v%d" % (P + 7, prv + 14, prv + 15))
                if j == 1:
                    nwo = 0 if NOWO else sum(1 for k in range(t - (NB - 2), t) if k % 4 == 0)
                    a("s_waitcnt vmcnt(%d)" % (3 * (NB - 2) + nwo))
                    if t % 4 == 0:
                        if not NOWO:
                            a("s_lshl_b32 s3, s38, 13")
                            a("s_add_u32 m0, s3, s37")
                            a("s_lshl3_add_u32 s3, s3, s36")
                            a("buffer_load_dwordx4 v4, s[40:43], s3 offen lds")
                            a("s_add_u32 s38, s38, 1")
                            a("s_and_b32 s38, s38, 7")
                        if older:
                            a("s_bitcmp1_b32 s32, s23")
                            a("s_cbranch_scc1 P2_HOOK")
                            a.label("P2_HRET%d" % (t // 4))
                        a("s_add_u32 s23, s23, 1")
                mark()
                a("%s %s, %s, %s, %s" % (MF32, vr(nxt, 16), vr(nb, 4), vr(Q + 4 * (j ^ 1), 4), vr(C + 16 * (j ^ 1), 16)))
                if j == 0:
                    ld_k(t)
                E(1); E(2); CV(0); E(3); E(4); CV(2); E(5)
                mark()
                a("%s %s, %s, %s, %s" % (MF32, vr(O + 16 * (j ^ 1), 16), vr(pb + 8, 4), vr(P + 4, 4), vr(O + 16 * (j ^ 1), 16)))
                if j == 0:
                    ld_v(t - 1)
                E(6); CV(4); E(7); E(8); CV(6); E(9); E(10)
                mark()
                a("%s %s, %s, %s, %s" % (MF32, vr(O + 16 * j, 16), vr(kvb(t) + 4, 4), vr(P, 4), vr(O + 16 * j, 16)))
                CV(8); E(11); E(12); CV(10); E(13); E(14); CV(12); E(15)
                a("v_exp_f32 v%d, v%d" % (nxt, nxt))
        if older and PRIO:
            a("s_setprio 1")
        if STAMP == 1:
            a("s_memtime s[100:101]")
            a("s_waitcnt lgkmcnt(0)")
            a("v_mov_b32 v255, s100")
            a("s_lshl_b32 s100, s2, 3")
            a("s_add_u32 s100, s100, s19")
            a("s_lshl_b32 s100, s100, 5")
            a("s_add_u32 s100, s100, s23")
            a("s_lshl_b32 s100, s100, 2")
            a("s_add_u32 s100, s100, %d" % (WS_ST + 15 * 4))
            a("buffer_store_dword v255, off, %s, s100" % WS)
        a("s_cmp_lt_u32 s23, 8")
        a("s_cbranch_scc1 P2_LOOP" + sfx)
    if PRIO:
        a("s_setprio 1")
    a("s_cmp_ge_u32 s19, 4")
    a("s_cbranch_scc1 P2_LOOPB")
    main_loop("A", True)
    a("s_branch P2_DRAIN")
    main_loop("B", False)
    a.label("P2_DRAIN")
    a("v_cvt_pk_bf16_f32 v%d, v%d, v%d" % (P + 7, S + 16 + 14, S + 16 + 15))
    a("ds_write_b128 v%d, %s" % (CW16, vr(O, 4)))
    a("ds_write_b32 v%d, v%d offset:2048" % (CW4, O + 8))
    a("%s %s, %s, %s, %s" % (MF32, vr(O + 16, 16), vr(kvb(NB - 1) + 8, 4), vr(P + 4, 4), vr(O + 16, 16)))
    a("ds_write_b128 v%d, %s offset:1024" % (CW16, vr(O + 4, 4)))
    stamp(a, 7)
    stamp(a, 27, True)
    ev(a, 2)
    a("s_mov_b32 s28, 0x4f800000")
    a("s_nop 9")
    a("v_max_f32 v%d, v%d, v%d" % (S, O + 8, O + 24))
    a("v_cmp_u_f32 s[56:57], v%d, v%d" % (O + 8, O + 24))
    a("v_cmp_lt_f32 vcc, s28, v%d" % S)
    a("s_nop 3")
    a("s_or_b64 s[56:57], s[56:57], vcc")
    a("s_cbranch_scc0 P2_NOFLAG")
    a("v_mov_b32 v%d, 1" % S)
    a("ds_write_b32 v%d, v%d offset:8" % (VM, S))
    a.label("P2_NOFLAG")
    a("s_waitcnt lgkmcnt(0)")
    a("s_barrier")
    a("ds_read_b32 v%d, v%d offset:8" % (S + 1, VM))
    a("ds_read_b32 v%d, v%d offset:2048" % (O + 8, CR4))
    a("ds_read_b128 %s, v%d" % (vr(O, 4), CR16))
    a("ds_read_b128 %s, v%d offset:1024" % (vr(O + 4, 4), CR16))
    a("s_waitcnt lgkmcnt(2)")
    a("v_readfirstlane_b32 s23, v%d" % (S + 1))
    a("v_add_f32 v%d, v%d, v%d" % (O + 8, O + 8, O + 24))
    a("v_rcp_f32 v%d, v%d" % (O + 8, O + 8))
    a("s_cmp_gt_u32 s23, s29")
    a("s_cbranch_scc1 P2_EXACT")
    a("v_mov_b32 v%d, v%d" % (O + 9, O + 8))
    a("s_waitcnt lgkmcnt(0)")
    for r in range(0, 8, 2):
        a("v_pk_add_f32 %s, %s, %s" % (vr(O + r, 2), vr(O + r, 2), vr(O + 16 + r, 2)))
    for r in range(0, 8, 2):
        a("v_pk_mul_f32 %s, %s, %s" % (vr(O + r, 2), vr(O + r, 2), vr(O + 8, 2)))
    for r in range(4):
        a("v_cvt_pk_bf16_f32 v%d, v%d, v%d" % (O + 16 + r, O + 2 * r, O + 2 * r + 1))
    a("buffer_store_dwordx4 %s, v2, %s, s33 offen sc1" % (vr(O + 16, 4), WS))
    stamp(a, 8)

    YR = 96
    a("s_and_b32 s21, s%d, 0xffff" % S_KEY)
    a("s_cmp_lt_u32 s19, 4")
    a("s_cbranch_scc1 P3_MUL")
    a("buffer_load_dword v8, v%d, %s, s10 offen sc1" % (HFL, WS))
    a("v_mov_b32 v10, 1")
    a("s_mov_b32 s22, 0")
    a("s_mov_b32 s13, 0")
    a("s_mov_b32 s94, 0")
    a("s_waitcnt vmcnt(0)")
    last_wave_flag(a, "P3_FLB", VM, 16, 8, 98, 12)
    stamp(a, 9)
    stamp(a, 30, True)
    a.label("P3_HL")
    a("v_cmp_eq_u32 vcc, s%d, v8" % S_TAG)
    a("s_add_u32 s94, s94, 1")
    a("s_cmp_ge_u32 s94, 0x8000")
    a("s_cselect_b32 s23, 3, vcc_lo")
    a("s_and_b32 s23, s23, 3")
    a("s_andn2_b32 s23, s23, s22")
    a("s_or_b32 s22, s22, s23")
    a("s_cmp_eq_u32 s22, 3")
    a("s_cbranch_scc1 P3_HN")
    a("buffer_load_dword v8, v%d, %s, s10 offen sc1" % (HFL, WS))
    a.label("P3_HN")
    for q in range(2):
        a("s_bitcmp1_b32 s23, %d" % q)
        a("s_cbranch_scc0 P3_HS%d" % q)
        for t in range(2):
            a("s_add_u32 m0, s12, %d" % (L_X + q * 8192 + t * 4096))
            a("s_add_u32 s3, s11, %d" % (q * 4096 + t * 32768))
            for i in range(4):
                a("buffer_load_dwordx4 v2, %s, s3 offen offset:%d sc1 lds" % (WS, i * 1024))
        a.label("P3_HS%d" % q)
    a("s_cmp_eq_u32 s22, 3")
    a("s_cbranch_scc1 P3_HE")
    a("s_cmp_eq_u32 s23, 0")
    a("s_cbranch_scc1 P3_HW")
    a("s_waitcnt vmcnt(8)")
    a("s_branch P3_HL")
    a.label("P3_HW")
    a("s_waitcnt vmcnt(0)")
    a("s_cmp_eq_u32 s13, s22")
    a("s_cbranch_scc1 P3_HL")
    a("s_mov_b32 s13, s22")
    a("s_lshr_b32 s3, s22, 1")
    a("s_lshl_b32 s3, s3, 2")
    a("v_add_u32 v9, s3, v%d" % HLD)
    a("ds_write_b32 v9, v10 offset:32")
    a("s_branch P3_HL")
    a.label("P3_HE")
    stamp(a, 10)
    stamp(a, 28, True)
    a("s_cmp_eq_u32 s23, 1")
    a("s_cselect_b32 s3, 4, 0")
    a("v_add_u32 v9, s3, v%d" % HLD)
    a("s_waitcnt vmcnt(8)")
    a("ds_write_b32 v9, v10 offset:32")
    a("s_waitcnt vmcnt(0)")
    a("ds_write_b32 v%d, v10 offset:32" % HLD)
    a("ds_write_b32 v%d, v10 offset:36" % HLD)
    a("s_endpgm")
    a.label("P3_MUL")
    a("s_sub_u32 s21, 0xffff, s21")
    a("s_lshr_b32 s20, s21, 5")
    ACC3, OB, B, YR = 16, 32, 80, 96
    def wof(h):
        return (190 + 4 * h) if h < 16 else (120 + 4 * (h - 16)) if h < 28 else (104 + 4 * (h - 28))
    def rd_wo(h):
        a("ds_read_b64_tr_b16 %s, v%d offset:%d" % (vr(wof(h), 2), VWO, h * 2048))
        a("ds_read_b64_tr_b16 %s, v%d offset:%d" % (vr(wof(h) + 2, 2), VWO, h * 2048 + 1024))
    for h in list(range(16)) + list(range(28, 32)):
        rd_wo(h)
    srd(a, 44, P_OUT, 2048 * 512 * 2)
    for i in range(8):
        a("v_lshlrev_b32 v%d, 16, v%d" % (B + 2 * i, XR + i))
        a("v_and_b32 v%d, 0xffff0000, v%d" % (B + 2 * i + 1, XR + i))
    for r in range(0, 16, 2):
        a("v_mov_b64 %s, 0" % vr(ACC3 + r, 2))
    a("v_and_b32 v5, 7, v0")
    a("v_lshl_add_u32 v5, v5, 2, v%d" % VM)
    a("s_waitcnt vmcnt(0)")
    last_wave_flag(a, "P3_FLA", VM, 16, 8, 98, 8)
    stamp(a, 9)
    stamp(a, 30, True)
    for h in range(16, 28):
        rd_wo(h)
    a("s_cmp_eq_u32 s20, s4")
    a("s_cbranch_scc1 P3_YJOB")
    a.label("P3_YD")
    for i in range(16):
        a("v_mul_f32 v%d, v%d, v%d" % (B + i, B + i, GR + 1))
    a("s_mov_b32 s22, 0")
    a("s_mov_b32 s94, 0")
    a.label("P3_ROUND")
    a("ds_read_b32 v8, v5 offset:32")
    a("s_add_u32 s94, s94, 1")
    a("s_waitcnt lgkmcnt(0)")
    a("v_cmp_ne_u32 vcc, 0, v8")
    a("s_cmp_ge_u32 s94, 0x400000")
    a("s_cbranch_scc1 P3_FIN")
    a("s_and_b32 s23, vcc_lo, 0xff")
    a("s_andn2_b32 s23, s23, s22")
    a("s_cbranch_scc0 P3_ROUND")
    def rd_o(g):
        for i in range(4):
            a("ds_read_b128 %s, v%d offset:%d" % (vr(OB + 16 * (g & 1) + 4 * i, 4), VOF, L_X + g * 8192 + i * 1024))
    for g in range(8):
        a("s_bitcmp1_b32 s23, %d" % g)
        a("s_cbranch_scc0 P3_SK%d" % g)
        if g > 0:
            a("s_bitcmp1_b32 s23, %d" % (g - 1))
            a("s_cbranch_scc1 P3_HV%d" % g)
        rd_o(g)
        a.label("P3_HV%d" % g)
        if g < 7:
            rd_o(g + 1)
        for i in range(4):
            a("s_waitcnt lgkmcnt(%d)" % ((4 if g < 7 else 0) + 3 - i))
            a("%s %s, %s, %s, %s" % (MF32, vr(ACC3, 16), vr(wof(4 * g + i), 4), vr(OB + 16 * (g & 1) + 4 * i, 4), vr(ACC3, 16)))
        a.label("P3_SK%d" % g)
    a("s_or_b32 s22, s22, s23")
    a("s_cmp_lg_u32 s22, 0xff")
    a("s_cbranch_scc1 P3_ROUND")
    a.label("P3_FIN")
    stamp(a, 11)
    a("s_nop 10")
    for i in range(16):
        a("v_fma_f32 v%d, v%d, v%d, v%d" % (B + i, ACC3 + i, GR, B + i))
        if i % 2 == 1:
            a("v_cvt_pk_bf16_f32 v%d, v%d, v%d" % (XR + i // 2, B + i - 1, B + i))
        if i == 8:
            a("buffer_store_dwordx4 %s, v%d, s[44:47], s6 offen" % (vr(XR, 4), VXO))
    a("buffer_store_dwordx4 %s, v%d, s[44:47], s6 offen offset:16" % (vr(XR + 4, 4), VXO))
    stamp(a, 12)
    stamp(a, 25, True)
    if SPAN:
        ev(a, 3)
        a("s_lshl_b32 s3, s2, 3")
        a("s_add_u32 s3, s3, s19")
        a("s_cmp_lg_u32 s3, %d" % (77 * 8))
        a("s_cbranch_scc1 L_END")
        a("s_sub_u32 s13, s99, s13")
        a("s_min_u32 s13, s13, 10000")
        a("s_mul_i32 s13, s13, 10")
        a("s_memrealtime s[20:21]")
        a.label("SP_LOOP")
        a("s_memrealtime s[22:23]")
        a("s_waitcnt lgkmcnt(0)")
        a("s_sub_u32 s17, s22, s20")
        a("s_cmp_lt_u32 s17, s13")
        a("s_cbranch_scc1 SP_LOOP")
    a.label("L_END")
    a("s_endpgm")

    def ld_fl3(va=252):
        a("v_lshlrev_b32 v%d, 7, v0" % va)
        for i in range(4):
            a("s_mov_b32 s3, %d" % (WS_FL3 + i * 8192))
            a("buffer_load_dword v%d, v%d, %s, s3 offen sc1" % (F3 + i, va, WS))
    a.label("P3_YJOB")
    a("s_mov_b32 s94, 0")
    a.label("P3_ALL")
    for i in range(4):
        a("v_xor_b32 v%d, s%d, v%d" % (F3 + i, S_TAG, F3 + i))
    a("v_or3_b32 v%d, v%d, v%d, v%d" % (F3, F3, F3 + 1, F3 + 2))
    a("v_or_b32 v%d, v%d, v%d" % (F3, F3, F3 + 3))
    a("v_cmp_ne_u32 vcc, 0, v%d" % F3)
    a("s_add_u32 s94, s94, 1")
    a("s_cmp_ge_u32 s94, 0x8000")
    a("s_cbranch_scc1 P3_ALLD")
    a("s_cbranch_vccz P3_ALLD")
    ld_fl3(13)
    a("s_waitcnt vmcnt(0)")
    a("s_branch P3_ALL")
    a.label("P3_ALLD")
    a("v_lshrrev_b32 v12, 2, v0")
    a("v_and_b32 v13, 3, v0")
    a("v_lshlrev_b32 v14, 7, v12")
    a("v_lshl_add_u32 v14, v13, 4, v14")
    a("v_lshlrev_b32 v12, 11, v12")
    a("v_lshl_add_u32 v12, v13, 4, v12")
    a("s_lshr_b32 s30, s5, 8")
    a("s_lshl_b32 s30, s30, 9")
    a("s_and_b32 s31, s5, 255")
    a("s_add_u32 s30, s30, s31")
    a("s_add_u32 s30, s30, %d" % WS_Y)
    a("buffer_load_dwordx4 %s, v12, %s, s30 offen sc1" % (vr(YR, 4), WS))
    a("buffer_load_dwordx4 %s, v12, %s, s30 offen offset:256 sc1" % (vr(YR + 4, 4), WS))
    a("s_mul_i32 s30, s19, 2304")
    a("s_add_u32 s30, s30, %d" % L_QX)
    a("v_add_u32 v14, s30, v14")
    a("s_waitcnt vmcnt(0)")
    a("ds_write_b128 v14, %s" % vr(YR, 4))
    a("ds_write_b128 v14, %s offset:64" % vr(YR + 4, 4))
    a("v_lshlrev_b32 v14, 10, v7")
    a("v_lshl_add_u32 v14, v6, 2, v14")
    a("v_add_u32 v14, s30, v14")
    a("s_waitcnt lgkmcnt(0)")
    for i in range(8):
        a("ds_read_b32 v%d, v14 offset:%d" % (YR + i, i * 128))
    a("s_and_b32 s31, s%d, 0xffff0000" % S_KEY)
    a("s_ashr_i32 s28, s31, 31")
    a("s_not_b32 s28, s28")
    a("s_or_b32 s28, s28, 0x80000000")
    a("s_xor_b32 s31, s31, s28")
    a("s_and_b32 s31, s31, 0xffff0000")
    a("v_mov_b32 v15, s31")
    sigmoid_bf16(a, 15)
    a("s_waitcnt lgkmcnt(0)")
    for i in range(1, 8):
        a("v_add_f32 v%d, v%d, v%d" % (YR, YR, YR + i))
    a("v_mov_b32 v%d, v%d" % (YR + 1, YR))
    a("v_and_b32 v14, 15, v0")
    a("v_lshlrev_b32 v14, 3, v14")
    a("v_permlane32_swap_b32 v%d, v%d" % (YR, YR + 1))
    a("v_add_f32 v%d, v%d, v%d" % (YR, YR, YR + 1))
    bf16_round_to_f32(a, YR, YR)
    a("v_mul_f32 v%d, v%d, v15" % (YR, YR))
    bf16_round_to_f32(a, YR, YR)
    a("v_bfe_u32 v15, v0, 4, 1")
    a("v_lshl_add_u32 v14, v15, 2, v14")
    a("v_add_u32 v14, s30, v14")
    a("ds_write_b32 v14, v%d offset:2048" % YR)
    a("v_lshl_add_u32 v14, v7, 6, s30")
    for i in range(4):
        a("ds_read_b128 %s, v14 offset:%d" % (vr(OB + 4 * i, 4), 2048 + i * 16))
    a("s_and_b32 s30, s21, 31")
    a("v_cmp_eq_u32 vcc, s30, v6")
    a("s_waitcnt lgkmcnt(0)")
    a("s_and_saveexec_b64 s[48:49], vcc")
    for i in range(16):
        a("v_add_f32 v%d, v%d, v%d" % (B + i, B + i, OB + i))
        bf16_round_to_f32(a, B + i, B + i)
    a("s_mov_b64 exec, s[48:49]")
    a("s_branch P3_YD")

    a.label("P2_HRET")
    if NB == 8:
        a("s_bitcmp1_b32 s23, 0")
        a("s_cbranch_scc1 P2_HRET1")
    a("s_branch P2_HRET0")
    def gu_base():
        a("s_cmp_lt_u32 s19, 2")
        a("s_cselect_b32 s44, s%d, s%d" % (P_WG, P_WU))
        a("s_cselect_b32 s45, s%d, s%d" % (P_WG + 1, P_WU + 1))
        a("s_and_b32 s52, s2, 7")
        a("s_mul_i32 s52, s52, %d" % (64 * 3584))
        a("s_lshr_b32 s53, s2, 3")
        a("s_lshl_b32 s53, s53, 7")
        a("s_add_u32 s52, s52, s53")
    def warm_gu(lo, hi):
        if not WARM:
            return
        gu_base()
        a("s_and_b32 s53, s19, 1")
        a("s_mul_i32 s53, s53, %d" % (32 * 3584))
        a("s_add_u32 s52, s52, s53")
        a("s_add_u32 s44, s44, s52")
        a("s_addc_u32 s45, s45, 0")
        for i in range(lo, hi):
            a("s_load_dword s99, s[44:45], 0x%x" % (i * 3584))
    def warm_wd(lo, hi):
        if not WARM:
            return
        a("s_lshl_b32 s52, s2, 13")
        a("s_lshl_b32 s53, s19, 8")
        a("s_add_u32 s52, s52, s53")
        a("s_add_u32 s44, s%d, s52" % P_WD)
        a("s_addc_u32 s45, s%d, 0" % (P_WD + 1))
        for i in range(lo, hi):
            a("s_load_dword s99, s[44:45], 0x%x" % ((i // 2) * 1024 + (i % 2) * 128))
    def only_ffn():
        a("s_cmp_ge_u32 s2, 224")
        a("s_cbranch_scc1 P2_HRET")
    def check_tags(name, regs, reload):
        a("s_mov_b32 s94, 0")
        a.label(name + "L")
        a("v_cmp_ne_u32 vcc, s%d, v%d" % (S_TAG, regs[0]))
        for r in regs[1:]:
            a("v_cmp_ne_u32 s[52:53], s%d, v%d" % (S_TAG, r))
            a("s_nop 1")
            a("s_or_b64 vcc, vcc, s[52:53]")
        a("s_add_u32 s94, s94, 1")
        a("s_cmp_ge_u32 s94, 0x8000")
        a("s_cbranch_scc1 %sD" % name)
        a("s_cbranch_vccz %sD" % name)
        reload()
        a("s_waitcnt vmcnt(0)")
        a("s_branch %sL" % name)
        a.label(name + "D")
    def ld_keys():
        a("v_lshlrev_b32 v5, 3, v0")
        a("s_mov_b32 s3, %d" % WS_RK)
        a("buffer_load_dwordx2 %s, v5, %s, s3 offen sc1" % (vr(DD, 2), WS))
    def job_argmax():
        check_tags("P2_CK", [DD + 1], ld_keys)
        for sh in (1, 2, 4, 8):
            a("v_max_u32_dpp v%d, v%d, v%d row_ror:%d row_mask:0xf bank_mask:0xf" % (DD, DD, DD, sh))
            a("s_nop 1")
        for i in range(4):
            a("v_readlane_b32 s%d, v%d, %d" % (52 + i, DD, 16 * i))
        srd(a, 44, P_X, 2048 * 512 * 2)
        a("s_max_u32 s52, s52, s53")
        a("s_max_u32 s54, s54, s55")
        a("s_max_u32 s52, s52, s54")
        a("s_mov_b32 s%d, s52" % S_KEY)
        a("s_cmp_lt_u32 s2, 224")
        a("s_cselect_b32 s32, s32, 0xc0")
        only_ffn()
        a("s_and_b32 s52, s52, 0xffff")
        a("s_sub_u32 s52, 0xffff, s52")
        a("s_and_b32 s52, s52, 2047")
        a("s_lshl_b32 s52, s52, 10")
        a("s_and_b32 s53, s2, 7")
        a("s_lshl_b32 s53, s53, 7")
        a("s_add_u32 s52, s52, s53")
        a("v_lshrrev_b32 v5, 4, v0")
        a("v_lshlrev_b32 v5, 4, v5")
        for s_ in range(2):
            a("buffer_load_dwordx4 %s, v5, s[44:47], s52 offen offset:%d" % (vr(XS + 4 * s_, 4), 64 * s_))
    def job_gu(lo, hi):
        only_ffn()
        gu_base()
        a("s_and_b32 s45, s45, 0xffff")
        a("s_mov_b32 s46, 0x%x" % (512 * 1792 * 2))
        a("s_mov_b32 s47, 0x00020000")
        a("v_lshrrev_b32 v5, 2, v0")
        a("v_mul_u32_u24 v5, 3584, v5")
        a("v_and_b32 v252, 3, v0")
        a("v_lshl_add_u32 v5, v252, 4, v5")
        a("s_and_b32 s53, s19, 1")
        a("s_lshl_b32 s53, s53, 6")
        a("s_add_u32 s52, s52, s53")
        a("s_lshl_b32 s54, s19, 12")
        for i in range(lo, hi):
            a("s_add_u32 m0, s54, %d" % (L_FFW + i * 1024))
            a("s_add_u32 s53, s52, %d" % (i * 16 * 3584))
            a("buffer_load_dwordx4 v5, s[44:47], s53 offen lds")
    def job_wd():
        srd(a, 48, P_WD, 1792 * 512 * 2)
        a("s_lshl_b32 s52, s2, 13")
        a("s_lshl_b32 s53, s19, 8")
        a("s_add_u32 s52, s52, s53")
        a("v_lshlrev_b32 v5, 2, v0")
        a("s_add_u32 s53, s52, 4096")
        for f in range(8):
            a("buffer_load_dword v%d, v5, s[48:51], s%d offen offset:%d" % (WD + f, 52 + f // 4, (f % 4) * 1024))
    def job_part():
        a("v_lshrrev_b32 v5, 4, v0")
        a("v_lshlrev_b32 v5, 9, v5")
        a("v_bfe_u32 v252, v0, 2, 2")
        a("v_lshl_add_u32 v5, v252, 6, v5")
        a("v_and_b32 v252, 3, v0")
        a("v_lshl_add_u32 v5, v252, 3, v5")
        a("s_lshl_b32 s52, s19, 12")
        a("s_add_u32 s52, s52, %d" % L_FFW)
        a("v_add_u32 v5, s52, v5")
        for ct in range(2):
            for s_ in range(2):
                for half in range(2):
                    a("ds_read_b64_tr_b16 %s, v5 offset:%d" % (vr(BF + 4 * s_ + 2 * half, 2), ct * 32 + s_ * 2048 + half * 256))
            a("s_waitcnt lgkmcnt(0)")
            a("%s %s, %s, %s, 0" % (MF16, vr(DD + 4 * ct, 4), vr(XS, 4), vr(BF, 4)))
            a("%s %s, %s, %s, %s" % (MF16, vr(DD + 4 * ct, 4), vr(XS + 4, 4), vr(BF + 4, 4), vr(DD + 4 * ct, 4)))
        a("v_lshlrev_b32 v5, 3, v0")
        a("s_lshl_b32 s52, s2, 10")
        a("s_lshl_b32 s53, s19, 8")
        a("s_add_u32 s52, s52, s53")
        a("s_add_u32 s52, s52, %d" % WS_PA)
        a("s_nop 3")
        a("v_mov_b32 v%d, s%d" % (DD + 1, S_TAG))
        a("s_mov_b32 exec_hi, 0")
        a("s_mov_b32 exec_lo, 0xffff0000")
        a("v_mov_b32 v%d, v%d" % (DD, DD + 4))
        a("s_mov_b32 exec_lo, -1")
        a("buffer_store_dwordx2 %s, v5, %s, s52 offen sc1" % (vr(DD, 2), WS))
        a("s_mov_b64 exec, -1")
    def ld_part():
        a("v_lshrrev_b32 v5, 3, v0")
        a("v_lshlrev_b32 v5, 10, v5")
        a("v_and_b32 v252, 7, v0")
        a("v_lshl_add_u32 v5, v252, 3, v5")
        a("s_lshr_b32 s3, s2, 3")
        a("s_lshl_b32 s3, s3, 13")
        a("s_and_b32 s54, s2, 7")
        a("s_lshl_b32 s54, s54, 6")
        a("s_add_u32 s3, s3, s54")
        a("s_add_u32 s3, s3, %d" % WS_PA)
        a("buffer_load_dwordx2 %s, v5, %s, s3 offen sc1" % (vr(T, 2), WS))
        a("buffer_load_dwordx2 %s, v5, %s, s3 offen offset:512 sc1" % (vr(T + 2, 2), WS))
    def job_final():
        check_tags("P2_CP", [T + 1, T + 3], ld_part)
        G_, U_ = T, T + 2
        for r in (G_, U_):
            a("v_add_f32_dpp v%d, v%d, v%d row_ror:8 row_mask:0xf bank_mask:0xf" % (r, r, r))
        for op in ("v_permlane16_swap_b32", "v_permlane32_swap_b32"):
            for r in (G_, U_):
                a("v_mov_b32 v%d, v%d" % (r + 1, r))
            a("s_nop 0")
            for r in (G_, U_):
                a("%s v%d, v%d" % (op, r, r + 1))
            for r in (G_, U_):
                a("v_add_f32 v%d, v%d, v%d" % (r, r, r + 1))
        bf16_round_to_f32(a, G_, G_)
        bf16_round_to_f32(a, U_, U_)
        a("v_mul_f32 v%d, 0x%08x, v%d" % (T + 1, f32bits(-LOG2E), G_))
        a("v_exp_f32 v%d, v%d" % (T + 1, T + 1))
        a("v_mov_b32 v%d, 0" % (T + 4))
        a("v_add_f32 v%d, 1.0, v%d" % (T + 1, T + 1))
        a("v_rcp_f32 v%d, v%d" % (T + 1, T + 1))
        a("v_mov_b32 v%d, 0" % (T + 5))
        a("v_mul_f32 v%d, v%d, v%d" % (T + 1, T + 1, G_))
        bf16_round_to_f32(a, T + 1, T + 1)
        a("v_mul_f32 v%d, v%d, v%d" % (T + 1, T + 1, U_))
        a("v_cvt_pk_bf16_f32 v%d, v%d, v%d" % (T + 1, T + 1, T + 4))
        a("v_lshlrev_b32 v5, 2, v0")
        for i in range(8):
            a("v_readlane_b32 s%d, v%d, %d" % (44 + i, T + 1, i))
        a("s_lshl_b32 s60, s19, 9")
        a("s_and_b32 s61, s2, 15")
        a("s_lshl_b32 s61, s61, 11")
        a("s_add_u32 s60, s60, s61")
        a("s_add_u32 s60, s60, %d" % WS_Y)
        for i in range(8):
            a("s_lshl_b32 s%d, s%d, 16" % (52 + i, 44 + i))
        for i in range(8):
            a("v_dot2_f32_bf16 v%d, v%d, s%d, v%d" % (T + 4, WD + i, 44 + i, T + 4))
            a("v_dot2_f32_bf16 v%d, v%d, s%d, v%d" % (T + 5, WD + i, 52 + i, T + 5))
        a("s_nop 3")
        a("buffer_atomic_add_f32 v%d, v5, %s, s60 offen" % (T + 4, WS))
        a("buffer_atomic_add_f32 v%d, v5, %s, s60 offen offset:256" % (T + 5, WS))
    def job_tail():
        a("s_lshl_b32 s3, s2, 7")
        a("s_add_u32 s3, s3, %d" % WS_FL3)
        a("s_waitcnt vmcnt(0)")
        last_wave_flag(a, "P2_FL3", VM, 12, 4, 3, 5)
        srd(a, 44, P_X, 2048 * 512 * 2)
        a("buffer_load_dwordx4 %s, v%d, s[44:47], s6 offen" % (vr(XR, 4), VXO))
        a("buffer_load_dwordx4 %s, v%d, s[44:47], s6 offen offset:16" % (vr(XR + 4, 4), VXO))
        a("v_lshlrev_b32 v252, 3, v6")
        a("buffer_load_dwordx2 %s, v252, %s, s7 offen sc1" % (vr(GR, 2), WS))
    def job_key():
        a("s_cmp_eq_u32 s39, -1")
        a("s_cbranch_scc1 P2_NOKEY")
        a("s_lshl_b32 s3, s39, 3")
        a("s_add_u32 s3, s3, %d" % WS_RK)
        a("v_mov_b32 v%d, s%d" % (DD, S_KEY))
        a("v_mov_b32 v%d, s%d" % (DD + 1, S_TAG))
        a("s_waitcnt vmcnt(0)")
        a("s_mov_b64 exec, 1")
        a("buffer_store_dwordx2 %s, off, %s, s3 sc1" % (vr(DD, 2), WS))
        a("s_mov_b64 exec, -1")
        a.label("P2_NOKEY")
    def job_own():
        a("s_and_b32 s52, s%d, 0xffff" % S_KEY)
        a("s_sub_u32 s52, 0xffff, s52")
        a("s_lshr_b32 s52, s52, 5")
        a("s_cmp_lg_u32 s52, s4")
        a("s_cbranch_scc1 P2_HRET")
        ld_fl3()
    if NB == 4:
        plans = {
            0: {0: [job_key], 1: [ld_keys, lambda: job_gu(0, 2)], 2: [job_argmax, lambda: job_gu(2, 4)], 3: [job_part, job_wd], 4: [ld_part], 5: [job_final], 6: [job_tail], 7: [job_own]},
            2: {0: [job_key, lambda: job_gu(0, 1)], 1: [ld_keys, lambda: job_gu(1, 3)], 2: [job_argmax, lambda: job_gu(3, 4)], 3: [job_part, job_wd], 4: [ld_part], 5: [job_final], 6: [job_tail], 7: [job_own]},
            1: {1: [ld_keys, lambda: job_gu(0, 1)], 2: [job_argmax, lambda: job_gu(1, 2)], 3: [lambda: job_gu(2, 4)], 4: [job_part], 5: [job_wd], 6: [ld_part], 7: [job_final]},
        }
    else:
        plans = {
            0: {0: [ld_keys], 1: [lambda: job_gu(0, 4)], 2: [job_argmax], 3: [job_wd], 4: [job_part], 5: [ld_part], 7: [job_final]},
        }
    plan = plans[PLAN]
    a.label("P2_HOOK")
    for st in plan:
        a("s_cmp_eq_u32 s23, %d" % st)
        a("s_cbranch_scc1 P2_J%d" % st)
    a("s_branch P2_HRET")
    for st, jobs in plan.items():
        a.label("P2_J%d" % st)
        for jb in jobs:
            jb()
        a("s_branch P2_HRET")

    a.label("P2_EXACT")
    a("s_mov_b32 s29, 1")
    a("s_mov_b32 s32, 0")
    a("s_mov_b32 s23, 0xff800000")
    for j in range(2):
        a("v_mov_b32 v%d, s23" % (T + j))
    a("s_mov_b32 s28, s22")
    a("s_mov_b32 s23, 0")
    a("s_waitcnt vmcnt(0) lgkmcnt(0)")
    a.label("P2_EXLOOP")
    a("buffer_load_dwordx4 %s, v2, %s, s28 offen sc1" % (vr(KV, 4), WS))
    a("s_waitcnt vmcnt(0)")
    for j in range(2):
        a("%s %s, %s, %s, 0" % (MF32, vr(S, 16), vr(KV, 4), vr(Q + 4 * j, 4)))
        a("s_nop 15")
        for r in range(0, 16, 2):
            a("v_max3_f32 v%d, v%d, v%d, v%d" % (T + j, T + j, S + r, S + r + 1))
    a("s_add_u32 s28, s28, 2048")
    a("s_add_u32 s23, s23, 1")
    a("s_cmp_lt_u32 s23, 32")
    a("s_cbranch_scc1 P2_EXLOOP")
    a("s_lshl_b32 s23, s19, 9")
    a("s_lshl_b32 s28, s16, 8")
    a("s_add_u32 s23, s23, %d" % L_EX)
    a("v_lshl_add_u32 v5, v0, 2, s23")
    a("v_add_u32 v252, s28, v5")
    a("v_xor_b32 v253, 256, v252")
    a("ds_write_b32 v253, v%d" % T)
    a("ds_write_b32 v252, v%d" % (T + 1))
    a("s_waitcnt lgkmcnt(0)")
    a("s_barrier")
    a("s_lshl_b32 s23, s17, 9")
    a("s_add_u32 s23, s23, %d" % L_EX)
    a("v_lshl_add_u32 v5, v6, 2, s23")
    a("v_add_u32 v252, s28, v5")
    a("v_xor_b32 v253, 256, v252")
    for j in range(2):
        for kh in range(2):
            for hh in range(2):
                a("ds_read_b32 v%d, v%d offset:%d" % (S + kh * 2 + hh, 253 - j, kh * 2048 + hh * 128))
        a("s_waitcnt lgkmcnt(0)")
        a("v_max3_f32 v%d, v%d, v%d, v%d" % (S, S, S + 1, S + 2))
        a("v_max_f32 v%d, v%d, v%d" % (S, S, S + 3))
        a("v_sub_f32 v%d, 0, v%d" % (C + 16 * j, S))
    p2_init()
    a("s_branch P2_START")
    a.label("L_CODE_END")

def main():
    out = sys.argv[1] if len(sys.argv) > 1 else "cdna_kernels/%s.s" % NAME
    a = Asm()
    hdr = open("cdna_kernels/%s.s.ref" % NAME).read().split("\n")
    keep = [l for l in hdr if l.startswith(";") and "@launch" not in l and "Override launch" not in l and "grid=ceil" not in l]
    for l in keep:
        a.raw(l)
    a.raw("; @launch grid=(256,1,1) block=(512,1,1) lds=%d" % LDS_SIZE)
    a.raw('.amdgcn_target "amdgcn-amd-amdhsa--gfx950"')
    a.raw(".text")
    gen(a)
    a.raw('.section .rodata,"a"')
    a.raw(""".p2align 6
.amdhsa_kernel %s_kernel
  .amdhsa_next_free_vgpr 256
  .amdhsa_next_free_sgpr 102
  .amdhsa_accum_offset 256
  .amdhsa_group_segment_fixed_size 0
  .amdhsa_kernarg_size 96
  .amdhsa_user_sgpr_count 2
  .amdhsa_user_sgpr_kernarg_segment_ptr 1
  .amdhsa_system_sgpr_workgroup_id_x 1
.end_amdhsa_kernel""" % NAME)
    open(out, "w").write(a.text())

if __name__ == "__main__":
    main()
```

```python
import sys, math, struct, os

NAME = "gated_mix__mha_block__moe_arch_mod__prompt"

WS_KV = 0
WS_O = (4 << 20) + 65536
WS_FL1 = WS_O + (2 << 20)
WS_FL2 = WS_FL1 + 32768
WS_FL3 = WS_FL2 + 32768
WS_RK = WS_FL3 + 32768
WS_PA = WS_RK + 8192
WS_G = WS_PA + 262144
WS_EP = WS_G + 16384
WS_Y = WS_EP + 1024
WS_ST = 7 << 20
WS_SIZE = 8 << 20

STAMP = int(os.environ.get("STAMP", "0"))
NB = int(os.environ.get("NB", "4"))
CPF = int(os.environ.get("CPF", "1"))
SLEEP = int(os.environ.get("SLEEP", "0"))
MAP = int(os.environ.get("MAP", "1"))
PRIO = int(os.environ.get("PRIO", "3"))
TOUCH = int(os.environ.get("TOUCH", "0"))
HMASK = int(os.environ.get("HMASK", "0xff"), 0)
WARM = int(os.environ.get("WARM", "0"))
PLAN = int(os.environ.get("PLAN", "0"))
QF = int(os.environ.get("QF", "20"))
XLA = int(os.environ.get("XLA", "3"))
PD = int(os.environ.get("PD", "1"))
PGAP = int(os.environ.get("PGAP", "3"))
WQT = int(os.environ.get("WQT", "1"))
INIT = int(os.environ.get("INIT", "3"))
ROT = int(os.environ.get("ROT", "1"))
DELAY = int(os.environ.get("DELAY", "0"))
_dl = [0]
def delay(a, site, mod, wavemask=0xff):
    if not (DELAY >> site) & 1:
        return
    _dl[0] += 1
    a("s_mul_i32 s100, s2, %d" % (7 + 2 * site))
    a("s_and_b32 s100, s100, %d" % mod)
    a("s_cmp_lg_u32 s100, 1")
    a("s_cbranch_scc1 DL%d" % _dl[0])
    a("s_mov_b32 s100, %d" % wavemask)
    a("s_bitcmp1_b32 s100, s19")
    a("s_cbranch_scc0 DL%d" % _dl[0])
    for _ in range(6):
        a("s_sleep 127")
    a.label("DL%d" % _dl[0])
SPANW = int(os.environ.get("SPANW", "0"))
SPAN = os.environ.get("SPAN", "")
def ev(a, i):
    if not SPAN:
        return
    i0, i1 = [int(x) for x in SPAN.split(",")]
    for k, r in (((i0, 58), (i1, 59)) if SPANW else ((i0, 13), (i1, 99))):
        if k == i:
            a("s_memrealtime s[100:101]")
            a("s_waitcnt lgkmcnt(0)")
            a("s_mov_b32 s%d, s100" % r)
NOWO = int(os.environ.get("NOWO", "0"))

def f32bits(x):
    return struct.unpack("<I", struct.pack("<f", x))[0]

class Asm:
    def __init__(self):
        self.l = []
    def __call__(self, s):
        for line in s.strip("\n").split("\n"):
            self.l.append("    " + line.strip())
    def label(self, s):
        self.l.append(s + ":")
    def raw(self, s):
        self.l.append(s)
    def text(self):
        return "\n".join(self.l) + "\n"

def vr(b, n):
    return "v[%d:%d]" % (b, b + n - 1)
def sr(b, n):
    return "s[%d:%d]" % (b, b + n - 1)

def srd(a, d, base, nbytes):
    a("s_mov_b32 s%d, s%d" % (d, base))
    a("s_and_b32 s%d, s%d, 0xffff" % (d + 1, base + 1))
    a("s_mov_b32 s%d, 0x%x" % (d + 2, nbytes))
    a("s_mov_b32 s%d, 0x00020000" % (d + 3))

MF32 = "v_mfma_f32_32x32x16_bf16"
MF16 = "v_mfma_f32_16x16x32_bf16"
LOG2E = math.log2(math.e)

P_X, P_WQKV, P_WO, P_WR, P_WG, P_WU, P_WD, P_GW, P_OUT, P_DBG, P_WS = 64, 66, 68, 72, 74, 76, 78, 80, 82, 84, 86
WS = "s[88:91]"
S_TAG, S_KEY = 92, 93

def stamp(a, idx, real=False):
    if not STAMP:
        return
    a("s_memrealtime s[100:101]" if real else "s_memtime s[100:101]")
    a("s_waitcnt lgkmcnt(0)")
    a("v_mov_b32 v255, s100")
    a("s_lshl_b32 s100, s2, 3")
    a("s_add_u32 s100, s100, s19")
    a("s_lshl_b32 s100, s100, 7")
    a("s_add_u32 s100, s100, %d" % (WS_ST + idx * 4))
    a("buffer_store_dword v255, off, %s, s100" % WS)

def bf16_round_to_f32(a, dst, src):
    a("v_cvt_pk_bf16_f32 v%d, v%d, v%d" % (dst, src, src))
    a("v_lshlrev_b32 v%d, 16, v%d" % (dst, dst))

def sigmoid_bf16(a, r):
    a("v_mul_f32 v%d, 0x%08x, v%d" % (r, f32bits(-LOG2E), r))
    a("v_exp_f32 v%d, v%d" % (r, r))
    a("s_nop 0")
    a("v_add_f32 v%d, 1.0, v%d" % (r, r))
    a("v_rcp_f32 v%d, v%d" % (r, r))
    a("s_nop 0")
    bf16_round_to_f32(a, r, r)

def poll(a, name, t0, voff):
    a("s_mov_b32 s94, 0")
    a("s_branch %s_IN" % name)
    a.label(name)
    if SLEEP:
        a("s_sleep %d" % SLEEP)
    a.label(name + "_IN")
    a("buffer_load_dword v%d, v%d, %s, s95 offen sc1" % (t0, voff, WS))
    a("s_add_u32 s94, s94, 1")
    a("s_waitcnt vmcnt(0)")
    a("v_cmp_ne_u32 vcc, s%d, v%d" % (S_TAG, t0))
    a("s_cmp_ge_u32 s94, 0x8000")
    a("s_cbranch_scc1 %s_OUT" % name)
    a("s_cbranch_vccz %s_OUT" % name)
    a("s_mov_b64 exec, vcc")
    a("s_branch %s" % name)
    a.label(name + "_OUT")

def poll_deep(a, name, t0, voff):
    a("s_mov_b32 s94, 0")
    for i in range(PD - 1):
        a("buffer_load_dword v%d, v%d, %s, s95 offen sc1" % (t0 + i, voff, WS))
        a("s_sleep %d" % PGAP)
    a.label(name)
    for i in range(PD):
        a("buffer_load_dword v%d, v%d, %s, s95 offen sc1" % (t0 + (i + PD - 1) % PD, voff, WS))
        a("s_waitcnt vmcnt(%d)" % (PD - 1))
        a("v_cmp_ne_u32 vcc, s%d, v%d" % (S_TAG, t0 + i))
        a("s_add_u32 s94, s94, 1")
        a("s_nop 0")
        a("s_cbranch_vccz %s_OUT" % name)
        a("s_mov_b64 exec, vcc")
    a("s_cmp_lt_u32 s94, 0x10000")
    a("s_cbranch_scc1 %s" % name)
    a.label(name + "_OUT")

def last_wave_flag(a, name, vm, ldsoff, n, soff, t0):
    a("v_mov_b32 v%d, 1" % t0)
    a("s_mov_b64 exec, 1")
    a("ds_add_rtn_u32 v%d, v%d, v%d offset:%d" % (t0, vm, t0, ldsoff))
    a("s_waitcnt lgkmcnt(0)")
    a("v_readfirstlane_b32 s97, v%d" % t0)
    a("v_mov_b32 v%d, s%d" % (t0, S_TAG))
    a("s_nop 1")
    a("s_cmp_lg_u32 s97, %d" % (n - 1))
    a("s_cbranch_scc1 %s" % name)
    a("buffer_store_dword v%d, off, %s, s%d sc1" % (t0, WS, soff))
    a.label(name)
    a("s_mov_b64 exec, -1")

def get_tag(a, name, t0):
    a("s_mov_b32 s94, 0")
    a.label(name + "L")
    a("s_waitcnt vmcnt(0)")
    a("v_readfirstlane_b32 s95, v%d" % (t0 + 1))
    a("s_add_u32 s94, s94, 1")
    a("s_cmp_ge_u32 s94, 0x8000")
    a("s_cbranch_scc1 %sD" % name)
    a("s_cmp_lg_u32 s95, 0")
    a("s_cbranch_scc1 %sD" % name)
    a("buffer_load_dwordx2 %s, off, s[24:27], 0 sc1" % vr(t0, 2))
    a("s_branch %sL" % name)
    a.label(name + "D")
    a("v_readfirstlane_b32 s%d, v%d" % (S_TAG, t0))

def put_flag(a, soff, t0):
    a("v_mov_b32 v%d, s%d" % (t0, S_TAG))
    a("s_mov_b64 exec, 1")
    a("buffer_store_dword v%d, off, %s, s%d sc1" % (t0, WS, soff))
    a("s_mov_b64 exec, -1")

L_X = 0
L_W = 65536
L_FFW = L_X + 32768
L_EX = L_X
L_CMB = 131072
L_RT = L_CMB + 18432
L_MISC = L_RT + 2048
L_QX = L_MISC + 2048
L_MX = L_QX + 8192
LDS_SIZE = L_MX + 1024

def gen(a):
    kn = NAME + "_kernel"
    a.raw(".globl %s" % kn)
    a.raw(".p2align 8")
    a.raw(".type %s,@function" % kn)
    a.label(kn)
    a("s_cmp_ge_u32 s2, 256")
    a("s_cbranch_scc1 L_END")
    a("s_load_dwordx16 s[64:79], s[0:1], 0")
    a("s_load_dwordx8 s[80:87], s[0:1], 64")
    if CPF:
        a("s_getpc_b64 s[22:23]")
        a.label("L_PC")
        a("v_subrev_u32 v2, 256, v0")
        a("v_lshlrev_b32 v2, 7, v2")
        a("v_cmp_gt_u32 vcc, L_CODE_END - L_PC, v2")
        a("s_and_saveexec_b64 s[24:25], vcc")
        a("s_cbranch_execz L_NOPF")
        a("global_load_dword v3, v2, s[22:23]")
        a.label("L_NOPF")
        a("s_mov_b64 exec, -1")
    a("v_lshrrev_b32 v1, 6, v0")
    a("v_and_b32 v0, 63, v0")
    a("v_readfirstlane_b32 s19, v1")
    ev(a, 0)
    delay(a, 0, 7)
    Q, C, O, S, P, KV, T = 8, 16, 48, 80, 112, 120, 216
    VM = 254
    XS, WD, BF, DD = T, T + 8, T + 16, T + 24
    ntb = 32 // MAP
    lt = ntb.bit_length() - 1
    a("s_and_b32 s16, s2, 7")
    a("s_lshr_b32 s17, s2, 3")
    a("s_and_b32 s14, s16, %d" % (MAP - 1))
    a("s_lshl_b32 s14, s14, %d" % lt)
    a("s_and_b32 s18, s17, %d" % (ntb - 1))
    a("s_add_u32 s14, s14, s18")
    a("s_lshr_b32 s15, s16, %d" % (MAP.bit_length() - 1))
    a("s_mul_i32 s15, s15, %d" % MAP)
    a("s_lshr_b32 s17, s17, %d" % lt)
    a("s_add_u32 s15, s15, s17")
    if ROT:
        a("s_mul_i32 s17, s15, %d" % ROT)
    else:
        a("s_mul_i32 s17, s17, %d" % (8 // MAP))
    a("s_add_u32 s16, s17, s18")
    a("s_and_b32 s16, s16, 7")
    a("s_and_b32 s62, s2, 7")
    a("s_lshl_b32 s62, s62, 2")
    a("s_bfe_u32 s38, s2, 0x20003")
    a("s_add_u32 s62, s62, s38")
    a("s_lshr_b32 s63, s2, 5")
    a("s_lshl_b32 s38, s38, 1")
    a("s_add_u32 s38, s38, s63")
    a("s_and_b32 s38, s38, 7")
    a("v_lshlrev_b32 v2, 4, v0")
    a("v_and_b32 v6, 31, v0")
    a("v_lshrrev_b32 v7, 5, v0")
    a("v_mov_b32 v%d, %d" % (VM, L_MISC))
    a("s_and_b32 s20, s19, 1")
    XA = 8
    a("v_bfe_u32 v24, v6, 1, 3")
    a("v_lshlrev_b32 v25, 7, v6")
    a("s_lshl_b32 s18, s20, 12")
    a("v_add_u32 v25, s18, v25")
    for ks in range(4):
        a("v_or_b32 v26, %d, v7" % (2 * ks))
        a("v_xor_b32 v26, v26, v24")
        a("v_lshl_add_u32 v%d, v26, 4, v25" % (XA + ks))
    a("s_lshl_b32 s47, s14, 1")
    a("s_add_u32 s39, s47, s20")
    a("s_cmp_ge_u32 s19, 4")
    a("s_cbranch_scc1 P1_COMPUTE")

    a("v_lshrrev_b32 v4, 3, v0")
    a("v_lshlrev_b32 v5, 10, v4")
    a("v_and_b32 v3, 7, v0")
    a("v_lshrrev_b32 v16, 4, v0")
    a("v_xor_b32 v17, v3, v16")
    a("v_lshl_add_u32 v5, v17, 4, v5")
    a("v_mul_u32_u24 v4, 3072, v4")
    a("v_and_b32 v16, 1, v16")
    a("v_lshlrev_b32 v16, 2, v16")
    a("v_xor_b32 v17, v3, v16")
    a("v_lshl_add_u32 v4, v17, 4, v4")
    a("s_lshl_b32 s18, s15, 7")
    a("v_add_u32 v4, s18, v4")
    a("v_xor_b32 v3, 64, v5")
    a("s_lshl_b32 s40, s14, 16")
    a("s_lshl_b32 s18, s19, 14")
    a("s_add_u32 s40, s40, s18")
    a("s_lshl_b32 s44, s19, 11")
    a("s_lshl_b32 s18, s16, 7")
    a("v_add_u32 v16, s18, v2")
    a("v_and_b32 v16, 1023, v16")
    a("s_mul_i32 s41, s19, 49152")
    a("s_lshl_b32 s45, s19, 12")
    a("s_mul_i32 s42, s20, %d" % (32 * 3072))
    a("s_lshr_b32 s43, s19, 1")
    a("s_waitcnt lgkmcnt(0)")
    srd(a, 20, P_X, 2048 * 512 * 2)
    srd(a, 24, P_WQKV, 512 * 1536 * 2)
    srd(a, 88, P_WS, WS_SIZE)
    stamp(a, 0)
    stamp(a, 24, True)

    order = []
    a("s_mov_b32 s51, s16")
    def issue_x(c):
        a("s_lshl_b32 s46, s51, 7")
        a("s_add_u32 s46, s46, s40")
        a("s_add_u32 m0, s44, %d" % (L_X + c * 8192))
        a("s_add_u32 s48, s46, 8192")
        a("buffer_load_dwordx4 v5, s[20:23], s46 offen lds")
        a("s_add_u32 m0, s44, %d" % (L_X + c * 8192 + 1024))
        a("s_add_u32 s51, s51, 1")
        a("buffer_load_dwordx4 v3, s[20:23], s48 offen lds")
        a("s_and_b32 s51, s51, 7")
        order.extend([c, c])
    def issue_step(c):
        wb = L_W + (c % 4) * 16384
        order.extend([c] * 4)
        if c < 8:
            a("s_mul_i32 s47, s16, %d" % (64 * 3072))
            a("s_add_u32 s47, s47, s41")
            a("s_add_u32 s49, s47, %d" % (8 * 3072))
            for rh in range(2):
                a("s_add_u32 m0, s45, %d" % (wb + rh * 2048 - 1024))
                a("s_add_u32 s16, s16, 1" if rh == 0 else "s_and_b32 s16, s16, 7")
                for t in (1, 2):
                    a("buffer_load_dwordx4 v4, s[24:27], s%d offen offset:%d lds" % (47 + 2 * rh, t * 1024))
        else:
            a("s_add_u32 s46, s16, s43")
            a("s_and_b32 s46, s46, 7")
            a("s_mul_i32 s47, s46, %d" % (64 * 3072))
            a("s_add_u32 s47, s47, s42")
            a("s_add_u32 s16, s16, 2")
            for i in range(4):
                a("s_add_u32 m0, s45, %d" % (wb + i * 1024))
                a("s_add_u32 s48, s47, %d" % (i * 8 * 3072))
                a("buffer_load_dwordx4 v4, s[24:27], s48 offen lds")

    issue_x(0)
    issue_step(0)
    srd(a, 28, P_WR, 1024)
    srd(a, 32, P_GW, 1024)
    a("s_mov_b32 m0, %d" % L_RT)
    a("s_nop 0")
    a("buffer_load_dwordx4 v16, s[32:35], 0 offen lds")
    a("s_mov_b32 m0, %d" % (L_RT + 1024))
    a("s_nop 0")
    a("buffer_load_dwordx4 v16, s[28:31], 0 offen lds")
    order.extend([7, 7])
    for c in range(1, INIT):
        issue_x(c)
        issue_step(c)
    for c in range(INIT, XLA):
        issue_x(c)
    a("s_and_b32 s50, s14, 7")
    a("s_xor_b32 s50, s50, s15")
    a("s_lshr_b32 s57, s19, 1")
    a("s_or_b32 s50, s50, s57")
    a("v_and_b32 v25, 1, v0")
    a("v_lshlrev_b32 v25, 10, v25")
    a("v_lshl_add_u32 v17, v7, 4, v25")
    a("v_add_u32 v17, %d, v17" % L_RT)
    RACC, RF = 32, 48
    for r in range(0, 16, 2):
        a("v_mov_b64 %s, 0" % vr(RACC + r, 2))
    a("ds_write_b128 v%d, %s" % (VM, vr(RACC, 4)))
    for o in (16, 32, 48, 64):
        a("ds_write_b128 v%d, %s offset:%d" % (VM, vr(RACC, 4), o))
    for c in range(12):
        younger = len(order) - 1 - max(i for i, k in enumerate(order) if k <= c)
        a("s_waitcnt vmcnt(%d)%s" % (younger, " lgkmcnt(0)" if c == 0 else ""))
        if STAMP == 3 and c < 8:
            a("s_memtime s[100:101]")
            a("s_waitcnt lgkmcnt(0)")
            a("s_mov_b32 s%d, s100" % (52 + c))
        a("s_barrier")
        if c == 0 and STAMP != 3:
            stamp(a, 1)
        if c + max(XLA, INIT) < 8 and XLA <= 3:
            issue_x(c + max(XLA, INIT))
        if INIT <= c + 3 < 12:
            issue_step(c + 3)
        if c + XLA < 8 and XLA > 3:
            issue_x(c + XLA)
        if c == 0:
            srd(a, 32, P_DBG, 256)
        if c == 9:
            a("buffer_load_dwordx2 v[28:29], off, s[32:35], 0 sc1")
            order.append(99)
        if 8 <= c <= 10:
            a("s_cmp_lg_u32 s50, 0")
            a("s_cbranch_scc1 P1_NR%d" % c)
            k0, k1 = (0, 11, 22, 32)[c - 8], (0, 11, 22, 32)[c - 7]
            def rd_r(kk):
                a("ds_read_b128 %s, v%d offset:%d" % (vr(RF + 8 * (kk % 6), 4), XA + kk % 4, L_X + (kk // 4) * 8192))
                a("ds_read_b128 %s, v17 offset:%d" % (vr(RF + 8 * (kk % 6) + 4, 4), kk * 32))
            if c == 8:
                for kk in range(5):
                    rd_r(kk)
            for kk in range(k0, k1):
                a("s_waitcnt lgkmcnt(%d)" % (2 * min(4, 31 - kk)))
                a("%s %s, %s, %s, %s" % (MF32, vr(RACC, 16), vr(RF + 8 * (kk % 6) + 4, 4), vr(RF + 8 * (kk % 6), 4), vr(RACC, 16)))
                if kk + 5 < 32:
                    rd_r(kk + 5)
            a.label("P1_NR%d" % c)
    if STAMP == 3:
        for c in range(0, 8):
            a("v_mov_b32 v255, s%d" % (52 + c))
            a("s_lshl_b32 s100, s2, 3")
            a("s_add_u32 s100, s100, s19")
            a("s_lshl_b32 s100, s100, 7")
            a("s_add_u32 s100, s100, %d" % (WS_ST + (16 + c) * 4))
            a("buffer_store_dword v255, off, %s, s100" % WS)
    srd(a, 24, P_DBG, 256)
    get_tag(a, "P1_TAGL", 28)
    a("s_mov_b32 s39, -1")
    a("s_cmp_lg_u32 s50, 0")
    a("s_cbranch_scc1 P1_DONE")
    R = RACC
    a("s_nop 9")
    a("s_lshl_b32 s39, s14, 1")
    a("s_add_u32 s39, s39, s19")
    bf16_round_to_f32(a, 100, R)
    sigmoid_bf16(a, 100)
    a("v_sub_f32 v101, 1.0, v100")
    bf16_round_to_f32(a, 101, 101)
    bf16_round_to_f32(a, 102, R + 1)
    a("v_ashrrev_i32 v103, 31, v102")
    a("v_or_b32 v103, 0x80000000, v103")
    a("v_xor_b32 v102, v102, v103")
    a("v_and_b32 v102, 0xffff0000, v102")
    a("s_lshl_b32 s55, s39, 5")
    a("v_add_u32 v103, s55, v6")
    a("v_sub_u32 v103, 0xffff, v103")
    a("v_or_b32 v102, v102, v103")
    for sh in (1, 2, 4, 8):
        a("s_nop 1")
        a("v_max_u32_dpp v102, v102, v102 row_ror:%d row_mask:0xf bank_mask:0xf" % sh)
    a("s_nop 0")
    a("v_readlane_b32 s56, v102, 0")
    a("v_readlane_b32 s57, v102, 16")
    a("s_nop 3")
    a("s_max_u32 s%d, s56, s57" % S_KEY)
    a("s_lshl_b32 s54, s39, 8")
    a("s_add_u32 s54, s54, %d" % WS_G)
    a("v_lshlrev_b32 v27, 3, v6")
    a("buffer_store_dwordx2 v[100:101], v27, %s, s54 offen sc1" % WS)
    a("v_mov_b64 v[84:85], 0")
    a("v_lshlrev_b32 v27, 3, v0")
    a("s_lshl_b32 s55, s39, 9")
    a("s_add_u32 s55, s55, %d" % WS_Y)
    a("buffer_store_dwordx2 v[84:85], v27, %s, s55 offen sc1" % WS)
    a("s_branch P1_DONE")

    a.label("P1_COMPUTE")
    WA, WQA = 16, 17
    a("s_lshl_b32 s22, s2, 3")
    a("s_add_u32 s22, s22, s19")
    a("s_waitcnt lgkmcnt(0)")
    ev(a, 8)
    srd(a, 28, P_WQKV, 512 * 1536 * 2)
    srd(a, 88, P_WS, WS_SIZE)
    stamp(a, 0)
    stamp(a, 24, True)
    a("s_mov_b32 s23, %d" % WS_EP)
    a("s_cmp_lg_u32 s22, 4")
    a("s_cbranch_scc1 P1_NOEP0")
    a("buffer_load_dword v24, off, %s, s23 sc1" % WS)
    a.label("P1_NOEP0")
    def wq_touch():
        a("s_cmp_lg_u32 s19, 5")
        a("s_cbranch_scc1 P1_NOWQ")
        a("s_and_b32 s46, s14, %d" % (ntb - 1))
        a("s_mul_i32 s46, s46, %d" % (512 // ntb * 3072))
        a("s_lshl_b32 s47, s15, 7")
        a("s_add_u32 s46, s46, s47")
        a("v_and_b32 v24, %d, v0" % (512 // ntb - 1))
        a("v_mul_u32_u24 v24, 3072, v24")
        a("buffer_load_dword v28, v24, s[28:31], s46 offen")
        a.label("P1_NOWQ")
    if WQT == 0:
        wq_touch()
    srd(a, 24, P_DBG, 256)
    a("s_bfe_u32 s21, s19, 0x10001")
    a("v_bfe_u32 v27, v0, 2, 2")
    a("v_lshlrev_b32 v26, 7, v27")
    a("v_lshrrev_b32 v27, 1, v27")
    a("v_xor_b32 v27, s21, v27")
    a("v_lshl_add_u32 v26, v27, 6, v26")
    a("v_bfe_u32 v27, v0, 4, 1")
    a("v_lshl_add_u32 v26, v27, 5, v26")
    a("v_and_b32 v27, 3, v0")
    a("v_lshl_add_u32 v26, v27, 3, v26")
    a("v_add_u32 v26, %d, v26" % L_W)
    a("v_lshl_add_u32 v%d, v7, 11, v26" % WA)
    a("v_lshl_add_u32 v%d, v7, 10, v26" % WQA)
    a("s_cmp_lg_u32 s22, 4")
    a("s_cbranch_scc1 P1_NOEP")
    if DELAY & 2:
        for _ in range(8):
            a("s_sleep 127")
    a("s_mov_b32 s22, 1664525")
    a("v_mov_b32 v25, 1")
    a("s_waitcnt vmcnt(0)")
    a("v_mul_lo_u32 v24, v24, s22")
    a("v_add_u32 v24, 1013904223, v24")
    a("s_mov_b64 exec, 1")
    a("buffer_store_dwordx2 v[24:25], off, s[24:27], 0 sc1")
    a("buffer_store_dword v24, off, %s, s23 sc1" % WS)
    a("s_mov_b64 exec, -1")
    a.label("P1_NOEP")
    ACC = 32
    FR = 80
    PK = 104
    XF = 120
    pend = []
    def rd_kv(kk, part):
        if kk >= 32:
            return
        c, ks = kk // 4, kk % 4
        if part == 0:
            a("ds_read_b128 %s, v%d offset:%d" % (vr(XF + 4 * kk, 4), XA + ks, L_X + c * 8192))
            pend.append((kk, 0))
        for half in range(2):
            a("ds_read_b64_tr_b16 %s, v%d offset:%d" % (vr(FR + (kk % 3) * 8 + part * 4 + 2 * half, 2), WA,
                                                       (c % 4) * 16384 + ks * 4096 + part * 1024 + half * 512))
            pend.append((kk, part))
    def rd_q(kk):
        if kk >= 32:
            return
        if kk % 8 == 0 and kk > 0:
            a("s_barrier")
        for half in range(2):
            a("ds_read_b64_tr_b16 %s, v%d offset:%d" % (vr(FR + (kk % 6) * 4 + 2 * half, 2), WQA,
                                                       (kk // 8) * 16384 + (kk % 8) * 2048 + half * 512))
            pend.append((100 + kk, 0))
    def wait_for(kk, part):
        last = max([i for i, (k2, p) in enumerate(pend) if k2 == kk and p == part], default=-1)
        if last >= 0:
            a("s_waitcnt lgkmcnt(%d)" % (len(pend) - 1 - last))
            del pend[:last + 1]
    if STAMP == 3:
        stamp(a, 14)
    a("s_barrier")
    if STAMP != 3:
        stamp(a, 1)
    ev(a, 4)
    for kk in range(2):
        rd_kv(kk, 0); rd_kv(kk, 1)
    if WQT == 1:
        wq_touch()
    for kk in range(32):
        nx = kk + 2
        if nx < 32 and nx % 4 == 0:
            c = nx // 4
            a("s_waitcnt lgkmcnt(0)")
            del pend[:]
            if STAMP == 3:
                a("s_memtime s[100:101]")
                a("s_waitcnt lgkmcnt(0)")
                a("s_mov_b32 s%d, s100" % (50 + c))
            a("s_barrier")
        x = vr(XF + 4 * kk, 4)
        cz = lambda r: ("0" if kk == 0 else vr(r, 16))
        wait_for(kk, 0)
        a("%s %s, %s, %s, %s" % (MF32, vr(ACC, 16), vr(FR + (kk % 3) * 8, 4), x, cz(ACC)))
        rd_kv(nx, 0)
        wait_for(kk, 1)
        a("%s %s, %s, %s, %s" % (MF32, vr(ACC + 16, 16), x, vr(FR + (kk % 3) * 8 + 4, 4), cz(ACC + 16)))
        rd_kv(nx, 1)
    a("s_barrier")
    LQ = 5
    for kk in range(LQ):
        rd_q(kk)
    a("s_lshl_b32 s46, s15, 1")
    a("s_add_u32 s46, s46, s21")
    a("s_lshl_b32 s48, s46, 18")
    a("s_lshl_b32 s49, s39, 11")
    a("s_add_u32 s48, s48, s49")
    a("s_add_u32 s49, s48, 131072")
    a("v_lshrrev_b32 v24, 4, v6")
    a("v_lshlrev_b32 v24, 17, v24")
    a("v_lshl_add_u32 v24, v7, 8, v24")
    a("v_and_b32 v25, 15, v0")
    a("v_lshl_add_u32 v24, v25, 4, v24")
    stamp(a, 2)
    ev(a, 5)
    for r in range(8):
        a("v_cvt_pk_bf16_f32 v%d, v%d, v%d" % (PK + r, ACC + 2 * r, ACC + 2 * r + 1))
    a("buffer_store_dwordx4 %s, v2, %s, s48 offen sc1" % (vr(PK, 4), WS))
    a("buffer_store_dwordx4 %s, v2, %s, s49 offen sc1" % (vr(PK + 4, 4), WS))
    for r in range(8):
        a("v_cvt_pk_bf16_f32 v%d, v%d, v%d" % (PK + 8 + r, ACC + 16 + 2 * r, ACC + 16 + 2 * r + 1))
    a("buffer_store_dwordx4 %s, v24, %s, s48 offen offset:1024 sc1" % (vr(PK + 8, 4), WS))
    a("buffer_store_dwordx4 %s, v24, %s, s48 offen offset:1536 sc1" % (vr(PK + 12, 4), WS))
    a("buffer_load_dwordx2 v[28:29], off, s[24:27], 0 sc1")
    a("s_lshl_b32 s96, s15, 12")
    a("s_lshl_b32 s97, s14, 7")
    a("s_add_u32 s96, s96, s97")
    a("s_add_u32 s96, s96, %d" % WS_FL1)
    for kk in range(32):
        if kk == QF:
            get_tag(a, "P1_TAGC", 28)
            last_wave_flag(a, "P1_FL", VM, 0, 4, 96, 30)
            del pend[:]
            stamp(a, 13)
            stamp(a, 29, True)
            ev(a, 6)
        wait_for(100 + kk, 0)
        a("%s %s, %s, %s, %s" % (MF32, vr(ACC + 32, 16), vr(FR + (kk % 6) * 4, 4), vr(XF + 4 * kk, 4), "0" if kk == 0 else vr(ACC + 32, 16)))
        rd_q(kk + LQ)
    CS = LOG2E * 0.25
    if STAMP != 3:
        a("s_mov_b32 s54, 0x%08x" % f32bits(CS))
        a("s_mov_b32 s55, 0x%08x" % f32bits(CS))
    a("s_lshl_b32 s22, s21, 12")
    a("s_lshl_b32 s23, s20, 10")
    a("s_add_u32 s22, s22, s23")
    a("s_add_u32 s22, s22, %d" % L_QX)
    a("v_add_u32 v24, s22, v2")
    a("s_lshl_b32 s22, s21, 9")
    a("s_lshl_b32 s23, s20, 7")
    a("s_add_u32 s22, s22, s23")
    a("s_add_u32 s22, s22, %d" % L_MX)
    a("v_lshl_add_u32 v26, v6, 2, s22")
    a("v_lshl_add_u32 v26, v7, 8, v26")
    stamp(a, 3)
    if STAMP == 3:
        for c in range(1, 8):
            a("v_mov_b32 v255, s%d" % (50 + c))
            a("s_lshl_b32 s100, s2, 3")
            a("s_add_u32 s100, s100, s19")
            a("s_lshl_b32 s100, s100, 7")
            a("s_add_u32 s100, s100, %d" % (WS_ST + (16 + c) * 4))
            a("buffer_store_dword v255, off, %s, s100" % WS)
        a("s_mov_b32 s54, 0x%08x" % f32bits(CS))
        a("s_mov_b32 s55, 0x%08x" % f32bits(CS))
    PQ = FR
    for r in range(0, 16, 2):
        a("v_pk_mul_f32 %s, %s, s[54:55]" % (vr(ACC + 32 + r, 2), vr(ACC + 32 + r, 2)))
    for r in range(8):
        a("v_cvt_pk_bf16_f32 v%d, v%d, v%d" % (PQ + r, ACC + 32 + 2 * r, ACC + 32 + 2 * r + 1))
    a("s_nop 1")
    a("%s %s, %s, %s, 0" % (MF32, vr(ACC, 16), vr(PK, 4), vr(PQ, 4)))
    a("%s %s, %s, %s, 0" % (MF32, vr(ACC + 16, 16), vr(PK + 4, 4), vr(PQ + 4, 4)))
    a("ds_write_b128 v24, %s" % vr(PQ, 4))
    a("ds_write_b128 v24, %s offset:2048" % vr(PQ + 4, 4))
    a("s_nop 9")
    m0, m1 = 92, 93
    for h, m in ((0, m0), (1, m1)):
        SS = ACC + 16 * h
        a("v_max3_f32 v%d, v%d, v%d, v%d" % (m, SS, SS + 1, SS + 2))
        for r in range(3, 15, 2):
            a("v_max3_f32 v%d, v%d, v%d, v%d" % (m, m, SS + r, SS + r + 1))
        a("v_max_f32 v%d, v%d, v%d" % (m, m, SS + 15))
    a("s_nop 1")
    a("v_permlane32_swap_b32 v%d, v%d" % (m0, m1))
    a("v_max_f32 v%d, v%d, v%d" % (m0, m0, m1))
    a("v_sub_f32 v%d, 0, v%d" % (m0, m0))
    a("ds_write_b32 v26, v%d" % m0)

    a.label("P1_DONE")
    stamp(a, 4)
    a("s_and_b32 s17, s19, 3")
    a("s_lshr_b32 s16, s19, 2")
    a("v_and_b32 v3, 15, v0")
    a("v_lshlrev_b32 v3, 4, v3")
    a("v_lshl_add_u32 v3, v7, 8, v3")
    a("s_lshl_b32 s18, s15, 2")
    a("s_add_u32 s18, s18, s17")
    a("s_lshl_b32 s22, s18, 17")
    a("s_lshl_b32 s23, s16, 16")
    a("s_add_u32 s22, s22, s23")
    a("s_lshl_b32 s95, s15, 12")
    a("s_add_u32 s95, s95, %d" % WS_FL1)
    a("s_mov_b32 s30, 0x0000ffff")
    a("s_mov_b32 s31, 0x0000ffff")
    a("s_mov_b32 s29, 0")
    a("s_cmp_lt_u32 s19, 4")
    a("s_cselect_b32 s32, 0x%x, 0" % HMASK)
    CW16, CW4, CR16, CR4, VXO, VWO, VOF, XR, GR, HFL, HLD, F3 = 168, 169, 170, 171, 172, 173, 174, 176, 184, 175, 186, 186
    srd(a, 40, P_WO, 512 * 512 * 2)
    a("v_lshrrev_b32 v4, 3, v0")
    a("v_lshlrev_b32 v4, 10, v4")
    a("v_and_b32 v5, 7, v0")
    a("v_bfe_u32 v192, v0, 4, 1")
    a("v_lshlrev_b32 v192, 2, v192")
    a("v_xor_b32 v5, v5, v192")
    a("v_lshl_add_u32 v4, v5, 4, v4")
    a("s_lshl_b32 s36, s63, 7")
    a("s_lshl_b32 s37, s19, 13")
    a("s_add_u32 s36, s36, s37")
    a("s_lshl_b32 s37, s19, 10")
    a("s_add_u32 s37, s37, %d" % L_W)
    a("s_mul_i32 s23, s19, 2304")
    a("s_add_u32 s23, s23, %d" % L_CMB)
    a("v_add_u32 v%d, s23, v2" % CW16)
    a("v_lshl_add_u32 v%d, v0, 2, s23" % CW4)
    a("s_xor_b32 s23, s19, 4")
    a("s_mul_i32 s23, s23, 2304")
    a("s_add_u32 s23, s23, %d" % L_CMB)
    a("v_add_u32 v%d, s23, v2" % CR16)
    a("v_lshl_add_u32 v%d, v0, 2, s23" % CR4)
    a("s_lshl_b32 s23, s14, 1")
    a("s_add_u32 s23, s23, s16")
    a("s_lshl_b32 s33, s23, 15")
    a("s_lshl_b32 s23, s18, 10")
    a("s_add_u32 s33, s33, s23")
    a("s_add_u32 s33, s33, %d" % WS_O)
    a("s_lshl_b32 s98, s14, 10")
    a("s_lshl_b32 s23, s15, 7")
    a("s_add_u32 s98, s98, s23")
    a("s_add_u32 s98, s98, %d" % WS_FL2)
    a("s_and_b32 s8, s19, 1")
    a("s_bfe_u32 s9, s19, 0x10001")
    a("s_lshl_b32 s4, s62, 1")
    a("s_add_u32 s4, s4, s8")
    a("s_lshl_b32 s5, s63, 7")
    a("s_lshl_b32 s23, s9, 6")
    a("s_add_u32 s5, s5, s23")
    a("s_lshl_b32 s6, s4, 15")
    a("s_add_u32 s6, s6, s5")
    a("s_lshl_b32 s7, s4, 8")
    a("s_add_u32 s7, s7, %d" % WS_G)
    a("v_lshlrev_b32 v%d, 10, v6" % VXO)
    a("v_lshl_add_u32 v%d, v7, 5, v%d" % (VXO, VXO))
    a("v_bfe_u32 v193, v0, 2, 2")
    a("v_lshl_add_u32 v192, v7, 2, v193")
    a("v_lshlrev_b32 v192, 7, v192")
    a("v_lshrrev_b32 v193, 1, v193")
    a("v_xor_b32 v193, s9, v193")
    a("v_lshl_add_u32 v192, v193, 6, v192")
    a("v_and_b32 v193, 1, v0")
    a("v_lshl_add_u32 v192, v193, 5, v192")
    a("v_bfe_u32 v193, v0, 1, 1")
    a("v_bfe_u32 v194, v0, 4, 1")
    a("v_lshl_add_u32 v193, v194, 1, v193")
    a("v_lshl_add_u32 v192, v193, 3, v192")
    a("v_add_u32 v%d, %d, v192" % (VWO, L_W))
    a("s_lshl_b32 s23, s8, 12")
    a("v_add_u32 v%d, s23, v2" % VOF)
    a("s_lshl_b32 s10, s62, 10")
    a("s_lshl_b32 s23, s17, 8")
    a("s_add_u32 s10, s10, s23")
    a("s_add_u32 s10, s10, %d" % WS_FL2)
    a("v_and_b32 v%d, 1, v0" % HFL)
    a("v_lshlrev_b32 v%d, 7, v%d" % (HFL, HFL))
    a("s_lshl_b32 s11, s62, 16")
    a("s_lshl_b32 s23, s17, 13")
    a("s_add_u32 s11, s11, s23")
    a("s_add_u32 s11, s11, %d" % WS_O)
    a("s_lshl_b32 s12, s17, 14")
    a("s_lshl_b32 s23, s17, 3")
    a("v_add_u32 v%d, s23, v%d" % (HLD, VM))
    a("v_lshlrev_b32 v5, 7, v0")
    a("s_lshl_b32 s23, s17, 1")
    a("s_add_u32 s23, s23, s16")
    a("s_lshl_b32 s28, s23, 10")
    a("s_add_u32 s28, s28, %d" % L_QX)
    a("v_add_u32 v252, s28, v2")
    a("v_xor_b32 v250, 1024, v252")
    a("s_lshl_b32 s28, s23, 7")
    a("s_add_u32 s28, s28, %d" % L_MX)
    a("v_lshl_add_u32 v253, v6, 2, s28")
    a("v_xor_b32 v251, 128, v253")
    CW16, CW4, CR16, CR4, VXO, VWO, VOF, XR, GR, HFL, HLD, F3 = 168, 169, 170, 171, 172, 173, 174, 176, 184, 175, 186, 186
    def kvb(t):
        return KV + 12 * (t % NB)
    def p2_init():
        for b in range(NB):
            for r in range(4, 12, 2):
                a("v_mov_b64 %s, 0" % vr(kvb(b) + r, 2))
        a("s_mov_b32 s34, 0x3f803f80")
        a("s_mov_b32 s35, 0x3f803f80")
        a("s_mov_b32 exec_lo, 0x00110000")
        a("s_mov_b32 exec_hi, 0x00110000")
        for b in range(NB):
            for r in range(4, 12, 2):
                a("v_mov_b64 %s, s[34:35]" % vr(kvb(b) + r, 2))
        a("s_mov_b64 exec, -1")
        for r in range(0, 32, 2):
            a("v_mov_b64 %s, 0" % vr(O + r, 2))
        a("v_mov_b64 %s, 0" % vr(P + 4, 2))
        a("v_mov_b64 %s, 0" % vr(P + 6, 2))
        a("v_mov_b64 %s, 0" % vr(S + 16 + 14, 2))
    a("s_waitcnt lgkmcnt(0)")
    p2_init()
    a("s_cmp_lg_u32 s19, 3")
    a("s_cbranch_scc1 H1_WAIT")
    a("s_mov_b32 exec_hi, 0")
    if PD > 1:
        poll_deep(a, "H1_POLL", T, 5)
    else:
        poll(a, "H1_POLL", S, 5)
    a("s_mov_b64 exec, -1")
    a.label("H1_WAIT")
    ev(a, 7)
    a("s_barrier")
    stamp(a, 5)
    stamp(a, 26, True)
    ev(a, 1)
    a("ds_read_b128 %s, v250" % vr(Q, 4))
    a("ds_read_b128 %s, v252" % vr(Q + 4, 4))
    a("ds_read_b32 v%d, v251" % C)
    a("ds_read_b32 v%d, v253" % (C + 16))
    a.label("P2_START")
    a("buffer_load_dwordx4 %s, v2, %s, s22 offen sc1" % (vr(kvb(0), 4), WS))
    a("s_mov_b32 s28, s22")
    def ld_k(t):
        a("buffer_load_dwordx4 %s, v2, %s, s28 offen offset:2048 sc1" % (vr(kvb(t), 4), WS))
    def ld_v(t):
        a("s_mov_b64 exec, s[30:31]")
        a("buffer_load_dwordx4 %s, v3, %s, s28 offen offset:1024 sc1" % (vr(kvb(t) + 4, 4), WS))
        a("buffer_load_dwordx4 %s, v3, %s, s28 offen offset:1536 sc1" % (vr(kvb(t) + 8, 4), WS))
        a("s_mov_b64 exec, -1")
        a("s_add_u32 s28, s28, 2048")
    for i in range(1, NB):
        ld_k(i)
        ld_v(i - 1)
        if (i - NB) % 4 == 0 and not NOWO:
            a("buffer_load_dword v255, off, %s, s22" % WS)
    a("s_mov_b32 s23, 0")
    a("s_waitcnt lgkmcnt(0)")
    for j in range(2):
        a("v_mov_b32 v%d, v%d" % (C + 16 * j + 1, C + 16 * j))
        for r in range(2, 16, 2):
            a("v_mov_b64 %s, %s" % (vr(C + 16 * j + r, 2), vr(C + 16 * j, 2)))
    a("s_waitcnt vmcnt(%d)" % (3 * (NB - 1)))
    a("%s %s, %s, %s, %s" % (MF32, vr(S, 16), vr(kvb(0), 4), vr(Q, 4), vr(C, 16)))
    a("s_waitcnt vmcnt(%d)" % (3 * (NB - 2)))
    a("s_nop 11")
    a("v_exp_f32 v%d, v%d" % (S, S))
    if not TOUCH:
        stamp(a, 6)

    def main_loop(sfx, older):
        a.raw(".p2align 6")
        a.label("P2_LOOP" + sfx)
        pos = [0]
        def mark():
            pos[0] += 1
            if older and PRIO and pos[0] % 24 == (24 - PRIO + 1) % 24:
                a("s_setprio 0")
            if older and PRIO and pos[0] % 24 == 1 and pos[0] > 1:
                a("s_setprio 1")
        for t in range(NB):
            for j in range(2):
                cur = S + 16 * j
                prv = S + 16 * (j ^ 1)
                nxt = prv
                E = lambda r: a("v_exp_f32 v%d, v%d" % (cur + r, cur + r))
                CV = lambda r: a("v_cvt_pk_bf16_f32 v%d, v%d, v%d" % (P + r // 2, cur + r, cur + r + 1))
                pb = kvb(t) if j == 1 else kvb(t - 1)
                nb = kvb(t) if j == 0 else kvb(t + 1)
                a("v_cvt_pk_bf16_f32 v%d, v%d, v%d" % (P + 7, prv + 14, prv + 15))
                if j == 1:
                    nwo = 0 if NOWO else sum(1 for k in range(t - (NB - 2), t) if k % 4 == 0)
                    a("s_waitcnt vmcnt(%d)" % (3 * (NB - 2) + nwo))
                    if t % 4 == 0:
                        if not NOWO:
                            a("s_lshl_b32 s3, s38, 13")
                            a("s_add_u32 m0, s3, s37")
                            a("s_lshl3_add_u32 s3, s3, s36")
                            a("buffer_load_dwordx4 v4, s[40:43], s3 offen lds")
                            a("s_add_u32 s38, s38, 1")
                            a("s_and_b32 s38, s38, 7")
                        if older:
                            a("s_bitcmp1_b32 s32, s23")
                            a("s_cbranch_scc1 P2_HOOK")
                            a.label("P2_HRET%d" % (t // 4))
                        a("s_add_u32 s23, s23, 1")
                mark()
                a("%s %s, %s, %s, %s" % (MF32, vr(nxt, 16), vr(nb, 4), vr(Q + 4 * (j ^ 1), 4), vr(C + 16 * (j ^ 1), 16)))
                if j == 0:
                    ld_k(t)
                E(1); E(2); CV(0); E(3); E(4); CV(2); E(5)
                mark()
                a("%s %s, %s, %s, %s" % (MF32, vr(O + 16 * (j ^ 1), 16), vr(pb + 8, 4), vr(P + 4, 4), vr(O + 16 * (j ^ 1), 16)))
                if j == 0:
                    ld_v(t - 1)
                E(6); CV(4); E(7); E(8); CV(6); E(9); E(10)
                mark()
                a("%s %s, %s, %s, %s" % (MF32, vr(O + 16 * j, 16), vr(kvb(t) + 4, 4), vr(P, 4), vr(O + 16 * j, 16)))
                CV(8); E(11); E(12); CV(10); E(13); E(14); CV(12); E(15)
                a("v_exp_f32 v%d, v%d" % (nxt, nxt))
        if older and PRIO:
            a("s_setprio 1")
        if STAMP == 1:
            a("s_memtime s[100:101]")
            a("s_waitcnt lgkmcnt(0)")
            a("v_mov_b32 v255, s100")
            a("s_lshl_b32 s100, s2, 3")
            a("s_add_u32 s100, s100, s19")
            a("s_lshl_b32 s100, s100, 5")
            a("s_add_u32 s100, s100, s23")
            a("s_lshl_b32 s100, s100, 2")
            a("s_add_u32 s100, s100, %d" % (WS_ST + 15 * 4))
            a("buffer_store_dword v255, off, %s, s100" % WS)
        a("s_cmp_lt_u32 s23, 8")
        a("s_cbranch_scc1 P2_LOOP" + sfx)
    if PRIO:
        a("s_setprio 1")
    a("s_cmp_ge_u32 s19, 4")
    a("s_cbranch_scc1 P2_LOOPB")
    main_loop("A", True)
    a("s_branch P2_DRAIN")
    main_loop("B", False)
    a.label("P2_DRAIN")
    delay(a, 3, 7, 0x42)
    a("v_cvt_pk_bf16_f32 v%d, v%d, v%d" % (P + 7, S + 16 + 14, S + 16 + 15))
    a("ds_write_b128 v%d, %s" % (CW16, vr(O, 4)))
    a("ds_write_b32 v%d, v%d offset:2048" % (CW4, O + 8))
    a("%s %s, %s, %s, %s" % (MF32, vr(O + 16, 16), vr(kvb(NB - 1) + 8, 4), vr(P + 4, 4), vr(O + 16, 16)))
    a("ds_write_b128 v%d, %s offset:1024" % (CW16, vr(O + 4, 4)))
    stamp(a, 7)
    stamp(a, 27, True)
    ev(a, 2)
    a("s_mov_b32 s28, 0x4f800000")
    a("s_nop 9")
    a("v_max_f32 v%d, v%d, v%d" % (S, O + 8, O + 24))
    a("v_cmp_u_f32 s[56:57], v%d, v%d" % (O + 8, O + 24))
    a("v_cmp_lt_f32 vcc, s28, v%d" % S)
    a("s_nop 3")
    a("s_or_b64 s[56:57], s[56:57], vcc")
    a("s_cbranch_scc0 P2_NOFLAG")
    a("v_mov_b32 v%d, 1" % S)
    a("ds_write_b32 v%d, v%d offset:8" % (VM, S))
    a.label("P2_NOFLAG")
    a("s_waitcnt lgkmcnt(0)")
    a("s_barrier")
    a("ds_read_b32 v%d, v%d offset:8" % (S + 1, VM))
    a("ds_read_b32 v%d, v%d offset:2048" % (O + 8, CR4))
    a("ds_read_b128 %s, v%d" % (vr(O, 4), CR16))
    a("ds_read_b128 %s, v%d offset:1024" % (vr(O + 4, 4), CR16))
    a("s_waitcnt lgkmcnt(2)")
    a("v_readfirstlane_b32 s23, v%d" % (S + 1))
    a("v_add_f32 v%d, v%d, v%d" % (O + 8, O + 8, O + 24))
    a("v_rcp_f32 v%d, v%d" % (O + 8, O + 8))
    a("s_cmp_gt_u32 s23, s29")
    a("s_cbranch_scc1 P2_EXACT")
    a("v_mov_b32 v%d, v%d" % (O + 9, O + 8))
    a("s_waitcnt lgkmcnt(0)")
    for r in range(0, 8, 2):
        a("v_pk_add_f32 %s, %s, %s" % (vr(O + r, 2), vr(O + r, 2), vr(O + 16 + r, 2)))
    for r in range(0, 8, 2):
        a("v_pk_mul_f32 %s, %s, %s" % (vr(O + r, 2), vr(O + r, 2), vr(O + 8, 2)))
    for r in range(4):
        a("v_cvt_pk_bf16_f32 v%d, v%d, v%d" % (O + 16 + r, O + 2 * r, O + 2 * r + 1))
    a("buffer_store_dwordx4 %s, v2, %s, s33 offen sc1" % (vr(O + 16, 4), WS))
    stamp(a, 8)
    delay(a, 4, 3, 0x91)

    YR = 96
    a("s_and_b32 s21, s%d, 0xffff" % S_KEY)
    a("s_cmp_lt_u32 s19, 4")
    a("s_cbranch_scc1 P3_MUL")
    a("buffer_load_dword v8, v%d, %s, s10 offen sc1" % (HFL, WS))
    a("v_mov_b32 v10, 1")
    a("s_mov_b32 s22, 0")
    a("s_mov_b32 s13, 0")
    a("s_mov_b32 s94, 0")
    a("s_waitcnt vmcnt(0)")
    last_wave_flag(a, "P3_FLB", VM, 16, 8, 98, 12)
    stamp(a, 9)
    stamp(a, 30, True)
    a.label("P3_HL")
    a("v_cmp_eq_u32 vcc, s%d, v8" % S_TAG)
    a("s_add_u32 s94, s94, 1")
    a("s_cmp_ge_u32 s94, 0x8000")
    a("s_cselect_b32 s23, 3, vcc_lo")
    a("s_and_b32 s23, s23, 3")
    a("s_andn2_b32 s23, s23, s22")
    a("s_or_b32 s22, s22, s23")
    a("s_cmp_eq_u32 s22, 3")
    a("s_cbranch_scc1 P3_HN")
    a("buffer_load_dword v8, v%d, %s, s10 offen sc1" % (HFL, WS))
    a.label("P3_HN")
    for q in range(2):
        a("s_bitcmp1_b32 s23, %d" % q)
        a("s_cbranch_scc0 P3_HS%d" % q)
        for t in range(2):
            a("s_add_u32 m0, s12, %d" % (L_X + q * 8192 + t * 4096))
            a("s_add_u32 s3, s11, %d" % (q * 4096 + t * 32768))
            for i in range(4):
                a("buffer_load_dwordx4 v2, %s, s3 offen offset:%d sc1 lds" % (WS, i * 1024))
        a.label("P3_HS%d" % q)
    a("s_cmp_eq_u32 s22, 3")
    a("s_cbranch_scc1 P3_HE")
    a("s_cmp_eq_u32 s23, 0")
    a("s_cbranch_scc1 P3_HW")
    a("s_waitcnt vmcnt(8)")
    a("s_branch P3_HL")
    a.label("P3_HW")
    a("s_waitcnt vmcnt(0)")
    a("s_cmp_eq_u32 s13, s22")
    a("s_cbranch_scc1 P3_HL")
    a("s_mov_b32 s13, s22")
    a("s_lshr_b32 s3, s22, 1")
    a("s_lshl_b32 s3, s3, 2")
    a("v_add_u32 v9, s3, v%d" % HLD)
    a("ds_write_b32 v9, v10 offset:32")
    a("s_branch P3_HL")
    a.label("P3_HE")
    stamp(a, 10)
    stamp(a, 28, True)
    a("s_cmp_eq_u32 s23, 1")
    a("s_cselect_b32 s3, 4, 0")
    a("v_add_u32 v9, s3, v%d" % HLD)
    a("s_waitcnt vmcnt(8)")
    a("ds_write_b32 v9, v10 offset:32")
    a("s_waitcnt vmcnt(0)")
    a("ds_write_b32 v%d, v10 offset:32" % HLD)
    a("ds_write_b32 v%d, v10 offset:36" % HLD)
    if SPAN and SPANW:
        a("s_lshl_b32 s3, s2, 3")
        a("s_add_u32 s3, s3, s19")
        a("s_cmp_lg_u32 s3, %d" % (77 * 8 + 6))
        a("s_cbranch_scc1 L_END")
        a("s_sub_u32 s13, s59, s58")
        a("s_min_u32 s13, s13, 10000")
        a("s_mul_i32 s13, s13, 10")
        a("s_memrealtime s[20:21]")
        a.label("SP_LOOP")
        a("s_memrealtime s[22:23]")
        a("s_waitcnt lgkmcnt(0)")
        a("s_sub_u32 s17, s22, s20")
        a("s_cmp_lt_u32 s17, s13")
        a("s_cbranch_scc1 SP_LOOP")
    a("s_endpgm")
    a.label("P3_MUL")
    a("s_sub_u32 s21, 0xffff, s21")
    a("s_lshr_b32 s20, s21, 5")
    ACC3, OB, B, YR = 16, 32, 80, 96
    def wof(h):
        return (190 + 4 * h) if h < 16 else (120 + 4 * (h - 16)) if h < 28 else (104 + 4 * (h - 28))
    def rd_wo(h):
        a("ds_read_b64_tr_b16 %s, v%d offset:%d" % (vr(wof(h), 2), VWO, h * 2048))
        a("ds_read_b64_tr_b16 %s, v%d offset:%d" % (vr(wof(h) + 2, 2), VWO, h * 2048 + 1024))
    for h in list(range(16)) + list(range(28, 32)):
        rd_wo(h)
    srd(a, 44, P_OUT, 2048 * 512 * 2)
    for i in range(8):
        a("v_lshlrev_b32 v%d, 16, v%d" % (B + 2 * i, XR + i))
        a("v_and_b32 v%d, 0xffff0000, v%d" % (B + 2 * i + 1, XR + i))
    for r in range(0, 16, 2):
        a("v_mov_b64 %s, 0" % vr(ACC3 + r, 2))
    a("v_and_b32 v5, 7, v0")
    a("v_lshl_add_u32 v5, v5, 2, v%d" % VM)
    a("s_waitcnt vmcnt(0)")
    last_wave_flag(a, "P3_FLA", VM, 16, 8, 98, 8)
    stamp(a, 9)
    stamp(a, 30, True)
    for h in range(16, 28):
        rd_wo(h)
    a("s_cmp_eq_u32 s20, s4")
    a("s_cbranch_scc1 P3_YJOB")
    a.label("P3_YD")
    for i in range(16):
        a("v_mul_f32 v%d, v%d, v%d" % (B + i, B + i, GR + 1))
    a("s_mov_b32 s22, 0")
    a("s_mov_b32 s94, 0")
    a.label("P3_ROUND")
    a("ds_read_b32 v8, v5 offset:32")
    a("s_add_u32 s94, s94, 1")
    a("s_waitcnt lgkmcnt(0)")
    a("v_cmp_ne_u32 vcc, 0, v8")
    a("s_cmp_ge_u32 s94, 0x400000")
    a("s_cbranch_scc1 P3_FIN")
    a("s_and_b32 s23, vcc_lo, 0xff")
    a("s_andn2_b32 s23, s23, s22")
    a("s_cbranch_scc0 P3_ROUND")
    def rd_o(g):
        for i in range(4):
            a("ds_read_b128 %s, v%d offset:%d" % (vr(OB + 16 * (g & 1) + 4 * i, 4), VOF, L_X + g * 8192 + i * 1024))
    for g in range(8):
        a("s_bitcmp1_b32 s23, %d" % g)
        a("s_cbranch_scc0 P3_SK%d" % g)
        if g > 0:
            a("s_bitcmp1_b32 s23, %d" % (g - 1))
            a("s_cbranch_scc1 P3_HV%d" % g)
        rd_o(g)
        a.label("P3_HV%d" % g)
        if g < 7:
            rd_o(g + 1)
        for i in range(4):
            a("s_waitcnt lgkmcnt(%d)" % ((4 if g < 7 else 0) + 3 - i))
            a("%s %s, %s, %s, %s" % (MF32, vr(ACC3, 16), vr(wof(4 * g + i), 4), vr(OB + 16 * (g & 1) + 4 * i, 4), vr(ACC3, 16)))
        a.label("P3_SK%d" % g)
    a("s_or_b32 s22, s22, s23")
    a("s_cmp_lg_u32 s22, 0xff")
    a("s_cbranch_scc1 P3_ROUND")
    a.label("P3_FIN")
    stamp(a, 11)
    a("s_nop 10")
    for i in range(16):
        a("v_fma_f32 v%d, v%d, v%d, v%d" % (B + i, ACC3 + i, GR, B + i))
        if i % 2 == 1:
            a("v_cvt_pk_bf16_f32 v%d, v%d, v%d" % (XR + i // 2, B + i - 1, B + i))
        if i == 8:
            a("buffer_store_dwordx4 %s, v%d, s[44:47], s6 offen" % (vr(XR, 4), VXO))
    a("buffer_store_dwordx4 %s, v%d, s[44:47], s6 offen offset:16" % (vr(XR + 4, 4), VXO))
    stamp(a, 12)
    stamp(a, 25, True)
    if SPAN and not SPANW:
        ev(a, 3)
        a("s_lshl_b32 s3, s2, 3")
        a("s_add_u32 s3, s3, s19")
        a("s_cmp_lg_u32 s3, %d" % (77 * 8))
        a("s_cbranch_scc1 L_END")
        a("s_sub_u32 s13, s99, s13")
        a("s_min_u32 s13, s13, 10000")
        a("s_mul_i32 s13, s13, 10")
        a("s_memrealtime s[20:21]")
        a.label("SP_LOOP")
        a("s_memrealtime s[22:23]")
        a("s_waitcnt lgkmcnt(0)")
        a("s_sub_u32 s17, s22, s20")
        a("s_cmp_lt_u32 s17, s13")
        a("s_cbranch_scc1 SP_LOOP")
    a.label("L_END")
    a("s_endpgm")

    def ld_fl3(va=252):
        a("v_lshlrev_b32 v%d, 7, v0" % va)
        for i in range(4):
            a("s_mov_b32 s3, %d" % (WS_FL3 + i * 8192))
            a("buffer_load_dword v%d, v%d, %s, s3 offen sc1" % (F3 + i, va, WS))
    a.label("P3_YJOB")
    a("s_mov_b32 s94, 0")
    a.label("P3_ALL")
    for i in range(4):
        a("v_xor_b32 v%d, s%d, v%d" % (F3 + i, S_TAG, F3 + i))
    a("v_or3_b32 v%d, v%d, v%d, v%d" % (F3, F3, F3 + 1, F3 + 2))
    a("v_or_b32 v%d, v%d, v%d" % (F3, F3, F3 + 3))
    a("v_cmp_ne_u32 vcc, 0, v%d" % F3)
    a("s_add_u32 s94, s94, 1")
    a("s_cmp_ge_u32 s94, 0x8000")
    a("s_cbranch_scc1 P3_ALLD")
    a("s_cbranch_vccz P3_ALLD")
    ld_fl3(13)
    a("s_waitcnt vmcnt(0)")
    a("s_branch P3_ALL")
    a.label("P3_ALLD")
    a("v_lshrrev_b32 v12, 2, v0")
    a("v_and_b32 v13, 3, v0")
    a("v_lshlrev_b32 v14, 7, v12")
    a("v_lshl_add_u32 v14, v13, 4, v14")
    a("v_lshlrev_b32 v12, 11, v12")
    a("v_lshl_add_u32 v12, v13, 4, v12")
    a("s_lshr_b32 s30, s5, 8")
    a("s_lshl_b32 s30, s30, 9")
    a("s_and_b32 s31, s5, 255")
    a("s_add_u32 s30, s30, s31")
    a("s_add_u32 s30, s30, %d" % WS_Y)
    a("buffer_load_dwordx4 %s, v12, %s, s30 offen sc1" % (vr(YR, 4), WS))
    a("buffer_load_dwordx4 %s, v12, %s, s30 offen offset:256 sc1" % (vr(YR + 4, 4), WS))
    a("s_mul_i32 s30, s19, 2304")
    a("s_add_u32 s30, s30, %d" % L_QX)
    a("v_add_u32 v14, s30, v14")
    a("s_waitcnt vmcnt(0)")
    a("ds_write_b128 v14, %s" % vr(YR, 4))
    a("ds_write_b128 v14, %s offset:64" % vr(YR + 4, 4))
    a("v_lshlrev_b32 v14, 10, v7")
    a("v_lshl_add_u32 v14, v6, 2, v14")
    a("v_add_u32 v14, s30, v14")
    a("s_waitcnt lgkmcnt(0)")
    for i in range(8):
        a("ds_read_b32 v%d, v14 offset:%d" % (YR + i, i * 128))
    a("s_and_b32 s31, s%d, 0xffff0000" % S_KEY)
    a("s_ashr_i32 s28, s31, 31")
    a("s_not_b32 s28, s28")
    a("s_or_b32 s28, s28, 0x80000000")
    a("s_xor_b32 s31, s31, s28")
    a("s_and_b32 s31, s31, 0xffff0000")
    a("v_mov_b32 v15, s31")
    sigmoid_bf16(a, 15)
    a("s_waitcnt lgkmcnt(0)")
    for i in range(1, 8):
        a("v_add_f32 v%d, v%d, v%d" % (YR, YR, YR + i))
    a("v_mov_b32 v%d, v%d" % (YR + 1, YR))
    a("v_and_b32 v14, 15, v0")
    a("v_lshlrev_b32 v14, 3, v14")
    a("v_permlane32_swap_b32 v%d, v%d" % (YR, YR + 1))
    a("v_add_f32 v%d, v%d, v%d" % (YR, YR, YR + 1))
    bf16_round_to_f32(a, YR, YR)
    a("v_mul_f32 v%d, v%d, v15" % (YR, YR))
    bf16_round_to_f32(a, YR, YR)
    a("v_bfe_u32 v15, v0, 4, 1")
    a("v_lshl_add_u32 v14, v15, 2, v14")
    a("v_add_u32 v14, s30, v14")
    a("ds_write_b32 v14, v%d offset:2048" % YR)
    a("v_lshl_add_u32 v14, v7, 6, s30")
    for i in range(4):
        a("ds_read_b128 %s, v14 offset:%d" % (vr(OB + 4 * i, 4), 2048 + i * 16))
    a("s_and_b32 s30, s21, 31")
    a("v_cmp_eq_u32 vcc, s30, v6")
    a("s_waitcnt lgkmcnt(0)")
    a("s_and_saveexec_b64 s[48:49], vcc")
    for i in range(16):
        a("v_add_f32 v%d, v%d, v%d" % (B + i, B + i, OB + i))
        bf16_round_to_f32(a, B + i, B + i)
    a("s_mov_b64 exec, s[48:49]")
    a("s_branch P3_YD")

    a.label("P2_HRET")
    if NB == 8:
        a("s_bitcmp1_b32 s23, 0")
        a("s_cbranch_scc1 P2_HRET1")
    a("s_branch P2_HRET0")
    def gu_base():
        a("s_cmp_lt_u32 s19, 2")
        a("s_cselect_b32 s44, s%d, s%d" % (P_WG, P_WU))
        a("s_cselect_b32 s45, s%d, s%d" % (P_WG + 1, P_WU + 1))
        a("s_and_b32 s52, s2, 7")
        a("s_mul_i32 s52, s52, %d" % (64 * 3584))
        a("s_lshr_b32 s53, s2, 3")
        a("s_lshl_b32 s53, s53, 7")
        a("s_add_u32 s52, s52, s53")
    def warm_gu(lo, hi):
        if not WARM:
            return
        gu_base()
        a("s_and_b32 s53, s19, 1")
        a("s_mul_i32 s53, s53, %d" % (32 * 3584))
        a("s_add_u32 s52, s52, s53")
        a("s_add_u32 s44, s44, s52")
        a("s_addc_u32 s45, s45, 0")
        for i in range(lo, hi):
            a("s_load_dword s99, s[44:45], 0x%x" % (i * 3584))
    def warm_wd(lo, hi):
        if not WARM:
            return
        a("s_lshl_b32 s52, s2, 13")
        a("s_lshl_b32 s53, s19, 8")
        a("s_add_u32 s52, s52, s53")
        a("s_add_u32 s44, s%d, s52" % P_WD)
        a("s_addc_u32 s45, s%d, 0" % (P_WD + 1))
        for i in range(lo, hi):
            a("s_load_dword s99, s[44:45], 0x%x" % ((i // 2) * 1024 + (i % 2) * 128))
    def only_ffn():
        a("s_cmp_ge_u32 s2, 224")
        a("s_cbranch_scc1 P2_HRET")
    def check_tags(name, regs, reload):
        a("s_mov_b32 s94, 0")
        a.label(name + "L")
        a("v_cmp_ne_u32 vcc, s%d, v%d" % (S_TAG, regs[0]))
        for r in regs[1:]:
            a("v_cmp_ne_u32 s[52:53], s%d, v%d" % (S_TAG, r))
            a("s_nop 1")
            a("s_or_b64 vcc, vcc, s[52:53]")
        a("s_add_u32 s94, s94, 1")
        a("s_cmp_ge_u32 s94, 0x8000")
        a("s_cbranch_scc1 %sD" % name)
        a("s_cbranch_vccz %sD" % name)
        reload()
        a("s_waitcnt vmcnt(0)")
        a("s_branch %sL" % name)
        a.label(name + "D")
    def ld_keys():
        a("v_lshlrev_b32 v5, 3, v0")
        a("s_mov_b32 s3, %d" % WS_RK)
        a("buffer_load_dwordx2 %s, v5, %s, s3 offen sc1" % (vr(DD, 2), WS))
    def job_argmax():
        check_tags("P2_CK", [DD + 1], ld_keys)
        for sh in (1, 2, 4, 8):
            a("v_max_u32_dpp v%d, v%d, v%d row_ror:%d row_mask:0xf bank_mask:0xf" % (DD, DD, DD, sh))
            a("s_nop 1")
        for i in range(4):
            a("v_readlane_b32 s%d, v%d, %d" % (52 + i, DD, 16 * i))
        srd(a, 44, P_X, 2048 * 512 * 2)
        a("s_max_u32 s52, s52, s53")
        a("s_max_u32 s54, s54, s55")
        a("s_max_u32 s52, s52, s54")
        a("s_mov_b32 s%d, s52" % S_KEY)
        a("s_cmp_lt_u32 s2, 224")
        a("s_cselect_b32 s32, s32, 0x%x" % (0x80 if PLAN >= 5 else 0xc0))
        only_ffn()
        a("s_and_b32 s52, s52, 0xffff")
        a("s_sub_u32 s52, 0xffff, s52")
        a("s_and_b32 s52, s52, 2047")
        a("s_lshl_b32 s52, s52, 10")
        a("s_and_b32 s53, s2, 7")
        a("s_lshl_b32 s53, s53, 7")
        a("s_add_u32 s52, s52, s53")
        a("v_lshrrev_b32 v5, 4, v0")
        a("v_lshlrev_b32 v5, 4, v5")
        for s_ in range(2):
            a("buffer_load_dwordx4 %s, v5, s[44:47], s52 offen offset:%d" % (vr(XS + 4 * s_, 4), 64 * s_))
    def job_gu(lo, hi):
        only_ffn()
        gu_base()
        a("s_and_b32 s45, s45, 0xffff")
        a("s_mov_b32 s46, 0x%x" % (512 * 1792 * 2))
        a("s_mov_b32 s47, 0x00020000")
        a("v_lshrrev_b32 v5, 2, v0")
        a("v_mul_u32_u24 v5, 3584, v5")
        a("v_and_b32 v252, 3, v0")
        a("v_lshl_add_u32 v5, v252, 4, v5")
        a("s_and_b32 s53, s19, 1")
        a("s_lshl_b32 s53, s53, 6")
        a("s_add_u32 s52, s52, s53")
        a("s_lshl_b32 s54, s19, 12")
        for i in range(lo, hi):
            a("s_add_u32 m0, s54, %d" % (L_FFW + i * 1024))
            a("s_add_u32 s53, s52, %d" % (i * 16 * 3584))
            a("buffer_load_dwordx4 v5, s[44:47], s53 offen lds")
    def job_wd(lo=0, hi=8):
        srd(a, 48, P_WD, 1792 * 512 * 2)
        a("s_lshl_b32 s52, s2, 13")
        a("s_lshl_b32 s53, s19, 8")
        a("s_add_u32 s52, s52, s53")
        a("v_lshlrev_b32 v5, 2, v0")
        a("s_add_u32 s53, s52, 4096")
        for f in range(lo, hi):
            a("buffer_load_dword v%d, v5, s[48:51], s%d offen offset:%d" % (WD + f, 52 + f // 4, (f % 4) * 1024))
    def job_part():
        a("v_lshrrev_b32 v5, 4, v0")
        a("v_lshlrev_b32 v5, 9, v5")
        a("v_bfe_u32 v252, v0, 2, 2")
        a("v_lshl_add_u32 v5, v252, 6, v5")
        a("v_and_b32 v252, 3, v0")
        a("v_lshl_add_u32 v5, v252, 3, v5")
        a("s_lshl_b32 s52, s19, 12")
        a("s_add_u32 s52, s52, %d" % L_FFW)
        a("v_add_u32 v5, s52, v5")
        for ct in range(2):
            for s_ in range(2):
                for half in range(2):
                    a("ds_read_b64_tr_b16 %s, v5 offset:%d" % (vr(BF + 4 * s_ + 2 * half, 2), ct * 32 + s_ * 2048 + half * 256))
            a("s_waitcnt lgkmcnt(0)")
            a("%s %s, %s, %s, 0" % (MF16, vr(DD + 4 * ct, 4), vr(XS, 4), vr(BF, 4)))
            a("%s %s, %s, %s, %s" % (MF16, vr(DD + 4 * ct, 4), vr(XS + 4, 4), vr(BF + 4, 4), vr(DD + 4 * ct, 4)))
        a("v_lshlrev_b32 v5, 3, v0")
        a("s_lshl_b32 s52, s2, 10")
        a("s_lshl_b32 s53, s19, 8")
        a("s_add_u32 s52, s52, s53")
        a("s_add_u32 s52, s52, %d" % WS_PA)
        a("s_nop 3")
        a("v_mov_b32 v%d, s%d" % (DD + 1, S_TAG))
        a("s_mov_b32 exec_hi, 0")
        a("s_mov_b32 exec_lo, 0xffff0000")
        a("v_mov_b32 v%d, v%d" % (DD, DD + 4))
        a("s_mov_b32 exec_lo, -1")
        a("buffer_store_dwordx2 %s, v5, %s, s52 offen sc1" % (vr(DD, 2), WS))
        a("s_mov_b64 exec, -1")
    def ld_part():
        a("v_lshrrev_b32 v5, 3, v0")
        a("v_lshlrev_b32 v5, 10, v5")
        a("v_and_b32 v252, 7, v0")
        a("v_lshl_add_u32 v5, v252, 3, v5")
        a("s_lshr_b32 s3, s2, 3")
        a("s_lshl_b32 s3, s3, 13")
        a("s_and_b32 s54, s2, 7")
        a("s_lshl_b32 s54, s54, 6")
        a("s_add_u32 s3, s3, s54")
        a("s_add_u32 s3, s3, %d" % WS_PA)
        a("buffer_load_dwordx2 %s, v5, %s, s3 offen sc1" % (vr(T, 2), WS))
        a("buffer_load_dwordx2 %s, v5, %s, s3 offen offset:512 sc1" % (vr(T + 2, 2), WS))
    def job_final():
        check_tags("P2_CP", [T + 1, T + 3], ld_part)
        G_, U_ = T, T + 2
        for r in (G_, U_):
            a("v_add_f32_dpp v%d, v%d, v%d row_ror:8 row_mask:0xf bank_mask:0xf" % (r, r, r))
        for op in ("v_permlane16_swap_b32", "v_permlane32_swap_b32"):
            for r in (G_, U_):
                a("v_mov_b32 v%d, v%d" % (r + 1, r))
            a("s_nop 0")
            for r in (G_, U_):
                a("%s v%d, v%d" % (op, r, r + 1))
            for r in (G_, U_):
                a("v_add_f32 v%d, v%d, v%d" % (r, r, r + 1))
        bf16_round_to_f32(a, G_, G_)
        bf16_round_to_f32(a, U_, U_)
        a("v_mul_f32 v%d, 0x%08x, v%d" % (T + 1, f32bits(-LOG2E), G_))
        a("v_exp_f32 v%d, v%d" % (T + 1, T + 1))
        a("v_mov_b32 v%d, 0" % (T + 4))
        a("v_add_f32 v%d, 1.0, v%d" % (T + 1, T + 1))
        a("v_rcp_f32 v%d, v%d" % (T + 1, T + 1))
        a("v_mov_b32 v%d, 0" % (T + 5))
        a("v_mul_f32 v%d, v%d, v%d" % (T + 1, T + 1, G_))
        bf16_round_to_f32(a, T + 1, T + 1)
        a("v_mul_f32 v%d, v%d, v%d" % (T + 1, T + 1, U_))
        a("v_cvt_pk_bf16_f32 v%d, v%d, v%d" % (T + 1, T + 1, T + 4))
        a("v_lshlrev_b32 v5, 2, v0")
        for i in range(8):
            a("v_readlane_b32 s%d, v%d, %d" % (44 + i, T + 1, i))
        a("s_lshl_b32 s60, s19, 9")
        a("s_and_b32 s61, s2, 15")
        a("s_lshl_b32 s61, s61, 11")
        a("s_add_u32 s60, s60, s61")
        a("s_add_u32 s60, s60, %d" % WS_Y)
        for i in range(8):
            a("s_lshl_b32 s%d, s%d, 16" % (52 + i, 44 + i))
        for i in range(8):
            a("v_dot2_f32_bf16 v%d, v%d, s%d, v%d" % (T + 4, WD + i, 44 + i, T + 4))
            a("v_dot2_f32_bf16 v%d, v%d, s%d, v%d" % (T + 5, WD + i, 52 + i, T + 5))
        a("s_nop 3")
        a("buffer_atomic_add_f32 v%d, v5, %s, s60 offen" % (T + 4, WS))
        a("buffer_atomic_add_f32 v%d, v5, %s, s60 offen offset:256" % (T + 5, WS))
    def job_tail():
        a("s_lshl_b32 s3, s2, 7")
        a("s_add_u32 s3, s3, %d" % WS_FL3)
        a("s_waitcnt vmcnt(0)")
        last_wave_flag(a, "P2_FL3", VM, 12, 4, 3, 5)
        srd(a, 44, P_X, 2048 * 512 * 2)
        a("buffer_load_dwordx4 %s, v%d, s[44:47], s6 offen" % (vr(XR, 4), VXO))
        a("buffer_load_dwordx4 %s, v%d, s[44:47], s6 offen offset:16" % (vr(XR + 4, 4), VXO))
        a("v_lshlrev_b32 v252, 3, v6")
        a("buffer_load_dwordx2 %s, v252, %s, s7 offen sc1" % (vr(GR, 2), WS))
    def job_key():
        a("s_cmp_eq_u32 s39, -1")
        a("s_cbranch_scc1 P2_NOKEY")
        a("s_lshl_b32 s3, s39, 3")
        a("s_add_u32 s3, s3, %d" % WS_RK)
        a("v_mov_b32 v%d, s%d" % (DD, S_KEY))
        a("v_mov_b32 v%d, s%d" % (DD + 1, S_TAG))
        a("s_waitcnt vmcnt(0)")
        a("s_mov_b64 exec, 1")
        a("buffer_store_dwordx2 %s, off, %s, s3 sc1" % (vr(DD, 2), WS))
        a("s_mov_b64 exec, -1")
        a.label("P2_NOKEY")
    def job_own():
        a("s_and_b32 s52, s%d, 0xffff" % S_KEY)
        a("s_sub_u32 s52, 0xffff, s52")
        a("s_lshr_b32 s52, s52, 5")
        a("s_cmp_lg_u32 s52, s4")
        a("s_cbranch_scc1 P2_HRET")
        ld_fl3()
    def odd(b):
        a("s_bitcmp%d_b32 s2, 3" % b)
        a("s_cbranch_scc1 P2_HRET")
    if NB == 4:
        plans = {
            0: {0: [job_key], 1: [ld_keys, lambda: job_gu(0, 2)], 2: [job_argmax, lambda: job_gu(2, 4)], 3: [job_part, job_wd], 4: [ld_part], 5: [job_final], 6: [job_tail], 7: [job_own]},
            2: {0: [job_key, lambda: job_gu(0, 1)], 1: [ld_keys, lambda: job_gu(1, 3)], 2: [job_argmax, lambda: job_gu(3, 4)], 3: [job_part, job_wd], 4: [ld_part], 5: [job_final], 6: [job_tail], 7: [job_own]},
            3: {0: [job_key], 1: [ld_keys, lambda: job_gu(0, 4), job_wd], 2: [job_argmax], 3: [job_part], 4: [ld_part], 5: [job_final], 6: [job_tail], 7: [job_own]},
            4: {0: [job_key], 1: [ld_keys, lambda: odd(1), lambda: job_gu(0, 4), job_wd], 2: [job_argmax, lambda: odd(0), lambda: job_gu(0, 4), job_wd], 3: [job_part], 4: [ld_part], 5: [job_final], 6: [job_tail], 7: [job_own]},
            5: {0: [job_key], 1: [ld_keys, only_ffn, lambda: warm_gu(0, 14)], 2: [job_argmax, lambda: warm_gu(14, 28)], 3: [lambda: job_gu(0, 4), lambda: warm_wd(0, 14)], 4: [job_part, job_wd], 5: [ld_part], 6: [job_final], 7: [job_tail, job_own]},
            6: {0: [job_key, lambda: job_gu(0, 1)], 1: [ld_keys, lambda: job_gu(1, 2)], 2: [job_argmax, lambda: job_gu(2, 3)], 3: [lambda: job_gu(3, 4)], 4: [job_part, lambda: job_wd(0, 4)], 5: [ld_part, lambda: job_wd(4, 8)], 6: [job_final], 7: [job_tail, job_own]},
            7: {0: [job_key], 1: [ld_keys, lambda: job_gu(0, 1)], 2: [job_argmax, lambda: job_gu(1, 3)], 3: [lambda: job_gu(3, 4), lambda: job_wd(0, 3)], 4: [job_part, lambda: job_wd(3, 6)], 5: [ld_part, lambda: job_wd(6, 8)], 6: [job_final], 7: [job_tail, job_own]},
            1: {1: [ld_keys, lambda: job_gu(0, 1)], 2: [job_argmax, lambda: job_gu(1, 2)], 3: [lambda: job_gu(2, 4)], 4: [job_part], 5: [job_wd], 6: [ld_part], 7: [job_final]},
        }
    else:
        plans = {
            0: {0: [ld_keys], 1: [lambda: job_gu(0, 4)], 2: [job_argmax], 3: [job_wd], 4: [job_part], 5: [ld_part], 7: [job_final]},
        }
    plan = plans[PLAN]
    a.label("P2_HOOK")
    delay(a, 2, 15, 0x05)
    for st in plan:
        a("s_cmp_eq_u32 s23, %d" % st)
        a("s_cbranch_scc1 P2_J%d" % st)
    a("s_branch P2_HRET")
    for st, jobs in plan.items():
        a.label("P2_J%d" % st)
        for jb in jobs:
            jb()
        a("s_branch P2_HRET")

    a.label("P2_EXACT")
    a("s_mov_b32 s29, 1")
    a("s_mov_b32 s32, 0")
    a("s_mov_b32 s23, 0xff800000")
    for j in range(2):
        a("v_mov_b32 v%d, s23" % (T + j))
    a("s_mov_b32 s28, s22")
    a("s_mov_b32 s23, 0")
    a("s_waitcnt vmcnt(0) lgkmcnt(0)")
    a.label("P2_EXLOOP")
    a("buffer_load_dwordx4 %s, v2, %s, s28 offen sc1" % (vr(KV, 4), WS))
    a("s_waitcnt vmcnt(0)")
    for j in range(2):
        a("%s %s, %s, %s, 0" % (MF32, vr(S, 16), vr(KV, 4), vr(Q + 4 * j, 4)))
        a("s_nop 15")
        for r in range(0, 16, 2):
            a("v_max3_f32 v%d, v%d, v%d, v%d" % (T + j, T + j, S + r, S + r + 1))
    a("s_add_u32 s28, s28, 2048")
    a("s_add_u32 s23, s23, 1")
    a("s_cmp_lt_u32 s23, 32")
    a("s_cbranch_scc1 P2_EXLOOP")
    a("s_lshl_b32 s23, s19, 9")
    a("s_lshl_b32 s28, s16, 8")
    a("s_add_u32 s23, s23, %d" % L_EX)
    a("v_lshl_add_u32 v5, v0, 2, s23")
    a("v_add_u32 v252, s28, v5")
    a("v_xor_b32 v253, 256, v252")
    a("ds_write_b32 v253, v%d" % T)
    a("ds_write_b32 v252, v%d" % (T + 1))
    a("s_waitcnt lgkmcnt(0)")
    a("s_barrier")
    a("s_lshl_b32 s23, s17, 9")
    a("s_add_u32 s23, s23, %d" % L_EX)
    a("v_lshl_add_u32 v5, v6, 2, s23")
    a("v_add_u32 v252, s28, v5")
    a("v_xor_b32 v253, 256, v252")
    for j in range(2):
        for kh in range(2):
            for hh in range(2):
                a("ds_read_b32 v%d, v%d offset:%d" % (S + kh * 2 + hh, 253 - j, kh * 2048 + hh * 128))
        a("s_waitcnt lgkmcnt(0)")
        a("v_max3_f32 v%d, v%d, v%d, v%d" % (S, S, S + 1, S + 2))
        a("v_max_f32 v%d, v%d, v%d" % (S, S, S + 3))
        a("v_sub_f32 v%d, 0, v%d" % (C + 16 * j, S))
    p2_init()
    a("s_branch P2_START")
    a.label("L_CODE_END")

def main():
    out = sys.argv[1] if len(sys.argv) > 1 else "cdna_kernels/%s.s" % NAME
    a = Asm()
    hdr = open("cdna_kernels/%s.s.ref" % NAME).read().split("\n")
    keep = [l for l in hdr if l.startswith(";") and "@launch" not in l and "Override launch" not in l and "grid=ceil" not in l]
    for l in keep:
        a.raw(l)
    a.raw("; @launch grid=(256,1,1) block=(512,1,1) lds=%d" % LDS_SIZE)
    a.raw('.amdgcn_target "amdgcn-amd-amdhsa--gfx950"')
    a.raw(".text")
    gen(a)
    a.raw('.section .rodata,"a"')
    a.raw(""".p2align 6
.amdhsa_kernel %s_kernel
  .amdhsa_next_free_vgpr 256
  .amdhsa_next_free_sgpr 102
  .amdhsa_accum_offset 256
  .amdhsa_group_segment_fixed_size 0
  .amdhsa_kernarg_size 96
  .amdhsa_user_sgpr_count 2
  .amdhsa_user_sgpr_kernarg_segment_ptr 1
  .amdhsa_system_sgpr_workgroup_id_x 1
.end_amdhsa_kernel""" % NAME)
    open(out, "w").write(a.text())

if __name__ == "__main__":
    main()
```

```python
import sys, math, struct, os

NAME = "gated_mix__mha_block__moe_arch_mod__prompt"

WS_KV = 0
WS_O = (4 << 20) + 65536
WS_FL1 = WS_O + (2 << 20)
WS_FL2 = WS_FL1 + 32768
WS_FL3 = WS_FL2 + 32768
WS_RK = WS_FL3 + 32768
WS_PA = WS_RK + 8192
WS_G = WS_PA + 262144
WS_EP = WS_G + 16384
WS_Y = WS_EP + 1024
WS_ST = 7 << 20
WS_SIZE = 8 << 20

STAMP = int(os.environ.get("STAMP", "0"))
NB = int(os.environ.get("NB", "4"))
CPF = int(os.environ.get("CPF", "1"))
SLEEP = int(os.environ.get("SLEEP", "0"))
MAP = int(os.environ.get("MAP", "1"))
PRIO = int(os.environ.get("PRIO", "3"))
TOUCH = int(os.environ.get("TOUCH", "0"))
HMASK = int(os.environ.get("HMASK", "0xff"), 0)
WARM = int(os.environ.get("WARM", "0"))
PLAN = int(os.environ.get("PLAN", "0"))
QF = int(os.environ.get("QF", "20"))
XLA = int(os.environ.get("XLA", "3"))
PD = int(os.environ.get("PD", "1"))
PGAP = int(os.environ.get("PGAP", "3"))
WQT = int(os.environ.get("WQT", "1"))
INIT = int(os.environ.get("INIT", "3"))
ROT = int(os.environ.get("ROT", "1"))
DELAY = int(os.environ.get("DELAY", "0"))
_dl = [0]
def delay(a, site, mod, wavemask=0xff):
    if not (DELAY >> site) & 1:
        return
    _dl[0] += 1
    a("s_mul_i32 s100, s2, %d" % (7 + 2 * site))
    a("s_and_b32 s100, s100, %d" % mod)
    a("s_cmp_lg_u32 s100, 1")
    a("s_cbranch_scc1 DL%d" % _dl[0])
    a("s_mov_b32 s100, %d" % wavemask)
    a("s_bitcmp1_b32 s100, s19")
    a("s_cbranch_scc0 DL%d" % _dl[0])
    for _ in range(6):
        a("s_sleep 127")
    a.label("DL%d" % _dl[0])
SPANW = int(os.environ.get("SPANW", "0"))
SPAN = os.environ.get("SPAN", "")
def ev(a, i):
    if not SPAN:
        return
    i0, i1 = [int(x) for x in SPAN.split(",")]
    for k, r in (((i0, 58), (i1, 59)) if SPANW else ((i0, 13), (i1, 99))):
        if k == i:
            a("s_memrealtime s[100:101]")
            a("s_waitcnt lgkmcnt(0)")
            a("s_mov_b32 s%d, s100" % r)
NOWO = int(os.environ.get("NOWO", "0"))

def f32bits(x):
    return struct.unpack("<I", struct.pack("<f", x))[0]

import re
_SRC = open(__file__).read().split("\n")

class Asm:
    def __init__(self):
        self.l = []
        self.seen = set()
    def _lead(self, ln):
        k = ln - 2
        while k >= 0 and re.match(r"\s*(for |if |def |[\w, ]+ = )", _SRC[k]) and ln - k < 6:
            k -= 1
        out = []
        while k >= 0 and _SRC[k].strip().startswith("#") and k not in self.seen:
            self.seen.add(k)
            out.append("    ; " + _SRC[k].strip().lstrip("#").strip())
            k -= 1
        self.l.extend(reversed(out))
    def __call__(self, s):
        ln = sys._getframe(1).f_lineno
        self._lead(ln)
        m = re.search(r"\)\s+# (.*)$", _SRC[ln - 1])
        tail = ""
        if m and (ln - 1) not in self.seen:
            self.seen.add(ln - 1)
            tail = "   ; " + m.group(1)
        self.l.append("    " + s.strip() + tail)
    def label(self, s):
        self._lead(sys._getframe(1).f_lineno)
        self.l.append(s + ":")
    def raw(self, s):
        self.l.append(s)
    def text(self):
        return "\n".join(self.l) + "\n"

def vr(b, n):
    return "v[%d:%d]" % (b, b + n - 1)
def sr(b, n):
    return "s[%d:%d]" % (b, b + n - 1)

def srd(a, d, base, nbytes):
    a("s_mov_b32 s%d, s%d" % (d, base))
    a("s_and_b32 s%d, s%d, 0xffff" % (d + 1, base + 1))
    a("s_mov_b32 s%d, 0x%x" % (d + 2, nbytes))
    a("s_mov_b32 s%d, 0x00020000" % (d + 3))

MF32 = "v_mfma_f32_32x32x16_bf16"
MF16 = "v_mfma_f32_16x16x32_bf16"
LOG2E = math.log2(math.e)

P_X, P_WQKV, P_WO, P_WR, P_WG, P_WU, P_WD, P_GW, P_OUT, P_DBG, P_WS = 64, 66, 68, 72, 74, 76, 78, 80, 82, 84, 86
WS = "s[88:91]"
S_TAG, S_KEY = 92, 93

def stamp(a, idx, real=False):
    if not STAMP:
        return
    a("s_memrealtime s[100:101]" if real else "s_memtime s[100:101]")
    a("s_waitcnt lgkmcnt(0)")
    a("v_mov_b32 v255, s100")
    a("s_lshl_b32 s100, s2, 3")
    a("s_add_u32 s100, s100, s19")
    a("s_lshl_b32 s100, s100, 7")
    a("s_add_u32 s100, s100, %d" % (WS_ST + idx * 4))
    a("buffer_store_dword v255, off, %s, s100" % WS)

def bf16_round_to_f32(a, dst, src):
    a("v_cvt_pk_bf16_f32 v%d, v%d, v%d" % (dst, src, src))
    a("v_lshlrev_b32 v%d, 16, v%d" % (dst, dst))

def sigmoid_bf16(a, r):
    a("v_mul_f32 v%d, 0x%08x, v%d" % (r, f32bits(-LOG2E), r))
    a("v_exp_f32 v%d, v%d" % (r, r))
    a("s_nop 0")
    a("v_add_f32 v%d, 1.0, v%d" % (r, r))
    a("v_rcp_f32 v%d, v%d" % (r, r))
    a("s_nop 0")
    bf16_round_to_f32(a, r, r)

def poll(a, name, t0, voff):
    a("s_mov_b32 s94, 0")
    a("s_branch %s_IN" % name)
    a.label(name)
    if SLEEP:
        a("s_sleep %d" % SLEEP)
    a.label(name + "_IN")
    a("buffer_load_dword v%d, v%d, %s, s95 offen sc1" % (t0, voff, WS))
    a("s_add_u32 s94, s94, 1")
    a("s_waitcnt vmcnt(0)")
    a("v_cmp_ne_u32 vcc, s%d, v%d" % (S_TAG, t0))
    a("s_cmp_ge_u32 s94, 0x8000")
    a("s_cbranch_scc1 %s_OUT" % name)
    a("s_cbranch_vccz %s_OUT" % name)
    a("s_mov_b64 exec, vcc")
    a("s_branch %s" % name)
    a.label(name + "_OUT")

def poll_deep(a, name, t0, voff):
    a("s_mov_b32 s94, 0")
    for i in range(PD - 1):
        a("buffer_load_dword v%d, v%d, %s, s95 offen sc1" % (t0 + i, voff, WS))
        a("s_sleep %d" % PGAP)
    a.label(name)
    for i in range(PD):
        a("buffer_load_dword v%d, v%d, %s, s95 offen sc1" % (t0 + (i + PD - 1) % PD, voff, WS))
        a("s_waitcnt vmcnt(%d)" % (PD - 1))
        a("v_cmp_ne_u32 vcc, s%d, v%d" % (S_TAG, t0 + i))
        a("s_add_u32 s94, s94, 1")
        a("s_nop 0")
        a("s_cbranch_vccz %s_OUT" % name)
        a("s_mov_b64 exec, vcc")
    a("s_cmp_lt_u32 s94, 0x10000")
    a("s_cbranch_scc1 %s" % name)
    a.label(name + "_OUT")

def last_wave_flag(a, name, vm, ldsoff, n, soff, t0):
    a("v_mov_b32 v%d, 1" % t0)
    a("s_mov_b64 exec, 1")
    a("ds_add_rtn_u32 v%d, v%d, v%d offset:%d" % (t0, vm, t0, ldsoff))
    a("s_waitcnt lgkmcnt(0)")
    a("v_readfirstlane_b32 s97, v%d" % t0)
    a("v_mov_b32 v%d, s%d" % (t0, S_TAG))
    a("s_nop 1")
    a("s_cmp_lg_u32 s97, %d" % (n - 1))
    a("s_cbranch_scc1 %s" % name)
    a("buffer_store_dword v%d, off, %s, s%d sc1" % (t0, WS, soff))
    a.label(name)
    a("s_mov_b64 exec, -1")

def get_tag(a, name, t0):
    a("s_mov_b32 s94, 0")
    a.label(name + "L")
    a("s_waitcnt vmcnt(0)")
    a("v_readfirstlane_b32 s95, v%d" % (t0 + 1))
    a("s_add_u32 s94, s94, 1")
    a("s_cmp_ge_u32 s94, 0x8000")
    a("s_cbranch_scc1 %sD" % name)
    a("s_cmp_lg_u32 s95, 0")
    a("s_cbranch_scc1 %sD" % name)
    a("buffer_load_dwordx2 %s, off, s[24:27], 0 sc1" % vr(t0, 2))
    a("s_branch %sL" % name)
    a.label(name + "D")
    a("v_readfirstlane_b32 s%d, v%d" % (S_TAG, t0))

def put_flag(a, soff, t0):
    a("v_mov_b32 v%d, s%d" % (t0, S_TAG))
    a("s_mov_b64 exec, 1")
    a("buffer_store_dword v%d, off, %s, s%d sc1" % (t0, WS, soff))
    a("s_mov_b64 exec, -1")

L_X = 0
L_W = 65536
L_FFW = L_X + 32768
L_EX = L_X
L_CMB = 131072
L_RT = L_CMB + 18432
L_MISC = L_RT + 2048
L_QX = L_MISC + 2048
L_MX = L_QX + 8192
LDS_SIZE = L_MX + 1024

def gen(a):
    kn = NAME + "_kernel"
    a.raw(".globl %s" % kn)
    a.raw(".p2align 8")
    a.raw(".type %s,@function" % kn)
    a.label(kn)
    a("s_cmp_ge_u32 s2, 256")
    a("s_cbranch_scc1 L_END")
    a("s_load_dwordx16 s[64:79], s[0:1], 0")
    a("s_load_dwordx8 s[80:87], s[0:1], 64")
    if CPF:
        a("s_getpc_b64 s[22:23]")
        a.label("L_PC")
        a("v_subrev_u32 v2, 256, v0")
        a("v_lshlrev_b32 v2, 7, v2")
        a("v_cmp_gt_u32 vcc, L_CODE_END - L_PC, v2")
        a("s_and_saveexec_b64 s[24:25], vcc")
        a("s_cbranch_execz L_NOPF")
        a("global_load_dword v3, v2, s[22:23]")
        a.label("L_NOPF")
        a("s_mov_b64 exec, -1")
    a("v_lshrrev_b32 v1, 6, v0")
    a("v_and_b32 v0, 63, v0")
    a("v_readfirstlane_b32 s19, v1")
    ev(a, 0)
    delay(a, 0, 7)
    Q, C, O, S, P, KV, T = 8, 16, 48, 80, 112, 120, 216
    VM = 254
    XS, WD, BF, DD = T, T + 8, T + 16, T + 24
    ntb = 32 // MAP
    lt = ntb.bit_length() - 1
    a("s_and_b32 s16, s2, 7")
    a("s_lshr_b32 s17, s2, 3")
    a("s_and_b32 s14, s16, %d" % (MAP - 1))
    a("s_lshl_b32 s14, s14, %d" % lt)
    a("s_and_b32 s18, s17, %d" % (ntb - 1))
    a("s_add_u32 s14, s14, s18")
    a("s_lshr_b32 s15, s16, %d" % (MAP.bit_length() - 1))
    a("s_mul_i32 s15, s15, %d" % MAP)
    a("s_lshr_b32 s17, s17, %d" % lt)
    a("s_add_u32 s15, s15, s17")
    if ROT:
        a("s_mul_i32 s17, s15, %d" % ROT)
    else:
        a("s_mul_i32 s17, s17, %d" % (8 // MAP))
    a("s_add_u32 s16, s17, s18")
    a("s_and_b32 s16, s16, 7")
    a("s_and_b32 s62, s2, 7")
    a("s_lshl_b32 s62, s62, 2")
    a("s_bfe_u32 s38, s2, 0x20003")
    a("s_add_u32 s62, s62, s38")
    a("s_lshr_b32 s63, s2, 5")
    a("s_lshl_b32 s38, s38, 1")
    a("s_add_u32 s38, s38, s63")
    a("s_and_b32 s38, s38, 7")
    a("v_lshlrev_b32 v2, 4, v0")
    a("v_and_b32 v6, 31, v0")
    a("v_lshrrev_b32 v7, 5, v0")
    a("v_mov_b32 v%d, %d" % (VM, L_MISC))
    a("s_and_b32 s20, s19, 1")
    XA = 8
    a("v_bfe_u32 v24, v6, 1, 3")
    a("v_lshlrev_b32 v25, 7, v6")
    a("s_lshl_b32 s18, s20, 12")
    a("v_add_u32 v25, s18, v25")
    for ks in range(4):
        a("v_or_b32 v26, %d, v7" % (2 * ks))
        a("v_xor_b32 v26, v26, v24")
        a("v_lshl_add_u32 v%d, v26, 4, v25" % (XA + ks))
    a("s_lshl_b32 s47, s14, 1")
    a("s_add_u32 s39, s47, s20")
    a("s_cmp_ge_u32 s19, 4")
    a("s_cbranch_scc1 P1_COMPUTE")

    a("v_lshrrev_b32 v4, 3, v0")
    a("v_lshlrev_b32 v5, 10, v4")
    a("v_and_b32 v3, 7, v0")
    a("v_lshrrev_b32 v16, 4, v0")
    a("v_xor_b32 v17, v3, v16")
    a("v_lshl_add_u32 v5, v17, 4, v5")
    a("v_mul_u32_u24 v4, 3072, v4")
    a("v_and_b32 v16, 1, v16")
    a("v_lshlrev_b32 v16, 2, v16")
    a("v_xor_b32 v17, v3, v16")
    a("v_lshl_add_u32 v4, v17, 4, v4")
    a("s_lshl_b32 s18, s15, 7")
    a("v_add_u32 v4, s18, v4")
    a("v_xor_b32 v3, 64, v5")
    a("s_lshl_b32 s40, s14, 16")
    a("s_lshl_b32 s18, s19, 14")
    a("s_add_u32 s40, s40, s18")
    a("s_lshl_b32 s44, s19, 11")
    a("s_lshl_b32 s18, s16, 7")
    a("v_add_u32 v16, s18, v2")
    a("v_and_b32 v16, 1023, v16")
    a("s_mul_i32 s41, s19, 49152")
    a("s_lshl_b32 s45, s19, 12")
    a("s_mul_i32 s42, s20, %d" % (32 * 3072))
    a("s_lshr_b32 s43, s19, 1")
    a("s_waitcnt lgkmcnt(0)")
    srd(a, 20, P_X, 2048 * 512 * 2)
    srd(a, 24, P_WQKV, 512 * 1536 * 2)
    srd(a, 88, P_WS, WS_SIZE)
    stamp(a, 0)
    stamp(a, 24, True)

    order = []
    a("s_mov_b32 s51, s16")
    def issue_x(c):
        a("s_lshl_b32 s46, s51, 7")
        a("s_add_u32 s46, s46, s40")
        a("s_add_u32 m0, s44, %d" % (L_X + c * 8192))
        a("s_add_u32 s48, s46, 8192")
        a("buffer_load_dwordx4 v5, s[20:23], s46 offen lds")
        a("s_add_u32 m0, s44, %d" % (L_X + c * 8192 + 1024))
        a("s_add_u32 s51, s51, 1")
        a("buffer_load_dwordx4 v3, s[20:23], s48 offen lds")
        a("s_and_b32 s51, s51, 7")
        order.extend([c, c])
    def issue_step(c):
        wb = L_W + (c % 4) * 16384
        order.extend([c] * 4)
        if c < 8:
            a("s_mul_i32 s47, s16, %d" % (64 * 3072))
            a("s_add_u32 s47, s47, s41")
            a("s_add_u32 s49, s47, %d" % (8 * 3072))
            for rh in range(2):
                a("s_add_u32 m0, s45, %d" % (wb + rh * 2048 - 1024))
                a("s_add_u32 s16, s16, 1" if rh == 0 else "s_and_b32 s16, s16, 7")
                for t in (1, 2):
                    a("buffer_load_dwordx4 v4, s[24:27], s%d offen offset:%d lds" % (47 + 2 * rh, t * 1024))
        else:
            a("s_add_u32 s46, s16, s43")
            a("s_and_b32 s46, s46, 7")
            a("s_mul_i32 s47, s46, %d" % (64 * 3072))
            a("s_add_u32 s47, s47, s42")
            a("s_add_u32 s16, s16, 2")
            for i in range(4):
                a("s_add_u32 m0, s45, %d" % (wb + i * 1024))
                a("s_add_u32 s48, s47, %d" % (i * 8 * 3072))
                a("buffer_load_dwordx4 v4, s[24:27], s48 offen lds")

    issue_x(0)
    issue_step(0)
    srd(a, 28, P_WR, 1024)
    srd(a, 32, P_GW, 1024)
    a("s_mov_b32 m0, %d" % L_RT)
    a("s_nop 0")
    a("buffer_load_dwordx4 v16, s[32:35], 0 offen lds")
    a("s_mov_b32 m0, %d" % (L_RT + 1024))
    a("s_nop 0")
    a("buffer_load_dwordx4 v16, s[28:31], 0 offen lds")
    order.extend([7, 7])
    for c in range(1, INIT):
        issue_x(c)
        issue_step(c)
    for c in range(INIT, XLA):
        issue_x(c)
    a("s_and_b32 s50, s14, 7")
    a("s_xor_b32 s50, s50, s15")
    a("s_lshr_b32 s57, s19, 1")
    a("s_or_b32 s50, s50, s57")
    a("v_and_b32 v25, 1, v0")
    a("v_lshlrev_b32 v25, 10, v25")
    a("v_lshl_add_u32 v17, v7, 4, v25")
    a("v_add_u32 v17, %d, v17" % L_RT)
    RACC, RF = 32, 48
    for r in range(0, 16, 2):
        a("v_mov_b64 %s, 0" % vr(RACC + r, 2))
    a("ds_write_b128 v%d, %s" % (VM, vr(RACC, 4)))
    for o in (16, 32, 48, 64):
        a("ds_write_b128 v%d, %s offset:%d" % (VM, vr(RACC, 4), o))
    for c in range(12):
        younger = len(order) - 1 - max(i for i, k in enumerate(order) if k <= c)
        a("s_waitcnt vmcnt(%d)%s" % (younger, " lgkmcnt(0)" if c == 0 else ""))
        if STAMP == 3 and c < 8:
            a("s_memtime s[100:101]")
            a("s_waitcnt lgkmcnt(0)")
            a("s_mov_b32 s%d, s100" % (52 + c))
        a("s_barrier")
        if c == 0 and STAMP != 3:
            stamp(a, 1)
        if c + max(XLA, INIT) < 8 and XLA <= 3:
            issue_x(c + max(XLA, INIT))
        if INIT <= c + 3 < 12:
            issue_step(c + 3)
        if c + XLA < 8 and XLA > 3:
            issue_x(c + XLA)
        if c == 0:
            srd(a, 32, P_DBG, 256)
        if c == 9:
            a("buffer_load_dwordx2 v[28:29], off, s[32:35], 0 sc1")
            order.append(99)
        if 8 <= c <= 10:
            a("s_cmp_lg_u32 s50, 0")
            a("s_cbranch_scc1 P1_NR%d" % c)
            k0, k1 = (0, 11, 22, 32)[c - 8], (0, 11, 22, 32)[c - 7]
            def rd_r(kk):
                a("ds_read_b128 %s, v%d offset:%d" % (vr(RF + 8 * (kk % 6), 4), XA + kk % 4, L_X + (kk // 4) * 8192))
                a("ds_read_b128 %s, v17 offset:%d" % (vr(RF + 8 * (kk % 6) + 4, 4), kk * 32))
            if c == 8:
                for kk in range(5):
                    rd_r(kk)
            for kk in range(k0, k1):
                a("s_waitcnt lgkmcnt(%d)" % (2 * min(4, 31 - kk)))
                a("%s %s, %s, %s, %s" % (MF32, vr(RACC, 16), vr(RF + 8 * (kk % 6) + 4, 4), vr(RF + 8 * (kk % 6), 4), vr(RACC, 16)))
                if kk + 5 < 32:
                    rd_r(kk + 5)
            a.label("P1_NR%d" % c)
    if STAMP == 3:
        for c in range(0, 8):
            a("v_mov_b32 v255, s%d" % (52 + c))
            a("s_lshl_b32 s100, s2, 3")
            a("s_add_u32 s100, s100, s19")
            a("s_lshl_b32 s100, s100, 7")
            a("s_add_u32 s100, s100, %d" % (WS_ST + (16 + c) * 4))
            a("buffer_store_dword v255, off, %s, s100" % WS)
    srd(a, 24, P_DBG, 256)
    get_tag(a, "P1_TAGL", 28)
    a("s_mov_b32 s39, -1")
    a("s_cmp_lg_u32 s50, 0")
    a("s_cbranch_scc1 P1_DONE")
    R = RACC
    a("s_nop 9")
    a("s_lshl_b32 s39, s14, 1")
    a("s_add_u32 s39, s39, s19")
    bf16_round_to_f32(a, 100, R)
    sigmoid_bf16(a, 100)
    a("v_sub_f32 v101, 1.0, v100")
    bf16_round_to_f32(a, 101, 101)
    bf16_round_to_f32(a, 102, R + 1)
    a("v_ashrrev_i32 v103, 31, v102")
    a("v_or_b32 v103, 0x80000000, v103")
    a("v_xor_b32 v102, v102, v103")
    a("v_and_b32 v102, 0xffff0000, v102")
    a("s_lshl_b32 s55, s39, 5")
    a("v_add_u32 v103, s55, v6")
    a("v_sub_u32 v103, 0xffff, v103")
    a("v_or_b32 v102, v102, v103")
    for sh in (1, 2, 4, 8):
        a("s_nop 1")
        a("v_max_u32_dpp v102, v102, v102 row_ror:%d row_mask:0xf bank_mask:0xf" % sh)
    a("s_nop 0")
    a("v_readlane_b32 s56, v102, 0")
    a("v_readlane_b32 s57, v102, 16")
    a("s_nop 3")
    a("s_max_u32 s%d, s56, s57" % S_KEY)
    a("s_lshl_b32 s54, s39, 8")
    a("s_add_u32 s54, s54, %d" % WS_G)
    a("v_lshlrev_b32 v27, 3, v6")
    a("buffer_store_dwordx2 v[100:101], v27, %s, s54 offen sc1" % WS)
    a("v_mov_b64 v[84:85], 0")
    a("v_lshlrev_b32 v27, 3, v0")
    a("s_lshl_b32 s55, s39, 9")
    a("s_add_u32 s55, s55, %d" % WS_Y)
    a("buffer_store_dwordx2 v[84:85], v27, %s, s55 offen sc1" % WS)
    a("s_branch P1_DONE")

    a.label("P1_COMPUTE")
    WA, WQA = 16, 17
    a("s_lshl_b32 s22, s2, 3")
    a("s_add_u32 s22, s22, s19")
    a("s_waitcnt lgkmcnt(0)")
    ev(a, 8)
    srd(a, 28, P_WQKV, 512 * 1536 * 2)
    srd(a, 88, P_WS, WS_SIZE)
    stamp(a, 0)
    stamp(a, 24, True)
    a("s_mov_b32 s23, %d" % WS_EP)
    a("s_cmp_lg_u32 s22, 4")
    a("s_cbranch_scc1 P1_NOEP0")
    a("buffer_load_dword v24, off, %s, s23 sc1" % WS)
    a.label("P1_NOEP0")
    def wq_touch():
        a("s_cmp_lg_u32 s19, 5")
        a("s_cbranch_scc1 P1_NOWQ")
        a("s_and_b32 s46, s14, %d" % (ntb - 1))
        a("s_mul_i32 s46, s46, %d" % (512 // ntb * 3072))
        a("s_lshl_b32 s47, s15, 7")
        a("s_add_u32 s46, s46, s47")
        a("v_and_b32 v24, %d, v0" % (512 // ntb - 1))
        a("v_mul_u32_u24 v24, 3072, v24")
        a("buffer_load_dword v28, v24, s[28:31], s46 offen")
        a.label("P1_NOWQ")
    if WQT == 0:
        wq_touch()
    srd(a, 24, P_DBG, 256)
    a("s_bfe_u32 s21, s19, 0x10001")
    a("v_bfe_u32 v27, v0, 2, 2")
    a("v_lshlrev_b32 v26, 7, v27")
    a("v_lshrrev_b32 v27, 1, v27")
    a("v_xor_b32 v27, s21, v27")
    a("v_lshl_add_u32 v26, v27, 6, v26")
    a("v_bfe_u32 v27, v0, 4, 1")
    a("v_lshl_add_u32 v26, v27, 5, v26")
    a("v_and_b32 v27, 3, v0")
    a("v_lshl_add_u32 v26, v27, 3, v26")
    a("v_add_u32 v26, %d, v26" % L_W)
    a("v_lshl_add_u32 v%d, v7, 11, v26" % WA)
    a("v_lshl_add_u32 v%d, v7, 10, v26" % WQA)
    a("s_cmp_lg_u32 s22, 4")
    a("s_cbranch_scc1 P1_NOEP")
    if DELAY & 2:
        for _ in range(8):
            a("s_sleep 127")
    a("s_mov_b32 s22, 1664525")
    a("v_mov_b32 v25, 1")
    a("s_waitcnt vmcnt(0)")
    a("v_mul_lo_u32 v24, v24, s22")
    a("v_add_u32 v24, 1013904223, v24")
    a("s_mov_b64 exec, 1")
    a("buffer_store_dwordx2 v[24:25], off, s[24:27], 0 sc1")
    a("buffer_store_dword v24, off, %s, s23 sc1" % WS)
    a("s_mov_b64 exec, -1")
    a.label("P1_NOEP")
    ACC = 32
    FR = 80
    PK = 104
    XF = 120
    pend = []
    def rd_kv(kk, part):
        if kk >= 32:
            return
        c, ks = kk // 4, kk % 4
        if part == 0:
            a("ds_read_b128 %s, v%d offset:%d" % (vr(XF + 4 * kk, 4), XA + ks, L_X + c * 8192))
            pend.append((kk, 0))
        for half in range(2):
            a("ds_read_b64_tr_b16 %s, v%d offset:%d" % (vr(FR + (kk % 3) * 8 + part * 4 + 2 * half, 2), WA,
                                                       (c % 4) * 16384 + ks * 4096 + part * 1024 + half * 512))
            pend.append((kk, part))
    def rd_q(kk):
        if kk >= 32:
            return
        if kk % 8 == 0 and kk > 0:
            a("s_barrier")
        for half in range(2):
            a("ds_read_b64_tr_b16 %s, v%d offset:%d" % (vr(FR + (kk % 6) * 4 + 2 * half, 2), WQA,
                                                       (kk // 8) * 16384 + (kk % 8) * 2048 + half * 512))
            pend.append((100 + kk, 0))
    def wait_for(kk, part):
        last = max([i for i, (k2, p) in enumerate(pend) if k2 == kk and p == part], default=-1)
        if last >= 0:
            a("s_waitcnt lgkmcnt(%d)" % (len(pend) - 1 - last))
            del pend[:last + 1]
    if STAMP == 3:
        stamp(a, 14)
    a("s_barrier")
    if STAMP != 3:
        stamp(a, 1)
    ev(a, 4)
    for kk in range(2):
        rd_kv(kk, 0); rd_kv(kk, 1)
    if WQT == 1:
        wq_touch()
    for kk in range(32):
        nx = kk + 2
        if nx < 32 and nx % 4 == 0:
            c = nx // 4
            a("s_waitcnt lgkmcnt(0)")
            del pend[:]
            if STAMP == 3:
                a("s_memtime s[100:101]")
                a("s_waitcnt lgkmcnt(0)")
                a("s_mov_b32 s%d, s100" % (50 + c))
            a("s_barrier")
        x = vr(XF + 4 * kk, 4)
        cz = lambda r: ("0" if kk == 0 else vr(r, 16))
        wait_for(kk, 0)
        a("%s %s, %s, %s, %s" % (MF32, vr(ACC, 16), vr(FR + (kk % 3) * 8, 4), x, cz(ACC)))
        rd_kv(nx, 0)
        wait_for(kk, 1)
        a("%s %s, %s, %s, %s" % (MF32, vr(ACC + 16, 16), x, vr(FR + (kk % 3) * 8 + 4, 4), cz(ACC + 16)))
        rd_kv(nx, 1)
    a("s_barrier")
    LQ = 5
    for kk in range(LQ):
        rd_q(kk)
    a("s_lshl_b32 s46, s15, 1")
    a("s_add_u32 s46, s46, s21")
    a("s_lshl_b32 s48, s46, 18")
    a("s_lshl_b32 s49, s39, 11")
    a("s_add_u32 s48, s48, s49")
    a("s_add_u32 s49, s48, 131072")
    a("v_lshrrev_b32 v24, 4, v6")
    a("v_lshlrev_b32 v24, 17, v24")
    a("v_lshl_add_u32 v24, v7, 8, v24")
    a("v_and_b32 v25, 15, v0")
    a("v_lshl_add_u32 v24, v25, 4, v24")
    stamp(a, 2)
    ev(a, 5)
    for r in range(8):
        a("v_cvt_pk_bf16_f32 v%d, v%d, v%d" % (PK + r, ACC + 2 * r, ACC + 2 * r + 1))
    a("buffer_store_dwordx4 %s, v2, %s, s48 offen sc1" % (vr(PK, 4), WS))
    a("buffer_store_dwordx4 %s, v2, %s, s49 offen sc1" % (vr(PK + 4, 4), WS))
    for r in range(8):
        a("v_cvt_pk_bf16_f32 v%d, v%d, v%d" % (PK + 8 + r, ACC + 16 + 2 * r, ACC + 16 + 2 * r + 1))
    a("buffer_store_dwordx4 %s, v24, %s, s48 offen offset:1024 sc1" % (vr(PK + 8, 4), WS))
    a("buffer_store_dwordx4 %s, v24, %s, s48 offen offset:1536 sc1" % (vr(PK + 12, 4), WS))
    a("buffer_load_dwordx2 v[28:29], off, s[24:27], 0 sc1")
    a("s_lshl_b32 s96, s15, 12")
    a("s_lshl_b32 s97, s14, 7")
    a("s_add_u32 s96, s96, s97")
    a("s_add_u32 s96, s96, %d" % WS_FL1)
    for kk in range(32):
        if kk == QF:
            get_tag(a, "P1_TAGC", 28)
            last_wave_flag(a, "P1_FL", VM, 0, 4, 96, 30)
            del pend[:]
            stamp(a, 13)
            stamp(a, 29, True)
            ev(a, 6)
        wait_for(100 + kk, 0)
        a("%s %s, %s, %s, %s" % (MF32, vr(ACC + 32, 16), vr(FR + (kk % 6) * 4, 4), vr(XF + 4 * kk, 4), "0" if kk == 0 else vr(ACC + 32, 16)))
        rd_q(kk + LQ)
    CS = LOG2E * 0.25
    if STAMP != 3:
        a("s_mov_b32 s54, 0x%08x" % f32bits(CS))
        a("s_mov_b32 s55, 0x%08x" % f32bits(CS))
    a("s_lshl_b32 s22, s21, 12")
    a("s_lshl_b32 s23, s20, 10")
    a("s_add_u32 s22, s22, s23")
    a("s_add_u32 s22, s22, %d" % L_QX)
    a("v_add_u32 v24, s22, v2")
    a("s_lshl_b32 s22, s21, 9")
    a("s_lshl_b32 s23, s20, 7")
    a("s_add_u32 s22, s22, s23")
    a("s_add_u32 s22, s22, %d" % L_MX)
    a("v_lshl_add_u32 v26, v6, 2, s22")
    a("v_lshl_add_u32 v26, v7, 8, v26")
    stamp(a, 3)
    if STAMP == 3:
        for c in range(1, 8):
            a("v_mov_b32 v255, s%d" % (50 + c))
            a("s_lshl_b32 s100, s2, 3")
            a("s_add_u32 s100, s100, s19")
            a("s_lshl_b32 s100, s100, 7")
            a("s_add_u32 s100, s100, %d" % (WS_ST + (16 + c) * 4))
            a("buffer_store_dword v255, off, %s, s100" % WS)
        a("s_mov_b32 s54, 0x%08x" % f32bits(CS))
        a("s_mov_b32 s55, 0x%08x" % f32bits(CS))
    PQ = FR
    for r in range(0, 16, 2):
        a("v_pk_mul_f32 %s, %s, s[54:55]" % (vr(ACC + 32 + r, 2), vr(ACC + 32 + r, 2)))
    for r in range(8):
        a("v_cvt_pk_bf16_f32 v%d, v%d, v%d" % (PQ + r, ACC + 32 + 2 * r, ACC + 32 + 2 * r + 1))
    a("s_nop 1")
    a("%s %s, %s, %s, 0" % (MF32, vr(ACC, 16), vr(PK, 4), vr(PQ, 4)))
    a("%s %s, %s, %s, 0" % (MF32, vr(ACC + 16, 16), vr(PK + 4, 4), vr(PQ + 4, 4)))
    a("ds_write_b128 v24, %s" % vr(PQ, 4))
    a("ds_write_b128 v24, %s offset:2048" % vr(PQ + 4, 4))
    a("s_nop 9")
    m0, m1 = 92, 93
    for h, m in ((0, m0), (1, m1)):
        SS = ACC + 16 * h
        a("v_max3_f32 v%d, v%d, v%d, v%d" % (m, SS, SS + 1, SS + 2))
        for r in range(3, 15, 2):
            a("v_max3_f32 v%d, v%d, v%d, v%d" % (m, m, SS + r, SS + r + 1))
        a("v_max_f32 v%d, v%d, v%d" % (m, m, SS + 15))
    a("s_nop 1")
    a("v_permlane32_swap_b32 v%d, v%d" % (m0, m1))
    a("v_max_f32 v%d, v%d, v%d" % (m0, m0, m1))
    a("v_sub_f32 v%d, 0, v%d" % (m0, m0))
    a("ds_write_b32 v26, v%d" % m0)

    a.label("P1_DONE")
    stamp(a, 4)
    a("s_and_b32 s17, s19, 3")
    a("s_lshr_b32 s16, s19, 2")
    a("v_and_b32 v3, 15, v0")
    a("v_lshlrev_b32 v3, 4, v3")
    a("v_lshl_add_u32 v3, v7, 8, v3")
    a("s_lshl_b32 s18, s15, 2")
    a("s_add_u32 s18, s18, s17")
    a("s_lshl_b32 s22, s18, 17")
    a("s_lshl_b32 s23, s16, 16")
    a("s_add_u32 s22, s22, s23")
    a("s_lshl_b32 s95, s15, 12")
    a("s_add_u32 s95, s95, %d" % WS_FL1)
    a("s_mov_b32 s30, 0x0000ffff")
    a("s_mov_b32 s31, 0x0000ffff")
    a("s_mov_b32 s29, 0")
    a("s_cmp_lt_u32 s19, 4")
    a("s_cselect_b32 s32, 0x%x, 0" % HMASK)
    CW16, CW4, CR16, CR4, VXO, VWO, VOF, XR, GR, HFL, HLD, F3 = 168, 169, 170, 171, 172, 173, 174, 176, 184, 175, 186, 186
    srd(a, 40, P_WO, 512 * 512 * 2)
    a("v_lshrrev_b32 v4, 3, v0")
    a("v_lshlrev_b32 v4, 10, v4")
    a("v_and_b32 v5, 7, v0")
    a("v_bfe_u32 v192, v0, 4, 1")
    a("v_lshlrev_b32 v192, 2, v192")
    a("v_xor_b32 v5, v5, v192")
    a("v_lshl_add_u32 v4, v5, 4, v4")
    a("s_lshl_b32 s36, s63, 7")
    a("s_lshl_b32 s37, s19, 13")
    a("s_add_u32 s36, s36, s37")
    a("s_lshl_b32 s37, s19, 10")
    a("s_add_u32 s37, s37, %d" % L_W)
    a("s_mul_i32 s23, s19, 2304")
    a("s_add_u32 s23, s23, %d" % L_CMB)
    a("v_add_u32 v%d, s23, v2" % CW16)
    a("v_lshl_add_u32 v%d, v0, 2, s23" % CW4)
    a("s_xor_b32 s23, s19, 4")
    a("s_mul_i32 s23, s23, 2304")
    a("s_add_u32 s23, s23, %d" % L_CMB)
    a("v_add_u32 v%d, s23, v2" % CR16)
    a("v_lshl_add_u32 v%d, v0, 2, s23" % CR4)
    a("s_lshl_b32 s23, s14, 1")
    a("s_add_u32 s23, s23, s16")
    a("s_lshl_b32 s33, s23, 15")
    a("s_lshl_b32 s23, s18, 10")
    a("s_add_u32 s33, s33, s23")
    a("s_add_u32 s33, s33, %d" % WS_O)
    a("s_lshl_b32 s98, s14, 10")
    a("s_lshl_b32 s23, s15, 7")
    a("s_add_u32 s98, s98, s23")
    a("s_add_u32 s98, s98, %d" % WS_FL2)
    a("s_and_b32 s8, s19, 1")
    a("s_bfe_u32 s9, s19, 0x10001")
    a("s_lshl_b32 s4, s62, 1")
    a("s_add_u32 s4, s4, s8")
    a("s_lshl_b32 s5, s63, 7")
    a("s_lshl_b32 s23, s9, 6")
    a("s_add_u32 s5, s5, s23")
    a("s_lshl_b32 s6, s4, 15")
    a("s_add_u32 s6, s6, s5")
    a("s_lshl_b32 s7, s4, 8")
    a("s_add_u32 s7, s7, %d" % WS_G)
    a("v_lshlrev_b32 v%d, 10, v6" % VXO)
    a("v_lshl_add_u32 v%d, v7, 5, v%d" % (VXO, VXO))
    a("v_bfe_u32 v193, v0, 2, 2")
    a("v_lshl_add_u32 v192, v7, 2, v193")
    a("v_lshlrev_b32 v192, 7, v192")
    a("v_lshrrev_b32 v193, 1, v193")
    a("v_xor_b32 v193, s9, v193")
    a("v_lshl_add_u32 v192, v193, 6, v192")
    a("v_and_b32 v193, 1, v0")
    a("v_lshl_add_u32 v192, v193, 5, v192")
    a("v_bfe_u32 v193, v0, 1, 1")
    a("v_bfe_u32 v194, v0, 4, 1")
    a("v_lshl_add_u32 v193, v194, 1, v193")
    a("v_lshl_add_u32 v192, v193, 3, v192")
    a("v_add_u32 v%d, %d, v192" % (VWO, L_W))
    a("s_lshl_b32 s23, s8, 12")
    a("v_add_u32 v%d, s23, v2" % VOF)
    a("s_lshl_b32 s10, s62, 10")
    a("s_lshl_b32 s23, s17, 8")
    a("s_add_u32 s10, s10, s23")
    a("s_add_u32 s10, s10, %d" % WS_FL2)
    a("v_and_b32 v%d, 1, v0" % HFL)
    a("v_lshlrev_b32 v%d, 7, v%d" % (HFL, HFL))
    a("s_lshl_b32 s11, s62, 16")
    a("s_lshl_b32 s23, s17, 13")
    a("s_add_u32 s11, s11, s23")
    a("s_add_u32 s11, s11, %d" % WS_O)
    a("s_lshl_b32 s12, s17, 14")
    a("s_lshl_b32 s23, s17, 3")
    a("v_add_u32 v%d, s23, v%d" % (HLD, VM))
    a("v_lshlrev_b32 v5, 7, v0")
    a("s_lshl_b32 s23, s17, 1")
    a("s_add_u32 s23, s23, s16")
    a("s_lshl_b32 s28, s23, 10")
    a("s_add_u32 s28, s28, %d" % L_QX)
    a("v_add_u32 v252, s28, v2")
    a("v_xor_b32 v250, 1024, v252")
    a("s_lshl_b32 s28, s23, 7")
    a("s_add_u32 s28, s28, %d" % L_MX)
    a("v_lshl_add_u32 v253, v6, 2, s28")
    a("v_xor_b32 v251, 128, v253")
    CW16, CW4, CR16, CR4, VXO, VWO, VOF, XR, GR, HFL, HLD, F3 = 168, 169, 170, 171, 172, 173, 174, 176, 184, 175, 186, 186
    def kvb(t):
        return KV + 12 * (t % NB)
    def p2_init():
        for b in range(NB):
            for r in range(4, 12, 2):
                a("v_mov_b64 %s, 0" % vr(kvb(b) + r, 2))
        a("s_mov_b32 s34, 0x3f803f80")
        a("s_mov_b32 s35, 0x3f803f80")
        a("s_mov_b32 exec_lo, 0x00110000")
        a("s_mov_b32 exec_hi, 0x00110000")
        for b in range(NB):
            for r in range(4, 12, 2):
                a("v_mov_b64 %s, s[34:35]" % vr(kvb(b) + r, 2))
        a("s_mov_b64 exec, -1")
        for r in range(0, 32, 2):
            a("v_mov_b64 %s, 0" % vr(O + r, 2))
        a("v_mov_b64 %s, 0" % vr(P + 4, 2))
        a("v_mov_b64 %s, 0" % vr(P + 6, 2))
        a("v_mov_b64 %s, 0" % vr(S + 16 + 14, 2))
    a("s_waitcnt lgkmcnt(0)")
    p2_init()
    a("s_cmp_lg_u32 s19, 3")
    a("s_cbranch_scc1 H1_WAIT")
    a("s_mov_b32 exec_hi, 0")
    if PD > 1:
        poll_deep(a, "H1_POLL", T, 5)
    else:
        poll(a, "H1_POLL", S, 5)
    a("s_mov_b64 exec, -1")
    a.label("H1_WAIT")
    ev(a, 7)
    a("s_barrier")
    stamp(a, 5)
    stamp(a, 26, True)
    ev(a, 1)
    a("ds_read_b128 %s, v250" % vr(Q, 4))
    a("ds_read_b128 %s, v252" % vr(Q + 4, 4))
    a("ds_read_b32 v%d, v251" % C)
    a("ds_read_b32 v%d, v253" % (C + 16))
    a.label("P2_START")
    a("buffer_load_dwordx4 %s, v2, %s, s22 offen sc1" % (vr(kvb(0), 4), WS))
    a("s_mov_b32 s28, s22")
    def ld_k(t):
        a("buffer_load_dwordx4 %s, v2, %s, s28 offen offset:2048 sc1" % (vr(kvb(t), 4), WS))
    def ld_v(t):
        a("s_mov_b64 exec, s[30:31]")
        a("buffer_load_dwordx4 %s, v3, %s, s28 offen offset:1024 sc1" % (vr(kvb(t) + 4, 4), WS))
        a("buffer_load_dwordx4 %s, v3, %s, s28 offen offset:1536 sc1" % (vr(kvb(t) + 8, 4), WS))
        a("s_mov_b64 exec, -1")
        a("s_add_u32 s28, s28, 2048")
    for i in range(1, NB):
        ld_k(i)
        ld_v(i - 1)
        if (i - NB) % 4 == 0 and not NOWO:
            a("buffer_load_dword v255, off, %s, s22" % WS)
    a("s_mov_b32 s23, 0")
    a("s_waitcnt lgkmcnt(0)")
    for j in range(2):
        a("v_mov_b32 v%d, v%d" % (C + 16 * j + 1, C + 16 * j))
        for r in range(2, 16, 2):
            a("v_mov_b64 %s, %s" % (vr(C + 16 * j + r, 2), vr(C + 16 * j, 2)))
    a("s_waitcnt vmcnt(%d)" % (3 * (NB - 1)))
    a("%s %s, %s, %s, %s" % (MF32, vr(S, 16), vr(kvb(0), 4), vr(Q, 4), vr(C, 16)))
    a("s_waitcnt vmcnt(%d)" % (3 * (NB - 2)))
    a("s_nop 11")
    a("v_exp_f32 v%d, v%d" % (S, S))
    if not TOUCH:
        stamp(a, 6)

    def main_loop(sfx, older):
        a.raw(".p2align 6")
        a.label("P2_LOOP" + sfx)
        pos = [0]
        def mark():
            pos[0] += 1
            if older and PRIO and pos[0] % 24 == (24 - PRIO + 1) % 24:
                a("s_setprio 0")
            if older and PRIO and pos[0] % 24 == 1 and pos[0] > 1:
                a("s_setprio 1")
        for t in range(NB):
            for j in range(2):
                cur = S + 16 * j
                prv = S + 16 * (j ^ 1)
                nxt = prv
                E = lambda r: a("v_exp_f32 v%d, v%d" % (cur + r, cur + r))
                CV = lambda r: a("v_cvt_pk_bf16_f32 v%d, v%d, v%d" % (P + r // 2, cur + r, cur + r + 1))
                pb = kvb(t) if j == 1 else kvb(t - 1)
                nb = kvb(t) if j == 0 else kvb(t + 1)
                a("v_cvt_pk_bf16_f32 v%d, v%d, v%d" % (P + 7, prv + 14, prv + 15))
                if j == 1:
                    nwo = 0 if NOWO else sum(1 for k in range(t - (NB - 2), t) if k % 4 == 0)
                    a("s_waitcnt vmcnt(%d)" % (3 * (NB - 2) + nwo))
                    if t % 4 == 0:
                        if not NOWO:
                            a("s_lshl_b32 s3, s38, 13")
                            a("s_add_u32 m0, s3, s37")
                            a("s_lshl3_add_u32 s3, s3, s36")
                            a("buffer_load_dwordx4 v4, s[40:43], s3 offen lds")
                            a("s_add_u32 s38, s38, 1")
                            a("s_and_b32 s38, s38, 7")
                        if older:
                            a("s_bitcmp1_b32 s32, s23")
                            a("s_cbranch_scc1 P2_HOOK")
                            a.label("P2_HRET%d" % (t // 4))
                        a("s_add_u32 s23, s23, 1")
                mark()
                a("%s %s, %s, %s, %s" % (MF32, vr(nxt, 16), vr(nb, 4), vr(Q + 4 * (j ^ 1), 4), vr(C + 16 * (j ^ 1), 16)))
                if j == 0:
                    ld_k(t)
                E(1); E(2); CV(0); E(3); E(4); CV(2); E(5)
                mark()
                a("%s %s, %s, %s, %s" % (MF32, vr(O + 16 * (j ^ 1), 16), vr(pb + 8, 4), vr(P + 4, 4), vr(O + 16 * (j ^ 1), 16)))
                if j == 0:
                    ld_v(t - 1)
                E(6); CV(4); E(7); E(8); CV(6); E(9); E(10)
                mark()
                a("%s %s, %s, %s, %s" % (MF32, vr(O + 16 * j, 16), vr(kvb(t) + 4, 4), vr(P, 4), vr(O + 16 * j, 16)))
                CV(8); E(11); E(12); CV(10); E(13); E(14); CV(12); E(15)
                a("v_exp_f32 v%d, v%d" % (nxt, nxt))
        if older and PRIO:
            a("s_setprio 1")
        if STAMP == 1:
            a("s_memtime s[100:101]")
            a("s_waitcnt lgkmcnt(0)")
            a("v_mov_b32 v255, s100")
            a("s_lshl_b32 s100, s2, 3")
            a("s_add_u32 s100, s100, s19")
            a("s_lshl_b32 s100, s100, 5")
            a("s_add_u32 s100, s100, s23")
            a("s_lshl_b32 s100, s100, 2")
            a("s_add_u32 s100, s100, %d" % (WS_ST + 15 * 4))
            a("buffer_store_dword v255, off, %s, s100" % WS)
        a("s_cmp_lt_u32 s23, 8")
        a("s_cbranch_scc1 P2_LOOP" + sfx)
    if PRIO:
        a("s_setprio 1")
    a("s_cmp_ge_u32 s19, 4")
    a("s_cbranch_scc1 P2_LOOPB")
    main_loop("A", True)
    a("s_branch P2_DRAIN")
    main_loop("B", False)
    a.label("P2_DRAIN")
    delay(a, 3, 7, 0x42)
    a("v_cvt_pk_bf16_f32 v%d, v%d, v%d" % (P + 7, S + 16 + 14, S + 16 + 15))
    a("ds_write_b128 v%d, %s" % (CW16, vr(O, 4)))
    a("ds_write_b32 v%d, v%d offset:2048" % (CW4, O + 8))
    a("%s %s, %s, %s, %s" % (MF32, vr(O + 16, 16), vr(kvb(NB - 1) + 8, 4), vr(P + 4, 4), vr(O + 16, 16)))
    a("ds_write_b128 v%d, %s offset:1024" % (CW16, vr(O + 4, 4)))
    stamp(a, 7)
    stamp(a, 27, True)
    ev(a, 2)
    a("s_mov_b32 s28, 0x4f800000")
    a("s_nop 9")
    a("v_max_f32 v%d, v%d, v%d" % (S, O + 8, O + 24))
    a("v_cmp_u_f32 s[56:57], v%d, v%d" % (O + 8, O + 24))
    a("v_cmp_lt_f32 vcc, s28, v%d" % S)
    a("s_nop 3")
    a("s_or_b64 s[56:57], s[56:57], vcc")
    a("s_cbranch_scc0 P2_NOFLAG")
    a("v_mov_b32 v%d, 1" % S)
    a("ds_write_b32 v%d, v%d offset:8" % (VM, S))
    a.label("P2_NOFLAG")
    a("s_waitcnt lgkmcnt(0)")
    a("s_barrier")
    a("ds_read_b32 v%d, v%d offset:8" % (S + 1, VM))
    a("ds_read_b32 v%d, v%d offset:2048" % (O + 8, CR4))
    a("ds_read_b128 %s, v%d" % (vr(O, 4), CR16))
    a("ds_read_b128 %s, v%d offset:1024" % (vr(O + 4, 4), CR16))
    a("s_waitcnt lgkmcnt(2)")
    a("v_readfirstlane_b32 s23, v%d" % (S + 1))
    a("v_add_f32 v%d, v%d, v%d" % (O + 8, O + 8, O + 24))
    a("v_rcp_f32 v%d, v%d" % (O + 8, O + 8))
    a("s_cmp_gt_u32 s23, s29")
    a("s_cbranch_scc1 P2_EXACT")
    a("v_mov_b32 v%d, v%d" % (O + 9, O + 8))
    a("s_waitcnt lgkmcnt(0)")
    for r in range(0, 8, 2):
        a("v_pk_add_f32 %s, %s, %s" % (vr(O + r, 2), vr(O + r, 2), vr(O + 16 + r, 2)))
    for r in range(0, 8, 2):
        a("v_pk_mul_f32 %s, %s, %s" % (vr(O + r, 2), vr(O + r, 2), vr(O + 8, 2)))
    for r in range(4):
        a("v_cvt_pk_bf16_f32 v%d, v%d, v%d" % (O + 16 + r, O + 2 * r, O + 2 * r + 1))
    a("buffer_store_dwordx4 %s, v2, %s, s33 offen sc1" % (vr(O + 16, 4), WS))
    stamp(a, 8)
    delay(a, 4, 3, 0x91)

    YR = 96
    a("s_and_b32 s21, s%d, 0xffff" % S_KEY)
    a("s_cmp_lt_u32 s19, 4")
    a("s_cbranch_scc1 P3_MUL")
    a("buffer_load_dword v8, v%d, %s, s10 offen sc1" % (HFL, WS))
    a("v_mov_b32 v10, 1")
    a("s_mov_b32 s22, 0")
    a("s_mov_b32 s13, 0")
    a("s_mov_b32 s94, 0")
    a("s_waitcnt vmcnt(0)")
    last_wave_flag(a, "P3_FLB", VM, 16, 8, 98, 12)
    stamp(a, 9)
    stamp(a, 30, True)
    a.label("P3_HL")
    a("v_cmp_eq_u32 vcc, s%d, v8" % S_TAG)
    a("s_add_u32 s94, s94, 1")
    a("s_cmp_ge_u32 s94, 0x8000")
    a("s_cselect_b32 s23, 3, vcc_lo")
    a("s_and_b32 s23, s23, 3")
    a("s_andn2_b32 s23, s23, s22")
    a("s_or_b32 s22, s22, s23")
    a("s_cmp_eq_u32 s22, 3")
    a("s_cbranch_scc1 P3_HN")
    a("buffer_load_dword v8, v%d, %s, s10 offen sc1" % (HFL, WS))
    a.label("P3_HN")
    for q in range(2):
        a("s_bitcmp1_b32 s23, %d" % q)
        a("s_cbranch_scc0 P3_HS%d" % q)
        for t in range(2):
            a("s_add_u32 m0, s12, %d" % (L_X + q * 8192 + t * 4096))
            a("s_add_u32 s3, s11, %d" % (q * 4096 + t * 32768))
            for i in range(4):
                a("buffer_load_dwordx4 v2, %s, s3 offen offset:%d sc1 lds" % (WS, i * 1024))
        a.label("P3_HS%d" % q)
    a("s_cmp_eq_u32 s22, 3")
    a("s_cbranch_scc1 P3_HE")
    a("s_cmp_eq_u32 s23, 0")
    a("s_cbranch_scc1 P3_HW")
    a("s_waitcnt vmcnt(8)")
    a("s_branch P3_HL")
    a.label("P3_HW")
    a("s_waitcnt vmcnt(0)")
    a("s_cmp_eq_u32 s13, s22")
    a("s_cbranch_scc1 P3_HL")
    a("s_mov_b32 s13, s22")
    a("s_lshr_b32 s3, s22, 1")
    a("s_lshl_b32 s3, s3, 2")
    a("v_add_u32 v9, s3, v%d" % HLD)
    a("ds_write_b32 v9, v10 offset:32")
    a("s_branch P3_HL")
    a.label("P3_HE")
    stamp(a, 10)
    stamp(a, 28, True)
    a("s_cmp_eq_u32 s23, 1")
    a("s_cselect_b32 s3, 4, 0")
    a("v_add_u32 v9, s3, v%d" % HLD)
    a("s_waitcnt vmcnt(8)")
    a("ds_write_b32 v9, v10 offset:32")
    a("s_waitcnt vmcnt(0)")
    a("ds_write_b32 v%d, v10 offset:32" % HLD)
    a("ds_write_b32 v%d, v10 offset:36" % HLD)
    if SPAN and SPANW:
        a("s_lshl_b32 s3, s2, 3")
        a("s_add_u32 s3, s3, s19")
        a("s_cmp_lg_u32 s3, %d" % (77 * 8 + 6))
        a("s_cbranch_scc1 L_END")
        a("s_sub_u32 s13, s59, s58")
        a("s_min_u32 s13, s13, 10000")
        a("s_mul_i32 s13, s13, 10")
        a("s_memrealtime s[20:21]")
        a.label("SP_LOOP")
        a("s_memrealtime s[22:23]")
        a("s_waitcnt lgkmcnt(0)")
        a("s_sub_u32 s17, s22, s20")
        a("s_cmp_lt_u32 s17, s13")
        a("s_cbranch_scc1 SP_LOOP")
    a("s_endpgm")
    a.label("P3_MUL")
    a("s_sub_u32 s21, 0xffff, s21")
    a("s_lshr_b32 s20, s21, 5")
    ACC3, OB, B, YR = 16, 32, 80, 96
    def wof(h):
        return (190 + 4 * h) if h < 16 else (120 + 4 * (h - 16)) if h < 28 else (104 + 4 * (h - 28))
    def rd_wo(h):
        a("ds_read_b64_tr_b16 %s, v%d offset:%d" % (vr(wof(h), 2), VWO, h * 2048))
        a("ds_read_b64_tr_b16 %s, v%d offset:%d" % (vr(wof(h) + 2, 2), VWO, h * 2048 + 1024))
    for h in list(range(16)) + list(range(28, 32)):
        rd_wo(h)
    srd(a, 44, P_OUT, 2048 * 512 * 2)
    for i in range(8):
        a("v_lshlrev_b32 v%d, 16, v%d" % (B + 2 * i, XR + i))
        a("v_and_b32 v%d, 0xffff0000, v%d" % (B + 2 * i + 1, XR + i))
    for r in range(0, 16, 2):
        a("v_mov_b64 %s, 0" % vr(ACC3 + r, 2))
    a("v_and_b32 v5, 7, v0")
    a("v_lshl_add_u32 v5, v5, 2, v%d" % VM)
    a("s_waitcnt vmcnt(0)")
    last_wave_flag(a, "P3_FLA", VM, 16, 8, 98, 8)
    stamp(a, 9)
    stamp(a, 30, True)
    for h in range(16, 28):
        rd_wo(h)
    a("s_cmp_eq_u32 s20, s4")
    a("s_cbranch_scc1 P3_YJOB")
    a.label("P3_YD")
    for i in range(16):
        a("v_mul_f32 v%d, v%d, v%d" % (B + i, B + i, GR + 1))
    a("s_mov_b32 s22, 0")
    a("s_mov_b32 s94, 0")
    a.label("P3_ROUND")
    a("ds_read_b32 v8, v5 offset:32")
    a("s_add_u32 s94, s94, 1")
    a("s_waitcnt lgkmcnt(0)")
    a("v_cmp_ne_u32 vcc, 0, v8")
    a("s_cmp_ge_u32 s94, 0x400000")
    a("s_cbranch_scc1 P3_FIN")
    a("s_and_b32 s23, vcc_lo, 0xff")
    a("s_andn2_b32 s23, s23, s22")
    a("s_cbranch_scc0 P3_ROUND")
    def rd_o(g):
        for i in range(4):
            a("ds_read_b128 %s, v%d offset:%d" % (vr(OB + 16 * (g & 1) + 4 * i, 4), VOF, L_X + g * 8192 + i * 1024))
    for g in range(8):
        a("s_bitcmp1_b32 s23, %d" % g)
        a("s_cbranch_scc0 P3_SK%d" % g)
        if g > 0:
            a("s_bitcmp1_b32 s23, %d" % (g - 1))
            a("s_cbranch_scc1 P3_HV%d" % g)
        rd_o(g)
        a.label("P3_HV%d" % g)
        if g < 7:
            rd_o(g + 1)
        for i in range(4):
            a("s_waitcnt lgkmcnt(%d)" % ((4 if g < 7 else 0) + 3 - i))
            a("%s %s, %s, %s, %s" % (MF32, vr(ACC3, 16), vr(wof(4 * g + i), 4), vr(OB + 16 * (g & 1) + 4 * i, 4), vr(ACC3, 16)))
        a.label("P3_SK%d" % g)
    a("s_or_b32 s22, s22, s23")
    a("s_cmp_lg_u32 s22, 0xff")
    a("s_cbranch_scc1 P3_ROUND")
    a.label("P3_FIN")
    stamp(a, 11)
    a("s_nop 10")
    for i in range(16):
        a("v_fma_f32 v%d, v%d, v%d, v%d" % (B + i, ACC3 + i, GR, B + i))
        if i % 2 == 1:
            a("v_cvt_pk_bf16_f32 v%d, v%d, v%d" % (XR + i // 2, B + i - 1, B + i))
        if i == 8:
            a("buffer_store_dwordx4 %s, v%d, s[44:47], s6 offen" % (vr(XR, 4), VXO))
    a("buffer_store_dwordx4 %s, v%d, s[44:47], s6 offen offset:16" % (vr(XR + 4, 4), VXO))
    stamp(a, 12)
    stamp(a, 25, True)
    if SPAN and not SPANW:
        ev(a, 3)
        a("s_lshl_b32 s3, s2, 3")
        a("s_add_u32 s3, s3, s19")
        a("s_cmp_lg_u32 s3, %d" % (77 * 8))
        a("s_cbranch_scc1 L_END")
        a("s_sub_u32 s13, s99, s13")
        a("s_min_u32 s13, s13, 10000")
        a("s_mul_i32 s13, s13, 10")
        a("s_memrealtime s[20:21]")
        a.label("SP_LOOP")
        a("s_memrealtime s[22:23]")
        a("s_waitcnt lgkmcnt(0)")
        a("s_sub_u32 s17, s22, s20")
        a("s_cmp_lt_u32 s17, s13")
        a("s_cbranch_scc1 SP_LOOP")
    a.label("L_END")
    a("s_endpgm")

    def ld_fl3(va=252):
        a("v_lshlrev_b32 v%d, 7, v0" % va)
        for i in range(4):
            a("s_mov_b32 s3, %d" % (WS_FL3 + i * 8192))
            a("buffer_load_dword v%d, v%d, %s, s3 offen sc1" % (F3 + i, va, WS))
    a.label("P3_YJOB")
    a("s_mov_b32 s94, 0")
    a.label("P3_ALL")
    for i in range(4):
        a("v_xor_b32 v%d, s%d, v%d" % (F3 + i, S_TAG, F3 + i))
    a("v_or3_b32 v%d, v%d, v%d, v%d" % (F3, F3, F3 + 1, F3 + 2))
    a("v_or_b32 v%d, v%d, v%d" % (F3, F3, F3 + 3))
    a("v_cmp_ne_u32 vcc, 0, v%d" % F3)
    a("s_add_u32 s94, s94, 1")
    a("s_cmp_ge_u32 s94, 0x8000")
    a("s_cbranch_scc1 P3_ALLD")
    a("s_cbranch_vccz P3_ALLD")
    ld_fl3(13)
    a("s_waitcnt vmcnt(0)")
    a("s_branch P3_ALL")
    a.label("P3_ALLD")
    a("v_lshrrev_b32 v12, 2, v0")
    a("v_and_b32 v13, 3, v0")
    a("v_lshlrev_b32 v14, 7, v12")
    a("v_lshl_add_u32 v14, v13, 4, v14")
    a("v_lshlrev_b32 v12, 11, v12")
    a("v_lshl_add_u32 v12, v13, 4, v12")
    a("s_lshr_b32 s30, s5, 8")
    a("s_lshl_b32 s30, s30, 9")
    a("s_and_b32 s31, s5, 255")
    a("s_add_u32 s30, s30, s31")
    a("s_add_u32 s30, s30, %d" % WS_Y)
    a("buffer_load_dwordx4 %s, v12, %s, s30 offen sc1" % (vr(YR, 4), WS))
    a("buffer_load_dwordx4 %s, v12, %s, s30 offen offset:256 sc1" % (vr(YR + 4, 4), WS))
    a("s_mul_i32 s30, s19, 2304")
    a("s_add_u32 s30, s30, %d" % L_QX)
    a("v_add_u32 v14, s30, v14")
    a("s_waitcnt vmcnt(0)")
    a("ds_write_b128 v14, %s" % vr(YR, 4))
    a("ds_write_b128 v14, %s offset:64" % vr(YR + 4, 4))
    a("v_lshlrev_b32 v14, 10, v7")
    a("v_lshl_add_u32 v14, v6, 2, v14")
    a("v_add_u32 v14, s30, v14")
    a("s_waitcnt lgkmcnt(0)")
    for i in range(8):
        a("ds_read_b32 v%d, v14 offset:%d" % (YR + i, i * 128))
    a("s_and_b32 s31, s%d, 0xffff0000" % S_KEY)
    a("s_ashr_i32 s28, s31, 31")
    a("s_not_b32 s28, s28")
    a("s_or_b32 s28, s28, 0x80000000")
    a("s_xor_b32 s31, s31, s28")
    a("s_and_b32 s31, s31, 0xffff0000")
    a("v_mov_b32 v15, s31")
    sigmoid_bf16(a, 15)
    a("s_waitcnt lgkmcnt(0)")
    for i in range(1, 8):
        a("v_add_f32 v%d, v%d, v%d" % (YR, YR, YR + i))
    a("v_mov_b32 v%d, v%d" % (YR + 1, YR))
    a("v_and_b32 v14, 15, v0")
    a("v_lshlrev_b32 v14, 3, v14")
    a("v_permlane32_swap_b32 v%d, v%d" % (YR, YR + 1))
    a("v_add_f32 v%d, v%d, v%d" % (YR, YR, YR + 1))
    bf16_round_to_f32(a, YR, YR)
    a("v_mul_f32 v%d, v%d, v15" % (YR, YR))
    bf16_round_to_f32(a, YR, YR)
    a("v_bfe_u32 v15, v0, 4, 1")
    a("v_lshl_add_u32 v14, v15, 2, v14")
    a("v_add_u32 v14, s30, v14")
    a("ds_write_b32 v14, v%d offset:2048" % YR)
    a("v_lshl_add_u32 v14, v7, 6, s30")
    for i in range(4):
        a("ds_read_b128 %s, v14 offset:%d" % (vr(OB + 4 * i, 4), 2048 + i * 16))
    a("s_and_b32 s30, s21, 31")
    a("v_cmp_eq_u32 vcc, s30, v6")
    a("s_waitcnt lgkmcnt(0)")
    a("s_and_saveexec_b64 s[48:49], vcc")
    for i in range(16):
        a("v_add_f32 v%d, v%d, v%d" % (B + i, B + i, OB + i))
        bf16_round_to_f32(a, B + i, B + i)
    a("s_mov_b64 exec, s[48:49]")
    a("s_branch P3_YD")

    a.label("P2_HRET")
    if NB == 8:
        a("s_bitcmp1_b32 s23, 0")
        a("s_cbranch_scc1 P2_HRET1")
    a("s_branch P2_HRET0")
    def gu_base():
        a("s_cmp_lt_u32 s19, 2")
        a("s_cselect_b32 s44, s%d, s%d" % (P_WG, P_WU))
        a("s_cselect_b32 s45, s%d, s%d" % (P_WG + 1, P_WU + 1))
        a("s_and_b32 s52, s2, 7")
        a("s_mul_i32 s52, s52, %d" % (64 * 3584))
        a("s_lshr_b32 s53, s2, 3")
        a("s_lshl_b32 s53, s53, 7")
        a("s_add_u32 s52, s52, s53")
    def warm_gu(lo, hi):
        if not WARM:
            return
        gu_base()
        a("s_and_b32 s53, s19, 1")
        a("s_mul_i32 s53, s53, %d" % (32 * 3584))
        a("s_add_u32 s52, s52, s53")
        a("s_add_u32 s44, s44, s52")
        a("s_addc_u32 s45, s45, 0")
        for i in range(lo, hi):
            a("s_load_dword s99, s[44:45], 0x%x" % (i * 3584))
    def warm_wd(lo, hi):
        if not WARM:
            return
        a("s_lshl_b32 s52, s2, 13")
        a("s_lshl_b32 s53, s19, 8")
        a("s_add_u32 s52, s52, s53")
        a("s_add_u32 s44, s%d, s52" % P_WD)
        a("s_addc_u32 s45, s%d, 0" % (P_WD + 1))
        for i in range(lo, hi):
            a("s_load_dword s99, s[44:45], 0x%x" % ((i // 2) * 1024 + (i % 2) * 128))
    def only_ffn():
        a("s_cmp_ge_u32 s2, 224")
        a("s_cbranch_scc1 P2_HRET")
    def check_tags(name, regs, reload):
        a("s_mov_b32 s94, 0")
        a.label(name + "L")
        a("v_cmp_ne_u32 vcc, s%d, v%d" % (S_TAG, regs[0]))
        for r in regs[1:]:
            a("v_cmp_ne_u32 s[52:53], s%d, v%d" % (S_TAG, r))
            a("s_nop 1")
            a("s_or_b64 vcc, vcc, s[52:53]")
        a("s_add_u32 s94, s94, 1")
        a("s_cmp_ge_u32 s94, 0x8000")
        a("s_cbranch_scc1 %sD" % name)
        a("s_cbranch_vccz %sD" % name)
        reload()
        a("s_waitcnt vmcnt(0)")
        a("s_branch %sL" % name)
        a.label(name + "D")
    def ld_keys():
        a("v_lshlrev_b32 v5, 3, v0")
        a("s_mov_b32 s3, %d" % WS_RK)
        a("buffer_load_dwordx2 %s, v5, %s, s3 offen sc1" % (vr(DD, 2), WS))
    def job_argmax():
        check_tags("P2_CK", [DD + 1], ld_keys)
        for sh in (1, 2, 4, 8):
            a("v_max_u32_dpp v%d, v%d, v%d row_ror:%d row_mask:0xf bank_mask:0xf" % (DD, DD, DD, sh))
            a("s_nop 1")
        for i in range(4):
            a("v_readlane_b32 s%d, v%d, %d" % (52 + i, DD, 16 * i))
        srd(a, 44, P_X, 2048 * 512 * 2)
        a("s_max_u32 s52, s52, s53")
        a("s_max_u32 s54, s54, s55")
        a("s_max_u32 s52, s52, s54")
        a("s_mov_b32 s%d, s52" % S_KEY)
        a("s_cmp_lt_u32 s2, 224")
        a("s_cselect_b32 s32, s32, 0x%x" % (0x80 if PLAN >= 5 else 0xc0))
        only_ffn()
        a("s_and_b32 s52, s52, 0xffff")
        a("s_sub_u32 s52, 0xffff, s52")
        a("s_and_b32 s52, s52, 2047")
        a("s_lshl_b32 s52, s52, 10")
        a("s_and_b32 s53, s2, 7")
        a("s_lshl_b32 s53, s53, 7")
        a("s_add_u32 s52, s52, s53")
        a("v_lshrrev_b32 v5, 4, v0")
        a("v_lshlrev_b32 v5, 4, v5")
        for s_ in range(2):
            a("buffer_load_dwordx4 %s, v5, s[44:47], s52 offen offset:%d" % (vr(XS + 4 * s_, 4), 64 * s_))
    def job_gu(lo, hi):
        only_ffn()
        gu_base()
        a("s_and_b32 s45, s45, 0xffff")
        a("s_mov_b32 s46, 0x%x" % (512 * 1792 * 2))
        a("s_mov_b32 s47, 0x00020000")
        a("v_lshrrev_b32 v5, 2, v0")
        a("v_mul_u32_u24 v5, 3584, v5")
        a("v_and_b32 v252, 3, v0")
        a("v_lshl_add_u32 v5, v252, 4, v5")
        a("s_and_b32 s53, s19, 1")
        a("s_lshl_b32 s53, s53, 6")
        a("s_add_u32 s52, s52, s53")
        a("s_lshl_b32 s54, s19, 12")
        for i in range(lo, hi):
            a("s_add_u32 m0, s54, %d" % (L_FFW + i * 1024))
            a("s_add_u32 s53, s52, %d" % (i * 16 * 3584))
            a("buffer_load_dwordx4 v5, s[44:47], s53 offen lds")
    def job_wd(lo=0, hi=8):
        srd(a, 48, P_WD, 1792 * 512 * 2)
        a("s_lshl_b32 s52, s2, 13")
        a("s_lshl_b32 s53, s19, 8")
        a("s_add_u32 s52, s52, s53")
        a("v_lshlrev_b32 v5, 2, v0")
        a("s_add_u32 s53, s52, 4096")
        for f in range(lo, hi):
            a("buffer_load_dword v%d, v5, s[48:51], s%d offen offset:%d" % (WD + f, 52 + f // 4, (f % 4) * 1024))
    def job_part():
        a("v_lshrrev_b32 v5, 4, v0")
        a("v_lshlrev_b32 v5, 9, v5")
        a("v_bfe_u32 v252, v0, 2, 2")
        a("v_lshl_add_u32 v5, v252, 6, v5")
        a("v_and_b32 v252, 3, v0")
        a("v_lshl_add_u32 v5, v252, 3, v5")
        a("s_lshl_b32 s52, s19, 12")
        a("s_add_u32 s52, s52, %d" % L_FFW)
        a("v_add_u32 v5, s52, v5")
        for ct in range(2):
            for s_ in range(2):
                for half in range(2):
                    a("ds_read_b64_tr_b16 %s, v5 offset:%d" % (vr(BF + 4 * s_ + 2 * half, 2), ct * 32 + s_ * 2048 + half * 256))
            a("s_waitcnt lgkmcnt(0)")
            a("%s %s, %s, %s, 0" % (MF16, vr(DD + 4 * ct, 4), vr(XS, 4), vr(BF, 4)))
            a("%s %s, %s, %s, %s" % (MF16, vr(DD + 4 * ct, 4), vr(XS + 4, 4), vr(BF + 4, 4), vr(DD + 4 * ct, 4)))
        a("v_lshlrev_b32 v5, 3, v0")
        a("s_lshl_b32 s52, s2, 10")
        a("s_lshl_b32 s53, s19, 8")
        a("s_add_u32 s52, s52, s53")
        a("s_add_u32 s52, s52, %d" % WS_PA)
        a("s_nop 3")
        a("v_mov_b32 v%d, s%d" % (DD + 1, S_TAG))
        a("s_mov_b32 exec_hi, 0")
        a("s_mov_b32 exec_lo, 0xffff0000")
        a("v_mov_b32 v%d, v%d" % (DD, DD + 4))
        a("s_mov_b32 exec_lo, -1")
        a("buffer_store_dwordx2 %s, v5, %s, s52 offen sc1" % (vr(DD, 2), WS))
        a("s_mov_b64 exec, -1")
    def ld_part():
        a("v_lshrrev_b32 v5, 3, v0")
        a("v_lshlrev_b32 v5, 10, v5")
        a("v_and_b32 v252, 7, v0")
        a("v_lshl_add_u32 v5, v252, 3, v5")
        a("s_lshr_b32 s3, s2, 3")
        a("s_lshl_b32 s3, s3, 13")
        a("s_and_b32 s54, s2, 7")
        a("s_lshl_b32 s54, s54, 6")
        a("s_add_u32 s3, s3, s54")
        a("s_add_u32 s3, s3, %d" % WS_PA)
        a("buffer_load_dwordx2 %s, v5, %s, s3 offen sc1" % (vr(T, 2), WS))
        a("buffer_load_dwordx2 %s, v5, %s, s3 offen offset:512 sc1" % (vr(T + 2, 2), WS))
    def job_final():
        check_tags("P2_CP", [T + 1, T + 3], ld_part)
        G_, U_ = T, T + 2
        for r in (G_, U_):
            a("v_add_f32_dpp v%d, v%d, v%d row_ror:8 row_mask:0xf bank_mask:0xf" % (r, r, r))
        for op in ("v_permlane16_swap_b32", "v_permlane32_swap_b32"):
            for r in (G_, U_):
                a("v_mov_b32 v%d, v%d" % (r + 1, r))
            a("s_nop 0")
            for r in (G_, U_):
                a("%s v%d, v%d" % (op, r, r + 1))
            for r in (G_, U_):
                a("v_add_f32 v%d, v%d, v%d" % (r, r, r + 1))
        bf16_round_to_f32(a, G_, G_)
        bf16_round_to_f32(a, U_, U_)
        a("v_mul_f32 v%d, 0x%08x, v%d" % (T + 1, f32bits(-LOG2E), G_))
        a("v_exp_f32 v%d, v%d" % (T + 1, T + 1))
        a("v_mov_b32 v%d, 0" % (T + 4))
        a("v_add_f32 v%d, 1.0, v%d" % (T + 1, T + 1))
        a("v_rcp_f32 v%d, v%d" % (T + 1, T + 1))
        a("v_mov_b32 v%d, 0" % (T + 5))
        a("v_mul_f32 v%d, v%d, v%d" % (T + 1, T + 1, G_))
        bf16_round_to_f32(a, T + 1, T + 1)
        a("v_mul_f32 v%d, v%d, v%d" % (T + 1, T + 1, U_))
        a("v_cvt_pk_bf16_f32 v%d, v%d, v%d" % (T + 1, T + 1, T + 4))
        a("v_lshlrev_b32 v5, 2, v0")
        for i in range(8):
            a("v_readlane_b32 s%d, v%d, %d" % (44 + i, T + 1, i))
        a("s_lshl_b32 s60, s19, 9")
        a("s_and_b32 s61, s2, 15")
        a("s_lshl_b32 s61, s61, 11")
        a("s_add_u32 s60, s60, s61")
        a("s_add_u32 s60, s60, %d" % WS_Y)
        for i in range(8):
            a("s_lshl_b32 s%d, s%d, 16" % (52 + i, 44 + i))
        for i in range(8):
            a("v_dot2_f32_bf16 v%d, v%d, s%d, v%d" % (T + 4, WD + i, 44 + i, T + 4))
            a("v_dot2_f32_bf16 v%d, v%d, s%d, v%d" % (T + 5, WD + i, 52 + i, T + 5))
        a("s_nop 3")
        a("buffer_atomic_add_f32 v%d, v5, %s, s60 offen" % (T + 4, WS))
        a("buffer_atomic_add_f32 v%d, v5, %s, s60 offen offset:256" % (T + 5, WS))
    def job_tail():
        a("s_lshl_b32 s3, s2, 7")
        a("s_add_u32 s3, s3, %d" % WS_FL3)
        a("s_waitcnt vmcnt(0)")
        last_wave_flag(a, "P2_FL3", VM, 12, 4, 3, 5)
        srd(a, 44, P_X, 2048 * 512 * 2)
        a("buffer_load_dwordx4 %s, v%d, s[44:47], s6 offen" % (vr(XR, 4), VXO))
        a("buffer_load_dwordx4 %s, v%d, s[44:47], s6 offen offset:16" % (vr(XR + 4, 4), VXO))
        a("v_lshlrev_b32 v252, 3, v6")
        a("buffer_load_dwordx2 %s, v252, %s, s7 offen sc1" % (vr(GR, 2), WS))
    def job_key():
        a("s_cmp_eq_u32 s39, -1")
        a("s_cbranch_scc1 P2_NOKEY")
        a("s_lshl_b32 s3, s39, 3")
        a("s_add_u32 s3, s3, %d" % WS_RK)
        a("v_mov_b32 v%d, s%d" % (DD, S_KEY))
        a("v_mov_b32 v%d, s%d" % (DD + 1, S_TAG))
        a("s_waitcnt vmcnt(0)")
        a("s_mov_b64 exec, 1")
        a("buffer_store_dwordx2 %s, off, %s, s3 sc1" % (vr(DD, 2), WS))
        a("s_mov_b64 exec, -1")
        a.label("P2_NOKEY")
    def job_own():
        a("s_and_b32 s52, s%d, 0xffff" % S_KEY)
        a("s_sub_u32 s52, 0xffff, s52")
        a("s_lshr_b32 s52, s52, 5")
        a("s_cmp_lg_u32 s52, s4")
        a("s_cbranch_scc1 P2_HRET")
        ld_fl3()
    def odd(b):
        a("s_bitcmp%d_b32 s2, 3" % b)
        a("s_cbranch_scc1 P2_HRET")
    if NB == 4:
        plans = {
            0: {0: [job_key], 1: [ld_keys, lambda: job_gu(0, 2)], 2: [job_argmax, lambda: job_gu(2, 4)], 3: [job_part, job_wd], 4: [ld_part], 5: [job_final], 6: [job_tail], 7: [job_own]},
            2: {0: [job_key, lambda: job_gu(0, 1)], 1: [ld_keys, lambda: job_gu(1, 3)], 2: [job_argmax, lambda: job_gu(3, 4)], 3: [job_part, job_wd], 4: [ld_part], 5: [job_final], 6: [job_tail], 7: [job_own]},
            3: {0: [job_key], 1: [ld_keys, lambda: job_gu(0, 4), job_wd], 2: [job_argmax], 3: [job_part], 4: [ld_part], 5: [job_final], 6: [job_tail], 7: [job_own]},
            4: {0: [job_key], 1: [ld_keys, lambda: odd(1), lambda: job_gu(0, 4), job_wd], 2: [job_argmax, lambda: odd(0), lambda: job_gu(0, 4), job_wd], 3: [job_part], 4: [ld_part], 5: [job_final], 6: [job_tail], 7: [job_own]},
            5: {0: [job_key], 1: [ld_keys, only_ffn, lambda: warm_gu(0, 14)], 2: [job_argmax, lambda: warm_gu(14, 28)], 3: [lambda: job_gu(0, 4), lambda: warm_wd(0, 14)], 4: [job_part, job_wd], 5: [ld_part], 6: [job_final], 7: [job_tail, job_own]},
            6: {0: [job_key, lambda: job_gu(0, 1)], 1: [ld_keys, lambda: job_gu(1, 2)], 2: [job_argmax, lambda: job_gu(2, 3)], 3: [lambda: job_gu(3, 4)], 4: [job_part, lambda: job_wd(0, 4)], 5: [ld_part, lambda: job_wd(4, 8)], 6: [job_final], 7: [job_tail, job_own]},
            7: {0: [job_key], 1: [ld_keys, lambda: job_gu(0, 1)], 2: [job_argmax, lambda: job_gu(1, 3)], 3: [lambda: job_gu(3, 4), lambda: job_wd(0, 3)], 4: [job_part, lambda: job_wd(3, 6)], 5: [ld_part, lambda: job_wd(6, 8)], 6: [job_final], 7: [job_tail, job_own]},
            1: {1: [ld_keys, lambda: job_gu(0, 1)], 2: [job_argmax, lambda: job_gu(1, 2)], 3: [lambda: job_gu(2, 4)], 4: [job_part], 5: [job_wd], 6: [ld_part], 7: [job_final]},
        }
    else:
        plans = {
            0: {0: [ld_keys], 1: [lambda: job_gu(0, 4)], 2: [job_argmax], 3: [job_wd], 4: [job_part], 5: [ld_part], 7: [job_final]},
        }
    plan = plans[PLAN]
    a.label("P2_HOOK")
    delay(a, 2, 15, 0x05)
    for st in plan:
        a("s_cmp_eq_u32 s23, %d" % st)
        a("s_cbranch_scc1 P2_J%d" % st)
    a("s_branch P2_HRET")
    for st, jobs in plan.items():
        a.label("P2_J%d" % st)
        for jb in jobs:
            jb()
        a("s_branch P2_HRET")

    a.label("P2_EXACT")
    a("s_mov_b32 s29, 1")
    a("s_mov_b32 s32, 0")
    a("s_mov_b32 s23, 0xff800000")
    for j in range(2):
        a("v_mov_b32 v%d, s23" % (T + j))
    a("s_mov_b32 s28, s22")
    a("s_mov_b32 s23, 0")
    a("s_waitcnt vmcnt(0) lgkmcnt(0)")
    a.label("P2_EXLOOP")
    a("buffer_load_dwordx4 %s, v2, %s, s28 offen sc1" % (vr(KV, 4), WS))
    a("s_waitcnt vmcnt(0)")
    for j in range(2):
        a("%s %s, %s, %s, 0" % (MF32, vr(S, 16), vr(KV, 4), vr(Q + 4 * j, 4)))
        a("s_nop 15")
        for r in range(0, 16, 2):
            a("v_max3_f32 v%d, v%d, v%d, v%d" % (T + j, T + j, S + r, S + r + 1))
    a("s_add_u32 s28, s28, 2048")
    a("s_add_u32 s23, s23, 1")
    a("s_cmp_lt_u32 s23, 32")
    a("s_cbranch_scc1 P2_EXLOOP")
    a("s_lshl_b32 s23, s19, 9")
    a("s_lshl_b32 s28, s16, 8")
    a("s_add_u32 s23, s23, %d" % L_EX)
    a("v_lshl_add_u32 v5, v0, 2, s23")
    a("v_add_u32 v252, s28, v5")
    a("v_xor_b32 v253, 256, v252")
    a("ds_write_b32 v253, v%d" % T)
    a("ds_write_b32 v252, v%d" % (T + 1))
    a("s_waitcnt lgkmcnt(0)")
    a("s_barrier")
    a("s_lshl_b32 s23, s17, 9")
    a("s_add_u32 s23, s23, %d" % L_EX)
    a("v_lshl_add_u32 v5, v6, 2, s23")
    a("v_add_u32 v252, s28, v5")
    a("v_xor_b32 v253, 256, v252")
    for j in range(2):
        for kh in range(2):
            for hh in range(2):
                a("ds_read_b32 v%d, v%d offset:%d" % (S + kh * 2 + hh, 253 - j, kh * 2048 + hh * 128))
        a("s_waitcnt lgkmcnt(0)")
        a("v_max3_f32 v%d, v%d, v%d, v%d" % (S, S, S + 1, S + 2))
        a("v_max_f32 v%d, v%d, v%d" % (S, S, S + 3))
        a("v_sub_f32 v%d, 0, v%d" % (C + 16 * j, S))
    p2_init()
    a("s_branch P2_START")
    a.label("L_CODE_END")

DOC = """;
; Hand-offs between workgroups: sc1 (device-scope) stores, drained with vmcnt(0), then a flag or {value, tag} word that
; Workgroup -> tile maps exploit the usual id%8 XCD placement for L2 locality only.
;"""

def main():
    out = sys.argv[1] if len(sys.argv) > 1 else "cdna_kernels/%s.s" % NAME
    a = Asm()
    hdr = open("cdna_kernels/%s.s.ref" % NAME).read().split("\n")
    keep = [l for l in hdr if l.startswith(";") and "@launch" not in l and "Override launch" not in l and "grid=ceil" not in l]
    for l in keep:
        a.raw(l)
    a.raw("; @launch grid=(256,1,1) block=(512,1,1) lds=%d" % LDS_SIZE)
    a.raw(DOC)
    a.raw('.amdgcn_target "amdgcn-amd-amdhsa--gfx950"')
    a.raw(".text")
    gen(a)
    a.raw('.section .rodata,"a"')
    a.raw(""".p2align 6
.amdhsa_kernel %s_kernel
  .amdhsa_next_free_vgpr 256
  .amdhsa_next_free_sgpr 102
  .amdhsa_accum_offset 256
  .amdhsa_group_segment_fixed_size 0
  .amdhsa_kernarg_size 96
  .amdhsa_user_sgpr_count 2
  .amdhsa_user_sgpr_kernarg_segment_ptr 1
  .amdhsa_system_sgpr_workgroup_id_x 1
.end_amdhsa_kernel""" % NAME)
    open(out, "w").write(a.text())

if __name__ == "__main__":
    main()
```

```python
import sys, math, struct, os

NAME = "gated_mix__mha_block__moe_arch_mod__prompt"

WS_KV = 0
WS_O = (4 << 20) + 65536
WS_FL1 = WS_O + (2 << 20)
WS_FL2 = WS_FL1 + 32768
WS_FL3 = WS_FL2 + 32768
WS_RK = WS_FL3 + 32768
WS_PA = WS_RK + 8192
WS_G = WS_PA + 262144
WS_EP = WS_G + 16384
WS_Y = WS_EP + 1024
WS_ST = 7 << 20
WS_SIZE = 8 << 20

STAMP = int(os.environ.get("STAMP", "0"))
NB = int(os.environ.get("NB", "4"))
CPF = int(os.environ.get("CPF", "1"))
SLEEP = int(os.environ.get("SLEEP", "0"))
MAP = int(os.environ.get("MAP", "1"))
PRIO = int(os.environ.get("PRIO", "3"))
TOUCH = int(os.environ.get("TOUCH", "0"))
HMASK = int(os.environ.get("HMASK", "0xff"), 0)
WARM = int(os.environ.get("WARM", "0"))
PLAN = int(os.environ.get("PLAN", "0"))
QF = int(os.environ.get("QF", "20"))
WOT = int(os.environ.get("WOT", "0"))
XLA = int(os.environ.get("XLA", "3"))
PD = int(os.environ.get("PD", "1"))
PGAP = int(os.environ.get("PGAP", "3"))
WQT = int(os.environ.get("WQT", "1"))
INIT = int(os.environ.get("INIT", "3"))
ROT = int(os.environ.get("ROT", "1"))
DELAY = int(os.environ.get("DELAY", "0"))
_dl = [0]
def delay(a, site, mod, wavemask=0xff):
    if not (DELAY >> site) & 1:
        return
    _dl[0] += 1
    a("s_mul_i32 s100, s2, %d" % (7 + 2 * site))
    a("s_and_b32 s100, s100, %d" % mod)
    a("s_cmp_lg_u32 s100, 1")
    a("s_cbranch_scc1 DL%d" % _dl[0])
    a("s_mov_b32 s100, %d" % wavemask)
    a("s_bitcmp1_b32 s100, s19")
    a("s_cbranch_scc0 DL%d" % _dl[0])
    for _ in range(6):
        a("s_sleep 127")
    a.label("DL%d" % _dl[0])
SPANW = int(os.environ.get("SPANW", "0"))
SPAN = os.environ.get("SPAN", "")
def ev(a, i):
    if not SPAN:
        return
    i0, i1 = [int(x) for x in SPAN.split(",")]
    for k, r in (((i0, 58), (i1, 59)) if SPANW else ((i0, 13), (i1, 99))):
        if k == i:
            a("s_memrealtime s[100:101]")
            a("s_waitcnt lgkmcnt(0)")
            a("s_mov_b32 s%d, s100" % r)
NOWO = int(os.environ.get("NOWO", "0"))

def f32bits(x):
    return struct.unpack("<I", struct.pack("<f", x))[0]

import re
_SRC = open(__file__).read().split("\n")

class Asm:
    def __init__(self):
        self.l = []
        self.seen = set()
    def _lead(self, ln):
        k = ln - 2
        while k >= 0 and re.match(r"\s*(for |if |def |[\w, ]+ = )", _SRC[k]) and ln - k < 6:
            k -= 1
        out = []
        while k >= 0 and _SRC[k].strip().startswith("#") and k not in self.seen:
            self.seen.add(k)
            out.append("    ; " + _SRC[k].strip().lstrip("#").strip())
            k -= 1
        self.l.extend(reversed(out))
    def __call__(self, s):
        ln = sys._getframe(1).f_lineno
        self._lead(ln)
        m = re.search(r"\)\s+# (.*)$", _SRC[ln - 1])
        tail = ""
        if m and (ln - 1) not in self.seen:
            self.seen.add(ln - 1)
            tail = "   ; " + m.group(1)
        self.l.append("    " + s.strip() + tail)
    def label(self, s):
        self._lead(sys._getframe(1).f_lineno)
        self.l.append(s + ":")
    def raw(self, s):
        self.l.append(s)
    def text(self):
        return "\n".join(self.l) + "\n"

def vr(b, n):
    return "v[%d:%d]" % (b, b + n - 1)
def sr(b, n):
    return "s[%d:%d]" % (b, b + n - 1)

def srd(a, d, base, nbytes):
    a("s_mov_b32 s%d, s%d" % (d, base))
    a("s_and_b32 s%d, s%d, 0xffff" % (d + 1, base + 1))
    a("s_mov_b32 s%d, 0x%x" % (d + 2, nbytes))
    a("s_mov_b32 s%d, 0x00020000" % (d + 3))

MF32 = "v_mfma_f32_32x32x16_bf16"
MF16 = "v_mfma_f32_16x16x32_bf16"
LOG2E = math.log2(math.e)

P_X, P_WQKV, P_WO, P_WR, P_WG, P_WU, P_WD, P_GW, P_OUT, P_DBG, P_WS = 64, 66, 68, 72, 74, 76, 78, 80, 82, 84, 86
WS = "s[88:91]"
S_TAG, S_KEY = 92, 93

def stamp(a, idx, real=False):
    if not STAMP:
        return
    a("s_memrealtime s[100:101]" if real else "s_memtime s[100:101]")
    a("s_waitcnt lgkmcnt(0)")
    a("v_mov_b32 v255, s100")
    a("s_lshl_b32 s100, s2, 3")
    a("s_add_u32 s100, s100, s19")
    a("s_lshl_b32 s100, s100, 7")
    a("s_add_u32 s100, s100, %d" % (WS_ST + idx * 4))
    a("buffer_store_dword v255, off, %s, s100" % WS)

def bf16_round_to_f32(a, dst, src):
    a("v_cvt_pk_bf16_f32 v%d, v%d, v%d" % (dst, src, src))
    a("v_lshlrev_b32 v%d, 16, v%d" % (dst, dst))

def sigmoid_bf16(a, r):
    a("v_mul_f32 v%d, 0x%08x, v%d" % (r, f32bits(-LOG2E), r))
    a("v_exp_f32 v%d, v%d" % (r, r))
    a("s_nop 0")
    a("v_add_f32 v%d, 1.0, v%d" % (r, r))
    a("v_rcp_f32 v%d, v%d" % (r, r))
    a("s_nop 0")
    bf16_round_to_f32(a, r, r)

def poll(a, name, t0, voff):
    a("s_mov_b32 s94, 0")
    a("s_branch %s_IN" % name)
    a.label(name)
    if SLEEP:
        a("s_sleep %d" % SLEEP)
    a.label(name + "_IN")
    a("buffer_load_dword v%d, v%d, %s, s95 offen sc1" % (t0, voff, WS))
    a("s_add_u32 s94, s94, 1")
    a("s_waitcnt vmcnt(0)")
    a("v_cmp_ne_u32 vcc, s%d, v%d" % (S_TAG, t0))
    a("s_cmp_ge_u32 s94, 0x8000")
    a("s_cbranch_scc1 %s_OUT" % name)
    a("s_cbranch_vccz %s_OUT" % name)
    a("s_mov_b64 exec, vcc")
    a("s_branch %s" % name)
    a.label(name + "_OUT")

def poll_deep(a, name, t0, voff):
    a("s_mov_b32 s94, 0")
    for i in range(PD - 1):
        a("buffer_load_dword v%d, v%d, %s, s95 offen sc1" % (t0 + i, voff, WS))
        a("s_sleep %d" % PGAP)
    a.label(name)
    for i in range(PD):
        a("buffer_load_dword v%d, v%d, %s, s95 offen sc1" % (t0 + (i + PD - 1) % PD, voff, WS))
        a("s_waitcnt vmcnt(%d)" % (PD - 1))
        a("v_cmp_ne_u32 vcc, s%d, v%d" % (S_TAG, t0 + i))
        a("s_add_u32 s94, s94, 1")
        a("s_nop 0")
        a("s_cbranch_vccz %s_OUT" % name)
        a("s_mov_b64 exec, vcc")
    a("s_cmp_lt_u32 s94, 0x10000")
    a("s_cbranch_scc1 %s" % name)
    a.label(name + "_OUT")

def last_wave_flag(a, name, vm, ldsoff, n, soff, t0):
    a("v_mov_b32 v%d, 1" % t0)
    a("s_mov_b64 exec, 1")
    a("ds_add_rtn_u32 v%d, v%d, v%d offset:%d" % (t0, vm, t0, ldsoff))
    a("s_waitcnt lgkmcnt(0)")
    a("v_readfirstlane_b32 s97, v%d" % t0)
    a("v_mov_b32 v%d, s%d" % (t0, S_TAG))
    a("s_nop 1")
    a("s_cmp_lg_u32 s97, %d" % (n - 1))
    a("s_cbranch_scc1 %s" % name)
    a("buffer_store_dword v%d, off, %s, s%d sc1" % (t0, WS, soff))
    a.label(name)
    a("s_mov_b64 exec, -1")

def get_tag(a, name, t0):
    a("s_mov_b32 s94, 0")
    a.label(name + "L")
    a("s_waitcnt vmcnt(0)")
    a("v_readfirstlane_b32 s95, v%d" % (t0 + 1))
    a("s_add_u32 s94, s94, 1")
    a("s_cmp_ge_u32 s94, 0x8000")
    a("s_cbranch_scc1 %sD" % name)
    a("s_cmp_lg_u32 s95, 0")
    a("s_cbranch_scc1 %sD" % name)
    a("buffer_load_dwordx2 %s, off, s[24:27], 0 sc1" % vr(t0, 2))
    a("s_branch %sL" % name)
    a.label(name + "D")
    a("v_readfirstlane_b32 s%d, v%d" % (S_TAG, t0))

def put_flag(a, soff, t0):
    a("v_mov_b32 v%d, s%d" % (t0, S_TAG))
    a("s_mov_b64 exec, 1")
    a("buffer_store_dword v%d, off, %s, s%d sc1" % (t0, WS, soff))
    a("s_mov_b64 exec, -1")

L_X = 0
L_W = 65536
L_FFW = L_X + 32768
L_EX = L_X
L_CMB = 131072
L_RT = L_CMB + 18432
L_MISC = L_RT + 2048
L_QX = L_MISC + 2048
L_MX = L_QX + 8192
LDS_SIZE = L_MX + 1024

def gen(a):
    kn = NAME + "_kernel"
    a.raw(".globl %s" % kn)
    a.raw(".p2align 8")
    a.raw(".type %s,@function" % kn)
    a.label(kn)
    a("s_cmp_ge_u32 s2, 256")
    a("s_cbranch_scc1 L_END")
    a("s_load_dwordx16 s[64:79], s[0:1], 0")
    a("s_load_dwordx8 s[80:87], s[0:1], 64")
    if CPF:
        a("s_getpc_b64 s[22:23]")
        a.label("L_PC")
        a("v_subrev_u32 v2, 256, v0")
        a("v_lshlrev_b32 v2, 7, v2")
        a("v_cmp_gt_u32 vcc, L_CODE_END - L_PC, v2")
        a("s_and_saveexec_b64 s[24:25], vcc")
        a("s_cbranch_execz L_NOPF")
        a("global_load_dword v3, v2, s[22:23]")
        a.label("L_NOPF")
        a("s_mov_b64 exec, -1")
    a("v_lshrrev_b32 v1, 6, v0")
    a("v_and_b32 v0, 63, v0")
    a("v_readfirstlane_b32 s19, v1")
    ev(a, 0)
    delay(a, 0, 7)
    Q, C, O, S, P, KV, T = 8, 16, 48, 80, 112, 120, 216
    VM = 254
    XS, WD, BF, DD = T, T + 8, T + 16, T + 24
    ntb = 32 // MAP
    lt = ntb.bit_length() - 1
    a("s_and_b32 s16, s2, 7")
    a("s_lshr_b32 s17, s2, 3")
    a("s_and_b32 s14, s16, %d" % (MAP - 1))
    a("s_lshl_b32 s14, s14, %d" % lt)
    a("s_and_b32 s18, s17, %d" % (ntb - 1))
    a("s_add_u32 s14, s14, s18")
    a("s_lshr_b32 s15, s16, %d" % (MAP.bit_length() - 1))
    a("s_mul_i32 s15, s15, %d" % MAP)
    a("s_lshr_b32 s17, s17, %d" % lt)
    a("s_add_u32 s15, s15, s17")
    if ROT:
        a("s_mul_i32 s17, s15, %d" % ROT)
    else:
        a("s_mul_i32 s17, s17, %d" % (8 // MAP))
    a("s_add_u32 s16, s17, s18")
    a("s_and_b32 s16, s16, 7")
    a("s_and_b32 s62, s2, 7")
    a("s_lshl_b32 s62, s62, 2")
    a("s_bfe_u32 s38, s2, 0x20003")
    a("s_add_u32 s62, s62, s38")
    a("s_lshr_b32 s63, s2, 5")
    a("s_lshl_b32 s38, s38, 1")
    a("s_add_u32 s38, s38, s63")
    a("s_and_b32 s38, s38, 7")
    a("v_lshlrev_b32 v2, 4, v0")
    a("v_and_b32 v6, 31, v0")
    a("v_lshrrev_b32 v7, 5, v0")
    a("v_mov_b32 v%d, %d" % (VM, L_MISC))
    a("s_and_b32 s20, s19, 1")
    XA = 8
    a("v_bfe_u32 v24, v6, 1, 3")
    a("v_lshlrev_b32 v25, 7, v6")
    a("s_lshl_b32 s18, s20, 12")
    a("v_add_u32 v25, s18, v25")
    for ks in range(4):
        a("v_or_b32 v26, %d, v7" % (2 * ks))
        a("v_xor_b32 v26, v26, v24")
        a("v_lshl_add_u32 v%d, v26, 4, v25" % (XA + ks))
    a("s_lshl_b32 s47, s14, 1")
    a("s_add_u32 s39, s47, s20")
    a("s_cmp_ge_u32 s19, 4")
    a("s_cbranch_scc1 P1_COMPUTE")

    a("v_lshrrev_b32 v4, 3, v0")
    a("v_lshlrev_b32 v5, 10, v4")
    a("v_and_b32 v3, 7, v0")
    a("v_lshrrev_b32 v16, 4, v0")
    a("v_xor_b32 v17, v3, v16")
    a("v_lshl_add_u32 v5, v17, 4, v5")
    a("v_mul_u32_u24 v4, 3072, v4")
    a("v_and_b32 v16, 1, v16")
    a("v_lshlrev_b32 v16, 2, v16")
    a("v_xor_b32 v17, v3, v16")
    a("v_lshl_add_u32 v4, v17, 4, v4")
    a("s_lshl_b32 s18, s15, 7")
    a("v_add_u32 v4, s18, v4")
    a("v_xor_b32 v3, 64, v5")
    a("s_lshl_b32 s40, s14, 16")
    a("s_lshl_b32 s18, s19, 14")
    a("s_add_u32 s40, s40, s18")
    a("s_lshl_b32 s44, s19, 11")
    a("s_lshl_b32 s18, s16, 7")
    a("v_add_u32 v16, s18, v2")
    a("v_and_b32 v16, 1023, v16")
    a("s_mul_i32 s41, s19, 49152")
    a("s_lshl_b32 s45, s19, 12")
    a("s_mul_i32 s42, s20, %d" % (32 * 3072))
    a("s_lshr_b32 s43, s19, 1")
    a("s_waitcnt lgkmcnt(0)")
    srd(a, 20, P_X, 2048 * 512 * 2)
    srd(a, 24, P_WQKV, 512 * 1536 * 2)
    srd(a, 88, P_WS, WS_SIZE)
    stamp(a, 0)
    stamp(a, 24, True)

    order = []
    a("s_mov_b32 s51, s16")
    def issue_x(c):
        a("s_lshl_b32 s46, s51, 7")
        a("s_add_u32 s46, s46, s40")
        a("s_add_u32 m0, s44, %d" % (L_X + c * 8192))
        a("s_add_u32 s48, s46, 8192")
        a("buffer_load_dwordx4 v5, s[20:23], s46 offen lds")
        a("s_add_u32 m0, s44, %d" % (L_X + c * 8192 + 1024))
        a("s_add_u32 s51, s51, 1")
        a("buffer_load_dwordx4 v3, s[20:23], s48 offen lds")
        a("s_and_b32 s51, s51, 7")
        order.extend([c, c])
    def issue_step(c):
        wb = L_W + (c % 4) * 16384
        order.extend([c] * 4)
        if c < 8:
            a("s_mul_i32 s47, s16, %d" % (64 * 3072))
            a("s_add_u32 s47, s47, s41")
            a("s_add_u32 s49, s47, %d" % (8 * 3072))
            for rh in range(2):
                a("s_add_u32 m0, s45, %d" % (wb + rh * 2048 - 1024))
                a("s_add_u32 s16, s16, 1" if rh == 0 else "s_and_b32 s16, s16, 7")
                for t in (1, 2):
                    a("buffer_load_dwordx4 v4, s[24:27], s%d offen offset:%d lds" % (47 + 2 * rh, t * 1024))
        else:
            a("s_add_u32 s46, s16, s43")
            a("s_and_b32 s46, s46, 7")
            a("s_mul_i32 s47, s46, %d" % (64 * 3072))
            a("s_add_u32 s47, s47, s42")
            a("s_add_u32 s16, s16, 2")
            for i in range(4):
                a("s_add_u32 m0, s45, %d" % (wb + i * 1024))
                a("s_add_u32 s48, s47, %d" % (i * 8 * 3072))
                a("buffer_load_dwordx4 v4, s[24:27], s48 offen lds")

    issue_x(0)
    issue_step(0)
    srd(a, 28, P_WR, 1024)
    srd(a, 32, P_GW, 1024)
    a("s_mov_b32 m0, %d" % L_RT)
    a("s_nop 0")
    a("buffer_load_dwordx4 v16, s[32:35], 0 offen lds")
    a("s_mov_b32 m0, %d" % (L_RT + 1024))
    a("s_nop 0")
    a("buffer_load_dwordx4 v16, s[28:31], 0 offen lds")
    order.extend([7, 7])
    for c in range(1, INIT):
        issue_x(c)
        issue_step(c)
    for c in range(INIT, XLA):
        issue_x(c)
    a("s_and_b32 s50, s14, 7")
    a("s_xor_b32 s50, s50, s15")
    a("s_lshr_b32 s57, s19, 1")
    a("s_or_b32 s50, s50, s57")
    a("v_and_b32 v25, 1, v0")
    a("v_lshlrev_b32 v25, 10, v25")
    a("v_lshl_add_u32 v17, v7, 4, v25")
    a("v_add_u32 v17, %d, v17" % L_RT)
    RACC, RF = 32, 48
    for r in range(0, 16, 2):
        a("v_mov_b64 %s, 0" % vr(RACC + r, 2))
    a("ds_write_b128 v%d, %s" % (VM, vr(RACC, 4)))
    for o in (16, 32, 48, 64):
        a("ds_write_b128 v%d, %s offset:%d" % (VM, vr(RACC, 4), o))
    for c in range(12):
        younger = len(order) - 1 - max(i for i, k in enumerate(order) if k <= c)
        a("s_waitcnt vmcnt(%d)%s" % (younger, " lgkmcnt(0)" if c == 0 else ""))
        if STAMP == 3 and c < 8:
            a("s_memtime s[100:101]")
            a("s_waitcnt lgkmcnt(0)")
            a("s_mov_b32 s%d, s100" % (52 + c))
        a("s_barrier")
        if c == 0 and STAMP != 3:
            stamp(a, 1)
        if c + max(XLA, INIT) < 8 and XLA <= 3:
            issue_x(c + max(XLA, INIT))
        if INIT <= c + 3 < 12:
            issue_step(c + 3)
        if c + XLA < 8 and XLA > 3:
            issue_x(c + XLA)
        if c == 0:
            srd(a, 32, P_DBG, 256)
        if c == 9:
            a("buffer_load_dwordx2 v[28:29], off, s[32:35], 0 sc1")
            order.append(99)
        if 8 <= c <= 10:
            a("s_cmp_lg_u32 s50, 0")
            a("s_cbranch_scc1 P1_NR%d" % c)
            k0, k1 = (0, 11, 22, 32)[c - 8], (0, 11, 22, 32)[c - 7]
            def rd_r(kk):
                a("ds_read_b128 %s, v%d offset:%d" % (vr(RF + 8 * (kk % 6), 4), XA + kk % 4, L_X + (kk // 4) * 8192))
                a("ds_read_b128 %s, v17 offset:%d" % (vr(RF + 8 * (kk % 6) + 4, 4), kk * 32))
            if c == 8:
                for kk in range(5):
                    rd_r(kk)
            for kk in range(k0, k1):
                a("s_waitcnt lgkmcnt(%d)" % (2 * min(4, 31 - kk)))
                a("%s %s, %s, %s, %s" % (MF32, vr(RACC, 16), vr(RF + 8 * (kk % 6) + 4, 4), vr(RF + 8 * (kk % 6), 4), vr(RACC, 16)))
                if kk + 5 < 32:
                    rd_r(kk + 5)
            a.label("P1_NR%d" % c)
    if STAMP == 3:
        for c in range(0, 8):
            a("v_mov_b32 v255, s%d" % (52 + c))
            a("s_lshl_b32 s100, s2, 3")
            a("s_add_u32 s100, s100, s19")
            a("s_lshl_b32 s100, s100, 7")
            a("s_add_u32 s100, s100, %d" % (WS_ST + (16 + c) * 4))
            a("buffer_store_dword v255, off, %s, s100" % WS)
    srd(a, 24, P_DBG, 256)
    get_tag(a, "P1_TAGL", 28)
    a("s_mov_b32 s39, -1")
    a("s_cmp_lg_u32 s50, 0")
    a("s_cbranch_scc1 P1_DONE")
    R = RACC
    a("s_nop 9")
    a("s_lshl_b32 s39, s14, 1")
    a("s_add_u32 s39, s39, s19")
    bf16_round_to_f32(a, 100, R)
    sigmoid_bf16(a, 100)
    a("v_sub_f32 v101, 1.0, v100")
    bf16_round_to_f32(a, 101, 101)
    bf16_round_to_f32(a, 102, R + 1)
    a("v_ashrrev_i32 v103, 31, v102")
    a("v_or_b32 v103, 0x80000000, v103")
    a("v_xor_b32 v102, v102, v103")
    a("v_and_b32 v102, 0xffff0000, v102")
    a("s_lshl_b32 s55, s39, 5")
    a("v_add_u32 v103, s55, v6")
    a("v_sub_u32 v103, 0xffff, v103")
    a("v_or_b32 v102, v102, v103")
    for sh in (1, 2, 4, 8):
        a("s_nop 1")
        a("v_max_u32_dpp v102, v102, v102 row_ror:%d row_mask:0xf bank_mask:0xf" % sh)
    a("s_nop 0")
    a("v_readlane_b32 s56, v102, 0")
    a("v_readlane_b32 s57, v102, 16")
    a("s_nop 3")
    a("s_max_u32 s%d, s56, s57" % S_KEY)
    a("s_lshl_b32 s54, s39, 8")
    a("s_add_u32 s54, s54, %d" % WS_G)
    a("v_lshlrev_b32 v27, 3, v6")
    a("buffer_store_dwordx2 v[100:101], v27, %s, s54 offen sc1" % WS)
    a("v_mov_b64 v[84:85], 0")
    a("v_lshlrev_b32 v27, 3, v0")
    a("s_lshl_b32 s55, s39, 9")
    a("s_add_u32 s55, s55, %d" % WS_Y)
    a("buffer_store_dwordx2 v[84:85], v27, %s, s55 offen sc1" % WS)
    a("s_branch P1_DONE")

    a.label("P1_COMPUTE")
    WA, WQA = 16, 17
    a("s_lshl_b32 s22, s2, 3")
    a("s_add_u32 s22, s22, s19")
    a("s_waitcnt lgkmcnt(0)")
    ev(a, 8)
    srd(a, 28, P_WQKV, 512 * 1536 * 2)
    srd(a, 88, P_WS, WS_SIZE)
    stamp(a, 0)
    stamp(a, 24, True)
    a("s_mov_b32 s23, %d" % WS_EP)
    a("s_cmp_lg_u32 s22, 4")
    a("s_cbranch_scc1 P1_NOEP0")
    a("buffer_load_dword v24, off, %s, s23 sc1" % WS)
    a.label("P1_NOEP0")
    def wq_touch():
        a("s_cmp_lg_u32 s19, 5")
        a("s_cbranch_scc1 P1_NOWQ")
        a("s_and_b32 s46, s14, %d" % (ntb - 1))
        a("s_mul_i32 s46, s46, %d" % (512 // ntb * 3072))
        a("s_lshl_b32 s47, s15, 7")
        a("s_add_u32 s46, s46, s47")
        a("v_and_b32 v24, %d, v0" % (512 // ntb - 1))
        a("v_mul_u32_u24 v24, 3072, v24")
        a("buffer_load_dword v28, v24, s[28:31], s46 offen")
        a.label("P1_NOWQ")
    if WQT == 0:
        wq_touch()
    srd(a, 24, P_DBG, 256)
    a("s_bfe_u32 s21, s19, 0x10001")
    a("v_bfe_u32 v27, v0, 2, 2")
    a("v_lshlrev_b32 v26, 7, v27")
    a("v_lshrrev_b32 v27, 1, v27")
    a("v_xor_b32 v27, s21, v27")
    a("v_lshl_add_u32 v26, v27, 6, v26")
    a("v_bfe_u32 v27, v0, 4, 1")
    a("v_lshl_add_u32 v26, v27, 5, v26")
    a("v_and_b32 v27, 3, v0")
    a("v_lshl_add_u32 v26, v27, 3, v26")
    a("v_add_u32 v26, %d, v26" % L_W)
    a("v_lshl_add_u32 v%d, v7, 11, v26" % WA)
    a("v_lshl_add_u32 v%d, v7, 10, v26" % WQA)
    a("s_cmp_lg_u32 s22, 4")
    a("s_cbranch_scc1 P1_NOEP")
    if DELAY & 2:
        for _ in range(8):
            a("s_sleep 127")
    a("s_mov_b32 s22, 1664525")
    a("v_mov_b32 v25, 1")
    a("s_waitcnt vmcnt(0)")
    a("v_mul_lo_u32 v24, v24, s22")
    a("v_add_u32 v24, 1013904223, v24")
    a("s_mov_b64 exec, 1")
    a("buffer_store_dwordx2 v[24:25], off, s[24:27], 0 sc1")
    a("buffer_store_dword v24, off, %s, s23 sc1" % WS)
    a("s_mov_b64 exec, -1")
    a.label("P1_NOEP")
    ACC = 32
    FR = 80
    PK = 104
    XF = 120
    pend = []
    def rd_kv(kk, part):
        if kk >= 32:
            return
        c, ks = kk // 4, kk % 4
        if part == 0:
            a("ds_read_b128 %s, v%d offset:%d" % (vr(XF + 4 * kk, 4), XA + ks, L_X + c * 8192))
            pend.append((kk, 0))
        for half in range(2):
            a("ds_read_b64_tr_b16 %s, v%d offset:%d" % (vr(FR + (kk % 3) * 8 + part * 4 + 2 * half, 2), WA,
                                                       (c % 4) * 16384 + ks * 4096 + part * 1024 + half * 512))
            pend.append((kk, part))
    def rd_q(kk):
        if kk >= 32:
            return
        if kk % 8 == 0 and kk > 0:
            a("s_barrier")
        for half in range(2):
            a("ds_read_b64_tr_b16 %s, v%d offset:%d" % (vr(FR + (kk % 6) * 4 + 2 * half, 2), WQA,
                                                       (kk // 8) * 16384 + (kk % 8) * 2048 + half * 512))
            pend.append((100 + kk, 0))
    def wait_for(kk, part):
        last = max([i for i, (k2, p) in enumerate(pend) if k2 == kk and p == part], default=-1)
        if last >= 0:
            a("s_waitcnt lgkmcnt(%d)" % (len(pend) - 1 - last))
            del pend[:last + 1]
    if STAMP == 3:
        stamp(a, 14)
    a("s_barrier")
    if STAMP != 3:
        stamp(a, 1)
    ev(a, 4)
    for kk in range(2):
        rd_kv(kk, 0); rd_kv(kk, 1)
    if WQT == 1:
        wq_touch()
    for kk in range(32):
        nx = kk + 2
        if nx < 32 and nx % 4 == 0:
            c = nx // 4
            a("s_waitcnt lgkmcnt(0)")
            del pend[:]
            if STAMP == 3:
                a("s_memtime s[100:101]")
                a("s_waitcnt lgkmcnt(0)")
                a("s_mov_b32 s%d, s100" % (50 + c))
            a("s_barrier")
        x = vr(XF + 4 * kk, 4)
        cz = lambda r: ("0" if kk == 0 else vr(r, 16))
        wait_for(kk, 0)
        a("%s %s, %s, %s, %s" % (MF32, vr(ACC, 16), vr(FR + (kk % 3) * 8, 4), x, cz(ACC)))
        rd_kv(nx, 0)
        wait_for(kk, 1)
        a("%s %s, %s, %s, %s" % (MF32, vr(ACC + 16, 16), x, vr(FR + (kk % 3) * 8 + 4, 4), cz(ACC + 16)))
        rd_kv(nx, 1)
    a("s_barrier")
    LQ = 5
    for kk in range(LQ):
        rd_q(kk)
    a("s_lshl_b32 s46, s15, 1")
    a("s_add_u32 s46, s46, s21")
    a("s_lshl_b32 s48, s46, 18")
    a("s_lshl_b32 s49, s20, 16")
    a("s_add_u32 s48, s48, s49")
    a("s_lshl_b32 s49, s14, 11")
    a("s_add_u32 s48, s48, s49")
    a("s_add_u32 s49, s48, 131072")
    a("v_lshrrev_b32 v24, 4, v6")
    a("v_lshlrev_b32 v24, 17, v24")
    a("v_lshl_add_u32 v24, v7, 8, v24")
    a("v_and_b32 v25, 15, v0")
    a("v_lshl_add_u32 v24, v25, 4, v24")
    stamp(a, 2)
    ev(a, 5)
    for r in range(8):
        a("v_cvt_pk_bf16_f32 v%d, v%d, v%d" % (PK + r, ACC + 2 * r, ACC + 2 * r + 1))
    a("buffer_store_dwordx4 %s, v2, %s, s48 offen sc1" % (vr(PK, 4), WS))
    a("buffer_store_dwordx4 %s, v2, %s, s49 offen sc1" % (vr(PK + 4, 4), WS))
    for r in range(8):
        a("v_cvt_pk_bf16_f32 v%d, v%d, v%d" % (PK + 8 + r, ACC + 16 + 2 * r, ACC + 16 + 2 * r + 1))
    a("buffer_store_dwordx4 %s, v24, %s, s48 offen offset:1024 sc1" % (vr(PK + 8, 4), WS))
    a("buffer_store_dwordx4 %s, v24, %s, s48 offen offset:1536 sc1" % (vr(PK + 12, 4), WS))
    a("buffer_load_dwordx2 v[28:29], off, s[24:27], 0 sc1")
    a("s_lshl_b32 s50, s21, 13")
    a("s_lshl_b32 s51, s20, 11")
    a("s_add_u32 s50, s50, s51")
    a("s_add_u32 s50, s50, %d" % L_CMB)
    a("v_add_u32 v26, s50, v2")
    a("v_lshrrev_b32 v27, 5, v24")
    a("v_and_b32 v27, 4096, v27")
    a("v_and_b32 v25, 511, v24")
    a("v_add3_u32 v27, v27, v25, s50")
    a("ds_write_b128 v26, %s" % vr(PK, 4))
    a("ds_write_b128 v26, %s offset:4096" % vr(PK + 4, 4))
    a("ds_write_b128 v27, %s offset:1024" % vr(PK + 8, 4))
    a("ds_write_b128 v27, %s offset:1536" % vr(PK + 12, 4))
    pend.extend([(-1, 0)] * 4)
    a("s_lshl_b32 s96, s15, 12")
    a("s_lshl_b32 s97, s14, 7")
    a("s_add_u32 s96, s96, s97")
    a("s_add_u32 s96, s96, %d" % WS_FL1)
    for kk in range(32):
        if kk == QF:
            get_tag(a, "P1_TAGC", 28)
            last_wave_flag(a, "P1_FL", VM, 0, 4, 96, 30)
            del pend[:]
            stamp(a, 13)
            stamp(a, 29, True)
            ev(a, 6)
        wait_for(100 + kk, 0)
        a("%s %s, %s, %s, %s" % (MF32, vr(ACC + 32, 16), vr(FR + (kk % 6) * 4, 4), vr(XF + 4 * kk, 4), "0" if kk == 0 else vr(ACC + 32, 16)))
        rd_q(kk + LQ)
    CS = LOG2E * 0.25
    if STAMP != 3:
        a("s_mov_b32 s54, 0x%08x" % f32bits(CS))
        a("s_mov_b32 s55, 0x%08x" % f32bits(CS))
    a("s_lshl_b32 s22, s21, 12")
    a("s_lshl_b32 s23, s20, 10")
    a("s_add_u32 s22, s22, s23")
    a("s_add_u32 s22, s22, %d" % L_QX)
    a("v_add_u32 v24, s22, v2")
    a("s_lshl_b32 s22, s21, 9")
    a("s_lshl_b32 s23, s20, 7")
    a("s_add_u32 s22, s22, s23")
    a("s_add_u32 s22, s22, %d" % L_MX)
    a("v_lshl_add_u32 v26, v6, 2, s22")
    a("v_lshl_add_u32 v26, v7, 8, v26")
    stamp(a, 3)
    if STAMP == 3:
        for c in range(1, 8):
            a("v_mov_b32 v255, s%d" % (50 + c))
            a("s_lshl_b32 s100, s2, 3")
            a("s_add_u32 s100, s100, s19")
            a("s_lshl_b32 s100, s100, 7")
            a("s_add_u32 s100, s100, %d" % (WS_ST + (16 + c) * 4))
            a("buffer_store_dword v255, off, %s, s100" % WS)
        a("s_mov_b32 s54, 0x%08x" % f32bits(CS))
        a("s_mov_b32 s55, 0x%08x" % f32bits(CS))
    PQ = FR
    for r in range(0, 16, 2):
        a("v_pk_mul_f32 %s, %s, s[54:55]" % (vr(ACC + 32 + r, 2), vr(ACC + 32 + r, 2)))
    for r in range(8):
        a("v_cvt_pk_bf16_f32 v%d, v%d, v%d" % (PQ + r, ACC + 32 + 2 * r, ACC + 32 + 2 * r + 1))
    a("s_nop 1")
    a("%s %s, %s, %s, 0" % (MF32, vr(ACC, 16), vr(PK, 4), vr(PQ, 4)))
    a("%s %s, %s, %s, 0" % (MF32, vr(ACC + 16, 16), vr(PK + 4, 4), vr(PQ + 4, 4)))
    a("ds_write_b128 v24, %s" % vr(PQ, 4))
    a("ds_write_b128 v24, %s offset:2048" % vr(PQ + 4, 4))
    a("s_nop 9")
    m0, m1 = 92, 93
    for h, m in ((0, m0), (1, m1)):
        SS = ACC + 16 * h
        a("v_max3_f32 v%d, v%d, v%d, v%d" % (m, SS, SS + 1, SS + 2))
        for r in range(3, 15, 2):
            a("v_max3_f32 v%d, v%d, v%d, v%d" % (m, m, SS + r, SS + r + 1))
        a("v_max_f32 v%d, v%d, v%d" % (m, m, SS + 15))
    a("s_nop 1")
    a("v_permlane32_swap_b32 v%d, v%d" % (m0, m1))
    a("v_max_f32 v%d, v%d, v%d" % (m0, m0, m1))
    a("v_sub_f32 v%d, 0, v%d" % (m0, m0))
    a("ds_write_b32 v26, v%d" % m0)

    a.label("P1_DONE")
    stamp(a, 4)
    a("s_and_b32 s17, s19, 3")
    a("s_lshr_b32 s16, s19, 2")
    a("v_and_b32 v3, 15, v0")
    a("v_lshlrev_b32 v3, 4, v3")
    a("v_lshl_add_u32 v3, v7, 8, v3")
    a("s_lshl_b32 s18, s15, 2")
    a("s_add_u32 s18, s18, s17")
    a("s_lshl_b32 s22, s18, 17")
    a("s_lshl_b32 s23, s16, 16")
    a("s_add_u32 s22, s22, s23")
    VKA, VVA = 196, 197
    a("v_add_u32 v%d, s22, v2" % VKA)
    a("v_add_u32 v%d, s22, v3" % VVA)
    a("s_lshl_b32 s23, s17, 12")
    a("s_lshl_b32 s28, s16, 11")
    a("s_add_u32 s23, s23, s28")
    a("s_add_u32 s23, s23, %d" % L_CMB)
    a("v_add_u32 v248, s23, v2")
    a("v_add_u32 v249, s23, v3")
    a("s_lshl_b32 s95, s15, 12")
    a("s_add_u32 s95, s95, %d" % WS_FL1)
    a("s_mov_b32 s30, 0x0000ffff")
    a("s_mov_b32 s31, 0x0000ffff")
    a("s_mov_b32 s29, 0")
    a("s_cmp_lt_u32 s19, 4")
    a("s_cselect_b32 s32, 0x%x, 0" % HMASK)
    CW16, CW4, CR16, CR4, VXO, VWO, VOF, XR, GR, HFL, HLD, F3 = 168, 169, 170, 171, 172, 173, 174, 176, 184, 175, 186, 186
    srd(a, 40, P_WO, 512 * 512 * 2)
    a("v_lshrrev_b32 v4, 3, v0")
    a("v_lshlrev_b32 v4, 10, v4")
    a("v_and_b32 v5, 7, v0")
    a("v_bfe_u32 v192, v0, 4, 1")
    a("v_lshlrev_b32 v192, 2, v192")
    a("v_xor_b32 v5, v5, v192")
    a("v_lshl_add_u32 v4, v5, 4, v4")
    a("s_lshl_b32 s36, s63, 7")
    a("s_lshl_b32 s37, s19, 13")
    a("s_add_u32 s36, s36, s37")
    a("s_lshl_b32 s37, s19, 10")
    a("s_add_u32 s37, s37, %d" % L_W)
    a("s_mul_i32 s23, s19, 2304")
    a("s_add_u32 s23, s23, %d" % L_CMB)
    a("v_add_u32 v%d, s23, v2" % CW16)
    a("v_lshl_add_u32 v%d, v0, 2, s23" % CW4)
    a("s_xor_b32 s23, s19, 4")
    a("s_mul_i32 s23, s23, 2304")
    a("s_add_u32 s23, s23, %d" % L_CMB)
    a("v_add_u32 v%d, s23, v2" % CR16)
    a("v_lshl_add_u32 v%d, v0, 2, s23" % CR4)
    a("s_lshl_b32 s23, s14, 1")
    a("s_add_u32 s23, s23, s16")
    a("s_lshl_b32 s33, s23, 15")
    a("s_lshl_b32 s23, s18, 10")
    a("s_add_u32 s33, s33, s23")
    a("s_add_u32 s33, s33, %d" % WS_O)
    a("s_lshl_b32 s98, s14, 10")
    a("s_lshl_b32 s23, s15, 7")
    a("s_add_u32 s98, s98, s23")
    a("s_add_u32 s98, s98, %d" % WS_FL2)
    a("s_and_b32 s8, s19, 1")
    a("s_bfe_u32 s9, s19, 0x10001")
    a("s_lshl_b32 s4, s62, 1")
    a("s_add_u32 s4, s4, s8")
    a("s_lshl_b32 s5, s63, 7")
    a("s_lshl_b32 s23, s9, 6")
    a("s_add_u32 s5, s5, s23")
    a("s_lshl_b32 s6, s4, 15")
    a("s_add_u32 s6, s6, s5")
    a("s_lshl_b32 s7, s4, 8")
    a("s_add_u32 s7, s7, %d" % WS_G)
    a("v_lshlrev_b32 v%d, 10, v6" % VXO)
    a("v_lshl_add_u32 v%d, v7, 5, v%d" % (VXO, VXO))
    a("v_bfe_u32 v193, v0, 2, 2")
    a("v_lshl_add_u32 v192, v7, 2, v193")
    a("v_lshlrev_b32 v192, 7, v192")
    a("v_lshrrev_b32 v193, 1, v193")
    a("v_xor_b32 v193, s9, v193")
    a("v_lshl_add_u32 v192, v193, 6, v192")
    a("v_and_b32 v193, 1, v0")
    a("v_lshl_add_u32 v192, v193, 5, v192")
    a("v_bfe_u32 v193, v0, 1, 1")
    a("v_bfe_u32 v194, v0, 4, 1")
    a("v_lshl_add_u32 v193, v194, 1, v193")
    a("v_lshl_add_u32 v192, v193, 3, v192")
    a("v_add_u32 v%d, %d, v192" % (VWO, L_W))
    a("s_lshl_b32 s23, s8, 12")
    a("v_add_u32 v%d, s23, v2" % VOF)
    a("s_lshl_b32 s10, s62, 10")
    a("s_lshl_b32 s23, s17, 8")
    a("s_add_u32 s10, s10, s23")
    a("s_add_u32 s10, s10, %d" % WS_FL2)
    a("v_and_b32 v%d, 1, v0" % HFL)
    a("v_lshlrev_b32 v%d, 7, v%d" % (HFL, HFL))
    a("s_lshl_b32 s11, s62, 16")
    a("s_lshl_b32 s23, s17, 13")
    a("s_add_u32 s11, s11, s23")
    a("s_add_u32 s11, s11, %d" % WS_O)
    a("s_lshl_b32 s12, s17, 14")
    a("s_lshl_b32 s23, s17, 3")
    a("v_add_u32 v%d, s23, v%d" % (HLD, VM))
    a("v_lshlrev_b32 v5, 7, v0")
    a("s_lshl_b32 s23, s17, 1")
    a("s_add_u32 s23, s23, s16")
    a("s_lshl_b32 s28, s23, 10")
    a("s_add_u32 s28, s28, %d" % L_QX)
    a("v_add_u32 v252, s28, v2")
    a("v_xor_b32 v250, 1024, v252")
    a("s_lshl_b32 s28, s23, 7")
    a("s_add_u32 s28, s28, %d" % L_MX)
    a("v_lshl_add_u32 v253, v6, 2, s28")
    a("v_xor_b32 v251, 128, v253")
    CW16, CW4, CR16, CR4, VXO, VWO, VOF, XR, GR, HFL, HLD, F3 = 168, 169, 170, 171, 172, 173, 174, 176, 184, 175, 186, 186
    def kvb(t):
        return KV + 12 * (t % NB)
    def p2_init():
        for b in range(NB):
            for r in range(4, 12, 2):
                a("v_mov_b64 %s, 0" % vr(kvb(b) + r, 2))
        a("s_mov_b32 s34, 0x3f803f80")
        a("s_mov_b32 s35, 0x3f803f80")
        a("s_mov_b32 exec_lo, 0x00110000")
        a("s_mov_b32 exec_hi, 0x00110000")
        for b in range(NB):
            for r in range(4, 12, 2):
                a("v_mov_b64 %s, s[34:35]" % vr(kvb(b) + r, 2))
        a("s_mov_b64 exec, -1")
        for r in range(0, 32, 2):
            a("v_mov_b64 %s, 0" % vr(O + r, 2))
        a("v_mov_b64 %s, 0" % vr(P + 4, 2))
        a("v_mov_b64 %s, 0" % vr(P + 6, 2))
        a("v_mov_b64 %s, 0" % vr(S + 16 + 14, 2))
    a("s_waitcnt lgkmcnt(0)")
    p2_init()
    if WOT:
        a("s_cmp_lg_u32 s19, 2")
        a("s_cbranch_scc1 P1_NOWO")
        a("s_lshl_b32 s3, s14, 14")
        a("buffer_load_dword v%d, v5, s[40:43], s3 offen" % T)
        a("s_add_u32 s3, s3, 8192")
        a("buffer_load_dword v%d, v5, s[40:43], s3 offen" % T)
        a.label("P1_NOWO")
    a("s_cmp_lg_u32 s19, 3")
    a("s_cbranch_scc1 H1_WAIT")
    a("s_mov_b32 exec_hi, 0")
    if PD > 1:
        poll_deep(a, "H1_POLL", T, 5)
    else:
        poll(a, "H1_POLL", S, 5)
    a("s_mov_b64 exec, -1")
    a.label("H1_WAIT")
    ev(a, 7)
    a("s_barrier")
    stamp(a, 5)
    stamp(a, 26, True)
    ev(a, 1)
    def ld_k(t):
        a("buffer_load_dwordx4 %s, v%d, %s, s28 offen sc1" % (vr(kvb(t), 4), VKA, WS))
    def ld_v(t):
        a("s_mov_b64 exec, s[30:31]")
        a("buffer_load_dwordx4 %s, v%d, %s, s28 offen offset:1024 sc1" % (vr(kvb(t) + 4, 4), VVA, WS))
        a("buffer_load_dwordx4 %s, v%d, %s, s28 offen offset:1536 sc1" % (vr(kvb(t) + 8, 4), VVA, WS))
        a("s_mov_b64 exec, -1")
        a("s_add_u32 s28, s28, 2048")
        a("s_and_b32 s28, s28, 0xffff")
    a("ds_read_b32 v%d, v251" % C)
    a("ds_read_b32 v%d, v253" % (C + 16))
    a("ds_read_b128 %s, v250" % vr(Q, 4))
    a("ds_read_b128 %s, v248" % vr(kvb(0), 4))
    a("ds_read_b128 %s, v252" % vr(Q + 4, 4))
    a("s_mov_b64 exec, s[30:31]")
    a("ds_read_b128 %s, v249 offset:1024" % vr(kvb(0) + 4, 4))
    a("ds_read_b128 %s, v249 offset:1536" % vr(kvb(0) + 8, 4))
    a("s_mov_b64 exec, -1")
    a.label("P2_START")
    a("s_add_u32 s28, s14, 1")
    a("s_lshl_b32 s28, s28, 11")
    a("s_and_b32 s28, s28, 0xffff")
    for i in range(1, NB - 1):
        ld_k(i)
        ld_v(i)
    a("s_mov_b32 s23, 0")
    a("s_waitcnt lgkmcnt(5)")
    for j in range(2):
        a("v_mov_b32 v%d, v%d" % (C + 16 * j + 1, C + 16 * j))
        for r in range(2, 16, 2):
            a("v_mov_b64 %s, %s" % (vr(C + 16 * j + r, 2), vr(C + 16 * j, 2)))
        if j == 0:
            a("s_waitcnt lgkmcnt(3)")
            a("s_nop 0")
            a("%s %s, %s, %s, %s" % (MF32, vr(S, 16), vr(kvb(0), 4), vr(Q, 4), vr(C, 16)))
    a("s_waitcnt lgkmcnt(0)")
    a("s_nop 2")
    a("v_exp_f32 v%d, v%d" % (S, S))
    if not TOUCH:
        stamp(a, 6)

    def main_loop(sfx, older):
        a.raw(".p2align 6")
        a.label("P2_LOOP" + sfx)
        pos = [0]
        def mark():
            pos[0] += 1
            if older and PRIO and pos[0] % 24 == (24 - PRIO + 1) % 24:
                a("s_setprio 0")
            if older and PRIO and pos[0] % 24 == 1 and pos[0] > 1:
                a("s_setprio 1")
        for t in range(NB):
            for j in range(2):
                cur = S + 16 * j
                prv = S + 16 * (j ^ 1)
                nxt = prv
                E = lambda r: a("v_exp_f32 v%d, v%d" % (cur + r, cur + r))
                CV = lambda r: a("v_cvt_pk_bf16_f32 v%d, v%d, v%d" % (P + r // 2, cur + r, cur + r + 1))
                pb = kvb(t) if j == 1 else kvb(t - 1)
                nb = kvb(t) if j == 0 else kvb(t + 1)
                a("v_cvt_pk_bf16_f32 v%d, v%d, v%d" % (P + 7, prv + 14, prv + 15))
                if j == 1:
                    nwo = 0 if NOWO else sum(1 for k in range(t - (NB - 2), t) if k % 4 == 0)
                    a("s_waitcnt vmcnt(%d)" % (3 * (NB - 2) + nwo))
                    if t % 4 == 0:
                        if not NOWO:
                            a("s_lshl_b32 s3, s38, 13")
                            a("s_add_u32 m0, s3, s37")
                            a("s_lshl3_add_u32 s3, s3, s36")
                            a("buffer_load_dwordx4 v4, s[40:43], s3 offen lds")
                            a("s_add_u32 s38, s38, 1")
                            a("s_and_b32 s38, s38, 7")
                        if older:
                            a("s_bitcmp1_b32 s32, s23")
                            a("s_cbranch_scc1 P2_HOOK")
                            a.label("P2_HRET%d" % (t // 4))
                        a("s_add_u32 s23, s23, 1")
                mark()
                a("%s %s, %s, %s, %s" % (MF32, vr(nxt, 16), vr(nb, 4), vr(Q + 4 * (j ^ 1), 4), vr(C + 16 * (j ^ 1), 16)))
                if j == 0:
                    ld_k(t - 1)
                E(1); E(2); CV(0); E(3); E(4); CV(2); E(5)
                mark()
                a("%s %s, %s, %s, %s" % (MF32, vr(O + 16 * (j ^ 1), 16), vr(pb + 8, 4), vr(P + 4, 4), vr(O + 16 * (j ^ 1), 16)))
                if j == 0:
                    ld_v(t - 1)
                E(6); CV(4); E(7); E(8); CV(6); E(9); E(10)
                mark()
                a("%s %s, %s, %s, %s" % (MF32, vr(O + 16 * j, 16), vr(kvb(t) + 4, 4), vr(P, 4), vr(O + 16 * j, 16)))
                CV(8); E(11); E(12); CV(10); E(13); E(14); CV(12); E(15)
                a("v_exp_f32 v%d, v%d" % (nxt, nxt))
        if older and PRIO:
            a("s_setprio 1")
        if STAMP == 1:
            a("s_memtime s[100:101]")
            a("s_waitcnt lgkmcnt(0)")
            a("v_mov_b32 v255, s100")
            a("s_lshl_b32 s100, s2, 3")
            a("s_add_u32 s100, s100, s19")
            a("s_lshl_b32 s100, s100, 5")
            a("s_add_u32 s100, s100, s23")
            a("s_lshl_b32 s100, s100, 2")
            a("s_add_u32 s100, s100, %d" % (WS_ST + 15 * 4))
            a("buffer_store_dword v255, off, %s, s100" % WS)
        a("s_cmp_lt_u32 s23, 8")
        a("s_cbranch_scc1 P2_LOOP" + sfx)
    if PRIO:
        a("s_setprio 1")
    a("s_cmp_ge_u32 s19, 4")
    a("s_cbranch_scc1 P2_LOOPB")
    main_loop("A", True)
    a("s_branch P2_DRAIN")
    main_loop("B", False)
    a.label("P2_DRAIN")
    delay(a, 3, 7, 0x42)
    a("v_cvt_pk_bf16_f32 v%d, v%d, v%d" % (P + 7, S + 16 + 14, S + 16 + 15))
    a("ds_write_b128 v%d, %s" % (CW16, vr(O, 4)))
    a("ds_write_b32 v%d, v%d offset:2048" % (CW4, O + 8))
    a("%s %s, %s, %s, %s" % (MF32, vr(O + 16, 16), vr(kvb(NB - 1) + 8, 4), vr(P + 4, 4), vr(O + 16, 16)))
    a("ds_write_b128 v%d, %s offset:1024" % (CW16, vr(O + 4, 4)))
    stamp(a, 7)
    stamp(a, 27, True)
    ev(a, 2)
    a("s_mov_b32 s28, 0x4f800000")
    a("s_nop 9")
    a("v_max_f32 v%d, v%d, v%d" % (S, O + 8, O + 24))
    a("v_cmp_u_f32 s[56:57], v%d, v%d" % (O + 8, O + 24))
    a("v_cmp_lt_f32 vcc, s28, v%d" % S)
    a("s_nop 3")
    a("s_or_b64 s[56:57], s[56:57], vcc")
    a("s_cbranch_scc0 P2_NOFLAG")
    a("v_mov_b32 v%d, 1" % S)
    a("ds_write_b32 v%d, v%d offset:8" % (VM, S))
    a.label("P2_NOFLAG")
    a("s_waitcnt lgkmcnt(0)")
    a("s_barrier")
    a("ds_read_b32 v%d, v%d offset:8" % (S + 1, VM))
    a("ds_read_b32 v%d, v%d offset:2048" % (O + 8, CR4))
    a("ds_read_b128 %s, v%d" % (vr(O, 4), CR16))
    a("ds_read_b128 %s, v%d offset:1024" % (vr(O + 4, 4), CR16))
    a("s_waitcnt lgkmcnt(2)")
    a("v_readfirstlane_b32 s23, v%d" % (S + 1))
    a("v_add_f32 v%d, v%d, v%d" % (O + 8, O + 8, O + 24))
    a("v_rcp_f32 v%d, v%d" % (O + 8, O + 8))
    a("s_cmp_gt_u32 s23, s29")
    a("s_cbranch_scc1 P2_EXACT")
    a("v_mov_b32 v%d, v%d" % (O + 9, O + 8))
    a("s_waitcnt lgkmcnt(0)")
    for r in range(0, 8, 2):
        a("v_pk_add_f32 %s, %s, %s" % (vr(O + r, 2), vr(O + r, 2), vr(O + 16 + r, 2)))
    for r in range(0, 8, 2):
        a("v_pk_mul_f32 %s, %s, %s" % (vr(O + r, 2), vr(O + r, 2), vr(O + 8, 2)))
    for r in range(4):
        a("v_cvt_pk_bf16_f32 v%d, v%d, v%d" % (O + 16 + r, O + 2 * r, O + 2 * r + 1))
    a("buffer_store_dwordx4 %s, v2, %s, s33 offen sc1" % (vr(O + 16, 4), WS))
    stamp(a, 8)
    delay(a, 4, 3, 0x91)

    YR = 96
    a("s_and_b32 s21, s%d, 0xffff" % S_KEY)
    a("s_cmp_lt_u32 s19, 4")
    a("s_cbranch_scc1 P3_MUL")
    a("buffer_load_dword v8, v%d, %s, s10 offen sc1" % (HFL, WS))
    a("v_mov_b32 v10, 1")
    a("s_mov_b32 s22, 0")
    a("s_mov_b32 s13, 0")
    a("s_mov_b32 s94, 0")
    a("s_waitcnt vmcnt(0)")
    last_wave_flag(a, "P3_FLB", VM, 16, 8, 98, 12)
    stamp(a, 9)
    stamp(a, 30, True)
    a.label("P3_HL")
    a("v_cmp_eq_u32 vcc, s%d, v8" % S_TAG)
    a("s_add_u32 s94, s94, 1")
    a("s_cmp_ge_u32 s94, 0x8000")
    a("s_cselect_b32 s23, 3, vcc_lo")
    a("s_and_b32 s23, s23, 3")
    a("s_andn2_b32 s23, s23, s22")
    a("s_or_b32 s22, s22, s23")
    a("s_cmp_eq_u32 s22, 3")
    a("s_cbranch_scc1 P3_HN")
    a("buffer_load_dword v8, v%d, %s, s10 offen sc1" % (HFL, WS))
    a.label("P3_HN")
    for q in range(2):
        a("s_bitcmp1_b32 s23, %d" % q)
        a("s_cbranch_scc0 P3_HS%d" % q)
        for t in range(2):
            a("s_add_u32 m0, s12, %d" % (L_X + q * 8192 + t * 4096))
            a("s_add_u32 s3, s11, %d" % (q * 4096 + t * 32768))
            for i in range(4):
                a("buffer_load_dwordx4 v2, %s, s3 offen offset:%d sc1 lds" % (WS, i * 1024))
        a.label("P3_HS%d" % q)
    a("s_cmp_eq_u32 s22, 3")
    a("s_cbranch_scc1 P3_HE")
    a("s_cmp_eq_u32 s23, 0")
    a("s_cbranch_scc1 P3_HW")
    a("s_waitcnt vmcnt(8)")
    a("s_branch P3_HL")
    a.label("P3_HW")
    a("s_waitcnt vmcnt(0)")
    a("s_cmp_eq_u32 s13, s22")
    a("s_cbranch_scc1 P3_HL")
    a("s_mov_b32 s13, s22")
    a("s_lshr_b32 s3, s22, 1")
    a("s_lshl_b32 s3, s3, 2")
    a("v_add_u32 v9, s3, v%d" % HLD)
    a("ds_write_b32 v9, v10 offset:32")
    a("s_branch P3_HL")
    a.label("P3_HE")
    stamp(a, 10)
    stamp(a, 28, True)
    a("s_cmp_eq_u32 s23, 1")
    a("s_cselect_b32 s3, 4, 0")
    a("v_add_u32 v9, s3, v%d" % HLD)
    a("s_waitcnt vmcnt(8)")
    a("ds_write_b32 v9, v10 offset:32")
    a("s_waitcnt vmcnt(0)")
    a("ds_write_b32 v%d, v10 offset:32" % HLD)
    a("ds_write_b32 v%d, v10 offset:36" % HLD)
    if SPAN and SPANW:
        a("s_lshl_b32 s3, s2, 3")
        a("s_add_u32 s3, s3, s19")
        a("s_cmp_lg_u32 s3, %d" % (77 * 8 + 6))
        a("s_cbranch_scc1 L_END")
        a("s_sub_u32 s13, s59, s58")
        a("s_min_u32 s13, s13, 10000")
        a("s_mul_i32 s13, s13, 10")
        a("s_memrealtime s[20:21]")
        a.label("SP_LOOP")
        a("s_memrealtime s[22:23]")
        a("s_waitcnt lgkmcnt(0)")
        a("s_sub_u32 s17, s22, s20")
        a("s_cmp_lt_u32 s17, s13")
        a("s_cbranch_scc1 SP_LOOP")
    a("s_endpgm")
    a.label("P3_MUL")
    a("s_sub_u32 s21, 0xffff, s21")
    a("s_lshr_b32 s20, s21, 5")
    ACC3, OB, B, YR = 16, 32, 80, 96
    def wof(h):
        return (190 + 4 * h) if h < 16 else (120 + 4 * (h - 16)) if h < 28 else (104 + 4 * (h - 28))
    def rd_wo(h):
        a("ds_read_b64_tr_b16 %s, v%d offset:%d" % (vr(wof(h), 2), VWO, h * 2048))
        a("ds_read_b64_tr_b16 %s, v%d offset:%d" % (vr(wof(h) + 2, 2), VWO, h * 2048 + 1024))
    for h in list(range(16)) + list(range(28, 32)):
        rd_wo(h)
    srd(a, 44, P_OUT, 2048 * 512 * 2)
    for i in range(8):
        a("v_lshlrev_b32 v%d, 16, v%d" % (B + 2 * i, XR + i))
        a("v_and_b32 v%d, 0xffff0000, v%d" % (B + 2 * i + 1, XR + i))
    for r in range(0, 16, 2):
        a("v_mov_b64 %s, 0" % vr(ACC3 + r, 2))
    a("v_and_b32 v5, 7, v0")
    a("v_lshl_add_u32 v5, v5, 2, v%d" % VM)
    a("s_waitcnt vmcnt(0)")
    last_wave_flag(a, "P3_FLA", VM, 16, 8, 98, 8)
    stamp(a, 9)
    stamp(a, 30, True)
    for h in range(16, 28):
        rd_wo(h)
    a("s_cmp_eq_u32 s20, s4")
    a("s_cbranch_scc1 P3_YJOB")
    a.label("P3_YD")
    for i in range(16):
        a("v_mul_f32 v%d, v%d, v%d" % (B + i, B + i, GR + 1))
    a("s_mov_b32 s22, 0")
    a("s_mov_b32 s94, 0")
    a.label("P3_ROUND")
    a("ds_read_b32 v8, v5 offset:32")
    a("s_add_u32 s94, s94, 1")
    a("s_waitcnt lgkmcnt(0)")
    a("v_cmp_ne_u32 vcc, 0, v8")
    a("s_cmp_ge_u32 s94, 0x400000")
    a("s_cbranch_scc1 P3_FIN")
    a("s_and_b32 s23, vcc_lo, 0xff")
    a("s_andn2_b32 s23, s23, s22")
    a("s_cbranch_scc0 P3_ROUND")
    def rd_o(g):
        for i in range(4):
            a("ds_read_b128 %s, v%d offset:%d" % (vr(OB + 16 * (g & 1) + 4 * i, 4), VOF, L_X + g * 8192 + i * 1024))
    for g in range(8):
        a("s_bitcmp1_b32 s23, %d" % g)
        a("s_cbranch_scc0 P3_SK%d" % g)
        if g > 0:
            a("s_bitcmp1_b32 s23, %d" % (g - 1))
            a("s_cbranch_scc1 P3_HV%d" % g)
        rd_o(g)
        a.label("P3_HV%d" % g)
        if g < 7:
            rd_o(g + 1)
        for i in range(4):
            a("s_waitcnt lgkmcnt(%d)" % ((4 if g < 7 else 0) + 3 - i))
            a("%s %s, %s, %s, %s" % (MF32, vr(ACC3, 16), vr(wof(4 * g + i), 4), vr(OB + 16 * (g & 1) + 4 * i, 4), vr(ACC3, 16)))
        a.label("P3_SK%d" % g)
    a("s_or_b32 s22, s22, s23")
    a("s_cmp_lg_u32 s22, 0xff")
    a("s_cbranch_scc1 P3_ROUND")
    a.label("P3_FIN")
    stamp(a, 11)
    a("s_nop 10")
    for i in range(16):
        a("v_fma_f32 v%d, v%d, v%d, v%d" % (B + i, ACC3 + i, GR, B + i))
        if i % 2 == 1:
            a("v_cvt_pk_bf16_f32 v%d, v%d, v%d" % (XR + i // 2, B + i - 1, B + i))
        if i == 8:
            a("buffer_store_dwordx4 %s, v%d, s[44:47], s6 offen" % (vr(XR, 4), VXO))
    a("buffer_store_dwordx4 %s, v%d, s[44:47], s6 offen offset:16" % (vr(XR + 4, 4), VXO))
    stamp(a, 12)
    stamp(a, 25, True)
    if SPAN and not SPANW:
        ev(a, 3)
        a("s_lshl_b32 s3, s2, 3")
        a("s_add_u32 s3, s3, s19")
        a("s_cmp_lg_u32 s3, %d" % (77 * 8))
        a("s_cbranch_scc1 L_END")
        a("s_sub_u32 s13, s99, s13")
        a("s_min_u32 s13, s13, 10000")
        a("s_mul_i32 s13, s13, 10")
        a("s_memrealtime s[20:21]")
        a.label("SP_LOOP")
        a("s_memrealtime s[22:23]")
        a("s_waitcnt lgkmcnt(0)")
        a("s_sub_u32 s17, s22, s20")
        a("s_cmp_lt_u32 s17, s13")
        a("s_cbranch_scc1 SP_LOOP")
    a.label("L_END")
    a("s_endpgm")

    def ld_fl3(va=252):
        a("v_lshlrev_b32 v%d, 7, v0" % va)
        for i in range(4):
            a("s_mov_b32 s3, %d" % (WS_FL3 + i * 8192))
            a("buffer_load_dword v%d, v%d, %s, s3 offen sc1" % (F3 + i, va, WS))
    a.label("P3_YJOB")
    a("s_mov_b32 s94, 0")
    a.label("P3_ALL")
    for i in range(4):
        a("v_xor_b32 v%d, s%d, v%d" % (F3 + i, S_TAG, F3 + i))
    a("v_or3_b32 v%d, v%d, v%d, v%d" % (F3, F3, F3 + 1, F3 + 2))
    a("v_or_b32 v%d, v%d, v%d" % (F3, F3, F3 + 3))
    a("v_cmp_ne_u32 vcc, 0, v%d" % F3)
    a("s_add_u32 s94, s94, 1")
    a("s_cmp_ge_u32 s94, 0x8000")
    a("s_cbranch_scc1 P3_ALLD")
    a("s_cbranch_vccz P3_ALLD")
    ld_fl3(13)
    a("s_waitcnt vmcnt(0)")
    a("s_branch P3_ALL")
    a.label("P3_ALLD")
    a("v_lshrrev_b32 v12, 2, v0")
    a("v_and_b32 v13, 3, v0")
    a("v_lshlrev_b32 v14, 7, v12")
    a("v_lshl_add_u32 v14, v13, 4, v14")
    a("v_lshlrev_b32 v12, 11, v12")
    a("v_lshl_add_u32 v12, v13, 4, v12")
    a("s_lshr_b32 s30, s5, 8")
    a("s_lshl_b32 s30, s30, 9")
    a("s_and_b32 s31, s5, 255")
    a("s_add_u32 s30, s30, s31")
    a("s_add_u32 s30, s30, %d" % WS_Y)
    a("buffer_load_dwordx4 %s, v12, %s, s30 offen sc1" % (vr(YR, 4), WS))
    a("buffer_load_dwordx4 %s, v12, %s, s30 offen offset:256 sc1" % (vr(YR + 4, 4), WS))
    a("s_mul_i32 s30, s19, 2304")
    a("s_add_u32 s30, s30, %d" % L_QX)
    a("v_add_u32 v14, s30, v14")
    a("s_waitcnt vmcnt(0)")
    a("ds_write_b128 v14, %s" % vr(YR, 4))
    a("ds_write_b128 v14, %s offset:64" % vr(YR + 4, 4))
    a("v_lshlrev_b32 v14, 10, v7")
    a("v_lshl_add_u32 v14, v6, 2, v14")
    a("v_add_u32 v14, s30, v14")
    a("s_waitcnt lgkmcnt(0)")
    for i in range(8):
        a("ds_read_b32 v%d, v14 offset:%d" % (YR + i, i * 128))
    a("s_and_b32 s31, s%d, 0xffff0000" % S_KEY)
    a("s_ashr_i32 s28, s31, 31")
    a("s_not_b32 s28, s28")
    a("s_or_b32 s28, s28, 0x80000000")
    a("s_xor_b32 s31, s31, s28")
    a("s_and_b32 s31, s31, 0xffff0000")
    a("v_mov_b32 v15, s31")
    sigmoid_bf16(a, 15)
    a("s_waitcnt lgkmcnt(0)")
    for i in range(1, 8):
        a("v_add_f32 v%d, v%d, v%d" % (YR, YR, YR + i))
    a("v_mov_b32 v%d, v%d" % (YR + 1, YR))
    a("v_and_b32 v14, 15, v0")
    a("v_lshlrev_b32 v14, 3, v14")
    a("v_permlane32_swap_b32 v%d, v%d" % (YR, YR + 1))
    a("v_add_f32 v%d, v%d, v%d" % (YR, YR, YR + 1))
    bf16_round_to_f32(a, YR, YR)
    a("v_mul_f32 v%d, v%d, v15" % (YR, YR))
    bf16_round_to_f32(a, YR, YR)
    a("v_bfe_u32 v15, v0, 4, 1")
    a("v_lshl_add_u32 v14, v15, 2, v14")
    a("v_add_u32 v14, s30, v14")
    a("ds_write_b32 v14, v%d offset:2048" % YR)
    a("v_lshl_add_u32 v14, v7, 6, s30")
    for i in range(4):
        a("ds_read_b128 %s, v14 offset:%d" % (vr(OB + 4 * i, 4), 2048 + i * 16))
    a("s_and_b32 s30, s21, 31")
    a("v_cmp_eq_u32 vcc, s30, v6")
    a("s_waitcnt lgkmcnt(0)")
    a("s_and_saveexec_b64 s[48:49], vcc")
    for i in range(16):
        a("v_add_f32 v%d, v%d, v%d" % (B + i, B + i, OB + i))
        bf16_round_to_f32(a, B + i, B + i)
    a("s_mov_b64 exec, s[48:49]")
    a("s_branch P3_YD")

    a.label("P2_HRET")
    if NB == 8:
        a("s_bitcmp1_b32 s23, 0")
        a("s_cbranch_scc1 P2_HRET1")
    a("s_branch P2_HRET0")
    def gu_base():
        a("s_cmp_lt_u32 s19, 2")
        a("s_cselect_b32 s44, s%d, s%d" % (P_WG, P_WU))
        a("s_cselect_b32 s45, s%d, s%d" % (P_WG + 1, P_WU + 1))
        a("s_and_b32 s52, s2, 7")
        a("s_mul_i32 s52, s52, %d" % (64 * 3584))
        a("s_lshr_b32 s53, s2, 3")
        a("s_lshl_b32 s53, s53, 7")
        a("s_add_u32 s52, s52, s53")
    def warm_gu(lo, hi):
        if not WARM:
            return
        gu_base()
        a("s_and_b32 s53, s19, 1")
        a("s_mul_i32 s53, s53, %d" % (32 * 3584))
        a("s_add_u32 s52, s52, s53")
        a("s_add_u32 s44, s44, s52")
        a("s_addc_u32 s45, s45, 0")
        for i in range(lo, hi):
            a("s_load_dword s99, s[44:45], 0x%x" % (i * 3584))
    def warm_wd(lo, hi):
        if not WARM:
            return
        a("s_lshl_b32 s52, s2, 13")
        a("s_lshl_b32 s53, s19, 8")
        a("s_add_u32 s52, s52, s53")
        a("s_add_u32 s44, s%d, s52" % P_WD)
        a("s_addc_u32 s45, s%d, 0" % (P_WD + 1))
        for i in range(lo, hi):
            a("s_load_dword s99, s[44:45], 0x%x" % ((i // 2) * 1024 + (i % 2) * 128))
    def only_ffn():
        a("s_cmp_ge_u32 s2, 224")
        a("s_cbranch_scc1 P2_HRET")
    def check_tags(name, regs, reload):
        a("s_mov_b32 s94, 0")
        a.label(name + "L")
        a("v_cmp_ne_u32 vcc, s%d, v%d" % (S_TAG, regs[0]))
        for r in regs[1:]:
            a("v_cmp_ne_u32 s[52:53], s%d, v%d" % (S_TAG, r))
            a("s_nop 1")
            a("s_or_b64 vcc, vcc, s[52:53]")
        a("s_add_u32 s94, s94, 1")
        a("s_cmp_ge_u32 s94, 0x8000")
        a("s_cbranch_scc1 %sD" % name)
        a("s_cbranch_vccz %sD" % name)
        reload()
        a("s_waitcnt vmcnt(0)")
        a("s_branch %sL" % name)
        a.label(name + "D")
    def ld_keys():
        a("v_lshlrev_b32 v5, 3, v0")
        a("s_mov_b32 s3, %d" % WS_RK)
        a("buffer_load_dwordx2 %s, v5, %s, s3 offen sc1" % (vr(DD, 2), WS))
    def job_argmax():
        check_tags("P2_CK", [DD + 1], ld_keys)
        for sh in (1, 2, 4, 8):
            a("v_max_u32_dpp v%d, v%d, v%d row_ror:%d row_mask:0xf bank_mask:0xf" % (DD, DD, DD, sh))
            a("s_nop 1")
        for i in range(4):
            a("v_readlane_b32 s%d, v%d, %d" % (52 + i, DD, 16 * i))
        srd(a, 44, P_X, 2048 * 512 * 2)
        a("s_max_u32 s52, s52, s53")
        a("s_max_u32 s54, s54, s55")
        a("s_max_u32 s52, s52, s54")
        a("s_mov_b32 s%d, s52" % S_KEY)
        a("s_cmp_lt_u32 s2, 224")
        a("s_cselect_b32 s32, s32, 0x%x" % (0x80 if PLAN >= 5 else 0xc0))
        only_ffn()
        a("s_and_b32 s52, s52, 0xffff")
        a("s_sub_u32 s52, 0xffff, s52")
        a("s_and_b32 s52, s52, 2047")
        a("s_lshl_b32 s52, s52, 10")
        a("s_and_b32 s53, s2, 7")
        a("s_lshl_b32 s53, s53, 7")
        a("s_add_u32 s52, s52, s53")
        a("v_lshrrev_b32 v5, 4, v0")
        a("v_lshlrev_b32 v5, 4, v5")
        for s_ in range(2):
            a("buffer_load_dwordx4 %s, v5, s[44:47], s52 offen offset:%d" % (vr(XS + 4 * s_, 4), 64 * s_))
    def job_gu(lo, hi):
        only_ffn()
        gu_base()
        a("s_and_b32 s45, s45, 0xffff")
        a("s_mov_b32 s46, 0x%x" % (512 * 1792 * 2))
        a("s_mov_b32 s47, 0x00020000")
        a("v_lshrrev_b32 v5, 2, v0")
        a("v_mul_u32_u24 v5, 3584, v5")
        a("v_and_b32 v252, 3, v0")
        a("v_lshl_add_u32 v5, v252, 4, v5")
        a("s_and_b32 s53, s19, 1")
        a("s_lshl_b32 s53, s53, 6")
        a("s_add_u32 s52, s52, s53")
        a("s_lshl_b32 s54, s19, 12")
        for i in range(lo, hi):
            a("s_add_u32 m0, s54, %d" % (L_FFW + i * 1024))
            a("s_add_u32 s53, s52, %d" % (i * 16 * 3584))
            a("buffer_load_dwordx4 v5, s[44:47], s53 offen lds")
    def job_wd(lo=0, hi=8):
        srd(a, 48, P_WD, 1792 * 512 * 2)
        a("s_lshl_b32 s52, s2, 13")
        a("s_lshl_b32 s53, s19, 8")
        a("s_add_u32 s52, s52, s53")
        a("v_lshlrev_b32 v5, 2, v0")
        a("s_add_u32 s53, s52, 4096")
        for f in range(lo, hi):
            a("buffer_load_dword v%d, v5, s[48:51], s%d offen offset:%d" % (WD + f, 52 + f // 4, (f % 4) * 1024))
    def job_part():
        a("v_lshrrev_b32 v5, 4, v0")
        a("v_lshlrev_b32 v5, 9, v5")
        a("v_bfe_u32 v252, v0, 2, 2")
        a("v_lshl_add_u32 v5, v252, 6, v5")
        a("v_and_b32 v252, 3, v0")
        a("v_lshl_add_u32 v5, v252, 3, v5")
        a("s_lshl_b32 s52, s19, 12")
        a("s_add_u32 s52, s52, %d" % L_FFW)
        a("v_add_u32 v5, s52, v5")
        for ct in range(2):
            for s_ in range(2):
                for half in range(2):
                    a("ds_read_b64_tr_b16 %s, v5 offset:%d" % (vr(BF + 4 * s_ + 2 * half, 2), ct * 32 + s_ * 2048 + half * 256))
            a("s_waitcnt lgkmcnt(0)")
            a("%s %s, %s, %s, 0" % (MF16, vr(DD + 4 * ct, 4), vr(XS, 4), vr(BF, 4)))
            a("%s %s, %s, %s, %s" % (MF16, vr(DD + 4 * ct, 4), vr(XS + 4, 4), vr(BF + 4, 4), vr(DD + 4 * ct, 4)))
        a("v_lshlrev_b32 v5, 3, v0")
        a("s_lshl_b32 s52, s2, 10")
        a("s_lshl_b32 s53, s19, 8")
        a("s_add_u32 s52, s52, s53")
        a("s_add_u32 s52, s52, %d" % WS_PA)
        a("s_nop 3")
        a("v_mov_b32 v%d, s%d" % (DD + 1, S_TAG))
        a("s_mov_b32 exec_hi, 0")
        a("s_mov_b32 exec_lo, 0xffff0000")
        a("v_mov_b32 v%d, v%d" % (DD, DD + 4))
        a("s_mov_b32 exec_lo, -1")
        a("buffer_store_dwordx2 %s, v5, %s, s52 offen sc1" % (vr(DD, 2), WS))
        a("s_mov_b64 exec, -1")
    def ld_part():
        a("v_lshrrev_b32 v5, 3, v0")
        a("v_lshlrev_b32 v5, 10, v5")
        a("v_and_b32 v252, 7, v0")
        a("v_lshl_add_u32 v5, v252, 3, v5")
        a("s_lshr_b32 s3, s2, 3")
        a("s_lshl_b32 s3, s3, 13")
        a("s_and_b32 s54, s2, 7")
        a("s_lshl_b32 s54, s54, 6")
        a("s_add_u32 s3, s3, s54")
        a("s_add_u32 s3, s3, %d" % WS_PA)
        a("buffer_load_dwordx2 %s, v5, %s, s3 offen sc1" % (vr(T, 2), WS))
        a("buffer_load_dwordx2 %s, v5, %s, s3 offen offset:512 sc1" % (vr(T + 2, 2), WS))
    def job_final():
        check_tags("P2_CP", [T + 1, T + 3], ld_part)
        G_, U_ = T, T + 2
        for r in (G_, U_):
            a("v_add_f32_dpp v%d, v%d, v%d row_ror:8 row_mask:0xf bank_mask:0xf" % (r, r, r))
        for op in ("v_permlane16_swap_b32", "v_permlane32_swap_b32"):
            for r in (G_, U_):
                a("v_mov_b32 v%d, v%d" % (r + 1, r))
            a("s_nop 0")
            for r in (G_, U_):
                a("%s v%d, v%d" % (op, r, r + 1))
            for r in (G_, U_):
                a("v_add_f32 v%d, v%d, v%d" % (r, r, r + 1))
        bf16_round_to_f32(a, G_, G_)
        bf16_round_to_f32(a, U_, U_)
        a("v_mul_f32 v%d, 0x%08x, v%d" % (T + 1, f32bits(-LOG2E), G_))
        a("v_exp_f32 v%d, v%d" % (T + 1, T + 1))
        a("v_mov_b32 v%d, 0" % (T + 4))
        a("v_add_f32 v%d, 1.0, v%d" % (T + 1, T + 1))
        a("v_rcp_f32 v%d, v%d" % (T + 1, T + 1))
        a("v_mov_b32 v%d, 0" % (T + 5))
        a("v_mul_f32 v%d, v%d, v%d" % (T + 1, T + 1, G_))
        bf16_round_to_f32(a, T + 1, T + 1)
        a("v_mul_f32 v%d, v%d, v%d" % (T + 1, T + 1, U_))
        a("v_cvt_pk_bf16_f32 v%d, v%d, v%d" % (T + 1, T + 1, T + 4))
        a("v_lshlrev_b32 v5, 2, v0")
        for i in range(8):
            a("v_readlane_b32 s%d, v%d, %d" % (44 + i, T + 1, i))
        a("s_lshl_b32 s60, s19, 9")
        a("s_and_b32 s61, s2, 15")
        a("s_lshl_b32 s61, s61, 11")
        a("s_add_u32 s60, s60, s61")
        a("s_add_u32 s60, s60, %d" % WS_Y)
        for i in range(8):
            a("s_lshl_b32 s%d, s%d, 16" % (52 + i, 44 + i))
        for i in range(8):
            a("v_dot2_f32_bf16 v%d, v%d, s%d, v%d" % (T + 4, WD + i, 44 + i, T + 4))
            a("v_dot2_f32_bf16 v%d, v%d, s%d, v%d" % (T + 5, WD + i, 52 + i, T + 5))
        a("s_nop 3")
        a("buffer_atomic_add_f32 v%d, v5, %s, s60 offen" % (T + 4, WS))
        a("buffer_atomic_add_f32 v%d, v5, %s, s60 offen offset:256" % (T + 5, WS))
    def job_tail():
        a("s_lshl_b32 s3, s2, 7")
        a("s_add_u32 s3, s3, %d" % WS_FL3)
        a("s_waitcnt vmcnt(0)")
        last_wave_flag(a, "P2_FL3", VM, 12, 4, 3, 5)
        srd(a, 44, P_X, 2048 * 512 * 2)
        a("buffer_load_dwordx4 %s, v%d, s[44:47], s6 offen" % (vr(XR, 4), VXO))
        a("buffer_load_dwordx4 %s, v%d, s[44:47], s6 offen offset:16" % (vr(XR + 4, 4), VXO))
        a("v_lshlrev_b32 v252, 3, v6")
        a("buffer_load_dwordx2 %s, v252, %s, s7 offen sc1" % (vr(GR, 2), WS))
    def job_key():
        a("s_cmp_eq_u32 s39, -1")
        a("s_cbranch_scc1 P2_NOKEY")
        a("s_lshl_b32 s3, s39, 3")
        a("s_add_u32 s3, s3, %d" % WS_RK)
        a("v_mov_b32 v%d, s%d" % (DD, S_KEY))
        a("v_mov_b32 v%d, s%d" % (DD + 1, S_TAG))
        a("s_waitcnt vmcnt(0)")
        a("s_mov_b64 exec, 1")
        a("buffer_store_dwordx2 %s, off, %s, s3 sc1" % (vr(DD, 2), WS))
        a("s_mov_b64 exec, -1")
        a.label("P2_NOKEY")
    def job_own():
        a("s_and_b32 s52, s%d, 0xffff" % S_KEY)
        a("s_sub_u32 s52, 0xffff, s52")
        a("s_lshr_b32 s52, s52, 5")
        a("s_cmp_lg_u32 s52, s4")
        a("s_cbranch_scc1 P2_HRET")
        ld_fl3()
    def odd(b):
        a("s_bitcmp%d_b32 s2, 3" % b)
        a("s_cbranch_scc1 P2_HRET")
    if NB == 4:
        plans = {
            0: {0: [job_key], 1: [ld_keys, lambda: job_gu(0, 2)], 2: [job_argmax, lambda: job_gu(2, 4)], 3: [job_part, job_wd], 4: [ld_part], 5: [job_final], 6: [job_tail], 7: [job_own]},
            2: {0: [job_key, lambda: job_gu(0, 1)], 1: [ld_keys, lambda: job_gu(1, 3)], 2: [job_argmax, lambda: job_gu(3, 4)], 3: [job_part, job_wd], 4: [ld_part], 5: [job_final], 6: [job_tail], 7: [job_own]},
            3: {0: [job_key], 1: [ld_keys, lambda: job_gu(0, 4), job_wd], 2: [job_argmax], 3: [job_part], 4: [ld_part], 5: [job_final], 6: [job_tail], 7: [job_own]},
            4: {0: [job_key], 1: [ld_keys, lambda: odd(1), lambda: job_gu(0, 4), job_wd], 2: [job_argmax, lambda: odd(0), lambda: job_gu(0, 4), job_wd], 3: [job_part], 4: [ld_part], 5: [job_final], 6: [job_tail], 7: [job_own]},
            5: {0: [job_key], 1: [ld_keys, only_ffn, lambda: warm_gu(0, 14)], 2: [job_argmax, lambda: warm_gu(14, 28)], 3: [lambda: job_gu(0, 4), lambda: warm_wd(0, 14)], 4: [job_part, job_wd], 5: [ld_part], 6: [job_final], 7: [job_tail, job_own]},
            6: {0: [job_key, lambda: job_gu(0, 1)], 1: [ld_keys, lambda: job_gu(1, 2)], 2: [job_argmax, lambda: job_gu(2, 3)], 3: [lambda: job_gu(3, 4)], 4: [job_part, lambda: job_wd(0, 4)], 5: [ld_part, lambda: job_wd(4, 8)], 6: [job_final], 7: [job_tail, job_own]},
            7: {0: [job_key], 1: [ld_keys, lambda: job_gu(0, 1)], 2: [job_argmax, lambda: job_gu(1, 3)], 3: [lambda: job_gu(3, 4), lambda: job_wd(0, 3)], 4: [job_part, lambda: job_wd(3, 6)], 5: [ld_part, lambda: job_wd(6, 8)], 6: [job_final], 7: [job_tail, job_own]},
            1: {1: [ld_keys, lambda: job_gu(0, 1)], 2: [job_argmax, lambda: job_gu(1, 2)], 3: [lambda: job_gu(2, 4)], 4: [job_part], 5: [job_wd], 6: [ld_part], 7: [job_final]},
        }
    else:
        plans = {
            0: {0: [ld_keys], 1: [lambda: job_gu(0, 4)], 2: [job_argmax], 3: [job_wd], 4: [job_part], 5: [ld_part], 7: [job_final]},
        }
    plan = plans[PLAN]
    a.label("P2_HOOK")
    delay(a, 2, 15, 0x05)
    for st in plan:
        a("s_cmp_eq_u32 s23, %d" % st)
        a("s_cbranch_scc1 P2_J%d" % st)
    a("s_branch P2_HRET")
    for st, jobs in plan.items():
        a.label("P2_J%d" % st)
        for jb in jobs:
            jb()
        a("s_branch P2_HRET")

    a.label("P2_EXACT")
    a("s_mov_b32 s29, 1")
    a("s_mov_b32 s32, 0")
    a("s_mov_b32 s23, 0xff800000")
    for j in range(2):
        a("v_mov_b32 v%d, s23" % (T + j))
    a("s_mov_b32 s28, s22")
    a("s_mov_b32 s23, 0")
    a("s_waitcnt vmcnt(0) lgkmcnt(0)")
    a.label("P2_EXLOOP")
    a("buffer_load_dwordx4 %s, v2, %s, s28 offen sc1" % (vr(KV, 4), WS))
    a("s_waitcnt vmcnt(0)")
    for j in range(2):
        a("%s %s, %s, %s, 0" % (MF32, vr(S, 16), vr(KV, 4), vr(Q + 4 * j, 4)))
        a("s_nop 15")
        for r in range(0, 16, 2):
            a("v_max3_f32 v%d, v%d, v%d, v%d" % (T + j, T + j, S + r, S + r + 1))
    a("s_add_u32 s28, s28, 2048")
    a("s_add_u32 s23, s23, 1")
    a("s_cmp_lt_u32 s23, 32")
    a("s_cbranch_scc1 P2_EXLOOP")
    a("s_lshl_b32 s23, s19, 9")
    a("s_lshl_b32 s28, s16, 8")
    a("s_add_u32 s23, s23, %d" % L_EX)
    a("v_lshl_add_u32 v5, v0, 2, s23")
    a("v_add_u32 v252, s28, v5")
    a("v_xor_b32 v253, 256, v252")
    a("ds_write_b32 v253, v%d" % T)
    a("ds_write_b32 v252, v%d" % (T + 1))
    a("s_waitcnt lgkmcnt(0)")
    a("s_barrier")
    a("s_lshl_b32 s23, s17, 9")
    a("s_add_u32 s23, s23, %d" % L_EX)
    a("v_lshl_add_u32 v5, v6, 2, s23")
    a("v_add_u32 v252, s28, v5")
    a("v_xor_b32 v253, 256, v252")
    for j in range(2):
        for kh in range(2):
            for hh in range(2):
                a("ds_read_b32 v%d, v%d offset:%d" % (S + kh * 2 + hh, 253 - j, kh * 2048 + hh * 128))
        a("s_waitcnt lgkmcnt(0)")
        a("v_max3_f32 v%d, v%d, v%d, v%d" % (S, S, S + 1, S + 2))
        a("v_max_f32 v%d, v%d, v%d" % (S, S, S + 3))
        a("v_sub_f32 v%d, 0, v%d" % (C + 16 * j, S))
    p2_init()
    a("s_lshl_b32 s28, s14, 11")
    ld_k(0)
    ld_v(0)
    a("s_waitcnt vmcnt(0)")
    a("s_branch P2_START")
    a.label("L_CODE_END")

DOC = """;
; Hand-offs between workgroups: sc1 (device-scope) stores, drained with vmcnt(0), then a flag or {value, tag} word that
; Workgroup -> tile maps exploit the usual id%8 XCD placement for L2 locality only.
;"""

def main():
    out = sys.argv[1] if len(sys.argv) > 1 else "cdna_kernels/%s.s" % NAME
    a = Asm()
    hdr = open("cdna_kernels/%s.s.ref" % NAME).read().split("\n")
    keep = [l for l in hdr if l.startswith(";") and "@launch" not in l and "Override launch" not in l and "grid=ceil" not in l]
    for l in keep:
        a.raw(l)
    a.raw("; @launch grid=(256,1,1) block=(512,1,1) lds=%d" % LDS_SIZE)
    a.raw(DOC)
    a.raw('.amdgcn_target "amdgcn-amd-amdhsa--gfx950"')
    a.raw(".text")
    gen(a)
    a.raw('.section .rodata,"a"')
    a.raw(""".p2align 6
.amdhsa_kernel %s_kernel
  .amdhsa_next_free_vgpr 256
  .amdhsa_next_free_sgpr 102
  .amdhsa_accum_offset 256
  .amdhsa_group_segment_fixed_size 0
  .amdhsa_kernarg_size 96
  .amdhsa_user_sgpr_count 2
  .amdhsa_user_sgpr_kernarg_segment_ptr 1
  .amdhsa_system_sgpr_workgroup_id_x 1
.end_amdhsa_kernel""" % NAME)
    open(out, "w").write(a.text())

if __name__ == "__main__":
    main()
```

```python
import sys, math, struct, os

NAME = "gated_mix__mha_block__moe_arch_mod__prompt"

WS_KV = 0
WS_O = (4 << 20) + 65536
WS_FL1 = WS_O + (2 << 20)
WS_FL2 = WS_FL1 + 32768
WS_FL3 = WS_FL2 + 32768
WS_RK = WS_FL3 + 32768
WS_PA = WS_RK + 8192
WS_G = WS_PA + 262144
WS_EP = WS_G + 16384
WS_Y = WS_EP + 1024
WS_ST = 7 << 20
WS_SIZE = 8 << 20

STAMP = int(os.environ.get("STAMP", "0"))
NB = int(os.environ.get("NB", "4"))
CPF = int(os.environ.get("CPF", "1"))
SLEEP = int(os.environ.get("SLEEP", "0"))
MAP = int(os.environ.get("MAP", "1"))
PRIO = int(os.environ.get("PRIO", "3"))
TOUCH = int(os.environ.get("TOUCH", "0"))
HMASK = int(os.environ.get("HMASK", "0xff"), 0)
WARM = int(os.environ.get("WARM", "0"))
PLAN = int(os.environ.get("PLAN", "0"))
QF = int(os.environ.get("QF", "20"))
DET = int(os.environ.get("DET", "1"))
EP = 0
SENT = int(os.environ.get("SENT", "0"))
LW = int(os.environ.get("LW", "0"))
WOT = int(os.environ.get("WOT", "0"))
XLA = int(os.environ.get("XLA", "3"))
PD = int(os.environ.get("PD", "1"))
PGAP = int(os.environ.get("PGAP", "3"))
WQT = int(os.environ.get("WQT", "1"))
INIT = int(os.environ.get("INIT", "3"))
ROT = int(os.environ.get("ROT", "1"))
DELAY = int(os.environ.get("DELAY", "0"))
_dl = [0]
def delay(a, site, mod, wavemask=0xff):
    if not (DELAY >> site) & 1:
        return
    _dl[0] += 1
    a("s_mul_i32 s100, s2, %d" % (7 + 2 * site))
    a("s_and_b32 s100, s100, %d" % mod)
    a("s_cmp_lg_u32 s100, 1")
    a("s_cbranch_scc1 DL%d" % _dl[0])
    a("s_mov_b32 s100, %d" % wavemask)
    a("s_bitcmp1_b32 s100, s19")
    a("s_cbranch_scc0 DL%d" % _dl[0])
    for _ in range(6):
        a("s_sleep 127")
    a.label("DL%d" % _dl[0])
SPANW = int(os.environ.get("SPANW", "0"))
SPAN = os.environ.get("SPAN", "")
def ev(a, i):
    if not SPAN:
        return
    i0, i1 = [int(x) for x in SPAN.split(",")]
    for k, r in (((i0, 58), (i1, 59)) if SPANW else ((i0, 13), (i1, 99))):
        if k == i:
            a("s_memrealtime s[100:101]")
            a("s_waitcnt lgkmcnt(0)")
            a("s_mov_b32 s%d, s100" % r)
NOWO = int(os.environ.get("NOWO", "0"))

def f32bits(x):
    return struct.unpack("<I", struct.pack("<f", x))[0]

import re
_SRC = open(__file__).read().split("\n")

class Asm:
    def __init__(self):
        self.l = []
        self.seen = set()
    def _lead(self, ln):
        k = ln - 2
        while k >= 0 and re.match(r"\s*(for |if |def |[\w, ]+ = )", _SRC[k]) and ln - k < 6:
            k -= 1
        out = []
        while k >= 0 and _SRC[k].strip().startswith("#") and k not in self.seen:
            self.seen.add(k)
            out.append("    ; " + _SRC[k].strip().lstrip("#").strip())
            k -= 1
        self.l.extend(reversed(out))
    def __call__(self, s):
        ln = sys._getframe(1).f_lineno
        self._lead(ln)
        m = re.search(r"\)\s+# (.*)$", _SRC[ln - 1])
        tail = ""
        if m and (ln - 1) not in self.seen:
            self.seen.add(ln - 1)
            tail = "   ; " + m.group(1)
        self.l.append("    " + s.strip() + tail)
    def label(self, s):
        self._lead(sys._getframe(1).f_lineno)
        self.l.append(s + ":")
    def raw(self, s):
        self.l.append(s)
    def text(self):
        return "\n".join(self.l) + "\n"

def vr(b, n):
    return "v[%d:%d]" % (b, b + n - 1)
def sr(b, n):
    return "s[%d:%d]" % (b, b + n - 1)

def srd(a, d, base, nbytes):
    a("s_mov_b32 s%d, s%d" % (d, base))
    a("s_and_b32 s%d, s%d, 0xffff" % (d + 1, base + 1))
    a("s_mov_b32 s%d, 0x%x" % (d + 2, nbytes))
    a("s_mov_b32 s%d, 0x00020000" % (d + 3))

MF32 = "v_mfma_f32_32x32x16_bf16"
MF16 = "v_mfma_f32_16x16x32_bf16"
LOG2E = math.log2(math.e)

P_X, P_WQKV, P_WO, P_WR, P_WG, P_WU, P_WD, P_GW, P_OUT, P_DBG, P_WS = 64, 66, 68, 72, 74, 76, 78, 80, 82, 84, 86
WS = "s[88:91]"
S_TAG, S_KEY = 92, 93

def stamp(a, idx, real=False):
    if not STAMP:
        return
    a("s_memrealtime s[100:101]" if real else "s_memtime s[100:101]")
    a("s_waitcnt lgkmcnt(0)")
    a("v_mov_b32 v255, s100")
    a("s_lshl_b32 s100, s2, 3")
    a("s_add_u32 s100, s100, s19")
    a("s_lshl_b32 s100, s100, 7")
    a("s_add_u32 s100, s100, %d" % (WS_ST + idx * 4))
    a("buffer_store_dword v255, off, %s, s100" % WS)

def bf16_round_to_f32(a, dst, src):
    a("v_cvt_pk_bf16_f32 v%d, v%d, v%d" % (dst, src, src))
    a("v_lshlrev_b32 v%d, 16, v%d" % (dst, dst))

def sigmoid_bf16(a, r):
    a("v_mul_f32 v%d, 0x%08x, v%d" % (r, f32bits(-LOG2E), r))
    a("v_exp_f32 v%d, v%d" % (r, r))
    a("s_nop 0")
    a("v_add_f32 v%d, 1.0, v%d" % (r, r))
    a("v_rcp_f32 v%d, v%d" % (r, r))
    a("s_nop 0")
    bf16_round_to_f32(a, r, r)

def poll(a, name, t0, voff):
    a("s_mov_b32 s94, 0")
    a("s_branch %s_IN" % name)
    a.label(name)
    if SLEEP:
        a("s_sleep %d" % SLEEP)
    a.label(name + "_IN")
    a("buffer_load_dword v%d, v%d, %s, s95 offen sc1" % (t0, voff, WS))
    a("s_add_u32 s94, s94, 1")
    a("s_waitcnt vmcnt(0)")
    a("v_cmp_ne_u32 vcc, s%d, v%d" % (S_TAG, t0))
    a("s_cmp_ge_u32 s94, 0x40000")
    a("s_cbranch_scc1 %s_OUT" % name)
    a("s_cbranch_vccz %s_OUT" % name)
    a("s_mov_b64 exec, vcc")
    a("s_branch %s" % name)
    a.label(name + "_OUT")

def poll_deep(a, name, t0, voff):
    a("s_mov_b32 s94, 0")
    for i in range(PD - 1):
        a("buffer_load_dword v%d, v%d, %s, s95 offen sc1" % (t0 + i, voff, WS))
        a("s_sleep %d" % PGAP)
    a.label(name)
    for i in range(PD):
        a("buffer_load_dword v%d, v%d, %s, s95 offen sc1" % (t0 + (i + PD - 1) % PD, voff, WS))
        a("s_waitcnt vmcnt(%d)" % (PD - 1))
        a("v_cmp_ne_u32 vcc, s%d, v%d" % (S_TAG, t0 + i))
        a("s_add_u32 s94, s94, 1")
        a("s_nop 0")
        a("s_cbranch_vccz %s_OUT" % name)
        a("s_mov_b64 exec, vcc")
    a("s_cmp_lt_u32 s94, 0x10000")
    a("s_cbranch_scc1 %s" % name)
    a.label(name + "_OUT")

def last_wave_flag(a, name, vm, ldsoff, n, soff, t0):
    a("v_mov_b32 v%d, 1" % t0)
    a("s_mov_b64 exec, 1")
    a("ds_add_rtn_u32 v%d, v%d, v%d offset:%d" % (t0, vm, t0, ldsoff))
    a("s_waitcnt lgkmcnt(0)")
    a("v_readfirstlane_b32 s97, v%d" % t0)
    a("v_mov_b32 v%d, s%d" % (t0, S_TAG))
    a("s_nop 1")
    a("s_cmp_lg_u32 s97, %d" % (n - 1))
    a("s_cbranch_scc1 %s" % name)
    a("buffer_store_dword v%d, off, %s, s%d sc1" % (t0, WS, soff))
    a.label(name)
    a("s_mov_b64 exec, -1")

def get_tag(a, name, t0):
    a("s_mov_b32 s94, 0")
    a.label(name + "L")
    a("s_waitcnt vmcnt(0)")
    a("v_readfirstlane_b32 s95, v%d" % (t0 + 1))
    a("s_add_u32 s94, s94, 1")
    a("s_cmp_ge_u32 s94, 0x40000")
    a("s_cbranch_scc1 %sD" % name)
    a("s_cmp_lg_u32 s95, 0")
    a("s_cbranch_scc1 %sD" % name)
    a("buffer_load_dwordx2 %s, off, s[24:27], 0 sc1" % vr(t0, 2))
    a("s_branch %sL" % name)
    a.label(name + "D")
    a("v_readfirstlane_b32 s%d, v%d" % (S_TAG, t0))

def put_flag(a, soff, t0):
    a("v_mov_b32 v%d, s%d" % (t0, S_TAG))
    a("s_mov_b64 exec, 1")
    a("buffer_store_dword v%d, off, %s, s%d sc1" % (t0, WS, soff))
    a("s_mov_b64 exec, -1")

L_X = 0
L_W = 65536
L_FFW = L_X + 32768
L_EX = L_X
L_CMB = 131072
L_RT = L_CMB + 18432
L_MISC = L_RT + 2048
L_QX = L_MISC + 2048
L_MX = L_QX + 8192
LDS_SIZE = L_MX + 1024

def gen(a):
    kn = NAME + "_kernel"
    a.raw(".globl %s" % kn)
    a.raw(".p2align 8")
    a.raw(".type %s,@function" % kn)
    a.label(kn)
    a("s_cmp_ge_u32 s2, 256")
    a("s_cbranch_scc1 L_END")
    a("s_load_dwordx16 s[64:79], s[0:1], 0")
    a("s_load_dwordx8 s[80:87], s[0:1], 64")
    if CPF:
        a("s_getpc_b64 s[22:23]")
        a.label("L_PC")
        a("v_subrev_u32 v2, 256, v0")
        a("v_lshlrev_b32 v2, 7, v2")
        a("v_cmp_gt_u32 vcc, L_CODE_END - L_PC, v2")
        a("s_and_saveexec_b64 s[24:25], vcc")
        a("s_cbranch_execz L_NOPF")
        a("global_load_dword v3, v2, s[22:23]")
        a.label("L_NOPF")
        a("s_mov_b64 exec, -1")
    a("v_lshrrev_b32 v1, 6, v0")
    a("v_and_b32 v0, 63, v0")
    a("v_readfirstlane_b32 s19, v1")
    ev(a, 0)
    delay(a, 0, 7)
    Q, C, O, S, P, KV, T = 8, 16, 48, 80, 112, 120, 216
    VM = 254
    XS, WD, BF, DD = T, T + 8, T + 16, T + 24
    ntb = 32 // MAP
    lt = ntb.bit_length() - 1
    a("s_and_b32 s16, s2, 7")
    a("s_lshr_b32 s17, s2, 3")
    a("s_and_b32 s14, s16, %d" % (MAP - 1))
    a("s_lshl_b32 s14, s14, %d" % lt)
    a("s_and_b32 s18, s17, %d" % (ntb - 1))
    a("s_add_u32 s14, s14, s18")
    a("s_lshr_b32 s15, s16, %d" % (MAP.bit_length() - 1))
    a("s_mul_i32 s15, s15, %d" % MAP)
    a("s_lshr_b32 s17, s17, %d" % lt)
    a("s_add_u32 s15, s15, s17")
    if ROT:
        a("s_mul_i32 s17, s15, %d" % ROT)
    else:
        a("s_mul_i32 s17, s17, %d" % (8 // MAP))
    a("s_add_u32 s16, s17, s18")
    a("s_and_b32 s16, s16, 7")
    a("s_and_b32 s62, s2, 7")
    a("s_lshl_b32 s62, s62, 2")
    a("s_bfe_u32 s38, s2, 0x20003")
    a("s_add_u32 s62, s62, s38")
    a("s_lshr_b32 s63, s2, 5")
    a("s_lshl_b32 s38, s38, 1")
    a("s_add_u32 s38, s38, s63")
    a("s_and_b32 s38, s38, 7")
    a("v_lshlrev_b32 v2, 4, v0")
    a("v_and_b32 v6, 31, v0")
    a("v_lshrrev_b32 v7, 5, v0")
    a("v_mov_b32 v%d, %d" % (VM, L_MISC))
    a("s_and_b32 s20, s19, 1")
    XA = 8
    a("v_bfe_u32 v24, v6, 1, 3")
    a("v_lshlrev_b32 v25, 7, v6")
    a("s_lshl_b32 s18, s20, 12")
    a("v_add_u32 v25, s18, v25")
    for ks in range(4):
        a("v_or_b32 v26, %d, v7" % (2 * ks))
        a("v_xor_b32 v26, v26, v24")
        a("v_lshl_add_u32 v%d, v26, 4, v25" % (XA + ks))
    a("s_lshl_b32 s47, s14, 1")
    a("s_add_u32 s39, s47, s20")
    a("s_cmp_ge_u32 s19, 4")
    a("s_cbranch_scc1 P1_COMPUTE")

    a("v_lshrrev_b32 v4, 3, v0")
    a("v_lshlrev_b32 v5, 10, v4")
    a("v_and_b32 v3, 7, v0")
    a("v_lshrrev_b32 v16, 4, v0")
    a("v_xor_b32 v17, v3, v16")
    a("v_lshl_add_u32 v5, v17, 4, v5")
    a("v_mul_u32_u24 v4, 3072, v4")
    a("v_and_b32 v16, 1, v16")
    a("v_lshlrev_b32 v16, 2, v16")
    a("v_xor_b32 v17, v3, v16")
    a("v_lshl_add_u32 v4, v17, 4, v4")
    a("s_lshl_b32 s18, s15, 7")
    a("v_add_u32 v4, s18, v4")
    a("v_xor_b32 v3, 64, v5")
    a("s_lshl_b32 s40, s14, 16")
    a("s_lshl_b32 s18, s19, 14")
    a("s_add_u32 s40, s40, s18")
    a("s_lshl_b32 s44, s19, 11")
    a("s_lshl_b32 s18, s16, 7")
    a("v_add_u32 v16, s18, v2")
    a("v_and_b32 v16, 1023, v16")
    a("s_mul_i32 s41, s19, 49152")
    a("s_lshl_b32 s45, s19, 12")
    a("s_mul_i32 s42, s20, %d" % (32 * 3072))
    a("s_lshr_b32 s43, s19, 1")
    a("s_waitcnt lgkmcnt(0)")
    srd(a, 20, P_X, 2048 * 512 * 2)
    srd(a, 24, P_WQKV, 512 * 1536 * 2)
    srd(a, 88, P_WS, WS_SIZE)
    stamp(a, 0)
    stamp(a, 24, True)

    order = []
    a("s_mov_b32 s51, s16")
    def issue_x(c):
        a("s_lshl_b32 s46, s51, 7")
        a("s_add_u32 s46, s46, s40")
        a("s_add_u32 m0, s44, %d" % (L_X + c * 8192))
        a("s_add_u32 s48, s46, 8192")
        a("buffer_load_dwordx4 v5, s[20:23], s46 offen lds")
        a("s_add_u32 m0, s44, %d" % (L_X + c * 8192 + 1024))
        a("s_add_u32 s51, s51, 1")
        a("buffer_load_dwordx4 v3, s[20:23], s48 offen lds")
        a("s_and_b32 s51, s51, 7")
        order.extend([c, c])
    def issue_step(c):
        wb = L_W + (c % 4) * 16384
        order.extend([c] * 4)
        if c < 8:
            a("s_mul_i32 s47, s16, %d" % (64 * 3072))
            a("s_add_u32 s47, s47, s41")
            a("s_add_u32 s49, s47, %d" % (8 * 3072))
            for rh in range(2):
                a("s_add_u32 m0, s45, %d" % (wb + rh * 2048 - 1024))
                a("s_add_u32 s16, s16, 1" if rh == 0 else "s_and_b32 s16, s16, 7")
                for t in (1, 2):
                    a("buffer_load_dwordx4 v4, s[24:27], s%d offen offset:%d lds" % (47 + 2 * rh, t * 1024))
        else:
            a("s_add_u32 s46, s16, s43")
            a("s_and_b32 s46, s46, 7")
            a("s_mul_i32 s47, s46, %d" % (64 * 3072))
            a("s_add_u32 s47, s47, s42")
            a("s_add_u32 s16, s16, 2")
            for i in range(4):
                a("s_add_u32 m0, s45, %d" % (wb + i * 1024))
                a("s_add_u32 s48, s47, %d" % (i * 8 * 3072))
                a("buffer_load_dwordx4 v4, s[24:27], s48 offen lds")

    issue_x(0)
    issue_step(0)
    srd(a, 28, P_WR, 1024)
    srd(a, 32, P_GW, 1024)
    a("s_mov_b32 m0, %d" % L_RT)
    a("s_nop 0")
    a("buffer_load_dwordx4 v16, s[32:35], 0 offen lds")
    a("s_mov_b32 m0, %d" % (L_RT + 1024))
    a("s_nop 0")
    a("buffer_load_dwordx4 v16, s[28:31], 0 offen lds")
    order.extend([7, 7])
    for c in range(1, INIT):
        issue_x(c)
        issue_step(c)
    for c in range(INIT, XLA):
        issue_x(c)
    a("s_and_b32 s50, s14, 7")
    a("s_xor_b32 s50, s50, s15")
    a("s_lshr_b32 s57, s19, 1")
    a("s_or_b32 s50, s50, s57")
    a("v_and_b32 v25, 1, v0")
    a("v_lshlrev_b32 v25, 10, v25")
    a("v_lshl_add_u32 v17, v7, 4, v25")
    a("v_add_u32 v17, %d, v17" % L_RT)
    RACC, RF = 32, 48
    for r in range(0, 16, 2):
        a("v_mov_b64 %s, 0" % vr(RACC + r, 2))
    a("ds_write_b128 v%d, %s" % (VM, vr(RACC, 4)))
    for o in (16, 32, 48, 64):
        a("ds_write_b128 v%d, %s offset:%d" % (VM, vr(RACC, 4), o))
    for c in range(12):
        younger = len(order) - 1 - max(i for i, k in enumerate(order) if k <= c)
        a("s_waitcnt vmcnt(%d)%s" % (younger, " lgkmcnt(0)" if c == 0 else ""))
        if STAMP == 3 and c < 8:
            a("s_memtime s[100:101]")
            a("s_waitcnt lgkmcnt(0)")
            a("s_mov_b32 s%d, s100" % (52 + c))
        a("s_barrier")
        if c == 0 and STAMP != 3:
            stamp(a, 1)
        if c + max(XLA, INIT) < 8 and XLA <= 3:
            issue_x(c + max(XLA, INIT))
        if INIT <= c + 3 < 12:
            issue_step(c + 3)
        if c + XLA < 8 and XLA > 3:
            issue_x(c + XLA)
        if c == 0:
            srd(a, 32, P_DBG, 256)
        if c == 9:
            a("buffer_load_dwordx2 v[28:29], off, s[32:35], 0 sc1")
            order.append(99)
        if 8 <= c <= 10:
            a("s_cmp_lg_u32 s50, 0")
            a("s_cbranch_scc1 P1_NR%d" % c)
            k0, k1 = (0, 11, 22, 32)[c - 8], (0, 11, 22, 32)[c - 7]
            def rd_r(kk):
                a("ds_read_b128 %s, v%d offset:%d" % (vr(RF + 8 * (kk % 6), 4), XA + kk % 4, L_X + (kk // 4) * 8192))
                a("ds_read_b128 %s, v17 offset:%d" % (vr(RF + 8 * (kk % 6) + 4, 4), kk * 32))
            if c == 8:
                for kk in range(5):
                    rd_r(kk)
            for kk in range(k0, k1):
                a("s_waitcnt lgkmcnt(%d)" % (2 * min(4, 31 - kk)))
                a("%s %s, %s, %s, %s" % (MF32, vr(RACC, 16), vr(RF + 8 * (kk % 6) + 4, 4), vr(RF + 8 * (kk % 6), 4), vr(RACC, 16)))
                if kk + 5 < 32:
                    rd_r(kk + 5)
            a.label("P1_NR%d" % c)
    if STAMP == 3:
        for c in range(0, 8):
            a("v_mov_b32 v255, s%d" % (52 + c))
            a("s_lshl_b32 s100, s2, 3")
            a("s_add_u32 s100, s100, s19")
            a("s_lshl_b32 s100, s100, 7")
            a("s_add_u32 s100, s100, %d" % (WS_ST + (16 + c) * 4))
            a("buffer_store_dword v255, off, %s, s100" % WS)
    srd(a, 24, P_DBG, 256)
    get_tag(a, "P1_TAGL", 28)
    a("s_mov_b32 s39, -1")
    a("s_cmp_lg_u32 s50, 0")
    a("s_cbranch_scc1 P1_DONE")
    R = RACC
    a("s_nop 9")
    a("s_lshl_b32 s39, s14, 1")
    a("s_add_u32 s39, s39, s19")
    bf16_round_to_f32(a, 100, R)
    sigmoid_bf16(a, 100)
    a("v_sub_f32 v101, 1.0, v100")
    bf16_round_to_f32(a, 101, 101)
    bf16_round_to_f32(a, 102, R + 1)
    a("v_ashrrev_i32 v103, 31, v102")
    a("v_or_b32 v103, 0x80000000, v103")
    a("v_xor_b32 v102, v102, v103")
    a("v_and_b32 v102, 0xffff0000, v102")
    a("s_lshl_b32 s55, s39, 5")
    a("v_add_u32 v103, s55, v6")
    a("v_sub_u32 v103, 0xffff, v103")
    a("v_or_b32 v102, v102, v103")
    for sh in (1, 2, 4, 8):
        a("s_nop 1")
        a("v_max_u32_dpp v102, v102, v102 row_ror:%d row_mask:0xf bank_mask:0xf" % sh)
    a("s_nop 0")
    a("v_readlane_b32 s56, v102, 0")
    a("v_readlane_b32 s57, v102, 16")
    a("s_nop 3")
    a("s_max_u32 s%d, s56, s57" % S_KEY)
    a("s_lshl_b32 s54, s39, 8")
    a("s_add_u32 s54, s54, %d" % WS_G)
    a("v_lshlrev_b32 v27, 3, v6")
    a("buffer_store_dwordx2 v[100:101], v27, %s, s54 offen sc1" % WS)
    a("v_mov_b64 v[84:85], 0")
    a("v_lshlrev_b32 v27, 3, v0")
    a("s_lshl_b32 s55, s39, 9")
    a("s_add_u32 s55, s55, %d" % WS_Y)
    a("buffer_store_dwordx2 v[84:85], v27, %s, s55 offen sc1" % WS)
    a("s_branch P1_DONE")

    a.label("P1_COMPUTE")
    WA, WQA = 16, 17
    a("s_lshl_b32 s22, s2, 3")
    a("s_add_u32 s22, s22, s19")
    a("s_waitcnt lgkmcnt(0)")
    ev(a, 8)
    srd(a, 28, P_WQKV, 512 * 1536 * 2)
    srd(a, 88, P_WS, WS_SIZE)
    stamp(a, 0)
    stamp(a, 24, True)
    a("s_mov_b32 s23, %d" % WS_EP)
    a("s_cmp_lg_u32 s22, 4")
    a("s_cbranch_scc1 P1_NOEP0")
    a("buffer_load_dword v24, off, %s, s23 sc1" % WS)
    a.label("P1_NOEP0")
    def wq_touch():
        a("s_cmp_lg_u32 s19, 5")
        a("s_cbranch_scc1 P1_NOWQ")
        a("s_and_b32 s46, s14, %d" % (ntb - 1))
        a("s_mul_i32 s46, s46, %d" % (512 // ntb * 3072))
        a("s_lshl_b32 s47, s15, 7")
        a("s_add_u32 s46, s46, s47")
        a("v_and_b32 v24, %d, v0" % (512 // ntb - 1))
        a("v_mul_u32_u24 v24, 3072, v24")
        a("buffer_load_dword v28, v24, s[28:31], s46 offen")
        a.label("P1_NOWQ")
    if WQT == 0:
        wq_touch()
    srd(a, 24, P_DBG, 256)
    a("s_bfe_u32 s21, s19, 0x10001")
    a("v_bfe_u32 v27, v0, 2, 2")
    a("v_lshlrev_b32 v26, 7, v27")
    a("v_lshrrev_b32 v27, 1, v27")
    a("v_xor_b32 v27, s21, v27")
    a("v_lshl_add_u32 v26, v27, 6, v26")
    a("v_bfe_u32 v27, v0, 4, 1")
    a("v_lshl_add_u32 v26, v27, 5, v26")
    a("v_and_b32 v27, 3, v0")
    a("v_lshl_add_u32 v26, v27, 3, v26")
    a("v_add_u32 v26, %d, v26" % L_W)
    a("v_lshl_add_u32 v%d, v7, 11, v26" % WA)
    a("v_lshl_add_u32 v%d, v7, 10, v26" % WQA)
    a("s_cmp_lg_u32 s22, 4")
    a("s_cbranch_scc1 P1_NOEP")
    if DELAY & 2:
        for _ in range(8):
            a("s_sleep 127")
    a("s_mov_b32 s22, 1664525")
    a("v_mov_b32 v25, 1")
    a("s_waitcnt vmcnt(0)")
    a("v_mul_lo_u32 v24, v24, s22")
    a("v_add_u32 v24, 1013904223, v24")
    a("s_mov_b64 exec, 1")
    a("buffer_store_dwordx2 v[24:25], off, s[24:27], 0 sc1")
    a("buffer_store_dword v24, off, %s, s23 sc1" % WS)
    a("s_mov_b64 exec, -1")
    a.label("P1_NOEP")
    ACC = 32
    FR = 80
    PK = 104
    XF = 120
    pend = []
    def rd_kv(kk, part):
        if kk >= 32:
            return
        c, ks = kk // 4, kk % 4
        if part == 0:
            a("ds_read_b128 %s, v%d offset:%d" % (vr(XF + 4 * kk, 4), XA + ks, L_X + c * 8192))
            pend.append((kk, 0))
        for half in range(2):
            a("ds_read_b64_tr_b16 %s, v%d offset:%d" % (vr(FR + (kk % 3) * 8 + part * 4 + 2 * half, 2), WA,
                                                       (c % 4) * 16384 + ks * 4096 + part * 1024 + half * 512))
            pend.append((kk, part))
    def rd_q(kk):
        if kk >= 32:
            return
        if kk % 8 == 0 and kk > 0:
            a("s_barrier")
        for half in range(2):
            a("ds_read_b64_tr_b16 %s, v%d offset:%d" % (vr(FR + (kk % 6) * 4 + 2 * half, 2), WQA,
                                                       (kk // 8) * 16384 + (kk % 8) * 2048 + half * 512))
            pend.append((100 + kk, 0))
    def wait_for(kk, part):
        last = max([i for i, (k2, p) in enumerate(pend) if k2 == kk and p == part], default=-1)
        if last >= 0:
            a("s_waitcnt lgkmcnt(%d)" % (len(pend) - 1 - last))
            del pend[:last + 1]
    if STAMP == 3:
        stamp(a, 14)
    a("s_barrier")
    if STAMP != 3:
        stamp(a, 1)
    ev(a, 4)
    for kk in range(2):
        rd_kv(kk, 0); rd_kv(kk, 1)
    if WQT == 1:
        wq_touch()
    for kk in range(32):
        nx = kk + 2
        if nx < 32 and nx % 4 == 0:
            c = nx // 4
            a("s_waitcnt lgkmcnt(0)")
            del pend[:]
            if STAMP == 3:
                a("s_memtime s[100:101]")
                a("s_waitcnt lgkmcnt(0)")
                a("s_mov_b32 s%d, s100" % (50 + c))
            a("s_barrier")
        x = vr(XF + 4 * kk, 4)
        cz = lambda r: ("0" if kk == 0 else vr(r, 16))
        wait_for(kk, 0)
        a("%s %s, %s, %s, %s" % (MF32, vr(ACC, 16), vr(FR + (kk % 3) * 8, 4), x, cz(ACC)))
        rd_kv(nx, 0)
        wait_for(kk, 1)
        a("%s %s, %s, %s, %s" % (MF32, vr(ACC + 16, 16), x, vr(FR + (kk % 3) * 8 + 4, 4), cz(ACC + 16)))
        rd_kv(nx, 1)
    a("s_barrier")
    LQ = 5
    for kk in range(LQ):
        rd_q(kk)
    a("s_lshl_b32 s46, s15, 1")
    a("s_add_u32 s46, s46, s21")
    a("s_lshl_b32 s48, s46, 18")
    a("s_lshl_b32 s49, s20, 16")
    a("s_add_u32 s48, s48, s49")
    a("s_lshl_b32 s49, s14, 11")
    a("s_add_u32 s48, s48, s49")
    a("s_add_u32 s49, s48, 131072")
    a("v_lshrrev_b32 v24, 4, v6")
    a("v_lshlrev_b32 v24, 17, v24")
    a("v_lshl_add_u32 v24, v7, 8, v24")
    a("v_and_b32 v25, 15, v0")
    a("v_lshl_add_u32 v24, v25, 4, v24")
    stamp(a, 2)
    ev(a, 5)
    for r in range(8):
        a("v_cvt_pk_bf16_f32 v%d, v%d, v%d" % (PK + r, ACC + 2 * r, ACC + 2 * r + 1))
    a("buffer_store_dwordx4 %s, v2, %s, s48 offen sc1" % (vr(PK, 4), WS))
    a("buffer_store_dwordx4 %s, v2, %s, s49 offen sc1" % (vr(PK + 4, 4), WS))
    for r in range(8):
        a("v_cvt_pk_bf16_f32 v%d, v%d, v%d" % (PK + 8 + r, ACC + 16 + 2 * r, ACC + 16 + 2 * r + 1))
    a("buffer_store_dwordx4 %s, v24, %s, s48 offen offset:1024 sc1" % (vr(PK + 8, 4), WS))
    a("buffer_store_dwordx4 %s, v24, %s, s48 offen offset:1536 sc1" % (vr(PK + 12, 4), WS))
    a("buffer_load_dwordx2 v[28:29], off, s[24:27], 0 sc1")
    a("s_lshl_b32 s50, s21, 13")
    a("s_lshl_b32 s51, s20, 11")
    a("s_add_u32 s50, s50, s51")
    a("s_add_u32 s50, s50, %d" % L_CMB)
    a("v_add_u32 v26, s50, v2")
    a("v_lshrrev_b32 v27, 5, v24")
    a("v_and_b32 v27, 4096, v27")
    a("v_and_b32 v25, 511, v24")
    a("v_add3_u32 v27, v27, v25, s50")
    a("ds_write_b128 v26, %s" % vr(PK, 4))
    a("ds_write_b128 v26, %s offset:4096" % vr(PK + 4, 4))
    a("ds_write_b128 v27, %s offset:1024" % vr(PK + 8, 4))
    a("ds_write_b128 v27, %s offset:1536" % vr(PK + 12, 4))
    pend.extend([(-1, 0)] * 4)
    a("s_lshl_b32 s96, s15, 12")
    a("s_lshl_b32 s97, s14, 7")
    a("s_add_u32 s96, s96, s97")
    a("s_add_u32 s96, s96, %d" % WS_FL1)
    for kk in range(32):
        if kk == QF:
            get_tag(a, "P1_TAGC", 28)
            last_wave_flag(a, "P1_FL", VM, 0, 4, 96, 30)
            del pend[:]
            stamp(a, 13)
            stamp(a, 29, True)
            ev(a, 6)
        wait_for(100 + kk, 0)
        a("%s %s, %s, %s, %s" % (MF32, vr(ACC + 32, 16), vr(FR + (kk % 6) * 4, 4), vr(XF + 4 * kk, 4), "0" if kk == 0 else vr(ACC + 32, 16)))
        rd_q(kk + LQ)
    CS = LOG2E * 0.25
    if STAMP != 3:
        a("s_mov_b32 s54, 0x%08x" % f32bits(CS))
        a("s_mov_b32 s55, 0x%08x" % f32bits(CS))
    a("s_lshl_b32 s22, s21, 12")
    a("s_lshl_b32 s23, s20, 10")
    a("s_add_u32 s22, s22, s23")
    a("s_add_u32 s22, s22, %d" % L_QX)
    a("v_add_u32 v24, s22, v2")
    a("s_lshl_b32 s22, s21, 9")
    a("s_lshl_b32 s23, s20, 7")
    a("s_add_u32 s22, s22, s23")
    a("s_add_u32 s22, s22, %d" % L_MX)
    a("v_lshl_add_u32 v26, v6, 2, s22")
    a("v_lshl_add_u32 v26, v7, 8, v26")
    stamp(a, 3)
    if STAMP == 3:
        for c in range(1, 8):
            a("v_mov_b32 v255, s%d" % (50 + c))
            a("s_lshl_b32 s100, s2, 3")
            a("s_add_u32 s100, s100, s19")
            a("s_lshl_b32 s100, s100, 7")
            a("s_add_u32 s100, s100, %d" % (WS_ST + (16 + c) * 4))
            a("buffer_store_dword v255, off, %s, s100" % WS)
        a("s_mov_b32 s54, 0x%08x" % f32bits(CS))
        a("s_mov_b32 s55, 0x%08x" % f32bits(CS))
    PQ = FR
    for r in range(0, 16, 2):
        a("v_pk_mul_f32 %s, %s, s[54:55]" % (vr(ACC + 32 + r, 2), vr(ACC + 32 + r, 2)))
    for r in range(8):
        a("v_cvt_pk_bf16_f32 v%d, v%d, v%d" % (PQ + r, ACC + 32 + 2 * r, ACC + 32 + 2 * r + 1))
    a("s_nop 1")
    a("%s %s, %s, %s, 0" % (MF32, vr(ACC, 16), vr(PK, 4), vr(PQ, 4)))
    a("%s %s, %s, %s, 0" % (MF32, vr(ACC + 16, 16), vr(PK + 4, 4), vr(PQ + 4, 4)))
    a("ds_write_b128 v24, %s" % vr(PQ, 4))
    a("ds_write_b128 v24, %s offset:2048" % vr(PQ + 4, 4))
    a("s_nop 9")
    m0, m1 = 92, 93
    for h, m in ((0, m0), (1, m1)):
        SS = ACC + 16 * h
        a("v_max3_f32 v%d, v%d, v%d, v%d" % (m, SS, SS + 1, SS + 2))
        for r in range(3, 15, 2):
            a("v_max3_f32 v%d, v%d, v%d, v%d" % (m, m, SS + r, SS + r + 1))
        a("v_max_f32 v%d, v%d, v%d" % (m, m, SS + 15))
    a("s_nop 1")
    a("v_permlane32_swap_b32 v%d, v%d" % (m0, m1))
    a("v_max_f32 v%d, v%d, v%d" % (m0, m0, m1))
    a("v_sub_f32 v%d, 0, v%d" % (m0, m0))
    a("ds_write_b32 v26, v%d" % m0)

    a.label("P1_DONE")
    stamp(a, 4)
    a("s_and_b32 s17, s19, 3")
    a("s_lshr_b32 s16, s19, 2")
    a("v_and_b32 v3, 15, v0")
    a("v_lshlrev_b32 v3, 4, v3")
    a("v_lshl_add_u32 v3, v7, 8, v3")
    a("s_lshl_b32 s18, s15, 2")
    a("s_add_u32 s18, s18, s17")
    a("s_lshl_b32 s22, s18, 17")
    a("s_lshl_b32 s23, s16, 16")
    a("s_add_u32 s22, s22, s23")
    VKA, VVA = 196, 197
    a("v_add_u32 v%d, s22, v2" % VKA)
    a("v_add_u32 v%d, s22, v3" % VVA)
    a("s_lshl_b32 s23, s17, 12")
    a("s_lshl_b32 s28, s16, 11")
    a("s_add_u32 s23, s23, s28")
    a("s_add_u32 s23, s23, %d" % L_CMB)
    a("v_add_u32 v248, s23, v2")
    a("v_add_u32 v249, s23, v3")
    a("s_lshl_b32 s95, s15, 12")
    a("s_add_u32 s95, s95, %d" % WS_FL1)
    a("s_mov_b32 s30, 0x0000ffff")
    a("s_mov_b32 s31, 0x0000ffff")
    a("s_mov_b32 s29, 0")
    a("s_cmp_lt_u32 s19, 4")
    a("s_cselect_b32 s32, 0x%x, 0" % HMASK)
    CW16, CW4, CR16, CR4, VXO, VWO, VOF, XR, GR, HFL, HLD, F3 = 168, 169, 170, 171, 172, 173, 174, 176, 184, 175, 186, 186
    srd(a, 40, P_WO, 512 * 512 * 2)
    a("v_lshrrev_b32 v4, 3, v0")
    a("v_lshlrev_b32 v4, 10, v4")
    a("v_and_b32 v5, 7, v0")
    a("v_bfe_u32 v192, v0, 4, 1")
    a("v_lshlrev_b32 v192, 2, v192")
    a("v_xor_b32 v5, v5, v192")
    a("v_lshl_add_u32 v4, v5, 4, v4")
    a("s_lshl_b32 s36, s63, 7")
    a("s_lshl_b32 s37, s19, 13")
    a("s_add_u32 s36, s36, s37")
    a("s_lshl_b32 s37, s19, 10")
    a("s_add_u32 s37, s37, %d" % L_W)
    a("s_mul_i32 s23, s19, 2304")
    a("s_add_u32 s23, s23, %d" % L_CMB)
    a("v_add_u32 v%d, s23, v2" % CW16)
    a("v_lshl_add_u32 v%d, v0, 2, s23" % CW4)
    a("s_xor_b32 s23, s19, 4")
    a("s_mul_i32 s23, s23, 2304")
    a("s_add_u32 s23, s23, %d" % L_CMB)
    a("v_add_u32 v%d, s23, v2" % CR16)
    a("v_lshl_add_u32 v%d, v0, 2, s23" % CR4)
    a("s_lshl_b32 s23, s14, 1")
    a("s_add_u32 s23, s23, s16")
    a("s_lshl_b32 s33, s23, 15")
    a("s_lshl_b32 s23, s18, 10")
    a("s_add_u32 s33, s33, s23")
    a("s_add_u32 s33, s33, %d" % WS_O)
    a("s_lshl_b32 s98, s14, 10")
    a("s_lshl_b32 s23, s15, 7")
    a("s_add_u32 s98, s98, s23")
    a("s_add_u32 s98, s98, %d" % WS_FL2)
    a("s_and_b32 s8, s19, 1")
    a("s_bfe_u32 s9, s19, 0x10001")
    a("s_lshl_b32 s4, s62, 1")
    a("s_add_u32 s4, s4, s8")
    a("s_lshl_b32 s5, s63, 7")
    a("s_lshl_b32 s23, s9, 6")
    a("s_add_u32 s5, s5, s23")
    a("s_lshl_b32 s6, s4, 15")
    a("s_add_u32 s6, s6, s5")
    a("s_lshl_b32 s7, s4, 8")
    a("s_add_u32 s7, s7, %d" % WS_G)
    a("v_lshlrev_b32 v%d, 10, v6" % VXO)
    a("v_lshl_add_u32 v%d, v7, 5, v%d" % (VXO, VXO))
    a("v_bfe_u32 v193, v0, 2, 2")
    a("v_lshl_add_u32 v192, v7, 2, v193")
    a("v_lshlrev_b32 v192, 7, v192")
    a("v_lshrrev_b32 v193, 1, v193")
    a("v_xor_b32 v193, s9, v193")
    a("v_lshl_add_u32 v192, v193, 6, v192")
    a("v_and_b32 v193, 1, v0")
    a("v_lshl_add_u32 v192, v193, 5, v192")
    a("v_bfe_u32 v193, v0, 1, 1")
    a("v_bfe_u32 v194, v0, 4, 1")
    a("v_lshl_add_u32 v193, v194, 1, v193")
    a("v_lshl_add_u32 v192, v193, 3, v192")
    a("v_add_u32 v%d, %d, v192" % (VWO, L_W))
    a("s_lshl_b32 s23, s8, 12")
    a("v_add_u32 v%d, s23, v2" % VOF)
    a("s_lshl_b32 s10, s62, 10")
    a("s_lshl_b32 s23, s17, 8")
    a("s_add_u32 s10, s10, s23")
    a("s_add_u32 s10, s10, %d" % WS_FL2)
    a("v_and_b32 v%d, 1, v0" % HFL)
    a("v_lshlrev_b32 v%d, 7, v%d" % (HFL, HFL))
    a("s_lshl_b32 s11, s62, 16")
    a("s_lshl_b32 s23, s17, 13")
    a("s_add_u32 s11, s11, s23")
    a("s_add_u32 s11, s11, %d" % WS_O)
    a("s_lshl_b32 s12, s17, 14")
    a("s_lshl_b32 s23, s17, 3")
    a("v_add_u32 v%d, s23, v%d" % (HLD, VM))
    a("v_lshlrev_b32 v5, 7, v0")
    a("s_lshl_b32 s23, s17, 1")
    a("s_add_u32 s23, s23, s16")
    a("s_lshl_b32 s28, s23, 10")
    a("s_add_u32 s28, s28, %d" % L_QX)
    a("v_add_u32 v252, s28, v2")
    a("v_xor_b32 v250, 1024, v252")
    a("s_lshl_b32 s28, s23, 7")
    a("s_add_u32 s28, s28, %d" % L_MX)
    a("v_lshl_add_u32 v253, v6, 2, s28")
    a("v_xor_b32 v251, 128, v253")
    CW16, CW4, CR16, CR4, VXO, VWO, VOF, XR, GR, HFL, HLD, F3 = 168, 169, 170, 171, 172, 173, 174, 176, 184, 175, 186, 186
    def kvb(t):
        return KV + 12 * (t % NB)
    def p2_init():
        for b in range(NB):
            for r in range(4, 12, 2):
                a("v_mov_b64 %s, 0" % vr(kvb(b) + r, 2))
        a("s_mov_b32 s34, 0x3f803f80")
        a("s_mov_b32 s35, 0x3f803f80")
        a("s_mov_b32 exec_lo, 0x00110000")
        a("s_mov_b32 exec_hi, 0x00110000")
        for b in range(NB):
            for r in range(4, 12, 2):
                a("v_mov_b64 %s, s[34:35]" % vr(kvb(b) + r, 2))
        a("s_mov_b64 exec, -1")
        for r in range(0, 32, 2):
            a("v_mov_b64 %s, 0" % vr(O + r, 2))
        a("v_mov_b64 %s, 0" % vr(P + 4, 2))
        a("v_mov_b64 %s, 0" % vr(P + 6, 2))
        a("v_mov_b64 %s, 0" % vr(S + 16 + 14, 2))
    a("s_waitcnt lgkmcnt(0)")
    p2_init()
    if WOT:
        a("s_cmp_lg_u32 s19, 2")
        a("s_cbranch_scc1 P1_NOWO")
        a("s_lshl_b32 s3, s14, 14")
        a("buffer_load_dword v%d, v5, s[40:43], s3 offen" % T)
        a("s_add_u32 s3, s3, 8192")
        a("buffer_load_dword v%d, v5, s[40:43], s3 offen" % T)
        a.label("P1_NOWO")
    a("s_cmp_lg_u32 s19, 3")
    a("s_cbranch_scc1 H1_WAIT")
    a("s_mov_b32 exec_hi, 0")
    if PD > 1:
        poll_deep(a, "H1_POLL", T, 5)
    else:
        poll(a, "H1_POLL", S, 5)
    a("s_mov_b64 exec, -1")
    a.label("H1_WAIT")
    ev(a, 7)
    a("s_barrier")
    stamp(a, 5)
    stamp(a, 26, True)
    ev(a, 1)
    def ld_k(t):
        a("buffer_load_dwordx4 %s, v%d, %s, s%d offen sc1" % (vr(kvb(t), 4), VKA, WS, 21 if LW else 28))
    def adv():
        if LW:
            a("s_mov_b32 s28, s21")
            a("s_add_u32 s21, s21, 2048")
            a("s_and_b32 s21, s21, 0xffff")
        else:
            a("s_add_u32 s28, s28, 2048")
            a("s_and_b32 s28, s28, 0xffff")
    def ld_v(t):
        a("s_mov_b64 exec, s[30:31]")
        a("buffer_load_dwordx4 %s, v%d, %s, s28 offen offset:1024 sc1" % (vr(kvb(t) + 4, 4), VVA, WS))
        a("buffer_load_dwordx4 %s, v%d, %s, s28 offen offset:1536 sc1" % (vr(kvb(t) + 8, 4), VVA, WS))
        a("s_mov_b64 exec, -1")
        adv()
    a("ds_read_b32 v%d, v251" % C)
    a("ds_read_b32 v%d, v253" % (C + 16))
    a("ds_read_b128 %s, v250" % vr(Q, 4))
    a("ds_read_b128 %s, v248" % vr(kvb(0), 4))
    a("ds_read_b128 %s, v252" % vr(Q + 4, 4))
    a("s_mov_b64 exec, s[30:31]")
    a("ds_read_b128 %s, v249 offset:1024" % vr(kvb(0) + 4, 4))
    a("ds_read_b128 %s, v249 offset:1536" % vr(kvb(0) + 8, 4))
    a("s_mov_b64 exec, -1")
    a.label("P2_START")
    r0 = 21 if LW else 28
    a("s_add_u32 s%d, s14, 1" % r0)
    a("s_lshl_b32 s%d, s%d, 11" % (r0, r0))
    a("s_and_b32 s%d, s%d, 0xffff" % (r0, r0))
    if LW:
        ld_k(1)
        adv()
        for i in range(2, NB):
            ld_k(i)
            ld_v(i - 1)
    else:
        for i in range(1, NB - 1):
            ld_k(i)
            ld_v(i)
    a("s_mov_b32 s23, 0")
    a("s_waitcnt lgkmcnt(5)")
    for j in range(2):
        a("v_mov_b32 v%d, v%d" % (C + 16 * j + 1, C + 16 * j))
        for r in range(2, 16, 2):
            a("v_mov_b64 %s, %s" % (vr(C + 16 * j + r, 2), vr(C + 16 * j, 2)))
        if j == 0:
            a("s_waitcnt lgkmcnt(3)")
            a("s_nop 0")
            a("%s %s, %s, %s, %s" % (MF32, vr(S, 16), vr(kvb(0), 4), vr(Q, 4), vr(C, 16)))
    a("s_waitcnt lgkmcnt(0)")
    a("s_nop 2")
    a("v_exp_f32 v%d, v%d" % (S, S))
    if not TOUCH:
        stamp(a, 6)

    def main_loop(sfx, older):
        a.raw(".p2align 6")
        a.label("P2_LOOP" + sfx)
        pos = [0]
        def mark():
            pos[0] += 1
            if older and PRIO and pos[0] % 24 == (24 - PRIO + 1) % 24:
                a("s_setprio 0")
            if older and PRIO and pos[0] % 24 == 1 and pos[0] > 1:
                a("s_setprio 1")
        for t in range(NB):
            for j in range(2):
                cur = S + 16 * j
                prv = S + 16 * (j ^ 1)
                nxt = prv
                E = lambda r: a("v_exp_f32 v%d, v%d" % (cur + r, cur + r))
                CV = lambda r: a("v_cvt_pk_bf16_f32 v%d, v%d, v%d" % (P + r // 2, cur + r, cur + r + 1))
                pb = kvb(t) if j == 1 else kvb(t - 1)
                nb = kvb(t) if j == 0 else kvb(t + 1)
                a("v_cvt_pk_bf16_f32 v%d, v%d, v%d" % (P + 7, prv + 14, prv + 15))
                def sync_point():
                    back = NB - 1 if LW else NB - 2
                    nwo = 0 if NOWO else sum(1 for k in range(t - back, t) if k % 4 == 0)
                    a("s_waitcnt vmcnt(%d)" % (3 * back + nwo))
                    if t % 4 == 0:
                        if not NOWO:
                            a("s_lshl_b32 s3, s38, 13")
                            a("s_add_u32 m0, s3, s37")
                            a("s_lshl3_add_u32 s3, s3, s36")
                            a("buffer_load_dwordx4 v4, s[40:43], s3 offen lds")
                            a("s_add_u32 s38, s38, 1")
                            a("s_and_b32 s38, s38, 7")
                        if older:
                            a("s_bitcmp1_b32 s32, s23")
                            a("s_cbranch_scc1 P2_HOOK")
                            a.label("P2_HRET%d" % (t // 4))
                        a("s_add_u32 s23, s23, 1")
                if j == 1 and not LW:
                    sync_point()
                mark()
                a("%s %s, %s, %s, %s" % (MF32, vr(nxt, 16), vr(nb, 4), vr(Q + 4 * (j ^ 1), 4), vr(C + 16 * (j ^ 1), 16)))
                if j == 0:
                    ld_k(t if LW else t - 1)
                E(1); E(2); CV(0); E(3); E(4); CV(2); E(5)
                mark()
                a("%s %s, %s, %s, %s" % (MF32, vr(O + 16 * (j ^ 1), 16), vr(pb + 8, 4), vr(P + 4, 4), vr(O + 16 * (j ^ 1), 16)))
                if j == 0:
                    ld_v(t - 1)
                E(6); CV(4); E(7); E(8); CV(6); E(9); E(10)
                if j == 0 and LW:
                    sync_point()
                mark()
                a("%s %s, %s, %s, %s" % (MF32, vr(O + 16 * j, 16), vr(kvb(t) + 4, 4), vr(P, 4), vr(O + 16 * j, 16)))
                CV(8); E(11); E(12); CV(10); E(13); E(14); CV(12); E(15)
                a("v_exp_f32 v%d, v%d" % (nxt, nxt))
        if older and PRIO:
            a("s_setprio 1")
        if STAMP == 1:
            a("s_memtime s[100:101]")
            a("s_waitcnt lgkmcnt(0)")
            a("v_mov_b32 v255, s100")
            a("s_lshl_b32 s100, s2, 3")
            a("s_add_u32 s100, s100, s19")
            a("s_lshl_b32 s100, s100, 5")
            a("s_add_u32 s100, s100, s23")
            a("s_lshl_b32 s100, s100, 2")
            a("s_add_u32 s100, s100, %d" % (WS_ST + 15 * 4))
            a("buffer_store_dword v255, off, %s, s100" % WS)
        a("s_cmp_lt_u32 s23, 8")
        a("s_cbranch_scc1 P2_LOOP" + sfx)
    if PRIO:
        a("s_setprio 1")
    a("s_cmp_ge_u32 s19, 4")
    a("s_cbranch_scc1 P2_LOOPB")
    main_loop("A", True)
    a("s_branch P2_DRAIN")
    main_loop("B", False)
    a.label("P2_DRAIN")
    delay(a, 3, 7, 0x42)
    a("v_cvt_pk_bf16_f32 v%d, v%d, v%d" % (P + 7, S + 16 + 14, S + 16 + 15))
    a("ds_write_b128 v%d, %s" % (CW16, vr(O, 4)))
    a("ds_write_b32 v%d, v%d offset:2048" % (CW4, O + 8))
    a("%s %s, %s, %s, %s" % (MF32, vr(O + 16, 16), vr(kvb(NB - 1) + 8, 4), vr(P + 4, 4), vr(O + 16, 16)))
    a("ds_write_b128 v%d, %s offset:1024" % (CW16, vr(O + 4, 4)))
    stamp(a, 7)
    stamp(a, 27, True)
    ev(a, 2)
    a("s_mov_b32 s28, 0x4f800000")
    a("s_nop 9")
    a("v_max_f32 v%d, v%d, v%d" % (S, O + 8, O + 24))
    a("v_cmp_u_f32 s[56:57], v%d, v%d" % (O + 8, O + 24))
    a("v_cmp_lt_f32 vcc, s28, v%d" % S)
    a("s_nop 3")
    a("s_or_b64 s[56:57], s[56:57], vcc")
    a("s_cbranch_scc0 P2_NOFLAG")
    a("v_mov_b32 v%d, 1" % S)
    a("ds_write_b32 v%d, v%d offset:8" % (VM, S))
    a.label("P2_NOFLAG")
    if SENT:
        a("s_cmp_eq_u32 s32, 0")
        a("s_cbranch_scc1 P2_MKD")
        a("v_cmp_ne_u32 vcc, s%d, v%d" % (S_TAG, T + 34))
        a("s_nop 3")
        a("s_cbranch_vccnz P2_MKR")
        a.label("P2_MKD")
    a("s_waitcnt vmcnt(9) lgkmcnt(0)")
    a("s_barrier")
    if EP:
        a("buffer_load_dword v%d, v%d, %s, s10 offen sc1" % (S + 4, HFL, WS))
    a("ds_read_b32 v%d, v%d offset:8" % (S + 1, VM))
    a("ds_read_b32 v%d, v%d offset:2048" % (O + 8, CR4))
    a("ds_read_b128 %s, v%d" % (vr(O, 4), CR16))
    a("ds_read_b128 %s, v%d offset:1024" % (vr(O + 4, 4), CR16))
    a("s_waitcnt lgkmcnt(2)")
    a("v_readfirstlane_b32 s23, v%d" % (S + 1))
    a("v_add_f32 v%d, v%d, v%d" % (O + 8, O + 8, O + 24))
    a("v_rcp_f32 v%d, v%d" % (O + 8, O + 8))
    a("s_cmp_gt_u32 s23, s29")
    a("s_cbranch_scc1 P2_EXACT")
    a("v_mov_b32 v%d, v%d" % (O + 9, O + 8))
    a("s_waitcnt lgkmcnt(0)")
    for r in range(0, 8, 2):
        a("v_pk_add_f32 %s, %s, %s" % (vr(O + r, 2), vr(O + r, 2), vr(O + 16 + r, 2)))
    for r in range(0, 8, 2):
        a("v_pk_mul_f32 %s, %s, %s" % (vr(O + r, 2), vr(O + r, 2), vr(O + 8, 2)))
    for r in range(4):
        a("v_cvt_pk_bf16_f32 v%d, v%d, v%d" % (O + 16 + r, O + 2 * r, O + 2 * r + 1))
    if SENT:
        for r in range(4):
            a("v_min_u32 v%d, -2, v%d" % (O + 16 + r, O + 16 + r))
    a("buffer_store_dwordx4 %s, v2, %s, s33 offen sc1" % (vr(O + 16, 4), WS))
    stamp(a, 8)
    delay(a, 4, 3, 0x91)

    YR = 96
    a("s_and_b32 s21, s%d, 0xffff" % S_KEY)
    a("s_cmp_lt_u32 s19, 4")
    a("s_cbranch_scc1 P3_MUL")
    if SENT:
        HB = 188
        a("s_add_u32 s20, s11, 32768")
        a("s_add_u32 s13, s11, 4096")
        a("s_add_u32 s28, s20, 4096")
        def ld_quad(q):
            for t in range(2):
                for i in range(4):
                    a("buffer_load_dwordx4 %s, v2, %s, s%d offen offset:%d sc1" % (vr(HB + 32 * q + 16 * t + 4 * i, 4), WS, ((11, 20), (13, 28))[q][t], i * 1024))
        ld_quad(0)
        ld_quad(1)
        a("v_add_u32 v8, s12, v2")
        a("v_mov_b32 v10, 1")
        a("s_mov_b32 s22, 3")
        a("s_mov_b32 s94, 0")
        a.label("P3_HL")
        a("s_add_u32 s94, s94, 1")
        for q in range(2):
            a("s_bitcmp1_b32 s22, %d" % q)
            a("s_cbranch_scc0 P3_HS%d" % q)
            if q == 0:
                a("s_cmp_eq_u32 s22, 3")
                a("s_cbranch_scc1 P3_HW1")
                a("s_waitcnt vmcnt(0)")
                a.label("P3_HW1")
                a("s_waitcnt vmcnt(8)")
            else:
                a("s_waitcnt vmcnt(0)")
            hb = HB + 32 * q
            a("v_max3_u32 v11, v%d, v%d, v%d" % (hb, hb + 1, hb + 2))
            for r in range(3, 31, 2):
                a("v_max3_u32 v11, v11, v%d, v%d" % (hb + r, hb + r + 1))
            a("v_max_u32 v11, v11, v%d" % (hb + 31))
            a("v_cmp_eq_u32 vcc, -1, v11")
            a("s_cmp_ge_u32 s94, 0x40000")
            a("s_cbranch_scc1 P3_HG%d" % q)
            a("s_nop 0")
            a("s_cbranch_vccnz P3_HS%d" % q)
            a.label("P3_HG%d" % q)
            for p in range(8):
                a("ds_write_b128 v8, %s offset:%d" % (vr(hb + 4 * p, 4), L_X + q * 8192 + p * 1024))
            a("ds_write_b32 v%d, v10 offset:%d" % (HLD, 32 + 4 * q))
            a("s_bitset0_b32 s22, %d" % q)
            a.label("P3_HS%d" % q)
        a("s_cmp_eq_u32 s22, 0")
        a("s_cbranch_scc1 P3_HE")
        for q in range(2):
            a("s_bitcmp1_b32 s22, %d" % q)
            a("s_cbranch_scc0 P3_HR%d" % q)
            ld_quad(q)
            a.label("P3_HR%d" % q)
        a("s_branch P3_HL")
        a.label("P3_HE")
        stamp(a, 10)
        stamp(a, 28, True)
    else:
        if not EP:
            a("buffer_load_dword v8, v%d, %s, s10 offen sc1" % (HFL, WS))
        a("v_mov_b32 v10, 1")
        a("s_mov_b32 s22, 0")
        a("s_mov_b32 s13, 0")
        a("s_mov_b32 s94, 0")
        if EP:
            a("s_waitcnt vmcnt(1)")
            a("v_mov_b32 v8, v%d" % (S + 4))
        else:
            a("s_waitcnt vmcnt(0)")
            last_wave_flag(a, "P3_FLB", VM, 16, 8, 98, 12)
            stamp(a, 9)
            stamp(a, 30, True)
        a.label("P3_HL")
        a("v_cmp_eq_u32 vcc, s%d, v8" % S_TAG)
        a("s_add_u32 s94, s94, 1")
        a("s_cmp_ge_u32 s94, 0x40000")
        a("s_cselect_b32 s23, 3, vcc_lo")
        a("s_and_b32 s23, s23, 3")
        a("s_andn2_b32 s23, s23, s22")
        a("s_or_b32 s22, s22, s23")
        a("s_cmp_eq_u32 s22, 3")
        a("s_cbranch_scc1 P3_HN")
        a("buffer_load_dword v8, v%d, %s, s10 offen sc1" % (HFL, WS))
        a.label("P3_HN")
        for q in range(2):
            a("s_bitcmp1_b32 s23, %d" % q)
            a("s_cbranch_scc0 P3_HS%d" % q)
            for t in range(2):
                a("s_add_u32 m0, s12, %d" % (L_X + q * 8192 + t * 4096))
                a("s_add_u32 s3, s11, %d" % (q * 4096 + t * 32768))
                for i in range(4):
                    a("buffer_load_dwordx4 v2, %s, s3 offen offset:%d sc1 lds" % (WS, i * 1024))
            a.label("P3_HS%d" % q)
        if EP:
            a("s_cmp_lg_u32 s94, 1")
            a("s_cbranch_scc1 P3_HC")
            a("s_cmp_eq_u32 s23, 3")
            a("s_cbranch_scc1 P3_HC2")
            a("s_cmp_eq_u32 s23, 0")
            a("s_cbranch_scc1 P3_HC0")
            a("s_waitcnt vmcnt(9)")
            a("s_branch P3_HCD")
            a.label("P3_HC0")
            a("s_waitcnt vmcnt(1)")
            a.label("P3_HC2")
            a("s_waitcnt vmcnt(16)")
            a.label("P3_HCD")
            last_wave_flag(a, "P3_FLB", VM, 16, 8, 98, 12)
            stamp(a, 9)
            stamp(a, 30, True)
            a.label("P3_HC")
        a("s_cmp_eq_u32 s22, 3")
        a("s_cbranch_scc1 P3_HE")
        a("s_cmp_eq_u32 s23, 0")
        a("s_cbranch_scc1 P3_HW")
        a("s_waitcnt vmcnt(8)")
        a("s_branch P3_HL")
        a.label("P3_HW")
        a("s_waitcnt vmcnt(0)")
        a("s_cmp_eq_u32 s13, s22")
        a("s_cbranch_scc1 P3_HL")
        a("s_mov_b32 s13, s22")
        a("s_lshr_b32 s3, s22, 1")
        a("s_lshl_b32 s3, s3, 2")
        a("v_add_u32 v9, s3, v%d" % HLD)
        a("ds_write_b32 v9, v10 offset:32")
        a("s_branch P3_HL")
        a.label("P3_HE")
        stamp(a, 10)
        stamp(a, 28, True)
        a("s_cmp_eq_u32 s23, 1")
        a("s_cselect_b32 s3, 4, 0")
        a("v_add_u32 v9, s3, v%d" % HLD)
        a("s_waitcnt vmcnt(8)")
        a("ds_write_b32 v9, v10 offset:32")
        a("s_waitcnt vmcnt(0)")
        a("ds_write_b32 v%d, v10 offset:32" % HLD)
        a("ds_write_b32 v%d, v10 offset:36" % HLD)
    if SPAN and SPANW:
        a("s_lshl_b32 s3, s2, 3")
        a("s_add_u32 s3, s3, s19")
        a("s_cmp_lg_u32 s3, %d" % (77 * 8 + 6))
        a("s_cbranch_scc1 L_END")
        a("s_sub_u32 s13, s59, s58")
        a("s_min_u32 s13, s13, 10000")
        a("s_mul_i32 s13, s13, 10")
        a("s_memrealtime s[20:21]")
        a.label("SP_LOOP")
        a("s_memrealtime s[22:23]")
        a("s_waitcnt lgkmcnt(0)")
        a("s_sub_u32 s17, s22, s20")
        a("s_cmp_lt_u32 s17, s13")
        a("s_cbranch_scc1 SP_LOOP")
    a("s_endpgm")
    a.label("P3_MUL")
    a("s_sub_u32 s21, 0xffff, s21")
    a("s_lshr_b32 s20, s21, 5")
    ACC3, OB, B, YR = 16, 32, 80, 96
    def wof(h):
        return (190 + 4 * h) if h < 16 else (120 + 4 * (h - 16)) if h < 28 else (104 + 4 * (h - 28))
    def rd_wo(h):
        a("ds_read_b64_tr_b16 %s, v%d offset:%d" % (vr(wof(h), 2), VWO, h * 2048))
        a("ds_read_b64_tr_b16 %s, v%d offset:%d" % (vr(wof(h) + 2, 2), VWO, h * 2048 + 1024))
    for h in list(range(16)) + list(range(28, 32)):
        rd_wo(h)
    srd(a, 44, P_OUT, 2048 * 512 * 2)
    for i in range(8):
        a("v_lshlrev_b32 v%d, 16, v%d" % (B + 2 * i, XR + i))
        a("v_and_b32 v%d, 0xffff0000, v%d" % (B + 2 * i + 1, XR + i))
    for r in range(0, 16, 2):
        a("v_mov_b64 %s, 0" % vr(ACC3 + r, 2))
    a("v_and_b32 v5, 7, v0")
    a("v_lshl_add_u32 v5, v5, 2, v%d" % VM)
    if SENT:
        a("s_waitcnt vmcnt(1)")
    else:
        a("s_waitcnt vmcnt(0)")
        last_wave_flag(a, "P3_FLA", VM, 16, 8, 98, 8)
    stamp(a, 9)
    stamp(a, 30, True)
    for h in range(16, 28):
        rd_wo(h)
    a("s_cmp_eq_u32 s20, s4")
    a("s_cbranch_scc1 P3_YJOB")
    a.label("P3_YD")
    for i in range(16):
        a("v_mul_f32 v%d, v%d, v%d" % (B + i, B + i, GR + 1))
    a("s_mov_b32 s22, 0")
    a("s_mov_b32 s94, 0")
    a.label("P3_ROUND")
    a("ds_read_b32 v8, v5 offset:32")
    a("s_add_u32 s94, s94, 1")
    a("s_waitcnt lgkmcnt(0)")
    a("v_cmp_ne_u32 vcc, 0, v8")
    a("s_cmp_ge_u32 s94, 0x2000000")
    a("s_cbranch_scc1 P3_FIN")
    a("s_and_b32 s23, vcc_lo, 0xff")
    if DET:
        a("s_add_u32 s3, s23, 1")
        a("s_xor_b32 s23, s23, s3")
        a("s_lshr_b32 s23, s23, 1")
    a("s_andn2_b32 s23, s23, s22")
    a("s_cbranch_scc0 P3_ROUND")
    def rd_o(g):
        for i in range(4):
            a("ds_read_b128 %s, v%d offset:%d" % (vr(OB + 16 * (g & 1) + 4 * i, 4), VOF, L_X + g * 8192 + i * 1024))
    for g in range(8):
        a("s_bitcmp1_b32 s23, %d" % g)
        a("s_cbranch_scc0 P3_SK%d" % g)
        if g > 0:
            a("s_bitcmp1_b32 s23, %d" % (g - 1))
            a("s_cbranch_scc1 P3_HV%d" % g)
        rd_o(g)
        a.label("P3_HV%d" % g)
        if g < 7:
            rd_o(g + 1)
        for i in range(4):
            a("s_waitcnt lgkmcnt(%d)" % ((4 if g < 7 else 0) + 3 - i))
            a("%s %s, %s, %s, %s" % (MF32, vr(ACC3, 16), vr(wof(4 * g + i), 4), vr(OB + 16 * (g & 1) + 4 * i, 4), vr(ACC3, 16)))
        a.label("P3_SK%d" % g)
    a("s_or_b32 s22, s22, s23")
    a("s_cmp_lg_u32 s22, 0xff")
    a("s_cbranch_scc1 P3_ROUND")
    a.label("P3_FIN")
    stamp(a, 11)
    a("s_nop 10")
    for i in range(16):
        a("v_fma_f32 v%d, v%d, v%d, v%d" % (B + i, ACC3 + i, GR, B + i))
        if i % 2 == 1:
            a("v_cvt_pk_bf16_f32 v%d, v%d, v%d" % (XR + i // 2, B + i - 1, B + i))
        if i == 8:
            a("buffer_store_dwordx4 %s, v%d, s[44:47], s6 offen" % (vr(XR, 4), VXO))
    a("buffer_store_dwordx4 %s, v%d, s[44:47], s6 offen offset:16" % (vr(XR + 4, 4), VXO))
    stamp(a, 12)
    stamp(a, 25, True)
    if SPAN and not SPANW:
        ev(a, 3)
        a("s_lshl_b32 s3, s2, 3")
        a("s_add_u32 s3, s3, s19")
        a("s_cmp_lg_u32 s3, %d" % (77 * 8))
        a("s_cbranch_scc1 L_END")
        a("s_sub_u32 s13, s99, s13")
        a("s_min_u32 s13, s13, 10000")
        a("s_mul_i32 s13, s13, 10")
        a("s_memrealtime s[20:21]")
        a.label("SP_LOOP")
        a("s_memrealtime s[22:23]")
        a("s_waitcnt lgkmcnt(0)")
        a("s_sub_u32 s17, s22, s20")
        a("s_cmp_lt_u32 s17, s13")
        a("s_cbranch_scc1 SP_LOOP")
    a.label("L_END")
    a("s_endpgm")

    def ld_fl3(va=252):
        a("v_lshlrev_b32 v%d, 7, v0" % va)
        for i in range(4):
            a("s_mov_b32 s3, %d" % (WS_FL3 + i * 8192))
            a("buffer_load_dword v%d, v%d, %s, s3 offen sc1" % (F3 + i, va, WS))
    a.label("P3_YJOB")
    a("s_mov_b32 s94, 0")
    a.label("P3_ALL")
    for i in range(4):
        a("v_xor_b32 v%d, s%d, v%d" % (F3 + i, S_TAG, F3 + i))
    a("v_or3_b32 v%d, v%d, v%d, v%d" % (F3, F3, F3 + 1, F3 + 2))
    a("v_or_b32 v%d, v%d, v%d" % (F3, F3, F3 + 3))
    a("v_cmp_ne_u32 vcc, 0, v%d" % F3)
    a("s_add_u32 s94, s94, 1")
    a("s_cmp_ge_u32 s94, 0x40000")
    a("s_cbranch_scc1 P3_ALLD")
    a("s_cbranch_vccz P3_ALLD")
    ld_fl3(13)
    a("s_waitcnt vmcnt(0)")
    a("s_branch P3_ALL")
    a.label("P3_ALLD")
    a("v_lshrrev_b32 v12, 2, v0")
    a("v_and_b32 v13, 3, v0")
    a("v_lshlrev_b32 v14, 7, v12")
    a("v_lshl_add_u32 v14, v13, 4, v14")
    a("v_lshlrev_b32 v12, 11, v12")
    a("v_lshl_add_u32 v12, v13, 4, v12")
    a("s_lshr_b32 s30, s5, 8")
    a("s_lshl_b32 s30, s30, 9")
    a("s_and_b32 s31, s5, 255")
    a("s_add_u32 s30, s30, s31")
    a("s_add_u32 s30, s30, %d" % WS_Y)
    a("buffer_load_dwordx4 %s, v12, %s, s30 offen sc1" % (vr(YR, 4), WS))
    a("buffer_load_dwordx4 %s, v12, %s, s30 offen offset:256 sc1" % (vr(YR + 4, 4), WS))
    a("s_mul_i32 s30, s19, 2304")
    a("s_add_u32 s30, s30, %d" % L_QX)
    a("v_add_u32 v14, s30, v14")
    a("s_waitcnt vmcnt(0)")
    a("ds_write_b128 v14, %s" % vr(YR, 4))
    a("ds_write_b128 v14, %s offset:64" % vr(YR + 4, 4))
    a("v_lshlrev_b32 v14, 10, v7")
    a("v_lshl_add_u32 v14, v6, 2, v14")
    a("v_add_u32 v14, s30, v14")
    a("s_waitcnt lgkmcnt(0)")
    for i in range(8):
        a("ds_read_b32 v%d, v14 offset:%d" % (YR + i, i * 128))
    a("s_and_b32 s31, s%d, 0xffff0000" % S_KEY)
    a("s_ashr_i32 s28, s31, 31")
    a("s_not_b32 s28, s28")
    a("s_or_b32 s28, s28, 0x80000000")
    a("s_xor_b32 s31, s31, s28")
    a("s_and_b32 s31, s31, 0xffff0000")
    a("v_mov_b32 v15, s31")
    sigmoid_bf16(a, 15)
    a("s_waitcnt lgkmcnt(0)")
    for i in range(1, 8):
        a("v_add_f32 v%d, v%d, v%d" % (YR, YR, YR + i))
    a("v_mov_b32 v%d, v%d" % (YR + 1, YR))
    a("v_and_b32 v14, 15, v0")
    a("v_lshlrev_b32 v14, 3, v14")
    a("v_permlane32_swap_b32 v%d, v%d" % (YR, YR + 1))
    a("v_add_f32 v%d, v%d, v%d" % (YR, YR, YR + 1))
    bf16_round_to_f32(a, YR, YR)
    a("v_mul_f32 v%d, v%d, v15" % (YR, YR))
    bf16_round_to_f32(a, YR, YR)
    a("v_bfe_u32 v15, v0, 4, 1")
    a("v_lshl_add_u32 v14, v15, 2, v14")
    a("v_add_u32 v14, s30, v14")
    a("ds_write_b32 v14, v%d offset:2048" % YR)
    a("v_lshl_add_u32 v14, v7, 6, s30")
    for i in range(4):
        a("ds_read_b128 %s, v14 offset:%d" % (vr(OB + 4 * i, 4), 2048 + i * 16))
    a("s_and_b32 s30, s21, 31")
    a("v_cmp_eq_u32 vcc, s30, v6")
    a("s_waitcnt lgkmcnt(0)")
    a("s_and_saveexec_b64 s[48:49], vcc")
    for i in range(16):
        a("v_add_f32 v%d, v%d, v%d" % (B + i, B + i, OB + i))
        bf16_round_to_f32(a, B + i, B + i)
    a("s_mov_b64 exec, s[48:49]")
    a("s_branch P3_YD")

    a.label("P2_HRET")
    if NB == 8:
        a("s_bitcmp1_b32 s23, 0")
        a("s_cbranch_scc1 P2_HRET1")
    a("s_branch P2_HRET0")
    def gu_base():
        a("s_cmp_lt_u32 s19, 2")
        a("s_cselect_b32 s44, s%d, s%d" % (P_WG, P_WU))
        a("s_cselect_b32 s45, s%d, s%d" % (P_WG + 1, P_WU + 1))
        a("s_and_b32 s52, s2, 7")
        a("s_mul_i32 s52, s52, %d" % (64 * 3584))
        a("s_lshr_b32 s53, s2, 3")
        a("s_lshl_b32 s53, s53, 7")
        a("s_add_u32 s52, s52, s53")
    def warm_gu(lo, hi):
        if not WARM:
            return
        gu_base()
        a("s_and_b32 s53, s19, 1")
        a("s_mul_i32 s53, s53, %d" % (32 * 3584))
        a("s_add_u32 s52, s52, s53")
        a("s_add_u32 s44, s44, s52")
        a("s_addc_u32 s45, s45, 0")
        for i in range(lo, hi):
            a("s_load_dword s99, s[44:45], 0x%x" % (i * 3584))
    def warm_wd(lo, hi):
        if not WARM:
            return
        a("s_lshl_b32 s52, s2, 13")
        a("s_lshl_b32 s53, s19, 8")
        a("s_add_u32 s52, s52, s53")
        a("s_add_u32 s44, s%d, s52" % P_WD)
        a("s_addc_u32 s45, s%d, 0" % (P_WD + 1))
        for i in range(lo, hi):
            a("s_load_dword s99, s[44:45], 0x%x" % ((i // 2) * 1024 + (i % 2) * 128))
    def only_ffn():
        a("s_cmp_ge_u32 s2, 224")
        a("s_cbranch_scc1 P2_HRET")
    def check_tags(name, regs, reload):
        a("s_mov_b32 s94, 0")
        a.label(name + "L")
        a("v_cmp_ne_u32 vcc, s%d, v%d" % (S_TAG, regs[0]))
        for r in regs[1:]:
            a("v_cmp_ne_u32 s[52:53], s%d, v%d" % (S_TAG, r))
            a("s_nop 1")
            a("s_or_b64 vcc, vcc, s[52:53]")
        a("s_add_u32 s94, s94, 1")
        a("s_cmp_ge_u32 s94, 0x40000")
        a("s_cbranch_scc1 %sD" % name)
        a("s_cbranch_vccz %sD" % name)
        reload()
        a("s_waitcnt vmcnt(0)")
        a("s_branch %sL" % name)
        a.label(name + "D")
    def ld_keys():
        a("v_lshlrev_b32 v5, 3, v0")
        a("s_mov_b32 s3, %d" % WS_RK)
        a("buffer_load_dwordx2 %s, v5, %s, s3 offen sc1" % (vr(DD, 2), WS))
    def job_argmax():
        check_tags("P2_CK", [DD + 1], ld_keys)
        for sh in (1, 2, 4, 8):
            a("v_max_u32_dpp v%d, v%d, v%d row_ror:%d row_mask:0xf bank_mask:0xf" % (DD, DD, DD, sh))
            a("s_nop 1")
        for i in range(4):
            a("v_readlane_b32 s%d, v%d, %d" % (52 + i, DD, 16 * i))
        srd(a, 44, P_X, 2048 * 512 * 2)
        a("s_max_u32 s52, s52, s53")
        a("s_max_u32 s54, s54, s55")
        a("s_max_u32 s52, s52, s54")
        a("s_mov_b32 s%d, s52" % S_KEY)
        a("s_cmp_lt_u32 s2, 224")
        a("s_cselect_b32 s32, s32, 0x%x" % (0x80 if PLAN >= 5 else 0xc0))
        only_ffn()
        a("s_and_b32 s52, s52, 0xffff")
        a("s_sub_u32 s52, 0xffff, s52")
        a("s_and_b32 s52, s52, 2047")
        a("s_lshl_b32 s52, s52, 10")
        a("s_and_b32 s53, s2, 7")
        a("s_lshl_b32 s53, s53, 7")
        a("s_add_u32 s52, s52, s53")
        a("v_lshrrev_b32 v5, 4, v0")
        a("v_lshlrev_b32 v5, 4, v5")
        for s_ in range(2):
            a("buffer_load_dwordx4 %s, v5, s[44:47], s52 offen offset:%d" % (vr(XS + 4 * s_, 4), 64 * s_))
    def job_gu(lo, hi):
        only_ffn()
        gu_base()
        a("s_and_b32 s45, s45, 0xffff")
        a("s_mov_b32 s46, 0x%x" % (512 * 1792 * 2))
        a("s_mov_b32 s47, 0x00020000")
        a("v_lshrrev_b32 v5, 2, v0")
        a("v_mul_u32_u24 v5, 3584, v5")
        a("v_and_b32 v252, 3, v0")
        a("v_lshl_add_u32 v5, v252, 4, v5")
        a("s_and_b32 s53, s19, 1")
        a("s_lshl_b32 s53, s53, 6")
        a("s_add_u32 s52, s52, s53")
        a("s_lshl_b32 s54, s19, 12")
        for i in range(lo, hi):
            a("s_add_u32 m0, s54, %d" % (L_FFW + i * 1024))
            a("s_add_u32 s53, s52, %d" % (i * 16 * 3584))
            a("buffer_load_dwordx4 v5, s[44:47], s53 offen lds")
    def job_wd(lo=0, hi=8):
        srd(a, 48, P_WD, 1792 * 512 * 2)
        a("s_lshl_b32 s52, s2, 13")
        a("s_lshl_b32 s53, s19, 8")
        a("s_add_u32 s52, s52, s53")
        a("v_lshlrev_b32 v5, 2, v0")
        a("s_add_u32 s53, s52, 4096")
        for f in range(lo, hi):
            a("buffer_load_dword v%d, v5, s[48:51], s%d offen offset:%d" % (WD + f, 52 + f // 4, (f % 4) * 1024))
    def job_part():
        a("v_lshrrev_b32 v5, 4, v0")
        a("v_lshlrev_b32 v5, 9, v5")
        a("v_bfe_u32 v252, v0, 2, 2")
        a("v_lshl_add_u32 v5, v252, 6, v5")
        a("v_and_b32 v252, 3, v0")
        a("v_lshl_add_u32 v5, v252, 3, v5")
        a("s_lshl_b32 s52, s19, 12")
        a("s_add_u32 s52, s52, %d" % L_FFW)
        a("v_add_u32 v5, s52, v5")
        for ct in range(2):
            for s_ in range(2):
                for half in range(2):
                    a("ds_read_b64_tr_b16 %s, v5 offset:%d" % (vr(BF + 4 * s_ + 2 * half, 2), ct * 32 + s_ * 2048 + half * 256))
            a("s_waitcnt lgkmcnt(0)")
            a("%s %s, %s, %s, 0" % (MF16, vr(DD + 4 * ct, 4), vr(XS, 4), vr(BF, 4)))
            a("%s %s, %s, %s, %s" % (MF16, vr(DD + 4 * ct, 4), vr(XS + 4, 4), vr(BF + 4, 4), vr(DD + 4 * ct, 4)))
        a("v_lshlrev_b32 v5, 3, v0")
        a("s_lshl_b32 s52, s2, 10")
        a("s_lshl_b32 s53, s19, 8")
        a("s_add_u32 s52, s52, s53")
        a("s_add_u32 s52, s52, %d" % WS_PA)
        a("s_nop 3")
        a("v_mov_b32 v%d, s%d" % (DD + 1, S_TAG))
        a("s_mov_b32 exec_hi, 0")
        a("s_mov_b32 exec_lo, 0xffff0000")
        a("v_mov_b32 v%d, v%d" % (DD, DD + 4))
        a("s_mov_b32 exec_lo, -1")
        a("buffer_store_dwordx2 %s, v5, %s, s52 offen sc1" % (vr(DD, 2), WS))
        a("s_mov_b64 exec, -1")
    def ld_part():
        a("v_lshrrev_b32 v5, 3, v0")
        a("v_lshlrev_b32 v5, 10, v5")
        a("v_and_b32 v252, 7, v0")
        a("v_lshl_add_u32 v5, v252, 3, v5")
        a("s_lshr_b32 s3, s2, 3")
        a("s_lshl_b32 s3, s3, 13")
        a("s_and_b32 s54, s2, 7")
        a("s_lshl_b32 s54, s54, 6")
        a("s_add_u32 s3, s3, s54")
        a("s_add_u32 s3, s3, %d" % WS_PA)
        a("buffer_load_dwordx2 %s, v5, %s, s3 offen sc1" % (vr(T, 2), WS))
        a("buffer_load_dwordx2 %s, v5, %s, s3 offen offset:512 sc1" % (vr(T + 2, 2), WS))
    def job_final():
        check_tags("P2_CP", [T + 1, T + 3], ld_part)
        G_, U_ = T, T + 2
        for r in (G_, U_):
            a("v_add_f32_dpp v%d, v%d, v%d row_ror:8 row_mask:0xf bank_mask:0xf" % (r, r, r))
        for op in ("v_permlane16_swap_b32", "v_permlane32_swap_b32"):
            for r in (G_, U_):
                a("v_mov_b32 v%d, v%d" % (r + 1, r))
            a("s_nop 0")
            for r in (G_, U_):
                a("%s v%d, v%d" % (op, r, r + 1))
            for r in (G_, U_):
                a("v_add_f32 v%d, v%d, v%d" % (r, r, r + 1))
        bf16_round_to_f32(a, G_, G_)
        bf16_round_to_f32(a, U_, U_)
        a("v_mul_f32 v%d, 0x%08x, v%d" % (T + 1, f32bits(-LOG2E), G_))
        a("v_exp_f32 v%d, v%d" % (T + 1, T + 1))
        a("v_mov_b32 v%d, 0" % (T + 4))
        a("v_add_f32 v%d, 1.0, v%d" % (T + 1, T + 1))
        a("v_rcp_f32 v%d, v%d" % (T + 1, T + 1))
        a("v_mov_b32 v%d, 0" % (T + 5))
        a("v_mul_f32 v%d, v%d, v%d" % (T + 1, T + 1, G_))
        bf16_round_to_f32(a, T + 1, T + 1)
        a("v_mul_f32 v%d, v%d, v%d" % (T + 1, T + 1, U_))
        a("v_cvt_pk_bf16_f32 v%d, v%d, v%d" % (T + 1, T + 1, T + 4))
        a("v_lshlrev_b32 v5, 2, v0")
        for i in range(8):
            a("v_readlane_b32 s%d, v%d, %d" % (44 + i, T + 1, i))
        a("s_lshl_b32 s60, s19, 9")
        a("s_and_b32 s61, s2, 15")
        a("s_lshl_b32 s61, s61, 11")
        a("s_add_u32 s60, s60, s61")
        a("s_add_u32 s60, s60, %d" % WS_Y)
        for i in range(8):
            a("s_lshl_b32 s%d, s%d, 16" % (52 + i, 44 + i))
        for i in range(8):
            a("v_dot2_f32_bf16 v%d, v%d, s%d, v%d" % (T + 4, WD + i, 44 + i, T + 4))
            a("v_dot2_f32_bf16 v%d, v%d, s%d, v%d" % (T + 5, WD + i, 52 + i, T + 5))
        a("s_nop 3")
        a("buffer_atomic_add_f32 v%d, v5, %s, s60 offen" % (T + 4, WS))
        a("buffer_atomic_add_f32 v%d, v5, %s, s60 offen offset:256" % (T + 5, WS))
    def job_tail():
        a("s_lshl_b32 s3, s2, 7")
        a("s_add_u32 s3, s3, %d" % WS_FL3)
        a("s_waitcnt vmcnt(0)")
        last_wave_flag(a, "P2_FL3", VM, 12, 4, 3, 5)
        srd(a, 44, P_X, 2048 * 512 * 2)
        a("buffer_load_dwordx4 %s, v%d, s[44:47], s6 offen" % (vr(XR, 4), VXO))
        a("buffer_load_dwordx4 %s, v%d, s[44:47], s6 offen offset:16" % (vr(XR + 4, 4), VXO))
        a("v_lshlrev_b32 v252, 3, v6")
        a("buffer_load_dwordx2 %s, v252, %s, s7 offen sc1" % (vr(GR, 2), WS))
    def job_key():
        a("s_cmp_eq_u32 s39, -1")
        a("s_cbranch_scc1 P2_NOKEY")
        a("s_lshl_b32 s3, s39, 3")
        a("s_add_u32 s3, s3, %d" % WS_RK)
        a("v_mov_b32 v%d, s%d" % (DD, S_KEY))
        a("v_mov_b32 v%d, s%d" % (DD + 1, S_TAG))
        a("s_waitcnt vmcnt(0)")
        a("s_mov_b64 exec, 1")
        a("buffer_store_dwordx2 %s, off, %s, s3 sc1" % (vr(DD, 2), WS))
        a("s_mov_b64 exec, -1")
        a.label("P2_NOKEY")
    def job_mark():
        a("s_add_u32 s3, s33, 32768")
        a("v_mov_b64 %s, -1" % vr(XR, 2))
        a("v_mov_b64 %s, -1" % vr(XR + 2, 2))
        a("buffer_store_dwordx4 %s, v2, %s, s33 offen sc1" % (vr(XR, 4), WS))
        a("buffer_store_dwordx4 %s, v2, %s, s3 offen sc1" % (vr(XR, 4), WS))
    def ld_marks():
        assert MAP == 1
        a("v_and_b32 v5, 7, v0")
        a("v_lshlrev_b32 v5, 7, v5")
        a("s_lshl_b32 s3, s62, 10")
        a("s_add_u32 s3, s3, %d" % WS_FL3)
        a("buffer_load_dword v%d, v5, %s, s3 offen sc1" % (T + 34, WS))
    def job_own():
        a("s_and_b32 s52, s%d, 0xffff" % S_KEY)
        a("s_sub_u32 s52, 0xffff, s52")
        a("s_lshr_b32 s52, s52, 5")
        a("s_cmp_lg_u32 s52, s4")
        a("s_cbranch_scc1 P2_HRET")
        ld_fl3()
    def odd(b):
        a("s_bitcmp%d_b32 s2, 3" % b)
        a("s_cbranch_scc1 P2_HRET")
    if NB == 4:
        plans = {
            0: {0: [job_key], 1: [ld_keys, lambda: job_gu(0, 2)], 2: [job_argmax, lambda: job_gu(2, 4)], 3: [job_part, job_wd], 4: [ld_part], 5: [job_final], 6: [job_tail], 7: [job_own]},
            2: {0: [job_key, lambda: job_gu(0, 1)], 1: [ld_keys, lambda: job_gu(1, 3)], 2: [job_argmax, lambda: job_gu(3, 4)], 3: [job_part, job_wd], 4: [ld_part], 5: [job_final], 6: [job_tail], 7: [job_own]},
            3: {0: [job_key], 1: [ld_keys, lambda: job_gu(0, 4), job_wd], 2: [job_argmax], 3: [job_part], 4: [ld_part], 5: [job_final], 6: [job_tail], 7: [job_own]},
            4: {0: [job_key], 1: [ld_keys, lambda: odd(1), lambda: job_gu(0, 4), job_wd], 2: [job_argmax, lambda: odd(0), lambda: job_gu(0, 4), job_wd], 3: [job_part], 4: [ld_part], 5: [job_final], 6: [job_tail], 7: [job_own]},
            5: {0: [job_key], 1: [ld_keys, only_ffn, lambda: warm_gu(0, 14)], 2: [job_argmax, lambda: warm_gu(14, 28)], 3: [lambda: job_gu(0, 4), lambda: warm_wd(0, 14)], 4: [job_part, job_wd], 5: [ld_part], 6: [job_final], 7: [job_tail, job_own]},
            6: {0: [job_key, lambda: job_gu(0, 1)], 1: [ld_keys, lambda: job_gu(1, 2)], 2: [job_argmax, lambda: job_gu(2, 3)], 3: [lambda: job_gu(3, 4)], 4: [job_part, lambda: job_wd(0, 4)], 5: [ld_part, lambda: job_wd(4, 8)], 6: [job_final], 7: [job_tail, job_own]},
            7: {0: [job_key], 1: [ld_keys, lambda: job_gu(0, 1)], 2: [job_argmax, lambda: job_gu(1, 3)], 3: [lambda: job_gu(3, 4), lambda: job_wd(0, 3)], 4: [job_part, lambda: job_wd(3, 6)], 5: [ld_part, lambda: job_wd(6, 8)], 6: [job_final], 7: [job_tail, job_own]},
            1: {1: [ld_keys, lambda: job_gu(0, 1)], 2: [job_argmax, lambda: job_gu(1, 2)], 3: [lambda: job_gu(2, 4)], 4: [job_part], 5: [job_wd], 6: [ld_part], 7: [job_final]},
        }
    else:
        plans = {
            0: {0: [ld_keys], 1: [lambda: job_gu(0, 4)], 2: [job_argmax], 3: [job_wd], 4: [job_part], 5: [ld_part], 7: [job_final]},
        }
    plan = plans[PLAN]
    if SENT:
        plan[0] = plan[0] + [job_mark]
        plan[7] = [ld_marks] + plan[7]
        a.label("P2_MKR")
        check_tags("P2_CM", [T + 34], ld_marks)
        a("s_branch P2_MKD")
    a.label("P2_HOOK")
    delay(a, 2, 15, 0x05)
    for st in plan:
        a("s_cmp_eq_u32 s23, %d" % st)
        a("s_cbranch_scc1 P2_J%d" % st)
    a("s_branch P2_HRET")
    for st, jobs in plan.items():
        a.label("P2_J%d" % st)
        for jb in jobs:
            jb()
        a("s_branch P2_HRET")

    a.label("P2_EXACT")
    a("s_mov_b32 s29, 1")
    a("s_mov_b32 s32, 0")
    a("s_mov_b32 s23, 0xff800000")
    for j in range(2):
        a("v_mov_b32 v%d, s23" % (T + j))
    a("s_mov_b32 s28, s22")
    a("s_mov_b32 s23, 0")
    a("s_waitcnt vmcnt(0) lgkmcnt(0)")
    a.label("P2_EXLOOP")
    a("buffer_load_dwordx4 %s, v2, %s, s28 offen sc1" % (vr(KV, 4), WS))
    a("s_waitcnt vmcnt(0)")
    for j in range(2):
        a("%s %s, %s, %s, 0" % (MF32, vr(S, 16), vr(KV, 4), vr(Q + 4 * j, 4)))
        a("s_nop 15")
        for r in range(0, 16, 2):
            a("v_max3_f32 v%d, v%d, v%d, v%d" % (T + j, T + j, S + r, S + r + 1))
    a("s_add_u32 s28, s28, 2048")
    a("s_add_u32 s23, s23, 1")
    a("s_cmp_lt_u32 s23, 32")
    a("s_cbranch_scc1 P2_EXLOOP")
    a("s_lshl_b32 s23, s19, 9")
    a("s_lshl_b32 s28, s16, 8")
    a("s_add_u32 s23, s23, %d" % L_EX)
    a("v_lshl_add_u32 v5, v0, 2, s23")
    a("v_add_u32 v252, s28, v5")
    a("v_xor_b32 v253, 256, v252")
    a("ds_write_b32 v253, v%d" % T)
    a("ds_write_b32 v252, v%d" % (T + 1))
    a("s_waitcnt lgkmcnt(0)")
    a("s_barrier")
    a("s_lshl_b32 s23, s17, 9")
    a("s_add_u32 s23, s23, %d" % L_EX)
    a("v_lshl_add_u32 v5, v6, 2, s23")
    a("v_add_u32 v252, s28, v5")
    a("v_xor_b32 v253, 256, v252")
    for j in range(2):
        for kh in range(2):
            for hh in range(2):
                a("ds_read_b32 v%d, v%d offset:%d" % (S + kh * 2 + hh, 253 - j, kh * 2048 + hh * 128))
        a("s_waitcnt lgkmcnt(0)")
        a("v_max3_f32 v%d, v%d, v%d, v%d" % (S, S, S + 1, S + 2))
        a("v_max_f32 v%d, v%d, v%d" % (S, S, S + 3))
        a("v_sub_f32 v%d, 0, v%d" % (C + 16 * j, S))
    p2_init()
    a("s_lshl_b32 s28, s14, 11")
    a("s_mov_b32 s21, s28")
    ld_k(0)
    ld_v(0)
    a("s_waitcnt vmcnt(0)")
    a("s_branch P2_START")
    a.label("L_CODE_END")

DOC = """;
; Hand-offs between workgroups: sc1 (device-scope) stores, drained with vmcnt(0), then a flag or {value, tag} word that
; Workgroup -> tile maps exploit the usual id%8 XCD placement for L2 locality only.
;"""

def main():
    out = sys.argv[1] if len(sys.argv) > 1 else "cdna_kernels/%s.s" % NAME
    a = Asm()
    hdr = open("cdna_kernels/%s.s.ref" % NAME).read().split("\n")
    keep = [l for l in hdr if l.startswith(";") and "@launch" not in l and "Override launch" not in l and "grid=ceil" not in l]
    for l in keep:
        a.raw(l)
    a.raw("; @launch grid=(256,1,1) block=(512,1,1) lds=%d" % LDS_SIZE)
    a.raw(DOC)
    a.raw('.amdgcn_target "amdgcn-amd-amdhsa--gfx950"')
    a.raw(".text")
    gen(a)
    a.raw('.section .rodata,"a"')
    a.raw(""".p2align 6
.amdhsa_kernel %s_kernel
  .amdhsa_next_free_vgpr 256
  .amdhsa_next_free_sgpr 102
  .amdhsa_accum_offset 256
  .amdhsa_group_segment_fixed_size 0
  .amdhsa_kernarg_size 96
  .amdhsa_user_sgpr_count 2
  .amdhsa_user_sgpr_kernarg_segment_ptr 1
  .amdhsa_system_sgpr_workgroup_id_x 1
.end_amdhsa_kernel""" % NAME)
    open(out, "w").write(a.text())

if __name__ == "__main__":
    main()
```

```python
import sys, math, struct, os

NAME = "gated_mix__mha_block__moe_arch_mod__prompt"

WS_KV = 0
WS_O = (4 << 20) + 65536
WS_FL1 = WS_O + (2 << 20)
WS_FL2 = WS_FL1 + 32768
WS_FL3 = WS_FL2 + 32768
WS_RK = WS_FL3 + 32768
WS_PA = WS_RK + 8192
WS_G = WS_PA + 262144
WS_EP = WS_G + 16384
WS_Y = WS_EP + 1024
WS_ST = 7 << 20
WS_SIZE = 8 << 20

STAMP = int(os.environ.get("STAMP", "0"))
NB = int(os.environ.get("NB", "4"))
CPF = int(os.environ.get("CPF", "1"))
SLEEP = int(os.environ.get("SLEEP", "0"))
MAP = int(os.environ.get("MAP", "1"))
PRIO = int(os.environ.get("PRIO", "3"))
TOUCH = int(os.environ.get("TOUCH", "0"))
HMASK = int(os.environ.get("HMASK", "0xff"), 0)
WARM = int(os.environ.get("WARM", "0"))
PLAN = int(os.environ.get("PLAN", "0"))
QF = int(os.environ.get("QF", "20"))
DET = int(os.environ.get("DET", "1"))
EP = 0
SMODE = int(os.environ.get("SM", "2"))
SM = SMODE == 1
RAW = SMODE == 2
SPLIT = int(os.environ.get("SPLIT", "1"))
P3POS = int(os.environ.get("P3POS", "9"))
SENT = int(os.environ.get("SENT", "0"))
LW = int(os.environ.get("LW", "0"))
WOT = int(os.environ.get("WOT", "0"))
XLA = int(os.environ.get("XLA", "3"))
PD = int(os.environ.get("PD", "1"))
PGAP = int(os.environ.get("PGAP", "3"))
WQT = int(os.environ.get("WQT", "1"))
INIT = int(os.environ.get("INIT", "3"))
ROT = int(os.environ.get("ROT", "1"))
DELAY = int(os.environ.get("DELAY", "0"))
_dl = [0]
def delay(a, site, mod, wavemask=0xff):
    if not (DELAY >> site) & 1:
        return
    _dl[0] += 1
    a("s_mul_i32 s100, s2, %d" % (7 + 2 * site))
    a("s_and_b32 s100, s100, %d" % mod)
    a("s_cmp_lg_u32 s100, 1")
    a("s_cbranch_scc1 DL%d" % _dl[0])
    a("s_mov_b32 s100, %d" % wavemask)
    a("s_bitcmp1_b32 s100, s19")
    a("s_cbranch_scc0 DL%d" % _dl[0])
    for _ in range(6):
        a("s_sleep 127")
    a.label("DL%d" % _dl[0])
SPANW = int(os.environ.get("SPANW", "0"))
SPAN = os.environ.get("SPAN", "")
def ev(a, i):
    if not SPAN:
        return
    i0, i1 = [int(x) for x in SPAN.split(",")]
    for k, r in (((i0, 58), (i1, 59)) if SPANW else ((i0, 13), (i1, 99))):
        if k == i:
            a("s_memrealtime s[100:101]")
            a("s_waitcnt lgkmcnt(0)")
            a("s_mov_b32 s%d, s100" % r)
NOWO = int(os.environ.get("NOWO", "0"))

def f32bits(x):
    return struct.unpack("<I", struct.pack("<f", x))[0]

import re
_SRC = open(__file__).read().split("\n")

class Asm:
    def __init__(self):
        self.l = []
        self.seen = set()
    def _lead(self, ln):
        k = ln - 2
        while k >= 0 and re.match(r"\s*(for |if |def |[\w, ]+ = )", _SRC[k]) and ln - k < 6:
            k -= 1
        out = []
        while k >= 0 and _SRC[k].strip().startswith("#") and k not in self.seen:
            self.seen.add(k)
            out.append("    ; " + _SRC[k].strip().lstrip("#").strip())
            k -= 1
        self.l.extend(reversed(out))
    def __call__(self, s):
        ln = sys._getframe(1).f_lineno
        self._lead(ln)
        m = re.search(r"\)\s+# (.*)$", _SRC[ln - 1])
        tail = ""
        if m and (ln - 1) not in self.seen:
            self.seen.add(ln - 1)
            tail = "   ; " + m.group(1)
        self.l.append("    " + s.strip() + tail)
    def label(self, s):
        self._lead(sys._getframe(1).f_lineno)
        self.l.append(s + ":")
    def raw(self, s):
        self.l.append(s)
    def text(self):
        return "\n".join(self.l) + "\n"

def vr(b, n):
    return "v[%d:%d]" % (b, b + n - 1)
def sr(b, n):
    return "s[%d:%d]" % (b, b + n - 1)

def srd(a, d, base, nbytes):
    a("s_mov_b32 s%d, s%d" % (d, base))
    a("s_and_b32 s%d, s%d, 0xffff" % (d + 1, base + 1))
    a("s_mov_b32 s%d, 0x%x" % (d + 2, nbytes))
    a("s_mov_b32 s%d, 0x00020000" % (d + 3))

MF32 = "v_mfma_f32_32x32x16_bf16"
MF16 = "v_mfma_f32_16x16x32_bf16"
LOG2E = math.log2(math.e)

P_X, P_WQKV, P_WO, P_WR, P_WG, P_WU, P_WD, P_GW, P_OUT, P_DBG, P_WS = 64, 66, 68, 72, 74, 76, 78, 80, 82, 84, 86
WS = "s[88:91]"
S_TAG, S_KEY = 92, 93

def stamp(a, idx, real=False):
    if not STAMP:
        return
    a("s_memrealtime s[100:101]" if real else "s_memtime s[100:101]")
    a("s_waitcnt lgkmcnt(0)")
    a("v_mov_b32 v255, s100")
    a("s_lshl_b32 s100, s2, 3")
    a("s_add_u32 s100, s100, s19")
    a("s_lshl_b32 s100, s100, 7")
    a("s_add_u32 s100, s100, %d" % (WS_ST + idx * 4))
    a("buffer_store_dword v255, off, %s, s100" % WS)

def bf16_round_to_f32(a, dst, src):
    a("v_cvt_pk_bf16_f32 v%d, v%d, v%d" % (dst, src, src))
    a("v_lshlrev_b32 v%d, 16, v%d" % (dst, dst))

def sigmoid_bf16(a, r):
    a("v_mul_f32 v%d, 0x%08x, v%d" % (r, f32bits(-LOG2E), r))
    a("v_exp_f32 v%d, v%d" % (r, r))
    a("s_nop 0")
    a("v_add_f32 v%d, 1.0, v%d" % (r, r))
    a("v_rcp_f32 v%d, v%d" % (r, r))
    a("s_nop 0")
    bf16_round_to_f32(a, r, r)

def poll(a, name, t0, voff):
    a("s_mov_b32 s94, 0")
    a("s_branch %s_IN" % name)
    a.label(name)
    if SLEEP:
        a("s_sleep %d" % SLEEP)
    a.label(name + "_IN")
    a("buffer_load_dword v%d, v%d, %s, s95 offen sc1" % (t0, voff, WS))
    a("s_add_u32 s94, s94, 1")
    a("s_waitcnt vmcnt(0)")
    a("v_cmp_ne_u32 vcc, s%d, v%d" % (S_TAG, t0))
    a("s_cmp_ge_u32 s94, 0x40000")
    a("s_cbranch_scc1 %s_OUT" % name)
    a("s_cbranch_vccz %s_OUT" % name)
    a("s_mov_b64 exec, vcc")
    a("s_branch %s" % name)
    a.label(name + "_OUT")

def poll_deep(a, name, t0, voff):
    a("s_mov_b32 s94, 0")
    for i in range(PD - 1):
        a("buffer_load_dword v%d, v%d, %s, s95 offen sc1" % (t0 + i, voff, WS))
        a("s_sleep %d" % PGAP)
    a.label(name)
    for i in range(PD):
        a("buffer_load_dword v%d, v%d, %s, s95 offen sc1" % (t0 + (i + PD - 1) % PD, voff, WS))
        a("s_waitcnt vmcnt(%d)" % (PD - 1))
        a("v_cmp_ne_u32 vcc, s%d, v%d" % (S_TAG, t0 + i))
        a("s_add_u32 s94, s94, 1")
        a("s_nop 0")
        a("s_cbranch_vccz %s_OUT" % name)
        a("s_mov_b64 exec, vcc")
    a("s_cmp_lt_u32 s94, 0x10000")
    a("s_cbranch_scc1 %s" % name)
    a.label(name + "_OUT")

def last_wave_flag(a, name, vm, ldsoff, n, soff, t0):
    a("v_mov_b32 v%d, 1" % t0)
    a("s_mov_b64 exec, 1")
    a("ds_add_rtn_u32 v%d, v%d, v%d offset:%d" % (t0, vm, t0, ldsoff))
    a("s_waitcnt lgkmcnt(0)")
    a("v_readfirstlane_b32 s97, v%d" % t0)
    a("v_mov_b32 v%d, s%d" % (t0, S_TAG))
    a("s_nop 1")
    a("s_cmp_lg_u32 s97, %d" % (n - 1))
    a("s_cbranch_scc1 %s" % name)
    a("buffer_store_dword v%d, off, %s, s%d sc1" % (t0, WS, soff))
    a.label(name)
    a("s_mov_b64 exec, -1")

def get_tag(a, name, t0):
    a("s_mov_b32 s94, 0")
    a.label(name + "L")
    a("s_waitcnt vmcnt(0)")
    a("v_readfirstlane_b32 s95, v%d" % (t0 + 1))
    a("s_add_u32 s94, s94, 1")
    a("s_cmp_ge_u32 s94, 0x40000")
    a("s_cbranch_scc1 %sD" % name)
    a("s_cmp_lg_u32 s95, 0")
    a("s_cbranch_scc1 %sD" % name)
    a("buffer_load_dwordx2 %s, off, s[24:27], 0 sc1" % vr(t0, 2))
    a("s_branch %sL" % name)
    a.label(name + "D")
    a("v_readfirstlane_b32 s%d, v%d" % (S_TAG, t0))

def put_flag(a, soff, t0):
    a("v_mov_b32 v%d, s%d" % (t0, S_TAG))
    a("s_mov_b64 exec, 1")
    a("buffer_store_dword v%d, off, %s, s%d sc1" % (t0, WS, soff))
    a("s_mov_b64 exec, -1")

L_X = 0
L_W = 65536
L_FFW = L_X + 32768
L_EX = L_X
L_CMB = 131072
L_RT = L_CMB + 18432
L_MISC = L_RT + 2048
L_QX = L_MISC + 2048
L_MX = L_QX + 8192
LDS_SIZE = L_MX + 1024

def gen(a):
    kn = NAME + "_kernel"
    a.raw(".globl %s" % kn)
    a.raw(".p2align 8")
    a.raw(".type %s,@function" % kn)
    a.label(kn)
    a("s_cmp_ge_u32 s2, 256")
    a("s_cbranch_scc1 L_END")
    a("s_load_dwordx16 s[64:79], s[0:1], 0")
    a("s_load_dwordx8 s[80:87], s[0:1], 64")
    if CPF:
        a("s_getpc_b64 s[22:23]")
        a.label("L_PC")
        a("v_subrev_u32 v2, 256, v0")
        a("v_lshlrev_b32 v2, 7, v2")
        a("v_cmp_gt_u32 vcc, L_CODE_END - L_PC, v2")
        a("s_and_saveexec_b64 s[24:25], vcc")
        a("s_cbranch_execz L_NOPF")
        a("global_load_dword v3, v2, s[22:23]")
        a.label("L_NOPF")
        a("s_mov_b64 exec, -1")
    a("v_lshrrev_b32 v1, 6, v0")
    a("v_and_b32 v0, 63, v0")
    a("v_readfirstlane_b32 s19, v1")
    ev(a, 0)
    delay(a, 0, 7)
    Q, C, O, S, P, KV, T = 8, 16, 48, 80, 112, 120, 216
    VM = 254
    XS, WD, BF, DD = T, T + 8, T + 16, T + 24
    ntb = 32 // MAP
    lt = ntb.bit_length() - 1
    a("s_and_b32 s16, s2, 7")
    a("s_lshr_b32 s17, s2, 3")
    a("s_and_b32 s14, s16, %d" % (MAP - 1))
    a("s_lshl_b32 s14, s14, %d" % lt)
    a("s_and_b32 s18, s17, %d" % (ntb - 1))
    a("s_add_u32 s14, s14, s18")
    a("s_lshr_b32 s15, s16, %d" % (MAP.bit_length() - 1))
    a("s_mul_i32 s15, s15, %d" % MAP)
    a("s_lshr_b32 s17, s17, %d" % lt)
    a("s_add_u32 s15, s15, s17")
    if ROT:
        a("s_mul_i32 s17, s15, %d" % ROT)
    else:
        a("s_mul_i32 s17, s17, %d" % (8 // MAP))
    a("s_add_u32 s16, s17, s18")
    a("s_and_b32 s16, s16, 7")
    a("s_and_b32 s62, s2, 7")
    a("s_lshl_b32 s62, s62, 2")
    a("s_bfe_u32 s38, s2, 0x20003")
    a("s_add_u32 s62, s62, s38")
    a("s_lshr_b32 s63, s2, 5")
    a("s_lshl_b32 s38, s38, 1")
    a("s_add_u32 s38, s38, s63")
    a("s_and_b32 s38, s38, 7")
    a("v_lshlrev_b32 v2, 4, v0")
    a("v_and_b32 v6, 31, v0")
    a("v_lshrrev_b32 v7, 5, v0")
    a("v_mov_b32 v%d, %d" % (VM, L_MISC))
    a("s_and_b32 s20, s19, 1")
    XA = 8
    a("v_bfe_u32 v24, v6, 1, 3")
    a("v_lshlrev_b32 v25, 7, v6")
    a("s_lshl_b32 s18, s20, 12")
    a("v_add_u32 v25, s18, v25")
    for ks in range(4):
        a("v_or_b32 v26, %d, v7" % (2 * ks))
        a("v_xor_b32 v26, v26, v24")
        a("v_lshl_add_u32 v%d, v26, 4, v25" % (XA + ks))
    a("s_lshl_b32 s47, s14, 1")
    a("s_add_u32 s39, s47, s20")
    a("s_cmp_ge_u32 s19, 4")
    a("s_cbranch_scc1 P1_COMPUTE")

    a("v_lshrrev_b32 v4, 3, v0")
    a("v_lshlrev_b32 v5, 10, v4")
    a("v_and_b32 v3, 7, v0")
    a("v_lshrrev_b32 v16, 4, v0")
    a("v_xor_b32 v17, v3, v16")
    a("v_lshl_add_u32 v5, v17, 4, v5")
    a("v_mul_u32_u24 v4, 3072, v4")
    a("v_and_b32 v16, 1, v16")
    a("v_lshlrev_b32 v16, 2, v16")
    a("v_xor_b32 v17, v3, v16")
    a("v_lshl_add_u32 v4, v17, 4, v4")
    a("s_lshl_b32 s18, s15, 7")
    a("v_add_u32 v4, s18, v4")
    a("v_xor_b32 v3, 64, v5")
    a("s_lshl_b32 s40, s14, 16")
    a("s_lshl_b32 s18, s19, 14")
    a("s_add_u32 s40, s40, s18")
    a("s_lshl_b32 s44, s19, 11")
    a("s_lshl_b32 s18, s16, 7")
    a("v_add_u32 v16, s18, v2")
    a("v_and_b32 v16, 1023, v16")
    a("s_mul_i32 s41, s19, 49152")
    a("s_lshl_b32 s45, s19, 12")
    a("s_mul_i32 s42, s20, %d" % (32 * 3072))
    a("s_lshr_b32 s43, s19, 1")
    a("s_waitcnt lgkmcnt(0)")
    srd(a, 20, P_X, 2048 * 512 * 2)
    srd(a, 24, P_WQKV, 512 * 1536 * 2)
    srd(a, 88, P_WS, WS_SIZE)
    stamp(a, 0)
    stamp(a, 24, True)

    order = []
    a("s_mov_b32 s51, s16")
    def issue_x(c):
        a("s_lshl_b32 s46, s51, 7")
        a("s_add_u32 s46, s46, s40")
        a("s_add_u32 m0, s44, %d" % (L_X + c * 8192))
        a("s_add_u32 s48, s46, 8192")
        a("buffer_load_dwordx4 v5, s[20:23], s46 offen lds")
        a("s_add_u32 m0, s44, %d" % (L_X + c * 8192 + 1024))
        a("s_add_u32 s51, s51, 1")
        a("buffer_load_dwordx4 v3, s[20:23], s48 offen lds")
        a("s_and_b32 s51, s51, 7")
        order.extend([c, c])
    def issue_step(c):
        wb = L_W + (c % 4) * 16384
        order.extend([c] * 4)
        if c < 8:
            a("s_mul_i32 s47, s16, %d" % (64 * 3072))
            a("s_add_u32 s47, s47, s41")
            a("s_add_u32 s49, s47, %d" % (8 * 3072))
            for rh in range(2):
                a("s_add_u32 m0, s45, %d" % (wb + rh * 2048 - 1024))
                a("s_add_u32 s16, s16, 1" if rh == 0 else "s_and_b32 s16, s16, 7")
                for t in (1, 2):
                    a("buffer_load_dwordx4 v4, s[24:27], s%d offen offset:%d lds" % (47 + 2 * rh, t * 1024))
        else:
            a("s_add_u32 s46, s16, s43")
            a("s_and_b32 s46, s46, 7")
            a("s_mul_i32 s47, s46, %d" % (64 * 3072))
            a("s_add_u32 s47, s47, s42")
            a("s_add_u32 s16, s16, 2")
            for i in range(4):
                a("s_add_u32 m0, s45, %d" % (wb + i * 1024))
                a("s_add_u32 s48, s47, %d" % (i * 8 * 3072))
                a("buffer_load_dwordx4 v4, s[24:27], s48 offen lds")

    issue_x(0)
    issue_step(0)
    srd(a, 28, P_WR, 1024)
    srd(a, 32, P_GW, 1024)
    a("s_mov_b32 m0, %d" % L_RT)
    a("s_nop 0")
    a("buffer_load_dwordx4 v16, s[32:35], 0 offen lds")
    a("s_mov_b32 m0, %d" % (L_RT + 1024))
    a("s_nop 0")
    a("buffer_load_dwordx4 v16, s[28:31], 0 offen lds")
    order.extend([7, 7])
    for c in range(1, INIT):
        issue_x(c)
        issue_step(c)
    for c in range(INIT, XLA):
        issue_x(c)
    a("s_and_b32 s50, s14, 7")
    a("s_xor_b32 s50, s50, s15")
    a("s_lshr_b32 s57, s19, 1")
    a("s_or_b32 s50, s50, s57")
    a("v_and_b32 v25, 1, v0")
    a("v_lshlrev_b32 v25, 10, v25")
    a("v_lshl_add_u32 v17, v7, 4, v25")
    a("v_add_u32 v17, %d, v17" % L_RT)
    RACC, RF = 32, 48
    for r in range(0, 16, 2):
        a("v_mov_b64 %s, 0" % vr(RACC + r, 2))
    a("ds_write_b128 v%d, %s" % (VM, vr(RACC, 4)))
    for o in (16, 32, 48, 64):
        a("ds_write_b128 v%d, %s offset:%d" % (VM, vr(RACC, 4), o))
    for c in range(12):
        younger = len(order) - 1 - max(i for i, k in enumerate(order) if k <= c)
        a("s_waitcnt vmcnt(%d)%s" % (younger, " lgkmcnt(0)" if c == 0 else ""))
        if STAMP == 3 and c < 8:
            a("s_memtime s[100:101]")
            a("s_waitcnt lgkmcnt(0)")
            a("s_mov_b32 s%d, s100" % (52 + c))
        a("s_barrier")
        if c == 0 and STAMP != 3:
            stamp(a, 1)
        if c + max(XLA, INIT) < 8 and XLA <= 3:
            issue_x(c + max(XLA, INIT))
        if INIT <= c + 3 < 12:
            issue_step(c + 3)
        if c + XLA < 8 and XLA > 3:
            issue_x(c + XLA)
        if c == 0:
            srd(a, 32, P_DBG, 256)
        if c == 9:
            a("buffer_load_dwordx2 v[28:29], off, s[32:35], 0 sc1")
            order.append(99)
        if 8 <= c <= 10:
            a("s_cmp_lg_u32 s50, 0")
            a("s_cbranch_scc1 P1_NR%d" % c)
            k0, k1 = (0, 11, 22, 32)[c - 8], (0, 11, 22, 32)[c - 7]
            def rd_r(kk):
                a("ds_read_b128 %s, v%d offset:%d" % (vr(RF + 8 * (kk % 6), 4), XA + kk % 4, L_X + (kk // 4) * 8192))
                a("ds_read_b128 %s, v17 offset:%d" % (vr(RF + 8 * (kk % 6) + 4, 4), kk * 32))
            if c == 8:
                for kk in range(5):
                    rd_r(kk)
            for kk in range(k0, k1):
                a("s_waitcnt lgkmcnt(%d)" % (2 * min(4, 31 - kk)))
                a("%s %s, %s, %s, %s" % (MF32, vr(RACC, 16), vr(RF + 8 * (kk % 6) + 4, 4), vr(RF + 8 * (kk % 6), 4), vr(RACC, 16)))
                if kk + 5 < 32:
                    rd_r(kk + 5)
            a.label("P1_NR%d" % c)
    if STAMP == 3:
        for c in range(0, 8):
            a("v_mov_b32 v255, s%d" % (52 + c))
            a("s_lshl_b32 s100, s2, 3")
            a("s_add_u32 s100, s100, s19")
            a("s_lshl_b32 s100, s100, 7")
            a("s_add_u32 s100, s100, %d" % (WS_ST + (16 + c) * 4))
            a("buffer_store_dword v255, off, %s, s100" % WS)
    srd(a, 24, P_DBG, 256)
    get_tag(a, "P1_TAGL", 28)
    a("s_mov_b32 s39, -1")
    a("s_cmp_lg_u32 s50, 0")
    a("s_cbranch_scc1 P1_DONE")
    R = RACC
    a("s_nop 9")
    a("s_lshl_b32 s39, s14, 1")
    a("s_add_u32 s39, s39, s19")
    bf16_round_to_f32(a, 100, R)
    sigmoid_bf16(a, 100)
    a("v_sub_f32 v101, 1.0, v100")
    bf16_round_to_f32(a, 101, 101)
    bf16_round_to_f32(a, 102, R + 1)
    a("v_ashrrev_i32 v103, 31, v102")
    a("v_or_b32 v103, 0x80000000, v103")
    a("v_xor_b32 v102, v102, v103")
    a("v_and_b32 v102, 0xffff0000, v102")
    a("s_lshl_b32 s55, s39, 5")
    a("v_add_u32 v103, s55, v6")
    a("v_sub_u32 v103, 0xffff, v103")
    a("v_or_b32 v102, v102, v103")
    for sh in (1, 2, 4, 8):
        a("s_nop 1")
        a("v_max_u32_dpp v102, v102, v102 row_ror:%d row_mask:0xf bank_mask:0xf" % sh)
    a("s_nop 0")
    a("v_readlane_b32 s56, v102, 0")
    a("v_readlane_b32 s57, v102, 16")
    a("s_nop 3")
    a("s_max_u32 s%d, s56, s57" % S_KEY)
    a("s_lshl_b32 s54, s39, 8")
    a("s_add_u32 s54, s54, %d" % WS_G)
    a("v_lshlrev_b32 v27, 3, v6")
    a("buffer_store_dwordx2 v[100:101], v27, %s, s54 offen sc1" % WS)
    a("v_mov_b64 v[84:85], 0")
    a("v_lshlrev_b32 v27, 3, v0")
    a("s_lshl_b32 s55, s39, 9")
    a("s_add_u32 s55, s55, %d" % WS_Y)
    a("buffer_store_dwordx2 v[84:85], v27, %s, s55 offen sc1" % WS)
    a("s_branch P1_DONE")

    a.label("P1_COMPUTE")
    WA, WQA = 16, 17
    a("s_lshl_b32 s22, s2, 3")
    a("s_add_u32 s22, s22, s19")
    a("s_waitcnt lgkmcnt(0)")
    ev(a, 8)
    srd(a, 28, P_WQKV, 512 * 1536 * 2)
    srd(a, 88, P_WS, WS_SIZE)
    stamp(a, 0)
    stamp(a, 24, True)
    a("s_mov_b32 s23, %d" % WS_EP)
    a("s_cmp_lg_u32 s22, 4")
    a("s_cbranch_scc1 P1_NOEP0")
    a("buffer_load_dword v24, off, %s, s23 sc1" % WS)
    a.label("P1_NOEP0")
    def wq_touch():
        a("s_cmp_lg_u32 s19, 5")
        a("s_cbranch_scc1 P1_NOWQ")
        a("s_and_b32 s46, s14, %d" % (ntb - 1))
        a("s_mul_i32 s46, s46, %d" % (512 // ntb * 3072))
        a("s_lshl_b32 s47, s15, 7")
        a("s_add_u32 s46, s46, s47")
        a("v_and_b32 v24, %d, v0" % (512 // ntb - 1))
        a("v_mul_u32_u24 v24, 3072, v24")
        a("buffer_load_dword v28, v24, s[28:31], s46 offen")
        a.label("P1_NOWQ")
    if WQT == 0:
        wq_touch()
    srd(a, 24, P_DBG, 256)
    a("s_bfe_u32 s21, s19, 0x10001")
    a("v_bfe_u32 v27, v0, 2, 2")
    a("v_lshlrev_b32 v26, 7, v27")
    a("v_lshrrev_b32 v27, 1, v27")
    a("v_xor_b32 v27, s21, v27")
    a("v_lshl_add_u32 v26, v27, 6, v26")
    a("v_bfe_u32 v27, v0, 4, 1")
    a("v_lshl_add_u32 v26, v27, 5, v26")
    a("v_and_b32 v27, 3, v0")
    a("v_lshl_add_u32 v26, v27, 3, v26")
    a("v_add_u32 v26, %d, v26" % L_W)
    a("v_lshl_add_u32 v%d, v7, 11, v26" % WA)
    a("v_lshl_add_u32 v%d, v7, 10, v26" % WQA)
    a("s_cmp_lg_u32 s22, 4")
    a("s_cbranch_scc1 P1_NOEP")
    if DELAY & 2:
        for _ in range(8):
            a("s_sleep 127")
    a("s_mov_b32 s22, 1664525")
    a("v_mov_b32 v25, 1")
    a("s_waitcnt vmcnt(0)")
    a("v_mul_lo_u32 v24, v24, s22")
    a("v_add_u32 v24, 1013904223, v24")
    a("s_mov_b64 exec, 1")
    a("buffer_store_dwordx2 v[24:25], off, s[24:27], 0 sc1")
    a("buffer_store_dword v24, off, %s, s23 sc1" % WS)
    a("s_mov_b64 exec, -1")
    a.label("P1_NOEP")
    ACC = 32
    FR = 80
    PK = 104
    XF = 120
    pend = []
    def rd_kv(kk, part):
        if kk >= 32:
            return
        c, ks = kk // 4, kk % 4
        if part == 0:
            a("ds_read_b128 %s, v%d offset:%d" % (vr(XF + 4 * kk, 4), XA + ks, L_X + c * 8192))
            pend.append((kk, 0))
        for half in range(2):
            a("ds_read_b64_tr_b16 %s, v%d offset:%d" % (vr(FR + (kk % 3) * 8 + part * 4 + 2 * half, 2), WA,
                                                       (c % 4) * 16384 + ks * 4096 + part * 1024 + half * 512))
            pend.append((kk, part))
    def rd_q(kk):
        if kk >= 32:
            return
        if kk % 8 == 0 and kk > 0:
            a("s_barrier")
        for half in range(2):
            a("ds_read_b64_tr_b16 %s, v%d offset:%d" % (vr(FR + (kk % 6) * 4 + 2 * half, 2), WQA,
                                                       (kk // 8) * 16384 + (kk % 8) * 2048 + half * 512))
            pend.append((100 + kk, 0))
    def wait_for(kk, part):
        last = max([i for i, (k2, p) in enumerate(pend) if k2 == kk and p == part], default=-1)
        if last >= 0:
            a("s_waitcnt lgkmcnt(%d)" % (len(pend) - 1 - last))
            del pend[:last + 1]
    if STAMP == 3:
        stamp(a, 14)
    a("s_barrier")
    if STAMP != 3:
        stamp(a, 1)
    ev(a, 4)
    for kk in range(2):
        rd_kv(kk, 0); rd_kv(kk, 1)
    if WQT == 1:
        wq_touch()
    for kk in range(32):
        nx = kk + 2
        if nx < 32 and nx % 4 == 0:
            c = nx // 4
            a("s_waitcnt lgkmcnt(0)")
            del pend[:]
            if STAMP == 3:
                a("s_memtime s[100:101]")
                a("s_waitcnt lgkmcnt(0)")
                a("s_mov_b32 s%d, s100" % (50 + c))
            a("s_barrier")
        x = vr(XF + 4 * kk, 4)
        cz = lambda r: ("0" if kk == 0 else vr(r, 16))
        wait_for(kk, 0)
        a("%s %s, %s, %s, %s" % (MF32, vr(ACC, 16), vr(FR + (kk % 3) * 8, 4), x, cz(ACC)))
        rd_kv(nx, 0)
        wait_for(kk, 1)
        a("%s %s, %s, %s, %s" % (MF32, vr(ACC + 16, 16), x, vr(FR + (kk % 3) * 8 + 4, 4), cz(ACC + 16)))
        rd_kv(nx, 1)
    a("s_barrier")
    LQ = 5
    for kk in range(LQ):
        rd_q(kk)
    a("s_lshl_b32 s46, s15, 1")
    a("s_add_u32 s46, s46, s21")
    a("s_lshl_b32 s48, s46, 18")
    a("s_lshl_b32 s49, s20, 16")
    a("s_add_u32 s48, s48, s49")
    a("s_lshl_b32 s49, s14, 11")
    a("s_add_u32 s48, s48, s49")
    a("s_add_u32 s49, s48, 131072")
    a("v_lshrrev_b32 v24, 4, v6")
    a("v_lshlrev_b32 v24, 17, v24")
    a("v_lshl_add_u32 v24, v7, %d, v24" % (9 if SM else 8))
    a("v_and_b32 v25, 15, v0")
    a("v_lshl_add_u32 v24, v25, 4, v24")
    stamp(a, 2)
    ev(a, 5)
    for r in range(8):
        a("v_cvt_pk_bf16_f32 v%d, v%d, v%d" % (PK + r, ACC + 2 * r, ACC + 2 * r + 1))
    a("buffer_store_dwordx4 %s, v2, %s, s48 offen sc1" % (vr(PK, 4), WS))
    a("buffer_store_dwordx4 %s, v2, %s, s49 offen sc1" % (vr(PK + 4, 4), WS))
    V2 = 1280 if SM else 1536
    vdst = (lambda i: PK + 8 + 4 * (i & 1) + (i >> 1)) if SM else (lambda i: PK + 8 + i)
    for r in range(8):
        a("v_cvt_pk_bf16_f32 v%d, v%d, v%d" % (vdst(r), ACC + 16 + 2 * r, ACC + 16 + 2 * r + 1))
    if SM:
        for i in range(4):
            a("v_permlane32_swap_b32 v%d, v%d" % (vdst(i), vdst(4 + i)))
    if RAW:
        for i in (0, 1, 4, 5):
            a("v_permlane32_swap_b32 v%d, v%d" % (PK + 8 + i, PK + 10 + i))
    a("buffer_store_dwordx4 %s, v24, %s, s48 offen offset:1024 sc1" % (vr(PK + 8, 4), WS))
    a("buffer_store_dwordx4 %s, v24, %s, s48 offen offset:%d sc1" % (vr(PK + 12, 4), WS, V2))
    a("buffer_load_dwordx2 v[28:29], off, s[24:27], 0 sc1")
    a("s_lshl_b32 s50, s21, 13")
    a("s_lshl_b32 s51, s20, 11")
    a("s_add_u32 s50, s50, s51")
    a("s_add_u32 s50, s50, %d" % L_CMB)
    a("v_add_u32 v26, s50, v2")
    a("v_lshrrev_b32 v27, 5, v24")
    a("v_and_b32 v27, 4096, v27")
    a("v_and_b32 v25, 1023, v24")
    a("v_add3_u32 v27, v27, v25, s50")
    a("ds_write_b128 v26, %s" % vr(PK, 4))
    a("ds_write_b128 v26, %s offset:4096" % vr(PK + 4, 4))
    a("ds_write_b128 v27, %s offset:1024" % vr(PK + 8, 4))
    a("ds_write_b128 v27, %s offset:%d" % (vr(PK + 12, 4), V2))
    pend.extend([(-1, 0)] * 4)
    a("s_lshl_b32 s96, s15, 12")
    a("s_lshl_b32 s97, s14, 7")
    a("s_add_u32 s96, s96, s97")
    a("s_add_u32 s96, s96, %d" % WS_FL1)
    for kk in range(32):
        if kk == QF:
            get_tag(a, "P1_TAGC", 28)
            last_wave_flag(a, "P1_FL", VM, 0, 4, 96, 30)
            del pend[:]
            stamp(a, 13)
            stamp(a, 29, True)
            ev(a, 6)
        wait_for(100 + kk, 0)
        a("%s %s, %s, %s, %s" % (MF32, vr(ACC + 32, 16), vr(FR + (kk % 6) * 4, 4), vr(XF + 4 * kk, 4), "0" if kk == 0 else vr(ACC + 32, 16)))
        rd_q(kk + LQ)
    CS = LOG2E * 0.25
    if STAMP != 3:
        a("s_mov_b32 s54, 0x%08x" % f32bits(CS))
        a("s_mov_b32 s55, 0x%08x" % f32bits(CS))
    a("s_lshl_b32 s22, s21, 12")
    a("s_lshl_b32 s23, s20, 10")
    a("s_add_u32 s22, s22, s23")
    a("s_add_u32 s22, s22, %d" % L_QX)
    a("v_add_u32 v24, s22, v2")
    a("s_lshl_b32 s22, s21, 9")
    a("s_lshl_b32 s23, s20, 7")
    a("s_add_u32 s22, s22, s23")
    a("s_add_u32 s22, s22, %d" % L_MX)
    a("v_lshl_add_u32 v26, v6, 2, s22")
    a("v_lshl_add_u32 v26, v7, 8, v26")
    stamp(a, 3)
    if STAMP == 3:
        for c in range(1, 8):
            a("v_mov_b32 v255, s%d" % (50 + c))
            a("s_lshl_b32 s100, s2, 3")
            a("s_add_u32 s100, s100, s19")
            a("s_lshl_b32 s100, s100, 7")
            a("s_add_u32 s100, s100, %d" % (WS_ST + (16 + c) * 4))
            a("buffer_store_dword v255, off, %s, s100" % WS)
        a("s_mov_b32 s54, 0x%08x" % f32bits(CS))
        a("s_mov_b32 s55, 0x%08x" % f32bits(CS))
    PQ = FR
    for r in range(0, 16, 2):
        a("v_pk_mul_f32 %s, %s, s[54:55]" % (vr(ACC + 32 + r, 2), vr(ACC + 32 + r, 2)))
    for r in range(8):
        a("v_cvt_pk_bf16_f32 v%d, v%d, v%d" % (PQ + r, ACC + 32 + 2 * r, ACC + 32 + 2 * r + 1))
    a("s_nop 1")
    a("%s %s, %s, %s, 0" % (MF32, vr(ACC, 16), vr(PK, 4), vr(PQ, 4)))
    a("%s %s, %s, %s, 0" % (MF32, vr(ACC + 16, 16), vr(PK + 4, 4), vr(PQ + 4, 4)))
    a("ds_write_b128 v24, %s" % vr(PQ, 4))
    a("ds_write_b128 v24, %s offset:2048" % vr(PQ + 4, 4))
    a("s_nop 9")
    m0, m1 = 92, 93
    for h, m in ((0, m0), (1, m1)):
        SS = ACC + 16 * h
        a("v_max3_f32 v%d, v%d, v%d, v%d" % (m, SS, SS + 1, SS + 2))
        for r in range(3, 15, 2):
            a("v_max3_f32 v%d, v%d, v%d, v%d" % (m, m, SS + r, SS + r + 1))
        a("v_max_f32 v%d, v%d, v%d" % (m, m, SS + 15))
    a("s_nop 1")
    a("v_permlane32_swap_b32 v%d, v%d" % (m0, m1))
    a("v_max_f32 v%d, v%d, v%d" % (m0, m0, m1))
    a("v_sub_f32 v%d, 0, v%d" % (m0, m0))
    a("ds_write_b32 v26, v%d" % m0)

    a.label("P1_DONE")
    stamp(a, 4)
    a("s_and_b32 s17, s19, 3")
    a("s_lshr_b32 s16, s19, 2")
    a("v_and_b32 v3, 15, v0")
    a("v_lshlrev_b32 v3, 4, v3")
    a("v_lshl_add_u32 v3, v7, 8, v3")
    a("s_lshl_b32 s18, s15, 2")
    a("s_add_u32 s18, s18, s17")
    a("s_lshl_b32 s22, s18, 17")
    a("s_lshl_b32 s23, s16, 16")
    a("s_add_u32 s22, s22, s23")
    VKA, VVA = 196, 197
    a("v_add_u32 v%d, s22, v2" % VKA)
    a("v_add_u32 v%d, s22, v3" % VVA)
    a("s_lshl_b32 s23, s17, 12")
    a("s_lshl_b32 s28, s16, 11")
    a("s_add_u32 s23, s23, s28")
    a("s_add_u32 s23, s23, %d" % L_CMB)
    a("v_add_u32 v248, s23, v2")
    a("v_add_u32 v249, s23, v3")
    a("s_lshl_b32 s95, s15, 12")
    a("s_add_u32 s95, s95, %d" % WS_FL1)
    a("s_mov_b32 s30, 0x0000ffff")
    a("s_mov_b32 s31, 0x0000ffff")
    a("s_mov_b32 s29, 0")
    a("s_cmp_lt_u32 s19, 4")
    a("s_cselect_b32 s32, 0x%x, 0" % HMASK)
    CW16, CW4, CR16, CR4, VXO, VWO, VOF, XR, GR, HFL, HLD, F3 = 168, 169, 170, 171, 172, 173, 174, 176, 184, 175, 186, 186
    srd(a, 40, P_WO, 512 * 512 * 2)
    a("v_lshrrev_b32 v4, 3, v0")
    a("v_lshlrev_b32 v4, 10, v4")
    a("v_and_b32 v5, 7, v0")
    a("v_bfe_u32 v192, v0, 4, 1")
    a("v_lshlrev_b32 v192, 2, v192")
    a("v_xor_b32 v5, v5, v192")
    a("v_lshl_add_u32 v4, v5, 4, v4")
    a("s_lshl_b32 s36, s63, 7")
    a("s_lshl_b32 s37, s19, 13")
    a("s_add_u32 s36, s36, s37")
    a("s_lshl_b32 s37, s19, 10")
    a("s_add_u32 s37, s37, %d" % L_W)
    a("s_mul_i32 s23, s19, 2304")
    a("s_add_u32 s23, s23, %d" % L_CMB)
    a("v_add_u32 v%d, s23, v2" % CW16)
    a("v_lshl_add_u32 v%d, v0, 2, s23" % CW4)
    a("s_xor_b32 s23, s19, 4")
    a("s_mul_i32 s23, s23, 2304")
    a("s_add_u32 s23, s23, %d" % L_CMB)
    a("v_add_u32 v%d, s23, v2" % CR16)
    a("v_lshl_add_u32 v%d, v0, 2, s23" % CR4)
    a("s_lshl_b32 s23, s14, 1")
    a("s_add_u32 s23, s23, s16")
    a("s_lshl_b32 s33, s23, 15")
    a("s_lshl_b32 s23, s18, 10")
    a("s_add_u32 s33, s33, s23")
    a("s_add_u32 s33, s33, %d" % WS_O)
    a("s_lshl_b32 s98, s14, 10")
    a("s_lshl_b32 s23, s15, 7")
    a("s_add_u32 s98, s98, s23")
    a("s_add_u32 s98, s98, %d" % WS_FL2)
    a("s_and_b32 s8, s19, 1")
    a("s_bfe_u32 s9, s19, 0x10001")
    a("s_lshl_b32 s4, s62, 1")
    a("s_add_u32 s4, s4, s8")
    a("s_lshl_b32 s5, s63, 7")
    a("s_lshl_b32 s23, s9, 6")
    a("s_add_u32 s5, s5, s23")
    a("s_lshl_b32 s6, s4, 15")
    a("s_add_u32 s6, s6, s5")
    a("s_lshl_b32 s7, s4, 8")
    a("s_add_u32 s7, s7, %d" % WS_G)
    a("v_lshlrev_b32 v%d, 10, v6" % VXO)
    a("v_lshl_add_u32 v%d, v7, 5, v%d" % (VXO, VXO))
    a("v_bfe_u32 v193, v0, 2, 2")
    a("v_lshl_add_u32 v192, v7, 2, v193")
    a("v_lshlrev_b32 v192, 7, v192")
    a("v_lshrrev_b32 v193, 1, v193")
    a("v_xor_b32 v193, s9, v193")
    a("v_lshl_add_u32 v192, v193, 6, v192")
    a("v_and_b32 v193, 1, v0")
    a("v_lshl_add_u32 v192, v193, 5, v192")
    a("v_bfe_u32 v193, v0, 1, 1")
    a("v_bfe_u32 v194, v0, 4, 1")
    a("v_lshl_add_u32 v193, v194, 1, v193")
    a("v_lshl_add_u32 v192, v193, 3, v192")
    a("v_add_u32 v%d, %d, v192" % (VWO, L_W))
    a("s_lshl_b32 s23, s8, 12")
    a("v_add_u32 v%d, s23, v2" % VOF)
    a("s_lshl_b32 s10, s62, 10")
    a("s_lshl_b32 s23, s17, 8")
    a("s_add_u32 s10, s10, s23")
    a("s_add_u32 s10, s10, %d" % WS_FL2)
    a("v_and_b32 v%d, 1, v0" % HFL)
    a("v_lshlrev_b32 v%d, 7, v%d" % (HFL, HFL))
    a("s_lshl_b32 s11, s62, 16")
    a("s_lshl_b32 s23, s17, 13")
    a("s_add_u32 s11, s11, s23")
    a("s_add_u32 s11, s11, %d" % WS_O)
    a("s_lshl_b32 s12, s17, 14")
    a("s_lshl_b32 s23, s17, 3")
    a("v_add_u32 v%d, s23, v%d" % (HLD, VM))
    a("v_lshlrev_b32 v5, 7, v0")
    a("s_lshl_b32 s23, s17, 1")
    a("s_add_u32 s23, s23, s16")
    a("s_lshl_b32 s28, s23, 10")
    a("s_add_u32 s28, s28, %d" % L_QX)
    a("v_add_u32 v252, s28, v2")
    a("v_xor_b32 v250, 1024, v252")
    a("s_lshl_b32 s28, s23, 7")
    a("s_add_u32 s28, s28, %d" % L_MX)
    a("v_lshl_add_u32 v253, v6, 2, s28")
    a("v_xor_b32 v251, 128, v253")
    CW16, CW4, CR16, CR4, VXO, VWO, VOF, XR, GR, HFL, HLD, F3 = 168, 169, 170, 171, 172, 173, 174, 176, 184, 175, 186, 186
    def kvb(t):
        return KV + (8 if SM else 12) * (t % NB)
    PB = (P, 152) if SM else (P, P)
    LA, SA, IXV, IXS = 160, 198, 202, 203
    NLD = 2 if SM else 3
    def p2_init():
      if SM:
        a("v_mov_b64 %s, 0" % vr(kvb(NB - 1) + 4, 2))
        a("v_mov_b64 %s, 0" % vr(kvb(NB - 1) + 6, 2))
        for r in range(0, 8, 2):
            a("v_mov_b64 %s, 0" % vr(PB[1] + r, 2))
            a("v_mov_b64 %s, 0" % vr(LA + r, 2))
        a("v_mov_b64 %s, 0" % vr(SA, 2))
        a("v_mov_b64 %s, 0" % vr(SA + 2, 2))
        a("s_mov_b32 s34, 0x3f803f80")
        a("s_mov_b32 s35, 0x3f803f80")
        a("s_mov_b32 exec_lo, 0x03030303")
        a("s_mov_b32 exec_hi, 0x03030303")
        a("v_mov_b64 %s, s[34:35]" % vr(SA, 2))
        a("s_mov_b32 exec_lo, 0x30303030")
        a("s_mov_b32 exec_hi, 0x30303030")
        a("v_mov_b64 %s, s[34:35]" % vr(SA + 2, 2))
        a("s_mov_b64 exec, -1")
        a("v_bfe_u32 v%d, v0, 4, 1" % IXV)
        a("v_mul_u32_u24 v%d, 0xaaaa, v%d" % (IXV, IXV))
        a("v_add_u32 v%d, 0x4444, v%d" % (IXV, IXV))
        a("v_and_b32 v%d, 1, v0" % IXS)
        a("v_mul_u32_u24 v%d, 0xaaaa, v%d" % (IXS, IXS))
        a("v_add_u32 v%d, 0x4444, v%d" % (IXS, IXS))
      else:
        for b in range(NB):
            for r in range(4, 12, 2):
                a("v_mov_b64 %s, 0" % vr(kvb(b) + r, 2))
        a("s_mov_b32 s34, 0x3f803f80")
        a("s_mov_b32 s35, 0x3f803f80")
        a("s_mov_b32 exec_lo, 0x00110000")
        a("s_mov_b32 exec_hi, 0x00110000")
        for b in range(NB):
            for r in range(4, 12, 2):
                a("v_mov_b64 %s, s[34:35]" % vr(kvb(b) + r, 2))
        a("s_mov_b64 exec, -1")
      if True:
        for r in range(0, 32, 2):
            a("v_mov_b64 %s, 0" % vr(O + r, 2))
        if RAW:
            a("v_mov_b32 v%d, 0xdddd" % IXV)
            for r in range(8, 14, 2):
                a("v_mov_b64 %s, 0" % vr(S + 16 + r, 2))
        else:
            a("v_mov_b64 %s, 0" % vr(P + 4, 2))
            a("v_mov_b64 %s, 0" % vr(P + 6, 2))
        a("v_mov_b64 %s, 0" % vr(S + 16 + 14, 2))
    a("s_waitcnt lgkmcnt(0)")
    p2_init()
    if WOT:
        a("s_cmp_lg_u32 s19, 2")
        a("s_cbranch_scc1 P1_NOWO")
        a("s_lshl_b32 s3, s14, 14")
        a("buffer_load_dword v%d, v5, s[40:43], s3 offen" % T)
        a("s_add_u32 s3, s3, 8192")
        a("buffer_load_dword v%d, v5, s[40:43], s3 offen" % T)
        a.label("P1_NOWO")
    a("s_cmp_lg_u32 s19, 3")
    a("s_cbranch_scc1 H1_WAIT")
    a("s_mov_b32 exec_hi, 0")
    if PD > 1:
        poll_deep(a, "H1_POLL", T, 5)
    else:
        poll(a, "H1_POLL", S, 5)
    a("s_mov_b64 exec, -1")
    a.label("H1_WAIT")
    ev(a, 7)
    a("s_barrier")
    stamp(a, 5)
    stamp(a, 26, True)
    ev(a, 1)
    def ld_k(t):
        a("buffer_load_dwordx4 %s, v%d, %s, s%d offen sc1" % (vr(kvb(t), 4), VKA, WS, 21 if LW else 28))
    def adv():
        if LW:
            a("s_mov_b32 s28, s21")
            a("s_add_u32 s21, s21, 2048")
            a("s_and_b32 s21, s21, 0xffff")
        else:
            a("s_add_u32 s28, s28, 2048")
            a("s_and_b32 s28, s28, 0xffff")
    def ld_v(t):
        if SM:
            a("buffer_load_dwordx4 %s, v%d, %s, s28 offen offset:1024 sc1" % (vr(kvb(t) + 4, 4), VKA, WS))
            adv()
            return
        a("s_mov_b64 exec, s[30:31]")
        a("buffer_load_dwordx4 %s, v%d, %s, s28 offen offset:1024 sc1" % (vr(kvb(t) + 4, 4), VVA, WS))
        a("buffer_load_dwordx4 %s, v%d, %s, s28 offen offset:1536 sc1" % (vr(kvb(t) + 8, 4), VVA, WS))
        a("s_mov_b64 exec, -1")
        adv()
    a("ds_read_b32 v%d, v251" % C)
    a("ds_read_b32 v%d, v253" % (C + 16))
    a("ds_read_b128 %s, v250" % vr(Q, 4))
    a("ds_read_b128 %s, v248" % vr(kvb(0), 4))
    a("ds_read_b128 %s, v252" % vr(Q + 4, 4))
    if SM:
        a("ds_read_b128 %s, v248 offset:1024" % vr(kvb(0) + 4, 4))
    else:
        a("s_mov_b64 exec, s[30:31]")
        a("ds_read_b128 %s, v249 offset:1024" % vr(kvb(0) + 4, 4))
        a("ds_read_b128 %s, v249 offset:1536" % vr(kvb(0) + 8, 4))
        a("s_mov_b64 exec, -1")
    a.label("P2_START")
    r0 = 21 if LW else 28
    a("s_add_u32 s%d, s14, 1" % r0)
    a("s_lshl_b32 s%d, s%d, 11" % (r0, r0))
    a("s_and_b32 s%d, s%d, 0xffff" % (r0, r0))
    if LW:
        ld_k(1)
        adv()
        for i in range(2, NB):
            ld_k(i)
            ld_v(i - 1)
    else:
        for i in range(1, NB - 1):
            ld_k(i)
            ld_v(i)
    a("s_mov_b32 s23, 0")
    a("s_waitcnt lgkmcnt(%d)" % (2 + NLD))
    for j in range(2):
        a("v_mov_b32 v%d, v%d" % (C + 16 * j + 1, C + 16 * j))
        for r in range(2, 16, 2):
            a("v_mov_b64 %s, %s" % (vr(C + 16 * j + r, 2), vr(C + 16 * j, 2)))
        if j == 0:
            a("s_waitcnt lgkmcnt(%d)" % NLD)
            a("s_nop 0")
            a("%s %s, %s, %s, %s" % (MF32, vr(S, 16), vr(kvb(0), 4), vr(Q, 4), vr(C, 16)))
    a("s_waitcnt lgkmcnt(0)")
    a("s_nop 2")
    a("v_exp_f32 v%d, v%d" % (S, S))
    if not TOUCH:
        stamp(a, 6)

    def main_loop(sfx, older):
        a.raw(".p2align 6")
        a.label("P2_LOOP" + sfx)
        pos = [0]
        def mark():
            pos[0] += 1
            if older and PRIO and pos[0] % 24 == (24 - PRIO + 1) % 24:
                a("s_setprio 0")
            if older and PRIO and pos[0] % 24 == 1 and pos[0] > 1:
                a("s_setprio 1")
        for t in range(NB):
            for j in range(2):
                cur = S + 16 * j
                prv = S + 16 * (j ^ 1)
                nxt = prv
                E = lambda r: a("v_exp_f32 v%d, v%d" % (cur + r, cur + r))
                CV = lambda r: a("v_cvt_pk_bf16_f32 v%d, v%d, v%d" % (PB[j] + r // 2, cur + r, cur + r + 1))
                pb = kvb(t) if j == 1 else kvb(t - 1)
                nb = kvb(t) if j == 0 else kvb(t + 1)
                if not RAW:
                    a("v_cvt_pk_bf16_f32 v%d, v%d, v%d" % (PB[j ^ 1] + 7, prv + 14, prv + 15))
                def sync_point():
                    back = NB - 1 if LW else NB - 2
                    nwo = 0 if NOWO else sum(1 for k in range(t - back, t) if k % 4 == 0)
                    a("s_waitcnt vmcnt(%d)" % (NLD * back + nwo + (1 if SM else 0)))
                    if t % 4 == 0:
                        if not NOWO:
                            a("s_lshl_b32 s3, s38, 13")
                            a("s_add_u32 m0, s3, s37")
                            a("s_lshl3_add_u32 s3, s3, s36")
                            a("buffer_load_dwordx4 v4, s[40:43], s3 offen lds")
                            a("s_add_u32 s38, s38, 1")
                            a("s_and_b32 s38, s38, 7")
                        if older:
                            a("s_bitcmp1_b32 s32, s23")
                            a("s_cbranch_scc1 P2_HOOK")
                            a.label("P2_HRET%d" % (t // 4))
                        a("s_add_u32 s23, s23, 1")
                if RAW:
                    SPV = lambda jj, av, sv: a("v_smfmac_f32_32x32x32_bf16 %s, %s, %s, v%d" % (vr(O + 16 * jj, 16), vr(av, 4), vr(sv, 8), IXV))
                    E(1)
                    mark()
                    SPV(j ^ 1, pb + 8, prv + 8)
                    if j == 0:
                        ld_k(t - 1)
                        if not SPLIT:
                            ld_v(t - 1)
                    E(2); E(3); E(4)
                    if j == 1:
                        sync_point()
                    mark()
                    a("%s %s, %s, %s, %s" % (MF32, vr(nxt, 16), vr(nb, 4), vr(Q + 4 * (j ^ 1), 4), vr(C + 16 * (j ^ 1), 16)))
                    for r in range(5, P3POS + 1):
                        E(r)
                    mark()
                    SPV(j, kvb(t) + 4, cur)
                    if j == 0 and SPLIT:
                        ld_v(t - 1)
                    for r in range(P3POS + 1, 16):
                        E(r)
                    a("v_exp_f32 v%d, v%d" % (nxt, nxt))
                    continue
                if j == 1 and not LW:
                    sync_point()
                mark()
                a("%s %s, %s, %s, %s" % (MF32, vr(nxt, 16), vr(nb, 4), vr(Q + 4 * (j ^ 1), 4), vr(C + 16 * (j ^ 1), 16)))
                if j == 0:
                    ld_k(t if LW else t - 1)
                E(1); E(2); CV(0); E(3); E(4); CV(2); E(5)
                mark()
                if SM:
                    a("v_smfmac_f32_32x32x32_bf16 %s, %s, %s, v%d" % (vr(O + 16 * (j ^ 1), 16), vr(pb + 4, 4), vr(PB[j ^ 1], 8), IXV))
                else:
                    a("%s %s, %s, %s, %s" % (MF32, vr(O + 16 * (j ^ 1), 16), vr(pb + 8, 4), vr(P + 4, 4), vr(O + 16 * (j ^ 1), 16)))
                if j == 0:
                    ld_v(t - 1)
                E(6); CV(4); E(7); E(8); CV(6); E(9); E(10)
                if j == 0 and LW:
                    sync_point()
                mark()
                if SM:
                    a("v_smfmac_f32_16x16x64_bf16 %s, %s, %s, v%d" % (vr(LA + 4 * (j ^ 1), 4), vr(SA, 4), vr(PB[j ^ 1], 8), IXS))
                else:
                    a("%s %s, %s, %s, %s" % (MF32, vr(O + 16 * j, 16), vr(kvb(t) + 4, 4), vr(P, 4), vr(O + 16 * j, 16)))
                CV(8); E(11); E(12); CV(10); E(13); E(14); CV(12); E(15)
                a("v_exp_f32 v%d, v%d" % (nxt, nxt))
        if older and PRIO:
            a("s_setprio 1")
        if STAMP == 1:
            a("s_memtime s[100:101]")
            a("s_waitcnt lgkmcnt(0)")
            a("v_mov_b32 v255, s100")
            a("s_lshl_b32 s100, s2, 3")
            a("s_add_u32 s100, s100, s19")
            a("s_lshl_b32 s100, s100, 5")
            a("s_add_u32 s100, s100, s23")
            a("s_lshl_b32 s100, s100, 2")
            a("s_add_u32 s100, s100, %d" % (WS_ST + 15 * 4))
            a("buffer_store_dword v255, off, %s, s100" % WS)
        a("s_cmp_lt_u32 s23, 8")
        a("s_cbranch_scc1 P2_LOOP" + sfx)
    if PRIO:
        a("s_setprio 1")
    a("s_cmp_ge_u32 s19, 4")
    a("s_cbranch_scc1 P2_LOOPB")
    main_loop("A", True)
    a("s_branch P2_DRAIN")
    main_loop("B", False)
    a.label("P2_DRAIN")
    delay(a, 3, 7, 0x42)
    if SM:
        a("v_cvt_pk_bf16_f32 v%d, v%d, v%d" % (PB[1] + 7, S + 16 + 14, S + 16 + 15))
        a("v_pk_add_f32 %s, %s, %s" % (vr(O, 2), vr(O, 2), vr(O + 8, 2)))
        a("v_pk_add_f32 %s, %s, %s" % (vr(O + 2, 2), vr(O + 2, 2), vr(O + 10, 2)))
        a("v_smfmac_f32_16x16x64_bf16 %s, %s, %s, v%d" % (vr(LA + 4, 4), vr(SA, 4), vr(PB[1], 8), IXS))
        a("v_smfmac_f32_32x32x32_bf16 %s, %s, %s, v%d" % (vr(O + 16, 16), vr(kvb(NB - 1) + 4, 4), vr(PB[1], 8), IXV))
        a("ds_write_b128 v%d, %s" % (CW16, vr(O, 4)))
        a("v_pk_add_f32 %s, %s, %s" % (vr(O + 4, 2), vr(O + 4, 2), vr(O + 12, 2)))
        a("v_pk_add_f32 %s, %s, %s" % (vr(O + 6, 2), vr(O + 6, 2), vr(O + 14, 2)))
        a("v_add_f32 v%d, v%d, v%d" % (O + 8, LA, LA + 1))
        a("ds_write_b128 v%d, %s offset:1024" % (CW16, vr(O + 4, 4)))
        a("ds_write_b32 v%d, v%d offset:2048" % (CW4, O + 8))
        stamp(a, 7)
        stamp(a, 27, True)
        ev(a, 2)
        a("s_mov_b32 s28, 0x4f800000")
        a("s_nop 5")
        a("v_add_f32 v%d, v%d, v%d" % (LA + 4, LA + 4, LA + 5))
    else:
        if not RAW:
            a("v_cvt_pk_bf16_f32 v%d, v%d, v%d" % (P + 7, S + 16 + 14, S + 16 + 15))
        a("ds_write_b128 v%d, %s" % (CW16, vr(O, 4)))
        a("ds_write_b32 v%d, v%d offset:2048" % (CW4, O + 8))
        if RAW:
            a("v_smfmac_f32_32x32x32_bf16 %s, %s, %s, v%d" % (vr(O + 16, 16), vr(kvb(NB - 1) + 8, 4), vr(S + 24, 8), IXV))
        else:
            a("%s %s, %s, %s, %s" % (MF32, vr(O + 16, 16), vr(kvb(NB - 1) + 8, 4), vr(P + 4, 4), vr(O + 16, 16)))
        a("ds_write_b128 v%d, %s offset:1024" % (CW16, vr(O + 4, 4)))
        stamp(a, 7)
        stamp(a, 27, True)
        ev(a, 2)
        a("s_mov_b32 s28, 0x4f800000")
        a("s_nop 9")
    L1 = LA + 4 if SM else O + 24
    a("v_max_f32 v%d, v%d, v%d" % (S, O + 8, L1))
    a("v_cmp_u_f32 s[56:57], v%d, v%d" % (O + 8, L1))
    a("v_cmp_lt_f32 vcc, s28, v%d" % S)
    a("s_nop 3")
    a("s_or_b64 s[56:57], s[56:57], vcc")
    a("s_cbranch_scc0 P2_NOFLAG")
    a("v_mov_b32 v%d, 1" % S)
    a("ds_write_b32 v%d, v%d offset:8" % (VM, S))
    a.label("P2_NOFLAG")
    if SENT:
        a("s_cmp_eq_u32 s32, 0")
        a("s_cbranch_scc1 P2_MKD")
        a("v_cmp_ne_u32 vcc, s%d, v%d" % (S_TAG, T + 34))
        a("s_nop 3")
        a("s_cbranch_vccnz P2_MKR")
        a.label("P2_MKD")
    if SM:
        for r in range(0, 8, 2):
            a("v_pk_add_f32 %s, %s, %s" % (vr(O + 16 + r, 2), vr(O + 16 + r, 2), vr(O + 24 + r, 2)))
    a("s_waitcnt vmcnt(%d) lgkmcnt(0)" % (3 * NLD))
    a("s_barrier")
    if EP:
        a("buffer_load_dword v%d, v%d, %s, s10 offen sc1" % (S + 4, HFL, WS))
    a("ds_read_b32 v%d, v%d offset:8" % (S + 1, VM))
    a("ds_read_b32 v%d, v%d offset:2048" % (O + 8, CR4))
    a("ds_read_b128 %s, v%d" % (vr(O, 4), CR16))
    a("ds_read_b128 %s, v%d offset:1024" % (vr(O + 4, 4), CR16))
    a("s_waitcnt lgkmcnt(2)")
    a("v_readfirstlane_b32 s23, v%d" % (S + 1))
    a("v_add_f32 v%d, v%d, v%d" % (O + 8, O + 8, L1))
    a("v_rcp_f32 v%d, v%d" % (O + 8, O + 8))
    a("s_cmp_gt_u32 s23, s29")
    a("s_cbranch_scc1 P2_EXACT")
    a("v_mov_b32 v%d, v%d" % (O + 9, O + 8))
    a("s_waitcnt lgkmcnt(0)")
    for r in range(0, 8, 2):
        a("v_pk_add_f32 %s, %s, %s" % (vr(O + r, 2), vr(O + r, 2), vr(O + 16 + r, 2)))
    for r in range(0, 8, 2):
        a("v_pk_mul_f32 %s, %s, %s" % (vr(O + r, 2), vr(O + r, 2), vr(O + 8, 2)))
    for r in range(4):
        a("v_cvt_pk_bf16_f32 v%d, v%d, v%d" % (O + 16 + r, O + 2 * r, O + 2 * r + 1))
    if SENT:
        for r in range(4):
            a("v_min_u32 v%d, -2, v%d" % (O + 16 + r, O + 16 + r))
    a("buffer_store_dwordx4 %s, v2, %s, s33 offen sc1" % (vr(O + 16, 4), WS))
    stamp(a, 8)
    delay(a, 4, 3, 0x91)

    YR = 96
    a("s_and_b32 s21, s%d, 0xffff" % S_KEY)
    a("s_cmp_lt_u32 s19, 4")
    a("s_cbranch_scc1 P3_MUL")
    if SENT:
        HB = 188
        a("s_add_u32 s20, s11, 32768")
        a("s_add_u32 s13, s11, 4096")
        a("s_add_u32 s28, s20, 4096")
        def ld_quad(q):
            for t in range(2):
                for i in range(4):
                    a("buffer_load_dwordx4 %s, v2, %s, s%d offen offset:%d sc1" % (vr(HB + 32 * q + 16 * t + 4 * i, 4), WS, ((11, 20), (13, 28))[q][t], i * 1024))
        ld_quad(0)
        ld_quad(1)
        a("v_add_u32 v8, s12, v2")
        a("v_mov_b32 v10, 1")
        a("s_mov_b32 s22, 3")
        a("s_mov_b32 s94, 0")
        a.label("P3_HL")
        a("s_add_u32 s94, s94, 1")
        for q in range(2):
            a("s_bitcmp1_b32 s22, %d" % q)
            a("s_cbranch_scc0 P3_HS%d" % q)
            if q == 0:
                a("s_cmp_eq_u32 s22, 3")
                a("s_cbranch_scc1 P3_HW1")
                a("s_waitcnt vmcnt(0)")
                a.label("P3_HW1")
                a("s_waitcnt vmcnt(8)")
            else:
                a("s_waitcnt vmcnt(0)")
            hb = HB + 32 * q
            a("v_max3_u32 v11, v%d, v%d, v%d" % (hb, hb + 1, hb + 2))
            for r in range(3, 31, 2):
                a("v_max3_u32 v11, v11, v%d, v%d" % (hb + r, hb + r + 1))
            a("v_max_u32 v11, v11, v%d" % (hb + 31))
            a("v_cmp_eq_u32 vcc, -1, v11")
            a("s_cmp_ge_u32 s94, 0x40000")
            a("s_cbranch_scc1 P3_HG%d" % q)
            a("s_nop 0")
            a("s_cbranch_vccnz P3_HS%d" % q)
            a.label("P3_HG%d" % q)
            for p in range(8):
                a("ds_write_b128 v8, %s offset:%d" % (vr(hb + 4 * p, 4), L_X + q * 8192 + p * 1024))
            a("ds_write_b32 v%d, v10 offset:%d" % (HLD, 32 + 4 * q))
            a("s_bitset0_b32 s22, %d" % q)
            a.label("P3_HS%d" % q)
        a("s_cmp_eq_u32 s22, 0")
        a("s_cbranch_scc1 P3_HE")
        for q in range(2):
            a("s_bitcmp1_b32 s22, %d" % q)
            a("s_cbranch_scc0 P3_HR%d" % q)
            ld_quad(q)
            a.label("P3_HR%d" % q)
        a("s_branch P3_HL")
        a.label("P3_HE")
        stamp(a, 10)
        stamp(a, 28, True)
    else:
        if not EP:
            a("buffer_load_dword v8, v%d, %s, s10 offen sc1" % (HFL, WS))
        a("v_mov_b32 v10, 1")
        a("s_mov_b32 s22, 0")
        a("s_mov_b32 s13, 0")
        a("s_mov_b32 s94, 0")
        if EP:
            a("s_waitcnt vmcnt(1)")
            a("v_mov_b32 v8, v%d" % (S + 4))
        else:
            a("s_waitcnt vmcnt(0)")
            last_wave_flag(a, "P3_FLB", VM, 16, 8, 98, 12)
            stamp(a, 9)
            stamp(a, 30, True)
        a.label("P3_HL")
        a("v_cmp_eq_u32 vcc, s%d, v8" % S_TAG)
        a("s_add_u32 s94, s94, 1")
        a("s_cmp_ge_u32 s94, 0x40000")
        a("s_cselect_b32 s23, 3, vcc_lo")
        a("s_and_b32 s23, s23, 3")
        a("s_andn2_b32 s23, s23, s22")
        a("s_or_b32 s22, s22, s23")
        a("s_cmp_eq_u32 s22, 3")
        a("s_cbranch_scc1 P3_HN")
        a("buffer_load_dword v8, v%d, %s, s10 offen sc1" % (HFL, WS))
        a.label("P3_HN")
        for q in range(2):
            a("s_bitcmp1_b32 s23, %d" % q)
            a("s_cbranch_scc0 P3_HS%d" % q)
            for t in range(2):
                a("s_add_u32 m0, s12, %d" % (L_X + q * 8192 + t * 4096))
                a("s_add_u32 s3, s11, %d" % (q * 4096 + t * 32768))
                for i in range(4):
                    a("buffer_load_dwordx4 v2, %s, s3 offen offset:%d sc1 lds" % (WS, i * 1024))
            a.label("P3_HS%d" % q)
        if EP:
            a("s_cmp_lg_u32 s94, 1")
            a("s_cbranch_scc1 P3_HC")
            a("s_cmp_eq_u32 s23, 3")
            a("s_cbranch_scc1 P3_HC2")
            a("s_cmp_eq_u32 s23, 0")
            a("s_cbranch_scc1 P3_HC0")
            a("s_waitcnt vmcnt(9)")
            a("s_branch P3_HCD")
            a.label("P3_HC0")
            a("s_waitcnt vmcnt(1)")
            a.label("P3_HC2")
            a("s_waitcnt vmcnt(16)")
            a.label("P3_HCD")
            last_wave_flag(a, "P3_FLB", VM, 16, 8, 98, 12)
            stamp(a, 9)
            stamp(a, 30, True)
            a.label("P3_HC")
        a("s_cmp_eq_u32 s22, 3")
        a("s_cbranch_scc1 P3_HE")
        a("s_cmp_eq_u32 s23, 0")
        a("s_cbranch_scc1 P3_HW")
        a("s_waitcnt vmcnt(8)")
        a("s_branch P3_HL")
        a.label("P3_HW")
        a("s_waitcnt vmcnt(0)")
        a("s_cmp_eq_u32 s13, s22")
        a("s_cbranch_scc1 P3_HL")
        a("s_mov_b32 s13, s22")
        a("s_lshr_b32 s3, s22, 1")
        a("s_lshl_b32 s3, s3, 2")
        a("v_add_u32 v9, s3, v%d" % HLD)
        a("ds_write_b32 v9, v10 offset:32")
        a("s_branch P3_HL")
        a.label("P3_HE")
        stamp(a, 10)
        stamp(a, 28, True)
        a("s_cmp_eq_u32 s23, 1")
        a("s_cselect_b32 s3, 4, 0")
        a("v_add_u32 v9, s3, v%d" % HLD)
        a("s_waitcnt vmcnt(8)")
        a("ds_write_b32 v9, v10 offset:32")
        a("s_waitcnt vmcnt(0)")
        a("ds_write_b32 v%d, v10 offset:32" % HLD)
        a("ds_write_b32 v%d, v10 offset:36" % HLD)
    if SPAN and SPANW:
        a("s_lshl_b32 s3, s2, 3")
        a("s_add_u32 s3, s3, s19")
        a("s_cmp_lg_u32 s3, %d" % (77 * 8 + 6))
        a("s_cbranch_scc1 L_END")
        a("s_sub_u32 s13, s59, s58")
        a("s_min_u32 s13, s13, 10000")
        a("s_mul_i32 s13, s13, 10")
        a("s_memrealtime s[20:21]")
        a.label("SP_LOOP")
        a("s_memrealtime s[22:23]")
        a("s_waitcnt lgkmcnt(0)")
        a("s_sub_u32 s17, s22, s20")
        a("s_cmp_lt_u32 s17, s13")
        a("s_cbranch_scc1 SP_LOOP")
    a("s_endpgm")
    a.label("P3_MUL")
    a("s_sub_u32 s21, 0xffff, s21")
    a("s_lshr_b32 s20, s21, 5")
    ACC3, OB, B, YR = 16, 32, 80, 96
    def wof(h):
        return (190 + 4 * h) if h < 16 else (120 + 4 * (h - 16)) if h < 28 else (104 + 4 * (h - 28))
    def rd_wo(h):
        a("ds_read_b64_tr_b16 %s, v%d offset:%d" % (vr(wof(h), 2), VWO, h * 2048))
        a("ds_read_b64_tr_b16 %s, v%d offset:%d" % (vr(wof(h) + 2, 2), VWO, h * 2048 + 1024))
    for h in list(range(16)) + list(range(28, 32)):
        rd_wo(h)
    srd(a, 44, P_OUT, 2048 * 512 * 2)
    for i in range(8):
        a("v_lshlrev_b32 v%d, 16, v%d" % (B + 2 * i, XR + i))
        a("v_and_b32 v%d, 0xffff0000, v%d" % (B + 2 * i + 1, XR + i))
    for r in range(0, 16, 2):
        a("v_mov_b64 %s, 0" % vr(ACC3 + r, 2))
    a("v_and_b32 v5, 7, v0")
    a("v_lshl_add_u32 v5, v5, 2, v%d" % VM)
    if SENT:
        a("s_waitcnt vmcnt(1)")
    else:
        a("s_waitcnt vmcnt(0)")
        last_wave_flag(a, "P3_FLA", VM, 16, 8, 98, 8)
    stamp(a, 9)
    stamp(a, 30, True)
    for h in range(16, 28):
        rd_wo(h)
    a("s_cmp_eq_u32 s20, s4")
    a("s_cbranch_scc1 P3_YJOB")
    a.label("P3_YD")
    for i in range(16):
        a("v_mul_f32 v%d, v%d, v%d" % (B + i, B + i, GR + 1))
    a("s_mov_b32 s22, 0")
    a("s_mov_b32 s94, 0")
    a.label("P3_ROUND")
    a("ds_read_b32 v8, v5 offset:32")
    a("s_add_u32 s94, s94, 1")
    a("s_waitcnt lgkmcnt(0)")
    a("v_cmp_ne_u32 vcc, 0, v8")
    a("s_cmp_ge_u32 s94, 0x2000000")
    a("s_cbranch_scc1 P3_FIN")
    a("s_and_b32 s23, vcc_lo, 0xff")
    if DET:
        a("s_add_u32 s3, s23, 1")
        a("s_xor_b32 s23, s23, s3")
        a("s_lshr_b32 s23, s23, 1")
    a("s_andn2_b32 s23, s23, s22")
    a("s_cbranch_scc0 P3_ROUND")
    def rd_o(g):
        for i in range(4):
            a("ds_read_b128 %s, v%d offset:%d" % (vr(OB + 16 * (g & 1) + 4 * i, 4), VOF, L_X + g * 8192 + i * 1024))
    for g in range(8):
        a("s_bitcmp1_b32 s23, %d" % g)
        a("s_cbranch_scc0 P3_SK%d" % g)
        if g > 0:
            a("s_bitcmp1_b32 s23, %d" % (g - 1))
            a("s_cbranch_scc1 P3_HV%d" % g)
        rd_o(g)
        a.label("P3_HV%d" % g)
        if g < 7:
            rd_o(g + 1)
        for i in range(4):
            a("s_waitcnt lgkmcnt(%d)" % ((4 if g < 7 else 0) + 3 - i))
            a("%s %s, %s, %s, %s" % (MF32, vr(ACC3, 16), vr(wof(4 * g + i), 4), vr(OB + 16 * (g & 1) + 4 * i, 4), vr(ACC3, 16)))
        a.label("P3_SK%d" % g)
    a("s_or_b32 s22, s22, s23")
    a("s_cmp_lg_u32 s22, 0xff")
    a("s_cbranch_scc1 P3_ROUND")
    a.label("P3_FIN")
    stamp(a, 11)
    a("s_nop 10")
    for i in range(16):
        a("v_fma_f32 v%d, v%d, v%d, v%d" % (B + i, ACC3 + i, GR, B + i))
        if i % 2 == 1:
            a("v_cvt_pk_bf16_f32 v%d, v%d, v%d" % (XR + i // 2, B + i - 1, B + i))
        if i == 8:
            a("buffer_store_dwordx4 %s, v%d, s[44:47], s6 offen" % (vr(XR, 4), VXO))
    a("buffer_store_dwordx4 %s, v%d, s[44:47], s6 offen offset:16" % (vr(XR + 4, 4), VXO))
    stamp(a, 12)
    stamp(a, 25, True)
    if SPAN and not SPANW:
        ev(a, 3)
        a("s_lshl_b32 s3, s2, 3")
        a("s_add_u32 s3, s3, s19")
        a("s_cmp_lg_u32 s3, %d" % (77 * 8))
        a("s_cbranch_scc1 L_END")
        a("s_sub_u32 s13, s99, s13")
        a("s_min_u32 s13, s13, 10000")
        a("s_mul_i32 s13, s13, 10")
        a("s_memrealtime s[20:21]")
        a.label("SP_LOOP")
        a("s_memrealtime s[22:23]")
        a("s_waitcnt lgkmcnt(0)")
        a("s_sub_u32 s17, s22, s20")
        a("s_cmp_lt_u32 s17, s13")
        a("s_cbranch_scc1 SP_LOOP")
    a.label("L_END")
    a("s_endpgm")

    def ld_fl3(va=252):
        a("v_lshlrev_b32 v%d, 7, v0" % va)
        for i in range(4):
            a("s_mov_b32 s3, %d" % (WS_FL3 + i * 8192))
            a("buffer_load_dword v%d, v%d, %s, s3 offen sc1" % (F3 + i, va, WS))
    a.label("P3_YJOB")
    a("s_mov_b32 s94, 0")
    a.label("P3_ALL")
    for i in range(4):
        a("v_xor_b32 v%d, s%d, v%d" % (F3 + i, S_TAG, F3 + i))
    a("v_or3_b32 v%d, v%d, v%d, v%d" % (F3, F3, F3 + 1, F3 + 2))
    a("v_or_b32 v%d, v%d, v%d" % (F3, F3, F3 + 3))
    a("v_cmp_ne_u32 vcc, 0, v%d" % F3)
    a("s_add_u32 s94, s94, 1")
    a("s_cmp_ge_u32 s94, 0x40000")
    a("s_cbranch_scc1 P3_ALLD")
    a("s_cbranch_vccz P3_ALLD")
    ld_fl3(13)
    a("s_waitcnt vmcnt(0)")
    a("s_branch P3_ALL")
    a.label("P3_ALLD")
    a("v_lshrrev_b32 v12, 2, v0")
    a("v_and_b32 v13, 3, v0")
    a("v_lshlrev_b32 v14, 7, v12")
    a("v_lshl_add_u32 v14, v13, 4, v14")
    a("v_lshlrev_b32 v12, 11, v12")
    a("v_lshl_add_u32 v12, v13, 4, v12")
    a("s_lshr_b32 s30, s5, 8")
    a("s_lshl_b32 s30, s30, 9")
    a("s_and_b32 s31, s5, 255")
    a("s_add_u32 s30, s30, s31")
    a("s_add_u32 s30, s30, %d" % WS_Y)
    a("buffer_load_dwordx4 %s, v12, %s, s30 offen sc1" % (vr(YR, 4), WS))
    a("buffer_load_dwordx4 %s, v12, %s, s30 offen offset:256 sc1" % (vr(YR + 4, 4), WS))
    a("s_mul_i32 s30, s19, 2304")
    a("s_add_u32 s30, s30, %d" % L_QX)
    a("v_add_u32 v14, s30, v14")
    a("s_waitcnt vmcnt(0)")
    a("ds_write_b128 v14, %s" % vr(YR, 4))
    a("ds_write_b128 v14, %s offset:64" % vr(YR + 4, 4))
    a("v_lshlrev_b32 v14, 10, v7")
    a("v_lshl_add_u32 v14, v6, 2, v14")
    a("v_add_u32 v14, s30, v14")
    a("s_waitcnt lgkmcnt(0)")
    for i in range(8):
        a("ds_read_b32 v%d, v14 offset:%d" % (YR + i, i * 128))
    a("s_and_b32 s31, s%d, 0xffff0000" % S_KEY)
    a("s_ashr_i32 s28, s31, 31")
    a("s_not_b32 s28, s28")
    a("s_or_b32 s28, s28, 0x80000000")
    a("s_xor_b32 s31, s31, s28")
    a("s_and_b32 s31, s31, 0xffff0000")
    a("v_mov_b32 v15, s31")
    sigmoid_bf16(a, 15)
    a("s_waitcnt lgkmcnt(0)")
    for i in range(1, 8):
        a("v_add_f32 v%d, v%d, v%d" % (YR, YR, YR + i))
    a("v_mov_b32 v%d, v%d" % (YR + 1, YR))
    a("v_and_b32 v14, 15, v0")
    a("v_lshlrev_b32 v14, 3, v14")
    a("v_permlane32_swap_b32 v%d, v%d" % (YR, YR + 1))
    a("v_add_f32 v%d, v%d, v%d" % (YR, YR, YR + 1))
    bf16_round_to_f32(a, YR, YR)
    a("v_mul_f32 v%d, v%d, v15" % (YR, YR))
    bf16_round_to_f32(a, YR, YR)
    a("v_bfe_u32 v15, v0, 4, 1")
    a("v_lshl_add_u32 v14, v15, 2, v14")
    a("v_add_u32 v14, s30, v14")
    a("ds_write_b32 v14, v%d offset:2048" % YR)
    a("v_lshl_add_u32 v14, v7, 6, s30")
    for i in range(4):
        a("ds_read_b128 %s, v14 offset:%d" % (vr(OB + 4 * i, 4), 2048 + i * 16))
    a("s_and_b32 s30, s21, 31")
    a("v_cmp_eq_u32 vcc, s30, v6")
    a("s_waitcnt lgkmcnt(0)")
    a("s_and_saveexec_b64 s[48:49], vcc")
    for i in range(16):
        a("v_add_f32 v%d, v%d, v%d" % (B + i, B + i, OB + i))
        bf16_round_to_f32(a, B + i, B + i)
    a("s_mov_b64 exec, s[48:49]")
    a("s_branch P3_YD")

    a.label("P2_HRET")
    if NB == 8:
        a("s_bitcmp1_b32 s23, 0")
        a("s_cbranch_scc1 P2_HRET1")
    a("s_branch P2_HRET0")
    def gu_base():
        a("s_cmp_lt_u32 s19, 2")
        a("s_cselect_b32 s44, s%d, s%d" % (P_WG, P_WU))
        a("s_cselect_b32 s45, s%d, s%d" % (P_WG + 1, P_WU + 1))
        a("s_and_b32 s52, s2, 7")
        a("s_mul_i32 s52, s52, %d" % (64 * 3584))
        a("s_lshr_b32 s53, s2, 3")
        a("s_lshl_b32 s53, s53, 7")
        a("s_add_u32 s52, s52, s53")
    def warm_gu(lo, hi):
        if not WARM:
            return
        gu_base()
        a("s_and_b32 s53, s19, 1")
        a("s_mul_i32 s53, s53, %d" % (32 * 3584))
        a("s_add_u32 s52, s52, s53")
        a("s_add_u32 s44, s44, s52")
        a("s_addc_u32 s45, s45, 0")
        for i in range(lo, hi):
            a("s_load_dword s99, s[44:45], 0x%x" % (i * 3584))
    def warm_wd(lo, hi):
        if not WARM:
            return
        a("s_lshl_b32 s52, s2, 13")
        a("s_lshl_b32 s53, s19, 8")
        a("s_add_u32 s52, s52, s53")
        a("s_add_u32 s44, s%d, s52" % P_WD)
        a("s_addc_u32 s45, s%d, 0" % (P_WD + 1))
        for i in range(lo, hi):
            a("s_load_dword s99, s[44:45], 0x%x" % ((i // 2) * 1024 + (i % 2) * 128))
    def only_ffn():
        a("s_cmp_ge_u32 s2, 224")
        a("s_cbranch_scc1 P2_HRET")
    def check_tags(name, regs, reload):
        a("s_mov_b32 s94, 0")
        a.label(name + "L")
        a("v_cmp_ne_u32 vcc, s%d, v%d" % (S_TAG, regs[0]))
        for r in regs[1:]:
            a("v_cmp_ne_u32 s[52:53], s%d, v%d" % (S_TAG, r))
            a("s_nop 1")
            a("s_or_b64 vcc, vcc, s[52:53]")
        a("s_add_u32 s94, s94, 1")
        a("s_cmp_ge_u32 s94, 0x40000")
        a("s_cbranch_scc1 %sD" % name)
        a("s_cbranch_vccz %sD" % name)
        reload()
        a("s_waitcnt vmcnt(0)")
        a("s_branch %sL" % name)
        a.label(name + "D")
    def ld_keys():
        a("v_lshlrev_b32 v5, 3, v0")
        a("s_mov_b32 s3, %d" % WS_RK)
        a("buffer_load_dwordx2 %s, v5, %s, s3 offen sc1" % (vr(DD, 2), WS))
    def job_argmax():
        check_tags("P2_CK", [DD + 1], ld_keys)
        for sh in (1, 2, 4, 8):
            a("v_max_u32_dpp v%d, v%d, v%d row_ror:%d row_mask:0xf bank_mask:0xf" % (DD, DD, DD, sh))
            a("s_nop 1")
        for i in range(4):
            a("v_readlane_b32 s%d, v%d, %d" % (52 + i, DD, 16 * i))
        srd(a, 44, P_X, 2048 * 512 * 2)
        a("s_max_u32 s52, s52, s53")
        a("s_max_u32 s54, s54, s55")
        a("s_max_u32 s52, s52, s54")
        a("s_mov_b32 s%d, s52" % S_KEY)
        a("s_cmp_lt_u32 s2, 224")
        a("s_cselect_b32 s32, s32, 0x%x" % (0x80 if PLAN >= 5 else 0xc0))
        only_ffn()
        a("s_and_b32 s52, s52, 0xffff")
        a("s_sub_u32 s52, 0xffff, s52")
        a("s_and_b32 s52, s52, 2047")
        a("s_lshl_b32 s52, s52, 10")
        a("s_and_b32 s53, s2, 7")
        a("s_lshl_b32 s53, s53, 7")
        a("s_add_u32 s52, s52, s53")
        a("v_lshrrev_b32 v5, 4, v0")
        a("v_lshlrev_b32 v5, 4, v5")
        for s_ in range(2):
            a("buffer_load_dwordx4 %s, v5, s[44:47], s52 offen offset:%d" % (vr(XS + 4 * s_, 4), 64 * s_))
    def job_gu(lo, hi):
        only_ffn()
        gu_base()
        a("s_and_b32 s45, s45, 0xffff")
        a("s_mov_b32 s46, 0x%x" % (512 * 1792 * 2))
        a("s_mov_b32 s47, 0x00020000")
        a("v_lshrrev_b32 v5, 2, v0")
        a("v_mul_u32_u24 v5, 3584, v5")
        a("v_and_b32 v252, 3, v0")
        a("v_lshl_add_u32 v5, v252, 4, v5")
        a("s_and_b32 s53, s19, 1")
        a("s_lshl_b32 s53, s53, 6")
        a("s_add_u32 s52, s52, s53")
        a("s_lshl_b32 s54, s19, 12")
        for i in range(lo, hi):
            a("s_add_u32 m0, s54, %d" % (L_FFW + i * 1024))
            a("s_add_u32 s53, s52, %d" % (i * 16 * 3584))
            a("buffer_load_dwordx4 v5, s[44:47], s53 offen lds")
    def job_wd(lo=0, hi=8):
        srd(a, 48, P_WD, 1792 * 512 * 2)
        a("s_lshl_b32 s52, s2, 13")
        a("s_lshl_b32 s53, s19, 8")
        a("s_add_u32 s52, s52, s53")
        a("v_lshlrev_b32 v5, 2, v0")
        a("s_add_u32 s53, s52, 4096")
        for f in range(lo, hi):
            a("buffer_load_dword v%d, v5, s[48:51], s%d offen offset:%d" % (WD + f, 52 + f // 4, (f % 4) * 1024))
    def job_part():
        a("v_lshrrev_b32 v5, 4, v0")
        a("v_lshlrev_b32 v5, 9, v5")
        a("v_bfe_u32 v252, v0, 2, 2")
        a("v_lshl_add_u32 v5, v252, 6, v5")
        a("v_and_b32 v252, 3, v0")
        a("v_lshl_add_u32 v5, v252, 3, v5")
        a("s_lshl_b32 s52, s19, 12")
        a("s_add_u32 s52, s52, %d" % L_FFW)
        a("v_add_u32 v5, s52, v5")
        for ct in range(2):
            for s_ in range(2):
                for half in range(2):
                    a("ds_read_b64_tr_b16 %s, v5 offset:%d" % (vr(BF + 4 * s_ + 2 * half, 2), ct * 32 + s_ * 2048 + half * 256))
            a("s_waitcnt lgkmcnt(0)")
            a("%s %s, %s, %s, 0" % (MF16, vr(DD + 4 * ct, 4), vr(XS, 4), vr(BF, 4)))
            a("%s %s, %s, %s, %s" % (MF16, vr(DD + 4 * ct, 4), vr(XS + 4, 4), vr(BF + 4, 4), vr(DD + 4 * ct, 4)))
        a("v_lshlrev_b32 v5, 3, v0")
        a("s_lshl_b32 s52, s2, 10")
        a("s_lshl_b32 s53, s19, 8")
        a("s_add_u32 s52, s52, s53")
        a("s_add_u32 s52, s52, %d" % WS_PA)
        a("s_nop 3")
        a("v_mov_b32 v%d, s%d" % (DD + 1, S_TAG))
        a("s_mov_b32 exec_hi, 0")
        a("s_mov_b32 exec_lo, 0xffff0000")
        a("v_mov_b32 v%d, v%d" % (DD, DD + 4))
        a("s_mov_b32 exec_lo, -1")
        a("buffer_store_dwordx2 %s, v5, %s, s52 offen sc1" % (vr(DD, 2), WS))
        a("s_mov_b64 exec, -1")
    def ld_part():
        a("v_lshrrev_b32 v5, 3, v0")
        a("v_lshlrev_b32 v5, 10, v5")
        a("v_and_b32 v252, 7, v0")
        a("v_lshl_add_u32 v5, v252, 3, v5")
        a("s_lshr_b32 s3, s2, 3")
        a("s_lshl_b32 s3, s3, 13")
        a("s_and_b32 s54, s2, 7")
        a("s_lshl_b32 s54, s54, 6")
        a("s_add_u32 s3, s3, s54")
        a("s_add_u32 s3, s3, %d" % WS_PA)
        a("buffer_load_dwordx2 %s, v5, %s, s3 offen sc1" % (vr(T, 2), WS))
        a("buffer_load_dwordx2 %s, v5, %s, s3 offen offset:512 sc1" % (vr(T + 2, 2), WS))
    def job_final():
        check_tags("P2_CP", [T + 1, T + 3], ld_part)
        G_, U_ = T, T + 2
        for r in (G_, U_):
            a("v_add_f32_dpp v%d, v%d, v%d row_ror:8 row_mask:0xf bank_mask:0xf" % (r, r, r))
        for op in ("v_permlane16_swap_b32", "v_permlane32_swap_b32"):
            for r in (G_, U_):
                a("v_mov_b32 v%d, v%d" % (r + 1, r))
            a("s_nop 0")
            for r in (G_, U_):
                a("%s v%d, v%d" % (op, r, r + 1))
            for r in (G_, U_):
                a("v_add_f32 v%d, v%d, v%d" % (r, r, r + 1))
        bf16_round_to_f32(a, G_, G_)
        bf16_round_to_f32(a, U_, U_)
        a("v_mul_f32 v%d, 0x%08x, v%d" % (T + 1, f32bits(-LOG2E), G_))
        a("v_exp_f32 v%d, v%d" % (T + 1, T + 1))
        a("v_mov_b32 v%d, 0" % (T + 4))
        a("v_add_f32 v%d, 1.0, v%d" % (T + 1, T + 1))
        a("v_rcp_f32 v%d, v%d" % (T + 1, T + 1))
        a("v_mov_b32 v%d, 0" % (T + 5))
        a("v_mul_f32 v%d, v%d, v%d" % (T + 1, T + 1, G_))
        bf16_round_to_f32(a, T + 1, T + 1)
        a("v_mul_f32 v%d, v%d, v%d" % (T + 1, T + 1, U_))
        a("v_cvt_pk_bf16_f32 v%d, v%d, v%d" % (T + 1, T + 1, T + 4))
        a("v_lshlrev_b32 v5, 2, v0")
        for i in range(8):
            a("v_readlane_b32 s%d, v%d, %d" % (44 + i, T + 1, i))
        a("s_lshl_b32 s60, s19, 9")
        a("s_and_b32 s61, s2, 15")
        a("s_lshl_b32 s61, s61, 11")
        a("s_add_u32 s60, s60, s61")
        a("s_add_u32 s60, s60, %d" % WS_Y)
        for i in range(8):
            a("s_lshl_b32 s%d, s%d, 16" % (52 + i, 44 + i))
        for i in range(8):
            a("v_dot2_f32_bf16 v%d, v%d, s%d, v%d" % (T + 4, WD + i, 44 + i, T + 4))
            a("v_dot2_f32_bf16 v%d, v%d, s%d, v%d" % (T + 5, WD + i, 52 + i, T + 5))
        a("s_nop 3")
        a("buffer_atomic_add_f32 v%d, v5, %s, s60 offen" % (T + 4, WS))
        a("buffer_atomic_add_f32 v%d, v5, %s, s60 offen offset:256" % (T + 5, WS))
    def job_tail():
        a("s_lshl_b32 s3, s2, 7")
        a("s_add_u32 s3, s3, %d" % WS_FL3)
        a("s_waitcnt vmcnt(0)")
        last_wave_flag(a, "P2_FL3", VM, 12, 4, 3, 5)
        srd(a, 44, P_X, 2048 * 512 * 2)
        a("buffer_load_dwordx4 %s, v%d, s[44:47], s6 offen" % (vr(XR, 4), VXO))
        a("buffer_load_dwordx4 %s, v%d, s[44:47], s6 offen offset:16" % (vr(XR + 4, 4), VXO))
        a("v_lshlrev_b32 v252, 3, v6")
        a("buffer_load_dwordx2 %s, v252, %s, s7 offen sc1" % (vr(GR, 2), WS))
    def job_key():
        a("s_cmp_eq_u32 s39, -1")
        a("s_cbranch_scc1 P2_NOKEY")
        a("s_lshl_b32 s3, s39, 3")
        a("s_add_u32 s3, s3, %d" % WS_RK)
        a("v_mov_b32 v%d, s%d" % (DD, S_KEY))
        a("v_mov_b32 v%d, s%d" % (DD + 1, S_TAG))
        a("s_waitcnt vmcnt(0)")
        a("s_mov_b64 exec, 1")
        a("buffer_store_dwordx2 %s, off, %s, s3 sc1" % (vr(DD, 2), WS))
        a("s_mov_b64 exec, -1")
        a.label("P2_NOKEY")
    def job_mark():
        a("s_add_u32 s3, s33, 32768")
        a("v_mov_b64 %s, -1" % vr(XR, 2))
        a("v_mov_b64 %s, -1" % vr(XR + 2, 2))
        a("buffer_store_dwordx4 %s, v2, %s, s33 offen sc1" % (vr(XR, 4), WS))
        a("buffer_store_dwordx4 %s, v2, %s, s3 offen sc1" % (vr(XR, 4), WS))
    def ld_marks():
        assert MAP == 1
        a("v_and_b32 v5, 7, v0")
        a("v_lshlrev_b32 v5, 7, v5")
        a("s_lshl_b32 s3, s62, 10")
        a("s_add_u32 s3, s3, %d" % WS_FL3)
        a("buffer_load_dword v%d, v5, %s, s3 offen sc1" % (T + 34, WS))
    def job_own():
        a("s_and_b32 s52, s%d, 0xffff" % S_KEY)
        a("s_sub_u32 s52, 0xffff, s52")
        a("s_lshr_b32 s52, s52, 5")
        a("s_cmp_lg_u32 s52, s4")
        a("s_cbranch_scc1 P2_HRET")
        ld_fl3()
    def odd(b):
        a("s_bitcmp%d_b32 s2, 3" % b)
        a("s_cbranch_scc1 P2_HRET")
    if NB == 4:
        plans = {
            0: {0: [job_key], 1: [ld_keys, lambda: job_gu(0, 2)], 2: [job_argmax, lambda: job_gu(2, 4)], 3: [job_part, job_wd], 4: [ld_part], 5: [job_final], 6: [job_tail], 7: [job_own]},
            2: {0: [job_key, lambda: job_gu(0, 1)], 1: [ld_keys, lambda: job_gu(1, 3)], 2: [job_argmax, lambda: job_gu(3, 4)], 3: [job_part, job_wd], 4: [ld_part], 5: [job_final], 6: [job_tail], 7: [job_own]},
            3: {0: [job_key], 1: [ld_keys, lambda: job_gu(0, 4), job_wd], 2: [job_argmax], 3: [job_part], 4: [ld_part], 5: [job_final], 6: [job_tail], 7: [job_own]},
            4: {0: [job_key], 1: [ld_keys, lambda: odd(1), lambda: job_gu(0, 4), job_wd], 2: [job_argmax, lambda: odd(0), lambda: job_gu(0, 4), job_wd], 3: [job_part], 4: [ld_part], 5: [job_final], 6: [job_tail], 7: [job_own]},
            5: {0: [job_key], 1: [ld_keys, only_ffn, lambda: warm_gu(0, 14)], 2: [job_argmax, lambda: warm_gu(14, 28)], 3: [lambda: job_gu(0, 4), lambda: warm_wd(0, 14)], 4: [job_part, job_wd], 5: [ld_part], 6: [job_final], 7: [job_tail, job_own]},
            6: {0: [job_key, lambda: job_gu(0, 1)], 1: [ld_keys, lambda: job_gu(1, 2)], 2: [job_argmax, lambda: job_gu(2, 3)], 3: [lambda: job_gu(3, 4)], 4: [job_part, lambda: job_wd(0, 4)], 5: [ld_part, lambda: job_wd(4, 8)], 6: [job_final], 7: [job_tail, job_own]},
            7: {0: [job_key], 1: [ld_keys, lambda: job_gu(0, 1)], 2: [job_argmax, lambda: job_gu(1, 3)], 3: [lambda: job_gu(3, 4), lambda: job_wd(0, 3)], 4: [job_part, lambda: job_wd(3, 6)], 5: [ld_part, lambda: job_wd(6, 8)], 6: [job_final], 7: [job_tail, job_own]},
            1: {1: [ld_keys, lambda: job_gu(0, 1)], 2: [job_argmax, lambda: job_gu(1, 2)], 3: [lambda: job_gu(2, 4)], 4: [job_part], 5: [job_wd], 6: [ld_part], 7: [job_final]},
        }
    else:
        plans = {
            0: {0: [ld_keys], 1: [lambda: job_gu(0, 4)], 2: [job_argmax], 3: [job_wd], 4: [job_part], 5: [ld_part], 7: [job_final]},
        }
    plan = plans[PLAN]
    if SENT:
        plan[0] = plan[0] + [job_mark]
        plan[7] = [ld_marks] + plan[7]
        a.label("P2_MKR")
        check_tags("P2_CM", [T + 34], ld_marks)
        a("s_branch P2_MKD")
    a.label("P2_HOOK")
    delay(a, 2, 15, 0x05)
    for st in plan:
        a("s_cmp_eq_u32 s23, %d" % st)
        a("s_cbranch_scc1 P2_J%d" % st)
    a("s_branch P2_HRET")
    for st, jobs in plan.items():
        a.label("P2_J%d" % st)
        for jb in jobs:
            jb()
        a("s_branch P2_HRET")

    a.label("P2_EXACT")
    a("s_mov_b32 s29, 1")
    a("s_mov_b32 s32, 0")
    a("s_mov_b32 s23, 0xff800000")
    for j in range(2):
        a("v_mov_b32 v%d, s23" % (T + j))
    a("s_mov_b32 s28, s22")
    a("s_mov_b32 s23, 0")
    a("s_waitcnt vmcnt(0) lgkmcnt(0)")
    a.label("P2_EXLOOP")
    a("buffer_load_dwordx4 %s, v2, %s, s28 offen sc1" % (vr(KV, 4), WS))
    a("s_waitcnt vmcnt(0)")
    for j in range(2):
        a("%s %s, %s, %s, 0" % (MF32, vr(S, 16), vr(KV, 4), vr(Q + 4 * j, 4)))
        a("s_nop 15")
        for r in range(0, 16, 2):
            a("v_max3_f32 v%d, v%d, v%d, v%d" % (T + j, T + j, S + r, S + r + 1))
    a("s_add_u32 s28, s28, 2048")
    a("s_add_u32 s23, s23, 1")
    a("s_cmp_lt_u32 s23, 32")
    a("s_cbranch_scc1 P2_EXLOOP")
    a("s_lshl_b32 s23, s19, 9")
    a("s_lshl_b32 s28, s16, 8")
    a("s_add_u32 s23, s23, %d" % L_EX)
    a("v_lshl_add_u32 v5, v0, 2, s23")
    a("v_add_u32 v252, s28, v5")
    a("v_xor_b32 v253, 256, v252")
    a("ds_write_b32 v253, v%d" % T)
    a("ds_write_b32 v252, v%d" % (T + 1))
    a("s_waitcnt lgkmcnt(0)")
    a("s_barrier")
    a("s_lshl_b32 s23, s17, 9")
    a("s_add_u32 s23, s23, %d" % L_EX)
    a("v_lshl_add_u32 v5, v6, 2, s23")
    a("v_add_u32 v252, s28, v5")
    a("v_xor_b32 v253, 256, v252")
    for j in range(2):
        for kh in range(2):
            for hh in range(2):
                a("ds_read_b32 v%d, v%d offset:%d" % (S + kh * 2 + hh, 253 - j, kh * 2048 + hh * 128))
        a("s_waitcnt lgkmcnt(0)")
        a("v_max3_f32 v%d, v%d, v%d, v%d" % (S, S, S + 1, S + 2))
        a("v_max_f32 v%d, v%d, v%d" % (S, S, S + 3))
        a("v_sub_f32 v%d, 0, v%d" % (C + 16 * j, S))
    p2_init()
    a("s_lshl_b32 s28, s14, 11")
    a("s_mov_b32 s21, s28")
    ld_k(0)
    ld_v(0)
    a("s_waitcnt vmcnt(0)")
    a("s_branch P2_START")
    a.label("L_CODE_END")

DOC = """;
; Hand-offs between workgroups: sc1 (device-scope) stores, drained with vmcnt(0), then a flag or {value, tag} word that
; Workgroup -> tile maps exploit the usual id%8 XCD placement for L2 locality only.
;"""

def main():
    out = sys.argv[1] if len(sys.argv) > 1 else "cdna_kernels/%s.s" % NAME
    a = Asm()
    hdr = open("cdna_kernels/%s.s.ref" % NAME).read().split("\n")
    keep = [l for l in hdr if l.startswith(";") and "@launch" not in l and "Override launch" not in l and "grid=ceil" not in l]
    for l in keep:
        a.raw(l)
    a.raw("; @launch grid=(256,1,1) block=(512,1,1) lds=%d" % LDS_SIZE)
    a.raw(DOC)
    a.raw('.amdgcn_target "amdgcn-amd-amdhsa--gfx950"')
    a.raw(".text")
    gen(a)
    a.raw('.section .rodata,"a"')
    a.raw(""".p2align 6
.amdhsa_kernel %s_kernel
  .amdhsa_next_free_vgpr 256
  .amdhsa_next_free_sgpr 102
  .amdhsa_accum_offset 256
  .amdhsa_group_segment_fixed_size 0
  .amdhsa_kernarg_size 96
  .amdhsa_user_sgpr_count 2
  .amdhsa_user_sgpr_kernarg_segment_ptr 1
  .amdhsa_system_sgpr_workgroup_id_x 1
.end_amdhsa_kernel""" % NAME)
    open(out, "w").write(a.text())

if __name__ == "__main__":
    main()
```

```python
import sys, math, struct, os

NAME = "gated_mix__mha_block__moe_arch_mod__prompt"

WS_KV = 0
WS_O = (4 << 20) + 65536
WS_FL1 = WS_O + (2 << 20)
WS_FL2 = WS_FL1 + 32768
WS_FL3 = WS_FL2 + 32768
WS_RK = WS_FL3 + 32768
WS_PA = WS_RK + 8192
WS_G = WS_PA + 262144
WS_EP = WS_G + 16384
WS_Y = WS_EP + 1024
WS_ST = 7 << 20
WS_SIZE = 8 << 20

STAMP = int(os.environ.get("STAMP", "0"))
NB = int(os.environ.get("NB", "4"))
CPF = int(os.environ.get("CPF", "1"))
SLEEP = int(os.environ.get("SLEEP", "0"))
MAP = int(os.environ.get("MAP", "1"))
PRIO = int(os.environ.get("PRIO", "3"))
TOUCH = int(os.environ.get("TOUCH", "0"))
HMASK = int(os.environ.get("HMASK", "0xff"), 0)
WARM = int(os.environ.get("WARM", "0"))
PLAN = int(os.environ.get("PLAN", "0"))
QF = int(os.environ.get("QF", "20"))
DET = int(os.environ.get("DET", "1"))
EP = 0
SMODE = int(os.environ.get("SM", "2"))
SM = SMODE == 1
RAW = SMODE == 2
SPLIT = int(os.environ.get("SPLIT", "1"))
P3POS = int(os.environ.get("P3POS", "9"))
SENT = int(os.environ.get("SENT", "0"))
LW = int(os.environ.get("LW", "0"))
WOT = int(os.environ.get("WOT", "0"))
XLA = int(os.environ.get("XLA", "3"))
PD = int(os.environ.get("PD", "1"))
PGAP = int(os.environ.get("PGAP", "3"))
WQT = int(os.environ.get("WQT", "1"))
INIT = int(os.environ.get("INIT", "3"))
ROT = int(os.environ.get("ROT", "1"))
DELAY = int(os.environ.get("DELAY", "0"))
_dl = [0]
def delay(a, site, mod, wavemask=0xff):
    if not (DELAY >> site) & 1:
        return
    _dl[0] += 1
    a("s_mul_i32 s100, s2, %d" % (7 + 2 * site))
    a("s_and_b32 s100, s100, %d" % mod)
    a("s_cmp_lg_u32 s100, 1")
    a("s_cbranch_scc1 DL%d" % _dl[0])
    a("s_mov_b32 s100, %d" % wavemask)
    a("s_bitcmp1_b32 s100, s19")
    a("s_cbranch_scc0 DL%d" % _dl[0])
    for _ in range(6):
        a("s_sleep 127")
    a.label("DL%d" % _dl[0])
SPWG = int(os.environ.get("SPWG", "77"))
SPANW = int(os.environ.get("SPANW", "0"))
SPAN = os.environ.get("SPAN", "")
def ev(a, i):
    if not SPAN:
        return
    i0, i1 = [int(x) for x in SPAN.split(",")]
    for k, r in (((i0, 58), (i1, 59)) if SPANW else ((i0, 13), (i1, 99))):
        if k == i:
            a("s_memrealtime s[100:101]")
            a("s_waitcnt lgkmcnt(0)")
            a("s_mov_b32 s%d, s100" % r)
NOWO = int(os.environ.get("NOWO", "0"))

def f32bits(x):
    return struct.unpack("<I", struct.pack("<f", x))[0]

import re
_SRC = open(__file__).read().split("\n")

class Asm:
    def __init__(self):
        self.l = []
        self.seen = set()
    def _lead(self, ln):
        k = ln - 2
        while k >= 0 and re.match(r"\s*(for |if |def |[\w, ]+ = )", _SRC[k]) and ln - k < 6:
            k -= 1
        out = []
        while k >= 0 and _SRC[k].strip().startswith("#") and k not in self.seen:
            self.seen.add(k)
            out.append("    ; " + _SRC[k].strip().lstrip("#").strip())
            k -= 1
        self.l.extend(reversed(out))
    def __call__(self, s):
        ln = sys._getframe(1).f_lineno
        self._lead(ln)
        m = re.search(r"\)\s+# (.*)$", _SRC[ln - 1])
        tail = ""
        if m and (ln - 1) not in self.seen:
            self.seen.add(ln - 1)
            tail = "   ; " + m.group(1)
        self.l.append("    " + s.strip() + tail)
    def label(self, s):
        self._lead(sys._getframe(1).f_lineno)
        self.l.append(s + ":")
    def raw(self, s):
        self.l.append(s)
    def text(self):
        return "\n".join(self.l) + "\n"

def vr(b, n):
    return "v[%d:%d]" % (b, b + n - 1)
def sr(b, n):
    return "s[%d:%d]" % (b, b + n - 1)

def srd(a, d, base, nbytes):
    a("s_mov_b32 s%d, s%d" % (d, base))
    a("s_and_b32 s%d, s%d, 0xffff" % (d + 1, base + 1))
    a("s_mov_b32 s%d, 0x%x" % (d + 2, nbytes))
    a("s_mov_b32 s%d, 0x00020000" % (d + 3))

MF32 = "v_mfma_f32_32x32x16_bf16"
MF16 = "v_mfma_f32_16x16x32_bf16"
LOG2E = math.log2(math.e)

P_X, P_WQKV, P_WO, P_WR, P_WG, P_WU, P_WD, P_GW, P_OUT, P_DBG, P_WS = 64, 66, 68, 72, 74, 76, 78, 80, 82, 84, 86
WS = "s[88:91]"
S_TAG, S_KEY = 92, 93

def stamp(a, idx, real=False):
    if not STAMP:
        return
    a("s_memrealtime s[100:101]" if real else "s_memtime s[100:101]")
    a("s_waitcnt lgkmcnt(0)")
    a("v_mov_b32 v255, s100")
    a("s_lshl_b32 s100, s2, 3")
    a("s_add_u32 s100, s100, s19")
    a("s_lshl_b32 s100, s100, 7")
    a("s_add_u32 s100, s100, %d" % (WS_ST + idx * 4))
    a("buffer_store_dword v255, off, %s, s100" % WS)

def bf16_round_to_f32(a, dst, src):
    a("v_cvt_pk_bf16_f32 v%d, v%d, v%d" % (dst, src, src))
    a("v_lshlrev_b32 v%d, 16, v%d" % (dst, dst))

def sigmoid_bf16(a, r):
    a("v_mul_f32 v%d, 0x%08x, v%d" % (r, f32bits(-LOG2E), r))
    a("v_exp_f32 v%d, v%d" % (r, r))
    a("s_nop 0")
    a("v_add_f32 v%d, 1.0, v%d" % (r, r))
    a("v_rcp_f32 v%d, v%d" % (r, r))
    a("s_nop 0")
    bf16_round_to_f32(a, r, r)

def poll(a, name, t0, voff):
    a("s_mov_b32 s94, 0")
    a("s_branch %s_IN" % name)
    a.label(name)
    if SLEEP:
        a("s_sleep %d" % SLEEP)
    a.label(name + "_IN")
    a("buffer_load_dword v%d, v%d, %s, s95 offen sc1" % (t0, voff, WS))
    a("s_add_u32 s94, s94, 1")
    a("s_waitcnt vmcnt(0)")
    a("v_cmp_ne_u32 vcc, s%d, v%d" % (S_TAG, t0))
    a("s_cmp_ge_u32 s94, 0x40000")
    a("s_cbranch_scc1 %s_OUT" % name)
    a("s_cbranch_vccz %s_OUT" % name)
    a("s_mov_b64 exec, vcc")
    a("s_branch %s" % name)
    a.label(name + "_OUT")

def poll_deep(a, name, t0, voff):
    a("s_mov_b32 s94, 0")
    for i in range(PD - 1):
        a("buffer_load_dword v%d, v%d, %s, s95 offen sc1" % (t0 + i, voff, WS))
        a("s_sleep %d" % PGAP)
    a.label(name)
    for i in range(PD):
        a("buffer_load_dword v%d, v%d, %s, s95 offen sc1" % (t0 + (i + PD - 1) % PD, voff, WS))
        a("s_waitcnt vmcnt(%d)" % (PD - 1))
        a("v_cmp_ne_u32 vcc, s%d, v%d" % (S_TAG, t0 + i))
        a("s_add_u32 s94, s94, 1")
        a("s_nop 0")
        a("s_cbranch_vccz %s_OUT" % name)
        a("s_mov_b64 exec, vcc")
    a("s_cmp_lt_u32 s94, 0x10000")
    a("s_cbranch_scc1 %s" % name)
    a.label(name + "_OUT")

def last_wave_flag(a, name, vm, ldsoff, n, soff, t0):
    a("v_mov_b32 v%d, 1" % t0)
    a("s_mov_b64 exec, 1")
    a("ds_add_rtn_u32 v%d, v%d, v%d offset:%d" % (t0, vm, t0, ldsoff))
    a("s_waitcnt lgkmcnt(0)")
    a("v_readfirstlane_b32 s97, v%d" % t0)
    a("v_mov_b32 v%d, s%d" % (t0, S_TAG))
    a("s_nop 1")
    a("s_cmp_lg_u32 s97, %d" % (n - 1))
    a("s_cbranch_scc1 %s" % name)
    a("buffer_store_dword v%d, off, %s, s%d sc1" % (t0, WS, soff))
    a.label(name)
    a("s_mov_b64 exec, -1")

def get_tag(a, name, t0):
    a("s_mov_b32 s94, 0")
    a.label(name + "L")
    a("s_waitcnt vmcnt(0)")
    a("v_readfirstlane_b32 s95, v%d" % (t0 + 1))
    a("s_add_u32 s94, s94, 1")
    a("s_cmp_ge_u32 s94, 0x40000")
    a("s_cbranch_scc1 %sD" % name)
    a("s_cmp_lg_u32 s95, 0")
    a("s_cbranch_scc1 %sD" % name)
    a("buffer_load_dwordx2 %s, off, s[24:27], 0 sc1" % vr(t0, 2))
    a("s_branch %sL" % name)
    a.label(name + "D")
    a("v_readfirstlane_b32 s%d, v%d" % (S_TAG, t0))

def put_flag(a, soff, t0):
    a("v_mov_b32 v%d, s%d" % (t0, S_TAG))
    a("s_mov_b64 exec, 1")
    a("buffer_store_dword v%d, off, %s, s%d sc1" % (t0, WS, soff))
    a("s_mov_b64 exec, -1")

L_X = 0
L_W = 65536
L_FFW = L_X + 32768
L_EX = L_X
L_CMB = 131072
L_RT = L_CMB + 18432
L_MISC = L_RT + 2048
L_QX = L_MISC + 2048
L_MX = L_QX + 8192
LDS_SIZE = L_MX + 1024

def gen(a):
    kn = NAME + "_kernel"
    a.raw(".globl %s" % kn)
    a.raw(".p2align 8")
    a.raw(".type %s,@function" % kn)
    a.label(kn)
    a("s_cmp_ge_u32 s2, 256")
    a("s_cbranch_scc1 L_END")
    a("s_load_dwordx16 s[64:79], s[0:1], 0")
    a("s_load_dwordx8 s[80:87], s[0:1], 64")
    if CPF:
        a("s_getpc_b64 s[22:23]")
        a.label("L_PC")
        a("v_subrev_u32 v2, 256, v0")
        a("v_lshlrev_b32 v2, 7, v2")
        a("v_cmp_gt_u32 vcc, L_CODE_END - L_PC, v2")
        a("s_and_saveexec_b64 s[24:25], vcc")
        a("s_cbranch_execz L_NOPF")
        a("global_load_dword v3, v2, s[22:23]")
        a.label("L_NOPF")
        a("s_mov_b64 exec, -1")
    a("v_lshrrev_b32 v1, 6, v0")
    a("v_and_b32 v0, 63, v0")
    a("v_readfirstlane_b32 s19, v1")
    ev(a, 0)
    delay(a, 0, 7)
    Q, C, O, S, P, KV, T = 8, 16, 48, 80, 112, 120, 216
    VM = 254
    XS, WD, BF, DD = T, T + 8, T + 16, T + 24
    ntb = 32 // MAP
    lt = ntb.bit_length() - 1
    a("s_and_b32 s16, s2, 7")
    a("s_lshr_b32 s17, s2, 3")
    a("s_and_b32 s14, s16, %d" % (MAP - 1))
    a("s_lshl_b32 s14, s14, %d" % lt)
    a("s_and_b32 s18, s17, %d" % (ntb - 1))
    a("s_add_u32 s14, s14, s18")
    a("s_lshr_b32 s15, s16, %d" % (MAP.bit_length() - 1))
    a("s_mul_i32 s15, s15, %d" % MAP)
    a("s_lshr_b32 s17, s17, %d" % lt)
    a("s_add_u32 s15, s15, s17")
    if ROT:
        a("s_mul_i32 s17, s15, %d" % ROT)
    else:
        a("s_mul_i32 s17, s17, %d" % (8 // MAP))
    a("s_add_u32 s16, s17, s18")
    a("s_and_b32 s16, s16, 7")
    a("s_and_b32 s62, s2, 7")
    a("s_lshl_b32 s62, s62, 2")
    a("s_bfe_u32 s38, s2, 0x20003")
    a("s_add_u32 s62, s62, s38")
    a("s_lshr_b32 s63, s2, 5")
    a("s_lshl_b32 s38, s38, 1")
    a("s_add_u32 s38, s38, s63")
    a("s_and_b32 s38, s38, 7")
    a("v_lshlrev_b32 v2, 4, v0")
    a("v_and_b32 v6, 31, v0")
    a("v_lshrrev_b32 v7, 5, v0")
    a("v_mov_b32 v%d, %d" % (VM, L_MISC))
    a("s_and_b32 s20, s19, 1")
    XA = 8
    a("v_bfe_u32 v24, v6, 1, 3")
    a("v_lshlrev_b32 v25, 7, v6")
    a("s_lshl_b32 s18, s20, 12")
    a("v_add_u32 v25, s18, v25")
    for ks in range(4):
        a("v_or_b32 v26, %d, v7" % (2 * ks))
        a("v_xor_b32 v26, v26, v24")
        a("v_lshl_add_u32 v%d, v26, 4, v25" % (XA + ks))
    a("s_lshl_b32 s47, s14, 1")
    a("s_add_u32 s39, s47, s20")
    a("s_cmp_ge_u32 s19, 4")
    a("s_cbranch_scc1 P1_COMPUTE")

    a("v_lshrrev_b32 v4, 3, v0")
    a("v_lshlrev_b32 v5, 10, v4")
    a("v_and_b32 v3, 7, v0")
    a("v_lshrrev_b32 v16, 4, v0")
    a("v_xor_b32 v17, v3, v16")
    a("v_lshl_add_u32 v5, v17, 4, v5")
    a("v_mul_u32_u24 v4, 3072, v4")
    a("v_and_b32 v16, 1, v16")
    a("v_lshlrev_b32 v16, 2, v16")
    a("v_xor_b32 v17, v3, v16")
    a("v_lshl_add_u32 v4, v17, 4, v4")
    a("s_lshl_b32 s18, s15, 7")
    a("v_add_u32 v4, s18, v4")
    a("v_xor_b32 v3, 64, v5")
    a("s_lshl_b32 s40, s14, 16")
    a("s_lshl_b32 s18, s19, 14")
    a("s_add_u32 s40, s40, s18")
    a("s_lshl_b32 s44, s19, 11")
    a("s_lshl_b32 s18, s16, 7")
    a("v_add_u32 v16, s18, v2")
    a("v_and_b32 v16, 1023, v16")
    a("s_mul_i32 s41, s19, 49152")
    a("s_lshl_b32 s45, s19, 12")
    a("s_mul_i32 s42, s20, %d" % (32 * 3072))
    a("s_lshr_b32 s43, s19, 1")
    a("s_waitcnt lgkmcnt(0)")
    srd(a, 20, P_X, 2048 * 512 * 2)
    srd(a, 24, P_WQKV, 512 * 1536 * 2)
    srd(a, 88, P_WS, WS_SIZE)
    stamp(a, 0)
    stamp(a, 24, True)

    order = []
    a("s_mov_b32 s51, s16")
    def issue_x(c):
        a("s_lshl_b32 s46, s51, 7")
        a("s_add_u32 s46, s46, s40")
        a("s_add_u32 m0, s44, %d" % (L_X + c * 8192))
        a("s_add_u32 s48, s46, 8192")
        a("buffer_load_dwordx4 v5, s[20:23], s46 offen lds")
        a("s_add_u32 m0, s44, %d" % (L_X + c * 8192 + 1024))
        a("s_add_u32 s51, s51, 1")
        a("buffer_load_dwordx4 v3, s[20:23], s48 offen lds")
        a("s_and_b32 s51, s51, 7")
        order.extend([c, c])
    def issue_step(c):
        wb = L_W + (c % 4) * 16384
        order.extend([c] * 4)
        if c < 8:
            a("s_mul_i32 s47, s16, %d" % (64 * 3072))
            a("s_add_u32 s47, s47, s41")
            a("s_add_u32 s49, s47, %d" % (8 * 3072))
            for rh in range(2):
                a("s_add_u32 m0, s45, %d" % (wb + rh * 2048 - 1024))
                a("s_add_u32 s16, s16, 1" if rh == 0 else "s_and_b32 s16, s16, 7")
                for t in (1, 2):
                    a("buffer_load_dwordx4 v4, s[24:27], s%d offen offset:%d lds" % (47 + 2 * rh, t * 1024))
        else:
            a("s_add_u32 s46, s16, s43")
            a("s_and_b32 s46, s46, 7")
            a("s_mul_i32 s47, s46, %d" % (64 * 3072))
            a("s_add_u32 s47, s47, s42")
            a("s_add_u32 s16, s16, 2")
            for i in range(4):
                a("s_add_u32 m0, s45, %d" % (wb + i * 1024))
                a("s_add_u32 s48, s47, %d" % (i * 8 * 3072))
                a("buffer_load_dwordx4 v4, s[24:27], s48 offen lds")

    issue_x(0)
    issue_step(0)
    srd(a, 28, P_WR, 1024)
    srd(a, 32, P_GW, 1024)
    a("s_mov_b32 m0, %d" % L_RT)
    a("s_nop 0")
    a("buffer_load_dwordx4 v16, s[32:35], 0 offen lds")
    a("s_mov_b32 m0, %d" % (L_RT + 1024))
    a("s_nop 0")
    a("buffer_load_dwordx4 v16, s[28:31], 0 offen lds")
    order.extend([7, 7])
    for c in range(1, INIT):
        issue_x(c)
        issue_step(c)
    for c in range(INIT, XLA):
        issue_x(c)
    a("s_and_b32 s50, s14, 7")
    a("s_xor_b32 s50, s50, s15")
    a("s_lshr_b32 s57, s19, 1")
    a("s_or_b32 s50, s50, s57")
    a("v_and_b32 v25, 1, v0")
    a("v_lshlrev_b32 v25, 10, v25")
    a("v_lshl_add_u32 v17, v7, 4, v25")
    a("v_add_u32 v17, %d, v17" % L_RT)
    RACC, RF = 32, 48
    for r in range(0, 16, 2):
        a("v_mov_b64 %s, 0" % vr(RACC + r, 2))
    a("ds_write_b128 v%d, %s" % (VM, vr(RACC, 4)))
    for o in (16, 32, 48, 64):
        a("ds_write_b128 v%d, %s offset:%d" % (VM, vr(RACC, 4), o))
    for c in range(12):
        younger = len(order) - 1 - max(i for i, k in enumerate(order) if k <= c)
        a("s_waitcnt vmcnt(%d)%s" % (younger, " lgkmcnt(0)" if c == 0 else ""))
        if STAMP == 3 and c < 8:
            a("s_memtime s[100:101]")
            a("s_waitcnt lgkmcnt(0)")
            a("s_mov_b32 s%d, s100" % (52 + c))
        a("s_barrier")
        if c == 0 and STAMP != 3:
            stamp(a, 1)
        if c + max(XLA, INIT) < 8 and XLA <= 3:
            issue_x(c + max(XLA, INIT))
        if INIT <= c + 3 < 12:
            issue_step(c + 3)
        if c + XLA < 8 and XLA > 3:
            issue_x(c + XLA)
        if c == 0:
            srd(a, 32, P_DBG, 256)
        if c == 9:
            a("buffer_load_dwordx2 v[28:29], off, s[32:35], 0 sc1")
            order.append(99)
        if 8 <= c <= 10:
            a("s_cmp_lg_u32 s50, 0")
            a("s_cbranch_scc1 P1_NR%d" % c)
            k0, k1 = (0, 11, 22, 32)[c - 8], (0, 11, 22, 32)[c - 7]
            def rd_r(kk):
                a("ds_read_b128 %s, v%d offset:%d" % (vr(RF + 8 * (kk % 6), 4), XA + kk % 4, L_X + (kk // 4) * 8192))
                a("ds_read_b128 %s, v17 offset:%d" % (vr(RF + 8 * (kk % 6) + 4, 4), kk * 32))
            if c == 8:
                for kk in range(5):
                    rd_r(kk)
            for kk in range(k0, k1):
                a("s_waitcnt lgkmcnt(%d)" % (2 * min(4, 31 - kk)))
                a("%s %s, %s, %s, %s" % (MF32, vr(RACC, 16), vr(RF + 8 * (kk % 6) + 4, 4), vr(RF + 8 * (kk % 6), 4), vr(RACC, 16)))
                if kk + 5 < 32:
                    rd_r(kk + 5)
            a.label("P1_NR%d" % c)
    if STAMP == 3:
        for c in range(0, 8):
            a("v_mov_b32 v255, s%d" % (52 + c))
            a("s_lshl_b32 s100, s2, 3")
            a("s_add_u32 s100, s100, s19")
            a("s_lshl_b32 s100, s100, 7")
            a("s_add_u32 s100, s100, %d" % (WS_ST + (16 + c) * 4))
            a("buffer_store_dword v255, off, %s, s100" % WS)
    srd(a, 24, P_DBG, 256)
    get_tag(a, "P1_TAGL", 28)
    a("s_mov_b32 s39, -1")
    a("s_cmp_lg_u32 s50, 0")
    a("s_cbranch_scc1 P1_DONE")
    R = RACC
    a("s_nop 9")
    a("s_lshl_b32 s39, s14, 1")
    a("s_add_u32 s39, s39, s19")
    bf16_round_to_f32(a, 100, R)
    sigmoid_bf16(a, 100)
    a("v_sub_f32 v101, 1.0, v100")
    bf16_round_to_f32(a, 101, 101)
    bf16_round_to_f32(a, 102, R + 1)
    a("v_ashrrev_i32 v103, 31, v102")
    a("v_or_b32 v103, 0x80000000, v103")
    a("v_xor_b32 v102, v102, v103")
    a("v_and_b32 v102, 0xffff0000, v102")
    a("s_lshl_b32 s55, s39, 5")
    a("v_add_u32 v103, s55, v6")
    a("v_sub_u32 v103, 0xffff, v103")
    a("v_or_b32 v102, v102, v103")
    for sh in (1, 2, 4, 8):
        a("s_nop 1")
        a("v_max_u32_dpp v102, v102, v102 row_ror:%d row_mask:0xf bank_mask:0xf" % sh)
    a("s_nop 0")
    a("v_readlane_b32 s56, v102, 0")
    a("v_readlane_b32 s57, v102, 16")
    a("s_nop 3")
    a("s_max_u32 s%d, s56, s57" % S_KEY)
    a("s_lshl_b32 s54, s39, 8")
    a("s_add_u32 s54, s54, %d" % WS_G)
    a("v_lshlrev_b32 v27, 3, v6")
    a("buffer_store_dwordx2 v[100:101], v27, %s, s54 offen sc1" % WS)
    a("v_mov_b64 v[84:85], 0")
    a("v_lshlrev_b32 v27, 3, v0")
    a("s_lshl_b32 s55, s39, 9")
    a("s_add_u32 s55, s55, %d" % WS_Y)
    a("buffer_store_dwordx2 v[84:85], v27, %s, s55 offen sc1" % WS)
    a("s_branch P1_DONE")

    a.label("P1_COMPUTE")
    WA, WQA = 16, 17
    a("s_lshl_b32 s22, s2, 3")
    a("s_add_u32 s22, s22, s19")
    a("s_waitcnt lgkmcnt(0)")
    ev(a, 8)
    srd(a, 28, P_WQKV, 512 * 1536 * 2)
    srd(a, 88, P_WS, WS_SIZE)
    stamp(a, 0)
    stamp(a, 24, True)
    a("s_mov_b32 s23, %d" % WS_EP)
    a("s_cmp_lg_u32 s22, 4")
    a("s_cbranch_scc1 P1_NOEP0")
    a("buffer_load_dword v24, off, %s, s23 sc1" % WS)
    a.label("P1_NOEP0")
    def wq_touch():
        a("s_cmp_lg_u32 s19, 5")
        a("s_cbranch_scc1 P1_NOWQ")
        a("s_and_b32 s46, s14, %d" % (ntb - 1))
        a("s_mul_i32 s46, s46, %d" % (512 // ntb * 3072))
        a("s_lshl_b32 s47, s15, 7")
        a("s_add_u32 s46, s46, s47")
        a("v_and_b32 v24, %d, v0" % (512 // ntb - 1))
        a("v_mul_u32_u24 v24, 3072, v24")
        a("buffer_load_dword v28, v24, s[28:31], s46 offen")
        a.label("P1_NOWQ")
    if WQT == 0:
        wq_touch()
    srd(a, 24, P_DBG, 256)
    a("s_bfe_u32 s21, s19, 0x10001")
    a("v_bfe_u32 v27, v0, 2, 2")
    a("v_lshlrev_b32 v26, 7, v27")
    a("v_lshrrev_b32 v27, 1, v27")
    a("v_xor_b32 v27, s21, v27")
    a("v_lshl_add_u32 v26, v27, 6, v26")
    a("v_bfe_u32 v27, v0, 4, 1")
    a("v_lshl_add_u32 v26, v27, 5, v26")
    a("v_and_b32 v27, 3, v0")
    a("v_lshl_add_u32 v26, v27, 3, v26")
    a("v_add_u32 v26, %d, v26" % L_W)
    a("v_lshl_add_u32 v%d, v7, 11, v26" % WA)
    a("v_lshl_add_u32 v%d, v7, 10, v26" % WQA)
    a("s_cmp_lg_u32 s22, 4")
    a("s_cbranch_scc1 P1_NOEP")
    if DELAY & 2:
        for _ in range(8):
            a("s_sleep 127")
    a("s_mov_b32 s22, 1664525")
    a("v_mov_b32 v25, 1")
    a("s_waitcnt vmcnt(0)")
    a("v_mul_lo_u32 v24, v24, s22")
    a("v_add_u32 v24, 1013904223, v24")
    a("s_mov_b64 exec, 1")
    a("buffer_store_dwordx2 v[24:25], off, s[24:27], 0 sc1")
    a("buffer_store_dword v24, off, %s, s23 sc1" % WS)
    a("s_mov_b64 exec, -1")
    a.label("P1_NOEP")
    ACC = 32
    FR = 80
    PK = 104
    XF = 120
    pend = []
    def rd_kv(kk, part):
        if kk >= 32:
            return
        c, ks = kk // 4, kk % 4
        if part == 0:
            a("ds_read_b128 %s, v%d offset:%d" % (vr(XF + 4 * kk, 4), XA + ks, L_X + c * 8192))
            pend.append((kk, 0))
        for half in range(2):
            a("ds_read_b64_tr_b16 %s, v%d offset:%d" % (vr(FR + (kk % 3) * 8 + part * 4 + 2 * half, 2), WA,
                                                       (c % 4) * 16384 + ks * 4096 + part * 1024 + half * 512))
            pend.append((kk, part))
    def rd_q(kk):
        if kk >= 32:
            return
        if kk % 8 == 0 and kk > 0:
            a("s_barrier")
        for half in range(2):
            a("ds_read_b64_tr_b16 %s, v%d offset:%d" % (vr(FR + (kk % 6) * 4 + 2 * half, 2), WQA,
                                                       (kk // 8) * 16384 + (kk % 8) * 2048 + half * 512))
            pend.append((100 + kk, 0))
    def wait_for(kk, part):
        last = max([i for i, (k2, p) in enumerate(pend) if k2 == kk and p == part], default=-1)
        if last >= 0:
            a("s_waitcnt lgkmcnt(%d)" % (len(pend) - 1 - last))
            del pend[:last + 1]
    if STAMP == 3:
        stamp(a, 14)
    a("s_barrier")
    if STAMP != 3:
        stamp(a, 1)
    ev(a, 4)
    for kk in range(2):
        rd_kv(kk, 0); rd_kv(kk, 1)
    if WQT == 1:
        wq_touch()
    for kk in range(32):
        nx = kk + 2
        if nx < 32 and nx % 4 == 0:
            c = nx // 4
            a("s_waitcnt lgkmcnt(0)")
            del pend[:]
            if STAMP == 3:
                a("s_memtime s[100:101]")
                a("s_waitcnt lgkmcnt(0)")
                a("s_mov_b32 s%d, s100" % (50 + c))
            a("s_barrier")
        x = vr(XF + 4 * kk, 4)
        cz = lambda r: ("0" if kk == 0 else vr(r, 16))
        wait_for(kk, 0)
        a("%s %s, %s, %s, %s" % (MF32, vr(ACC, 16), vr(FR + (kk % 3) * 8, 4), x, cz(ACC)))
        rd_kv(nx, 0)
        wait_for(kk, 1)
        a("%s %s, %s, %s, %s" % (MF32, vr(ACC + 16, 16), x, vr(FR + (kk % 3) * 8 + 4, 4), cz(ACC + 16)))
        rd_kv(nx, 1)
    a("s_barrier")
    LQ = 5
    for kk in range(LQ):
        rd_q(kk)
    a("s_lshl_b32 s46, s15, 1")
    a("s_add_u32 s46, s46, s21")
    a("s_lshl_b32 s48, s46, 18")
    a("s_lshl_b32 s49, s20, 16")
    a("s_add_u32 s48, s48, s49")
    a("s_lshl_b32 s49, s14, 11")
    a("s_add_u32 s48, s48, s49")
    a("s_add_u32 s49, s48, 131072")
    a("v_lshrrev_b32 v24, 4, v6")
    a("v_lshlrev_b32 v24, 17, v24")
    a("v_lshl_add_u32 v24, v7, %d, v24" % (9 if SM else 8))
    a("v_and_b32 v25, 15, v0")
    a("v_lshl_add_u32 v24, v25, 4, v24")
    stamp(a, 2)
    ev(a, 5)
    for r in range(8):
        a("v_cvt_pk_bf16_f32 v%d, v%d, v%d" % (PK + r, ACC + 2 * r, ACC + 2 * r + 1))
    a("buffer_store_dwordx4 %s, v2, %s, s48 offen sc1" % (vr(PK, 4), WS))
    a("buffer_store_dwordx4 %s, v2, %s, s49 offen sc1" % (vr(PK + 4, 4), WS))
    V2 = 1280 if SM else 1536
    vdst = (lambda i: PK + 8 + 4 * (i & 1) + (i >> 1)) if SM else (lambda i: PK + 8 + i)
    for r in range(8):
        a("v_cvt_pk_bf16_f32 v%d, v%d, v%d" % (vdst(r), ACC + 16 + 2 * r, ACC + 16 + 2 * r + 1))
    if SM:
        for i in range(4):
            a("v_permlane32_swap_b32 v%d, v%d" % (vdst(i), vdst(4 + i)))
    if RAW:
        for i in (0, 1, 4, 5):
            a("v_permlane32_swap_b32 v%d, v%d" % (PK + 8 + i, PK + 10 + i))
    a("buffer_store_dwordx4 %s, v24, %s, s48 offen offset:1024 sc1" % (vr(PK + 8, 4), WS))
    a("buffer_store_dwordx4 %s, v24, %s, s48 offen offset:%d sc1" % (vr(PK + 12, 4), WS, V2))
    a("buffer_load_dwordx2 v[28:29], off, s[24:27], 0 sc1")
    a("s_lshl_b32 s50, s21, 13")
    a("s_lshl_b32 s51, s20, 11")
    a("s_add_u32 s50, s50, s51")
    a("s_add_u32 s50, s50, %d" % L_CMB)
    a("v_add_u32 v26, s50, v2")
    a("v_lshrrev_b32 v27, 5, v24")
    a("v_and_b32 v27, 4096, v27")
    a("v_and_b32 v25, 1023, v24")
    a("v_add3_u32 v27, v27, v25, s50")
    a("ds_write_b128 v26, %s" % vr(PK, 4))
    a("ds_write_b128 v26, %s offset:4096" % vr(PK + 4, 4))
    a("ds_write_b128 v27, %s offset:1024" % vr(PK + 8, 4))
    a("ds_write_b128 v27, %s offset:%d" % (vr(PK + 12, 4), V2))
    pend.extend([(-1, 0)] * 4)
    a("s_lshl_b32 s96, s15, 12")
    a("s_lshl_b32 s97, s14, 7")
    a("s_add_u32 s96, s96, s97")
    a("s_add_u32 s96, s96, %d" % WS_FL1)
    for kk in range(32):
        if kk == QF:
            get_tag(a, "P1_TAGC", 28)
            last_wave_flag(a, "P1_FL", VM, 0, 4, 96, 30)
            del pend[:]
            stamp(a, 13)
            stamp(a, 29, True)
            ev(a, 6)
        wait_for(100 + kk, 0)
        a("%s %s, %s, %s, %s" % (MF32, vr(ACC + 32, 16), vr(FR + (kk % 6) * 4, 4), vr(XF + 4 * kk, 4), "0" if kk == 0 else vr(ACC + 32, 16)))
        rd_q(kk + LQ)
    CS = LOG2E * 0.25
    if STAMP != 3:
        a("s_mov_b32 s54, 0x%08x" % f32bits(CS))
        a("s_mov_b32 s55, 0x%08x" % f32bits(CS))
    a("s_lshl_b32 s22, s21, 12")
    a("s_lshl_b32 s23, s20, 10")
    a("s_add_u32 s22, s22, s23")
    a("s_add_u32 s22, s22, %d" % L_QX)
    a("v_add_u32 v24, s22, v2")
    a("s_lshl_b32 s22, s21, 9")
    a("s_lshl_b32 s23, s20, 7")
    a("s_add_u32 s22, s22, s23")
    a("s_add_u32 s22, s22, %d" % L_MX)
    a("v_lshl_add_u32 v26, v6, 2, s22")
    a("v_lshl_add_u32 v26, v7, 8, v26")
    stamp(a, 3)
    if STAMP == 3:
        for c in range(1, 8):
            a("v_mov_b32 v255, s%d" % (50 + c))
            a("s_lshl_b32 s100, s2, 3")
            a("s_add_u32 s100, s100, s19")
            a("s_lshl_b32 s100, s100, 7")
            a("s_add_u32 s100, s100, %d" % (WS_ST + (16 + c) * 4))
            a("buffer_store_dword v255, off, %s, s100" % WS)
        a("s_mov_b32 s54, 0x%08x" % f32bits(CS))
        a("s_mov_b32 s55, 0x%08x" % f32bits(CS))
    PQ = FR
    for r in range(0, 16, 2):
        a("v_pk_mul_f32 %s, %s, s[54:55]" % (vr(ACC + 32 + r, 2), vr(ACC + 32 + r, 2)))
    for r in range(8):
        a("v_cvt_pk_bf16_f32 v%d, v%d, v%d" % (PQ + r, ACC + 32 + 2 * r, ACC + 32 + 2 * r + 1))
    a("s_nop 1")
    a("%s %s, %s, %s, 0" % (MF32, vr(ACC, 16), vr(PK, 4), vr(PQ, 4)))
    a("%s %s, %s, %s, 0" % (MF32, vr(ACC + 16, 16), vr(PK + 4, 4), vr(PQ + 4, 4)))
    a("ds_write_b128 v24, %s" % vr(PQ, 4))
    a("ds_write_b128 v24, %s offset:2048" % vr(PQ + 4, 4))
    a("s_nop 9")
    m0, m1 = 92, 93
    for h, m in ((0, m0), (1, m1)):
        SS = ACC + 16 * h
        a("v_max3_f32 v%d, v%d, v%d, v%d" % (m, SS, SS + 1, SS + 2))
        for r in range(3, 15, 2):
            a("v_max3_f32 v%d, v%d, v%d, v%d" % (m, m, SS + r, SS + r + 1))
        a("v_max_f32 v%d, v%d, v%d" % (m, m, SS + 15))
    a("s_nop 1")
    a("v_permlane32_swap_b32 v%d, v%d" % (m0, m1))
    a("v_max_f32 v%d, v%d, v%d" % (m0, m0, m1))
    a("v_sub_f32 v%d, 0, v%d" % (m0, m0))
    a("ds_write_b32 v26, v%d" % m0)

    a.label("P1_DONE")
    stamp(a, 4)
    a("s_and_b32 s17, s19, 3")
    a("s_lshr_b32 s16, s19, 2")
    a("v_and_b32 v3, 15, v0")
    a("v_lshlrev_b32 v3, 4, v3")
    a("v_lshl_add_u32 v3, v7, 8, v3")
    a("s_lshl_b32 s18, s15, 2")
    a("s_add_u32 s18, s18, s17")
    a("s_lshl_b32 s22, s18, 17")
    a("s_lshl_b32 s23, s16, 16")
    a("s_add_u32 s22, s22, s23")
    VKA, VVA = 196, 197
    a("v_add_u32 v%d, s22, v2" % VKA)
    a("v_add_u32 v%d, s22, v3" % VVA)
    a("s_lshl_b32 s23, s17, 12")
    a("s_lshl_b32 s28, s16, 11")
    a("s_add_u32 s23, s23, s28")
    a("s_add_u32 s23, s23, %d" % L_CMB)
    a("v_add_u32 v248, s23, v2")
    a("v_add_u32 v249, s23, v3")
    a("s_lshl_b32 s95, s15, 12")
    a("s_add_u32 s95, s95, %d" % WS_FL1)
    a("s_mov_b32 s30, 0x0000ffff")
    a("s_mov_b32 s31, 0x0000ffff")
    a("s_mov_b32 s29, 0")
    a("s_cmp_lt_u32 s19, 4")
    a("s_cselect_b32 s32, 0x%x, 0" % HMASK)
    CW16, CW4, CR16, CR4, VXO, VWO, VOF, XR, GR, HFL, HLD, F3 = 168, 169, 170, 171, 172, 173, 174, 176, 184, 175, 186, 186
    srd(a, 40, P_WO, 512 * 512 * 2)
    a("v_lshrrev_b32 v4, 3, v0")
    a("v_lshlrev_b32 v4, 10, v4")
    a("v_and_b32 v5, 7, v0")
    a("v_bfe_u32 v192, v0, 4, 1")
    a("v_lshlrev_b32 v192, 2, v192")
    a("v_xor_b32 v5, v5, v192")
    a("v_lshl_add_u32 v4, v5, 4, v4")
    a("s_lshl_b32 s36, s63, 7")
    a("s_lshl_b32 s37, s19, 13")
    a("s_add_u32 s36, s36, s37")
    a("s_lshl_b32 s37, s19, 10")
    a("s_add_u32 s37, s37, %d" % L_W)
    a("s_mul_i32 s23, s19, 2304")
    a("s_add_u32 s23, s23, %d" % L_CMB)
    a("v_add_u32 v%d, s23, v2" % CW16)
    a("v_lshl_add_u32 v%d, v0, 2, s23" % CW4)
    a("s_xor_b32 s23, s19, 4")
    a("s_mul_i32 s23, s23, 2304")
    a("s_add_u32 s23, s23, %d" % L_CMB)
    a("v_add_u32 v%d, s23, v2" % CR16)
    a("v_lshl_add_u32 v%d, v0, 2, s23" % CR4)
    a("s_lshl_b32 s23, s14, 1")
    a("s_add_u32 s23, s23, s16")
    a("s_lshl_b32 s33, s23, 15")
    a("s_lshl_b32 s23, s18, 10")
    a("s_add_u32 s33, s33, s23")
    a("s_add_u32 s33, s33, %d" % WS_O)
    a("s_lshl_b32 s98, s14, 10")
    a("s_lshl_b32 s23, s15, 7")
    a("s_add_u32 s98, s98, s23")
    a("s_add_u32 s98, s98, %d" % WS_FL2)
    a("s_and_b32 s8, s19, 1")
    a("s_bfe_u32 s9, s19, 0x10001")
    a("s_lshl_b32 s4, s62, 1")
    a("s_add_u32 s4, s4, s8")
    a("s_lshl_b32 s5, s63, 7")
    a("s_lshl_b32 s23, s9, 6")
    a("s_add_u32 s5, s5, s23")
    a("s_lshl_b32 s6, s4, 15")
    a("s_add_u32 s6, s6, s5")
    a("s_lshl_b32 s7, s4, 8")
    a("s_add_u32 s7, s7, %d" % WS_G)
    a("v_lshlrev_b32 v%d, 10, v6" % VXO)
    a("v_lshl_add_u32 v%d, v7, 5, v%d" % (VXO, VXO))
    a("v_bfe_u32 v193, v0, 2, 2")
    a("v_lshl_add_u32 v192, v7, 2, v193")
    a("v_lshlrev_b32 v192, 7, v192")
    a("v_lshrrev_b32 v193, 1, v193")
    a("v_xor_b32 v193, s9, v193")
    a("v_lshl_add_u32 v192, v193, 6, v192")
    a("v_and_b32 v193, 1, v0")
    a("v_lshl_add_u32 v192, v193, 5, v192")
    a("v_bfe_u32 v193, v0, 1, 1")
    a("v_bfe_u32 v194, v0, 4, 1")
    a("v_lshl_add_u32 v193, v194, 1, v193")
    a("v_lshl_add_u32 v192, v193, 3, v192")
    a("v_add_u32 v%d, %d, v192" % (VWO, L_W))
    a("s_lshl_b32 s23, s8, 12")
    a("v_add_u32 v%d, s23, v2" % VOF)
    a("s_lshl_b32 s10, s62, 10")
    a("s_lshl_b32 s23, s17, 8")
    a("s_add_u32 s10, s10, s23")
    a("s_add_u32 s10, s10, %d" % WS_FL2)
    a("v_and_b32 v%d, 1, v0" % HFL)
    a("v_lshlrev_b32 v%d, 7, v%d" % (HFL, HFL))
    a("s_lshl_b32 s11, s62, 16")
    a("s_lshl_b32 s23, s17, 13")
    a("s_add_u32 s11, s11, s23")
    a("s_add_u32 s11, s11, %d" % WS_O)
    a("s_lshl_b32 s12, s17, 14")
    a("s_lshl_b32 s23, s17, 3")
    a("v_add_u32 v%d, s23, v%d" % (HLD, VM))
    a("v_lshlrev_b32 v5, 7, v0")
    a("s_lshl_b32 s23, s17, 1")
    a("s_add_u32 s23, s23, s16")
    a("s_lshl_b32 s28, s23, 10")
    a("s_add_u32 s28, s28, %d" % L_QX)
    a("v_add_u32 v252, s28, v2")
    a("v_xor_b32 v250, 1024, v252")
    a("s_lshl_b32 s28, s23, 7")
    a("s_add_u32 s28, s28, %d" % L_MX)
    a("v_lshl_add_u32 v253, v6, 2, s28")
    a("v_xor_b32 v251, 128, v253")
    CW16, CW4, CR16, CR4, VXO, VWO, VOF, XR, GR, HFL, HLD, F3 = 168, 169, 170, 171, 172, 173, 174, 176, 184, 175, 186, 186
    def kvb(t):
        return KV + (8 if SM else 12) * (t % NB)
    PB = (P, 152) if SM else (P, P)
    LA, SA, IXV, IXS = 160, 198, 202, 203
    NLD = 2 if SM else 3
    def p2_init():
      if SM:
        a("v_mov_b64 %s, 0" % vr(kvb(NB - 1) + 4, 2))
        a("v_mov_b64 %s, 0" % vr(kvb(NB - 1) + 6, 2))
        for r in range(0, 8, 2):
            a("v_mov_b64 %s, 0" % vr(PB[1] + r, 2))
            a("v_mov_b64 %s, 0" % vr(LA + r, 2))
        a("v_mov_b64 %s, 0" % vr(SA, 2))
        a("v_mov_b64 %s, 0" % vr(SA + 2, 2))
        a("s_mov_b32 s34, 0x3f803f80")
        a("s_mov_b32 s35, 0x3f803f80")
        a("s_mov_b32 exec_lo, 0x03030303")
        a("s_mov_b32 exec_hi, 0x03030303")
        a("v_mov_b64 %s, s[34:35]" % vr(SA, 2))
        a("s_mov_b32 exec_lo, 0x30303030")
        a("s_mov_b32 exec_hi, 0x30303030")
        a("v_mov_b64 %s, s[34:35]" % vr(SA + 2, 2))
        a("s_mov_b64 exec, -1")
        a("v_bfe_u32 v%d, v0, 4, 1" % IXV)
        a("v_mul_u32_u24 v%d, 0xaaaa, v%d" % (IXV, IXV))
        a("v_add_u32 v%d, 0x4444, v%d" % (IXV, IXV))
        a("v_and_b32 v%d, 1, v0" % IXS)
        a("v_mul_u32_u24 v%d, 0xaaaa, v%d" % (IXS, IXS))
        a("v_add_u32 v%d, 0x4444, v%d" % (IXS, IXS))
      else:
        for b in range(NB):
            for r in range(4, 12, 2):
                a("v_mov_b64 %s, 0" % vr(kvb(b) + r, 2))
        a("s_mov_b32 s34, 0x3f803f80")
        a("s_mov_b32 s35, 0x3f803f80")
        a("s_mov_b32 exec_lo, 0x00110000")
        a("s_mov_b32 exec_hi, 0x00110000")
        for b in range(NB):
            for r in range(4, 12, 2):
                a("v_mov_b64 %s, s[34:35]" % vr(kvb(b) + r, 2))
        a("s_mov_b64 exec, -1")
      if True:
        for r in range(0, 32, 2):
            a("v_mov_b64 %s, 0" % vr(O + r, 2))
        if RAW:
            a("v_mov_b32 v%d, 0xdddd" % IXV)
            for r in range(8, 14, 2):
                a("v_mov_b64 %s, 0" % vr(S + 16 + r, 2))
        else:
            a("v_mov_b64 %s, 0" % vr(P + 4, 2))
            a("v_mov_b64 %s, 0" % vr(P + 6, 2))
        a("v_mov_b64 %s, 0" % vr(S + 16 + 14, 2))
    a("s_waitcnt lgkmcnt(0)")
    p2_init()
    if WOT:
        a("s_cmp_lg_u32 s19, 2")
        a("s_cbranch_scc1 P1_NOWO")
        a("s_lshl_b32 s3, s14, 14")
        a("buffer_load_dword v%d, v5, s[40:43], s3 offen" % T)
        a("s_add_u32 s3, s3, 8192")
        a("buffer_load_dword v%d, v5, s[40:43], s3 offen" % T)
        a.label("P1_NOWO")
    a("s_cmp_lg_u32 s19, 3")
    a("s_cbranch_scc1 H1_WAIT")
    a("s_mov_b32 exec_hi, 0")
    if PD > 1:
        poll_deep(a, "H1_POLL", T, 5)
    else:
        poll(a, "H1_POLL", S, 5)
    a("s_mov_b64 exec, -1")
    a.label("H1_WAIT")
    ev(a, 7)
    a("s_barrier")
    stamp(a, 5)
    stamp(a, 26, True)
    ev(a, 1)
    def ld_k(t):
        a("buffer_load_dwordx4 %s, v%d, %s, s%d offen sc1" % (vr(kvb(t), 4), VKA, WS, 21 if LW else 28))
    def adv():
        if LW:
            a("s_mov_b32 s28, s21")
            a("s_add_u32 s21, s21, 2048")
            a("s_and_b32 s21, s21, 0xffff")
        else:
            a("s_add_u32 s28, s28, 2048")
            a("s_and_b32 s28, s28, 0xffff")
    def ld_v(t):
        if SM:
            a("buffer_load_dwordx4 %s, v%d, %s, s28 offen offset:1024 sc1" % (vr(kvb(t) + 4, 4), VKA, WS))
            adv()
            return
        a("s_mov_b64 exec, s[30:31]")
        a("buffer_load_dwordx4 %s, v%d, %s, s28 offen offset:1024 sc1" % (vr(kvb(t) + 4, 4), VVA, WS))
        a("buffer_load_dwordx4 %s, v%d, %s, s28 offen offset:1536 sc1" % (vr(kvb(t) + 8, 4), VVA, WS))
        a("s_mov_b64 exec, -1")
        adv()
    a("ds_read_b32 v%d, v251" % C)
    a("ds_read_b32 v%d, v253" % (C + 16))
    a("ds_read_b128 %s, v250" % vr(Q, 4))
    a("ds_read_b128 %s, v248" % vr(kvb(0), 4))
    a("ds_read_b128 %s, v252" % vr(Q + 4, 4))
    if SM:
        a("ds_read_b128 %s, v248 offset:1024" % vr(kvb(0) + 4, 4))
    else:
        a("s_mov_b64 exec, s[30:31]")
        a("ds_read_b128 %s, v249 offset:1024" % vr(kvb(0) + 4, 4))
        a("ds_read_b128 %s, v249 offset:1536" % vr(kvb(0) + 8, 4))
        a("s_mov_b64 exec, -1")
    a.label("P2_START")
    r0 = 21 if LW else 28
    a("s_add_u32 s%d, s14, 1" % r0)
    a("s_lshl_b32 s%d, s%d, 11" % (r0, r0))
    a("s_and_b32 s%d, s%d, 0xffff" % (r0, r0))
    if LW:
        ld_k(1)
        adv()
        for i in range(2, NB):
            ld_k(i)
            ld_v(i - 1)
    else:
        for i in range(1, NB - 1):
            ld_k(i)
            ld_v(i)
    a("s_mov_b32 s23, 0")
    a("s_waitcnt lgkmcnt(%d)" % (2 + NLD))
    for j in range(2):
        a("v_mov_b32 v%d, v%d" % (C + 16 * j + 1, C + 16 * j))
        for r in range(2, 16, 2):
            a("v_mov_b64 %s, %s" % (vr(C + 16 * j + r, 2), vr(C + 16 * j, 2)))
        if j == 0:
            a("s_waitcnt lgkmcnt(%d)" % NLD)
            a("s_nop 0")
            a("%s %s, %s, %s, %s" % (MF32, vr(S, 16), vr(kvb(0), 4), vr(Q, 4), vr(C, 16)))
    a("s_waitcnt lgkmcnt(0)")
    a("s_nop 2")
    a("v_exp_f32 v%d, v%d" % (S, S))
    if not TOUCH:
        stamp(a, 6)

    def main_loop(sfx, older):
        a.raw(".p2align 6")
        a.label("P2_LOOP" + sfx)
        pos = [0]
        def mark():
            pos[0] += 1
            if older and PRIO and pos[0] % 24 == (24 - PRIO + 1) % 24:
                a("s_setprio 0")
            if older and PRIO and pos[0] % 24 == 1 and pos[0] > 1:
                a("s_setprio 1")
        for t in range(NB):
            for j in range(2):
                cur = S + 16 * j
                prv = S + 16 * (j ^ 1)
                nxt = prv
                E = lambda r: a("v_exp_f32 v%d, v%d" % (cur + r, cur + r))
                CV = lambda r: a("v_cvt_pk_bf16_f32 v%d, v%d, v%d" % (PB[j] + r // 2, cur + r, cur + r + 1))
                pb = kvb(t) if j == 1 else kvb(t - 1)
                nb = kvb(t) if j == 0 else kvb(t + 1)
                if not RAW:
                    a("v_cvt_pk_bf16_f32 v%d, v%d, v%d" % (PB[j ^ 1] + 7, prv + 14, prv + 15))
                def sync_point():
                    back = NB - 1 if LW else NB - 2
                    nwo = 0 if NOWO else sum(1 for k in range(t - back, t) if k % 4 == 0)
                    a("s_waitcnt vmcnt(%d)" % (NLD * back + nwo + (1 if SM else 0)))
                    if t % 4 == 0:
                        if not NOWO:
                            a("s_lshl_b32 s3, s38, 13")
                            a("s_add_u32 m0, s3, s37")
                            a("s_lshl3_add_u32 s3, s3, s36")
                            a("buffer_load_dwordx4 v4, s[40:43], s3 offen lds")
                            a("s_add_u32 s38, s38, 1")
                            a("s_and_b32 s38, s38, 7")
                        if older:
                            a("s_bitcmp1_b32 s32, s23")
                            a("s_cbranch_scc1 P2_HOOK")
                            a.label("P2_HRET%d" % (t // 4))
                        a("s_add_u32 s23, s23, 1")
                if RAW:
                    SPV = lambda jj, av, sv: a("v_smfmac_f32_32x32x32_bf16 %s, %s, %s, v%d" % (vr(O + 16 * jj, 16), vr(av, 4), vr(sv, 8), IXV))
                    E(1)
                    mark()
                    SPV(j ^ 1, pb + 8, prv + 8)
                    if j == 0:
                        ld_k(t - 1)
                        if not SPLIT:
                            ld_v(t - 1)
                    E(2); E(3); E(4)
                    if j == 1:
                        sync_point()
                    mark()
                    a("%s %s, %s, %s, %s" % (MF32, vr(nxt, 16), vr(nb, 4), vr(Q + 4 * (j ^ 1), 4), vr(C + 16 * (j ^ 1), 16)))
                    for r in range(5, P3POS + 1):
                        E(r)
                    mark()
                    SPV(j, kvb(t) + 4, cur)
                    if j == 0 and SPLIT:
                        ld_v(t - 1)
                    for r in range(P3POS + 1, 16):
                        E(r)
                    a("v_exp_f32 v%d, v%d" % (nxt, nxt))
                    continue
                if j == 1 and not LW:
                    sync_point()
                mark()
                a("%s %s, %s, %s, %s" % (MF32, vr(nxt, 16), vr(nb, 4), vr(Q + 4 * (j ^ 1), 4), vr(C + 16 * (j ^ 1), 16)))
                if j == 0:
                    ld_k(t if LW else t - 1)
                E(1); E(2); CV(0); E(3); E(4); CV(2); E(5)
                mark()
                if SM:
                    a("v_smfmac_f32_32x32x32_bf16 %s, %s, %s, v%d" % (vr(O + 16 * (j ^ 1), 16), vr(pb + 4, 4), vr(PB[j ^ 1], 8), IXV))
                else:
                    a("%s %s, %s, %s, %s" % (MF32, vr(O + 16 * (j ^ 1), 16), vr(pb + 8, 4), vr(P + 4, 4), vr(O + 16 * (j ^ 1), 16)))
                if j == 0:
                    ld_v(t - 1)
                E(6); CV(4); E(7); E(8); CV(6); E(9); E(10)
                if j == 0 and LW:
                    sync_point()
                mark()
                if SM:
                    a("v_smfmac_f32_16x16x64_bf16 %s, %s, %s, v%d" % (vr(LA + 4 * (j ^ 1), 4), vr(SA, 4), vr(PB[j ^ 1], 8), IXS))
                else:
                    a("%s %s, %s, %s, %s" % (MF32, vr(O + 16 * j, 16), vr(kvb(t) + 4, 4), vr(P, 4), vr(O + 16 * j, 16)))
                CV(8); E(11); E(12); CV(10); E(13); E(14); CV(12); E(15)
                a("v_exp_f32 v%d, v%d" % (nxt, nxt))
        if older and PRIO:
            a("s_setprio 1")
        if STAMP == 1:
            a("s_memtime s[100:101]")
            a("s_waitcnt lgkmcnt(0)")
            a("v_mov_b32 v255, s100")
            a("s_lshl_b32 s100, s2, 3")
            a("s_add_u32 s100, s100, s19")
            a("s_lshl_b32 s100, s100, 5")
            a("s_add_u32 s100, s100, s23")
            a("s_lshl_b32 s100, s100, 2")
            a("s_add_u32 s100, s100, %d" % (WS_ST + 15 * 4))
            a("buffer_store_dword v255, off, %s, s100" % WS)
        a("s_cmp_lt_u32 s23, 8")
        a("s_cbranch_scc1 P2_LOOP" + sfx)
    if PRIO:
        a("s_setprio 1")
    a("s_cmp_ge_u32 s19, 4")
    a("s_cbranch_scc1 P2_LOOPB")
    main_loop("A", True)
    a("s_branch P2_DRAIN")
    main_loop("B", False)
    a.label("P2_DRAIN")
    delay(a, 3, 7, 0x42)
    if SM:
        a("v_cvt_pk_bf16_f32 v%d, v%d, v%d" % (PB[1] + 7, S + 16 + 14, S + 16 + 15))
        a("v_pk_add_f32 %s, %s, %s" % (vr(O, 2), vr(O, 2), vr(O + 8, 2)))
        a("v_pk_add_f32 %s, %s, %s" % (vr(O + 2, 2), vr(O + 2, 2), vr(O + 10, 2)))
        a("v_smfmac_f32_16x16x64_bf16 %s, %s, %s, v%d" % (vr(LA + 4, 4), vr(SA, 4), vr(PB[1], 8), IXS))
        a("v_smfmac_f32_32x32x32_bf16 %s, %s, %s, v%d" % (vr(O + 16, 16), vr(kvb(NB - 1) + 4, 4), vr(PB[1], 8), IXV))
        a("ds_write_b128 v%d, %s" % (CW16, vr(O, 4)))
        a("v_pk_add_f32 %s, %s, %s" % (vr(O + 4, 2), vr(O + 4, 2), vr(O + 12, 2)))
        a("v_pk_add_f32 %s, %s, %s" % (vr(O + 6, 2), vr(O + 6, 2), vr(O + 14, 2)))
        a("v_add_f32 v%d, v%d, v%d" % (O + 8, LA, LA + 1))
        a("ds_write_b128 v%d, %s offset:1024" % (CW16, vr(O + 4, 4)))
        a("ds_write_b32 v%d, v%d offset:2048" % (CW4, O + 8))
        stamp(a, 7)
        stamp(a, 27, True)
        ev(a, 2)
        a("s_mov_b32 s28, 0x4f800000")
        a("s_nop 5")
        a("v_add_f32 v%d, v%d, v%d" % (LA + 4, LA + 4, LA + 5))
    else:
        if not RAW:
            a("v_cvt_pk_bf16_f32 v%d, v%d, v%d" % (P + 7, S + 16 + 14, S + 16 + 15))
        a("ds_write_b128 v%d, %s" % (CW16, vr(O, 4)))
        a("ds_write_b32 v%d, v%d offset:2048" % (CW4, O + 8))
        if RAW:
            a("v_smfmac_f32_32x32x32_bf16 %s, %s, %s, v%d" % (vr(O + 16, 16), vr(kvb(NB - 1) + 8, 4), vr(S + 24, 8), IXV))
        else:
            a("%s %s, %s, %s, %s" % (MF32, vr(O + 16, 16), vr(kvb(NB - 1) + 8, 4), vr(P + 4, 4), vr(O + 16, 16)))
        a("ds_write_b128 v%d, %s offset:1024" % (CW16, vr(O + 4, 4)))
        stamp(a, 7)
        stamp(a, 27, True)
        ev(a, 2)
        a("s_mov_b32 s28, 0x4f800000")
        a("s_nop 9")
    L1 = LA + 4 if SM else O + 24
    a("v_max_f32 v%d, v%d, v%d" % (S, O + 8, L1))
    a("v_cmp_u_f32 s[56:57], v%d, v%d" % (O + 8, L1))
    a("v_cmp_lt_f32 vcc, s28, v%d" % S)
    a("s_nop 3")
    a("s_or_b64 s[56:57], s[56:57], vcc")
    a("s_cbranch_scc0 P2_NOFLAG")
    a("v_mov_b32 v%d, 1" % S)
    a("ds_write_b32 v%d, v%d offset:8" % (VM, S))
    a.label("P2_NOFLAG")
    if SENT:
        a("s_cmp_eq_u32 s32, 0")
        a("s_cbranch_scc1 P2_MKD")
        a("v_cmp_ne_u32 vcc, s%d, v%d" % (S_TAG, T + 34))
        a("s_nop 3")
        a("s_cbranch_vccnz P2_MKR")
        a.label("P2_MKD")
    if SM:
        for r in range(0, 8, 2):
            a("v_pk_add_f32 %s, %s, %s" % (vr(O + 16 + r, 2), vr(O + 16 + r, 2), vr(O + 24 + r, 2)))
    a("s_waitcnt vmcnt(%d) lgkmcnt(0)" % (3 * NLD))
    a("s_barrier")
    ev(a, 9)
    if EP:
        a("buffer_load_dword v%d, v%d, %s, s10 offen sc1" % (S + 4, HFL, WS))
    a("ds_read_b32 v%d, v%d offset:8" % (S + 1, VM))
    a("ds_read_b32 v%d, v%d offset:2048" % (O + 8, CR4))
    a("ds_read_b128 %s, v%d" % (vr(O, 4), CR16))
    a("ds_read_b128 %s, v%d offset:1024" % (vr(O + 4, 4), CR16))
    a("s_waitcnt lgkmcnt(2)")
    a("v_readfirstlane_b32 s23, v%d" % (S + 1))
    a("v_add_f32 v%d, v%d, v%d" % (O + 8, O + 8, L1))
    a("v_rcp_f32 v%d, v%d" % (O + 8, O + 8))
    a("s_cmp_gt_u32 s23, s29")
    a("s_cbranch_scc1 P2_EXACT")
    a("v_mov_b32 v%d, v%d" % (O + 9, O + 8))
    a("s_waitcnt lgkmcnt(0)")
    for r in range(0, 8, 2):
        a("v_pk_add_f32 %s, %s, %s" % (vr(O + r, 2), vr(O + r, 2), vr(O + 16 + r, 2)))
    for r in range(0, 8, 2):
        a("v_pk_mul_f32 %s, %s, %s" % (vr(O + r, 2), vr(O + r, 2), vr(O + 8, 2)))
    for r in range(4):
        a("v_cvt_pk_bf16_f32 v%d, v%d, v%d" % (O + 16 + r, O + 2 * r, O + 2 * r + 1))
    if SENT:
        for r in range(4):
            a("v_min_u32 v%d, -2, v%d" % (O + 16 + r, O + 16 + r))
    a("buffer_store_dwordx4 %s, v2, %s, s33 offen sc1" % (vr(O + 16, 4), WS))
    stamp(a, 8)
    delay(a, 4, 3, 0x91)

    YR = 96
    a("s_and_b32 s21, s%d, 0xffff" % S_KEY)
    a("s_cmp_lt_u32 s19, 4")
    a("s_cbranch_scc1 P3_MUL")
    if SENT:
        HB = 188
        a("s_add_u32 s20, s11, 32768")
        a("s_add_u32 s13, s11, 4096")
        a("s_add_u32 s28, s20, 4096")
        def ld_quad(q):
            for t in range(2):
                for i in range(4):
                    a("buffer_load_dwordx4 %s, v2, %s, s%d offen offset:%d sc1" % (vr(HB + 32 * q + 16 * t + 4 * i, 4), WS, ((11, 20), (13, 28))[q][t], i * 1024))
        ld_quad(0)
        ld_quad(1)
        a("v_add_u32 v8, s12, v2")
        a("v_mov_b32 v10, 1")
        a("s_mov_b32 s22, 3")
        a("s_mov_b32 s94, 0")
        a.label("P3_HL")
        a("s_add_u32 s94, s94, 1")
        for q in range(2):
            a("s_bitcmp1_b32 s22, %d" % q)
            a("s_cbranch_scc0 P3_HS%d" % q)
            if q == 0:
                a("s_cmp_eq_u32 s22, 3")
                a("s_cbranch_scc1 P3_HW1")
                a("s_waitcnt vmcnt(0)")
                a.label("P3_HW1")
                a("s_waitcnt vmcnt(8)")
            else:
                a("s_waitcnt vmcnt(0)")
            hb = HB + 32 * q
            a("v_max3_u32 v11, v%d, v%d, v%d" % (hb, hb + 1, hb + 2))
            for r in range(3, 31, 2):
                a("v_max3_u32 v11, v11, v%d, v%d" % (hb + r, hb + r + 1))
            a("v_max_u32 v11, v11, v%d" % (hb + 31))
            a("v_cmp_eq_u32 vcc, -1, v11")
            a("s_cmp_ge_u32 s94, 0x40000")
            a("s_cbranch_scc1 P3_HG%d" % q)
            a("s_nop 0")
            a("s_cbranch_vccnz P3_HS%d" % q)
            a.label("P3_HG%d" % q)
            for p in range(8):
                a("ds_write_b128 v8, %s offset:%d" % (vr(hb + 4 * p, 4), L_X + q * 8192 + p * 1024))
            a("ds_write_b32 v%d, v10 offset:%d" % (HLD, 32 + 4 * q))
            a("s_bitset0_b32 s22, %d" % q)
            a.label("P3_HS%d" % q)
        a("s_cmp_eq_u32 s22, 0")
        a("s_cbranch_scc1 P3_HE")
        for q in range(2):
            a("s_bitcmp1_b32 s22, %d" % q)
            a("s_cbranch_scc0 P3_HR%d" % q)
            ld_quad(q)
            a.label("P3_HR%d" % q)
        a("s_branch P3_HL")
        a.label("P3_HE")
        stamp(a, 10)
        stamp(a, 28, True)
    else:
        if not EP:
            a("buffer_load_dword v8, v%d, %s, s10 offen sc1" % (HFL, WS))
        a("v_mov_b32 v10, 1")
        a("s_mov_b32 s22, 0")
        a("s_mov_b32 s13, 0")
        a("s_mov_b32 s94, 0")
        if EP:
            a("s_waitcnt vmcnt(1)")
            a("v_mov_b32 v8, v%d" % (S + 4))
        else:
            a("s_waitcnt vmcnt(0)")
            last_wave_flag(a, "P3_FLB", VM, 16, 8, 98, 12)
            stamp(a, 9)
            stamp(a, 30, True)
        a.label("P3_HL")
        a("v_cmp_eq_u32 vcc, s%d, v8" % S_TAG)
        a("s_add_u32 s94, s94, 1")
        a("s_cmp_ge_u32 s94, 0x40000")
        a("s_cselect_b32 s23, 3, vcc_lo")
        a("s_and_b32 s23, s23, 3")
        a("s_andn2_b32 s23, s23, s22")
        a("s_or_b32 s22, s22, s23")
        a("s_cmp_eq_u32 s22, 3")
        a("s_cbranch_scc1 P3_HN")
        a("buffer_load_dword v8, v%d, %s, s10 offen sc1" % (HFL, WS))
        a.label("P3_HN")
        for q in range(2):
            a("s_bitcmp1_b32 s23, %d" % q)
            a("s_cbranch_scc0 P3_HS%d" % q)
            for t in range(2):
                a("s_add_u32 m0, s12, %d" % (L_X + q * 8192 + t * 4096))
                a("s_add_u32 s3, s11, %d" % (q * 4096 + t * 32768))
                for i in range(4):
                    a("buffer_load_dwordx4 v2, %s, s3 offen offset:%d sc1 lds" % (WS, i * 1024))
            a.label("P3_HS%d" % q)
        if EP:
            a("s_cmp_lg_u32 s94, 1")
            a("s_cbranch_scc1 P3_HC")
            a("s_cmp_eq_u32 s23, 3")
            a("s_cbranch_scc1 P3_HC2")
            a("s_cmp_eq_u32 s23, 0")
            a("s_cbranch_scc1 P3_HC0")
            a("s_waitcnt vmcnt(9)")
            a("s_branch P3_HCD")
            a.label("P3_HC0")
            a("s_waitcnt vmcnt(1)")
            a.label("P3_HC2")
            a("s_waitcnt vmcnt(16)")
            a.label("P3_HCD")
            last_wave_flag(a, "P3_FLB", VM, 16, 8, 98, 12)
            stamp(a, 9)
            stamp(a, 30, True)
            a.label("P3_HC")
        a("s_cmp_eq_u32 s22, 3")
        a("s_cbranch_scc1 P3_HE")
        a("s_cmp_eq_u32 s23, 0")
        a("s_cbranch_scc1 P3_HW")
        a("s_waitcnt vmcnt(8)")
        a("s_branch P3_HL")
        a.label("P3_HW")
        a("s_waitcnt vmcnt(0)")
        a("s_cmp_eq_u32 s13, s22")
        a("s_cbranch_scc1 P3_HL")
        a("s_mov_b32 s13, s22")
        a("s_lshr_b32 s3, s22, 1")
        a("s_lshl_b32 s3, s3, 2")
        a("v_add_u32 v9, s3, v%d" % HLD)
        a("ds_write_b32 v9, v10 offset:32")
        a("s_branch P3_HL")
        a.label("P3_HE")
        stamp(a, 10)
        stamp(a, 28, True)
        a("s_cmp_eq_u32 s23, 1")
        a("s_cselect_b32 s3, 4, 0")
        a("v_add_u32 v9, s3, v%d" % HLD)
        a("s_waitcnt vmcnt(8)")
        a("ds_write_b32 v9, v10 offset:32")
        a("s_waitcnt vmcnt(0)")
        a("ds_write_b32 v%d, v10 offset:32" % HLD)
        a("ds_write_b32 v%d, v10 offset:36" % HLD)
    if SPAN and SPANW:
        a("s_lshl_b32 s3, s2, 3")
        a("s_add_u32 s3, s3, s19")
        a("s_cmp_lg_u32 s3, %d" % (SPWG * 8 + 6))
        a("s_cbranch_scc1 L_END")
        a("s_sub_u32 s13, s59, s58")
        a("s_min_u32 s13, s13, 10000")
        a("s_mul_i32 s13, s13, 10")
        a("s_memrealtime s[20:21]")
        a.label("SP_LOOP")
        a("s_memrealtime s[22:23]")
        a("s_waitcnt lgkmcnt(0)")
        a("s_sub_u32 s17, s22, s20")
        a("s_cmp_lt_u32 s17, s13")
        a("s_cbranch_scc1 SP_LOOP")
    a("s_endpgm")
    a.label("P3_MUL")
    a("s_sub_u32 s21, 0xffff, s21")
    a("s_lshr_b32 s20, s21, 5")
    ACC3, OB, B, YR = 16, 32, 80, 96
    def wof(h):
        return (190 + 4 * h) if h < 16 else (120 + 4 * (h - 16)) if h < 28 else (104 + 4 * (h - 28))
    def rd_wo(h):
        a("ds_read_b64_tr_b16 %s, v%d offset:%d" % (vr(wof(h), 2), VWO, h * 2048))
        a("ds_read_b64_tr_b16 %s, v%d offset:%d" % (vr(wof(h) + 2, 2), VWO, h * 2048 + 1024))
    for h in list(range(16)) + list(range(28, 32)):
        rd_wo(h)
    srd(a, 44, P_OUT, 2048 * 512 * 2)
    for i in range(8):
        a("v_lshlrev_b32 v%d, 16, v%d" % (B + 2 * i, XR + i))
        a("v_and_b32 v%d, 0xffff0000, v%d" % (B + 2 * i + 1, XR + i))
    for r in range(0, 16, 2):
        a("v_mov_b64 %s, 0" % vr(ACC3 + r, 2))
    a("v_and_b32 v5, 7, v0")
    a("v_lshl_add_u32 v5, v5, 2, v%d" % VM)
    if SENT:
        a("s_waitcnt vmcnt(1)")
    else:
        a("s_waitcnt vmcnt(0)")
        last_wave_flag(a, "P3_FLA", VM, 16, 8, 98, 8)
    stamp(a, 9)
    stamp(a, 30, True)
    for h in range(16, 28):
        rd_wo(h)
    a("s_cmp_eq_u32 s20, s4")
    a("s_cbranch_scc1 P3_YJOB")
    a.label("P3_YD")
    for i in range(16):
        a("v_mul_f32 v%d, v%d, v%d" % (B + i, B + i, GR + 1))
    a("s_mov_b32 s22, 0")
    a("s_mov_b32 s94, 0")
    a.label("P3_ROUND")
    a("ds_read_b32 v8, v5 offset:32")
    a("s_add_u32 s94, s94, 1")
    a("s_waitcnt lgkmcnt(0)")
    a("v_cmp_ne_u32 vcc, 0, v8")
    a("s_cmp_ge_u32 s94, 0x2000000")
    a("s_cbranch_scc1 P3_FIN")
    a("s_and_b32 s23, vcc_lo, 0xff")
    if DET:
        a("s_add_u32 s3, s23, 1")
        a("s_xor_b32 s23, s23, s3")
        a("s_lshr_b32 s23, s23, 1")
    a("s_andn2_b32 s23, s23, s22")
    a("s_cbranch_scc0 P3_ROUND")
    def rd_o(g):
        for i in range(4):
            a("ds_read_b128 %s, v%d offset:%d" % (vr(OB + 16 * (g & 1) + 4 * i, 4), VOF, L_X + g * 8192 + i * 1024))
    for g in range(8):
        a("s_bitcmp1_b32 s23, %d" % g)
        a("s_cbranch_scc0 P3_SK%d" % g)
        if g > 0:
            a("s_bitcmp1_b32 s23, %d" % (g - 1))
            a("s_cbranch_scc1 P3_HV%d" % g)
        rd_o(g)
        a.label("P3_HV%d" % g)
        if g < 7:
            rd_o(g + 1)
        for i in range(4):
            a("s_waitcnt lgkmcnt(%d)" % ((4 if g < 7 else 0) + 3 - i))
            a("%s %s, %s, %s, %s" % (MF32, vr(ACC3, 16), vr(wof(4 * g + i), 4), vr(OB + 16 * (g & 1) + 4 * i, 4), vr(ACC3, 16)))
        a.label("P3_SK%d" % g)
    a("s_or_b32 s22, s22, s23")
    a("s_cmp_lg_u32 s22, 0xff")
    a("s_cbranch_scc1 P3_ROUND")
    a.label("P3_FIN")
    stamp(a, 11)
    a("s_nop 10")
    for i in range(16):
        a("v_fma_f32 v%d, v%d, v%d, v%d" % (B + i, ACC3 + i, GR, B + i))
        if i % 2 == 1:
            a("v_cvt_pk_bf16_f32 v%d, v%d, v%d" % (XR + i // 2, B + i - 1, B + i))
        if i == 8:
            a("buffer_store_dwordx4 %s, v%d, s[44:47], s6 offen" % (vr(XR, 4), VXO))
    a("buffer_store_dwordx4 %s, v%d, s[44:47], s6 offen offset:16" % (vr(XR + 4, 4), VXO))
    stamp(a, 12)
    stamp(a, 25, True)
    if SPAN and not SPANW:
        ev(a, 3)
        a("s_lshl_b32 s3, s2, 3")
        a("s_add_u32 s3, s3, s19")
        a("s_cmp_lg_u32 s3, %d" % (SPWG * 8))
        a("s_cbranch_scc1 L_END")
        a("s_sub_u32 s13, s99, s13")
        a("s_min_u32 s13, s13, 10000")
        a("s_mul_i32 s13, s13, 10")
        a("s_memrealtime s[20:21]")
        a.label("SP_LOOP")
        a("s_memrealtime s[22:23]")
        a("s_waitcnt lgkmcnt(0)")
        a("s_sub_u32 s17, s22, s20")
        a("s_cmp_lt_u32 s17, s13")
        a("s_cbranch_scc1 SP_LOOP")
    a.label("L_END")
    a("s_endpgm")

    def ld_fl3(va=252):
        a("v_lshlrev_b32 v%d, 7, v0" % va)
        for i in range(4):
            a("s_mov_b32 s3, %d" % (WS_FL3 + i * 8192))
            a("buffer_load_dword v%d, v%d, %s, s3 offen sc1" % (F3 + i, va, WS))
    a.label("P3_YJOB")
    a("s_mov_b32 s94, 0")
    a.label("P3_ALL")
    for i in range(4):
        a("v_xor_b32 v%d, s%d, v%d" % (F3 + i, S_TAG, F3 + i))
    a("v_or3_b32 v%d, v%d, v%d, v%d" % (F3, F3, F3 + 1, F3 + 2))
    a("v_or_b32 v%d, v%d, v%d" % (F3, F3, F3 + 3))
    a("v_cmp_ne_u32 vcc, 0, v%d" % F3)
    a("s_add_u32 s94, s94, 1")
    a("s_cmp_ge_u32 s94, 0x40000")
    a("s_cbranch_scc1 P3_ALLD")
    a("s_cbranch_vccz P3_ALLD")
    ld_fl3(13)
    a("s_waitcnt vmcnt(0)")
    a("s_branch P3_ALL")
    a.label("P3_ALLD")
    a("v_lshrrev_b32 v12, 2, v0")
    a("v_and_b32 v13, 3, v0")
    a("v_lshlrev_b32 v14, 7, v12")
    a("v_lshl_add_u32 v14, v13, 4, v14")
    a("v_lshlrev_b32 v12, 11, v12")
    a("v_lshl_add_u32 v12, v13, 4, v12")
    a("s_lshr_b32 s30, s5, 8")
    a("s_lshl_b32 s30, s30, 9")
    a("s_and_b32 s31, s5, 255")
    a("s_add_u32 s30, s30, s31")
    a("s_add_u32 s30, s30, %d" % WS_Y)
    a("buffer_load_dwordx4 %s, v12, %s, s30 offen sc1" % (vr(YR, 4), WS))
    a("buffer_load_dwordx4 %s, v12, %s, s30 offen offset:256 sc1" % (vr(YR + 4, 4), WS))
    a("s_mul_i32 s30, s19, 2304")
    a("s_add_u32 s30, s30, %d" % L_QX)
    a("v_add_u32 v14, s30, v14")
    a("s_waitcnt vmcnt(0)")
    a("ds_write_b128 v14, %s" % vr(YR, 4))
    a("ds_write_b128 v14, %s offset:64" % vr(YR + 4, 4))
    a("v_lshlrev_b32 v14, 10, v7")
    a("v_lshl_add_u32 v14, v6, 2, v14")
    a("v_add_u32 v14, s30, v14")
    a("s_waitcnt lgkmcnt(0)")
    for i in range(8):
        a("ds_read_b32 v%d, v14 offset:%d" % (YR + i, i * 128))
    a("s_and_b32 s31, s%d, 0xffff0000" % S_KEY)
    a("s_ashr_i32 s28, s31, 31")
    a("s_not_b32 s28, s28")
    a("s_or_b32 s28, s28, 0x80000000")
    a("s_xor_b32 s31, s31, s28")
    a("s_and_b32 s31, s31, 0xffff0000")
    a("v_mov_b32 v15, s31")
    sigmoid_bf16(a, 15)
    a("s_waitcnt lgkmcnt(0)")
    for i in range(1, 8):
        a("v_add_f32 v%d, v%d, v%d" % (YR, YR, YR + i))
    a("v_mov_b32 v%d, v%d" % (YR + 1, YR))
    a("v_and_b32 v14, 15, v0")
    a("v_lshlrev_b32 v14, 3, v14")
    a("v_permlane32_swap_b32 v%d, v%d" % (YR, YR + 1))
    a("v_add_f32 v%d, v%d, v%d" % (YR, YR, YR + 1))
    bf16_round_to_f32(a, YR, YR)
    a("v_mul_f32 v%d, v%d, v15" % (YR, YR))
    bf16_round_to_f32(a, YR, YR)
    a("v_bfe_u32 v15, v0, 4, 1")
    a("v_lshl_add_u32 v14, v15, 2, v14")
    a("v_add_u32 v14, s30, v14")
    a("ds_write_b32 v14, v%d offset:2048" % YR)
    a("v_lshl_add_u32 v14, v7, 6, s30")
    for i in range(4):
        a("ds_read_b128 %s, v14 offset:%d" % (vr(OB + 4 * i, 4), 2048 + i * 16))
    a("s_and_b32 s30, s21, 31")
    a("v_cmp_eq_u32 vcc, s30, v6")
    a("s_waitcnt lgkmcnt(0)")
    a("s_and_saveexec_b64 s[48:49], vcc")
    for i in range(16):
        a("v_add_f32 v%d, v%d, v%d" % (B + i, B + i, OB + i))
        bf16_round_to_f32(a, B + i, B + i)
    a("s_mov_b64 exec, s[48:49]")
    a("s_branch P3_YD")

    a.label("P2_HRET")
    if NB == 8:
        a("s_bitcmp1_b32 s23, 0")
        a("s_cbranch_scc1 P2_HRET1")
    a("s_branch P2_HRET0")
    def gu_base():
        a("s_cmp_lt_u32 s19, 2")
        a("s_cselect_b32 s44, s%d, s%d" % (P_WG, P_WU))
        a("s_cselect_b32 s45, s%d, s%d" % (P_WG + 1, P_WU + 1))
        a("s_and_b32 s52, s2, 7")
        a("s_mul_i32 s52, s52, %d" % (64 * 3584))
        a("s_lshr_b32 s53, s2, 3")
        a("s_lshl_b32 s53, s53, 7")
        a("s_add_u32 s52, s52, s53")
    def warm_gu(lo, hi):
        if not WARM:
            return
        gu_base()
        a("s_and_b32 s53, s19, 1")
        a("s_mul_i32 s53, s53, %d" % (32 * 3584))
        a("s_add_u32 s52, s52, s53")
        a("s_add_u32 s44, s44, s52")
        a("s_addc_u32 s45, s45, 0")
        for i in range(lo, hi):
            a("s_load_dword s99, s[44:45], 0x%x" % (i * 3584))
    def warm_wd(lo, hi):
        if not WARM:
            return
        a("s_lshl_b32 s52, s2, 13")
        a("s_lshl_b32 s53, s19, 8")
        a("s_add_u32 s52, s52, s53")
        a("s_add_u32 s44, s%d, s52" % P_WD)
        a("s_addc_u32 s45, s%d, 0" % (P_WD + 1))
        for i in range(lo, hi):
            a("s_load_dword s99, s[44:45], 0x%x" % ((i // 2) * 1024 + (i % 2) * 128))
    def only_ffn():
        a("s_cmp_ge_u32 s2, 224")
        a("s_cbranch_scc1 P2_HRET")
    def check_tags(name, regs, reload):
        a("s_mov_b32 s94, 0")
        a.label(name + "L")
        a("v_cmp_ne_u32 vcc, s%d, v%d" % (S_TAG, regs[0]))
        for r in regs[1:]:
            a("v_cmp_ne_u32 s[52:53], s%d, v%d" % (S_TAG, r))
            a("s_nop 1")
            a("s_or_b64 vcc, vcc, s[52:53]")
        a("s_add_u32 s94, s94, 1")
        a("s_cmp_ge_u32 s94, 0x40000")
        a("s_cbranch_scc1 %sD" % name)
        a("s_cbranch_vccz %sD" % name)
        reload()
        a("s_waitcnt vmcnt(0)")
        a("s_branch %sL" % name)
        a.label(name + "D")
    def ld_keys():
        a("v_lshlrev_b32 v5, 3, v0")
        a("s_mov_b32 s3, %d" % WS_RK)
        a("buffer_load_dwordx2 %s, v5, %s, s3 offen sc1" % (vr(DD, 2), WS))
    def job_argmax():
        check_tags("P2_CK", [DD + 1], ld_keys)
        for sh in (1, 2, 4, 8):
            a("v_max_u32_dpp v%d, v%d, v%d row_ror:%d row_mask:0xf bank_mask:0xf" % (DD, DD, DD, sh))
            a("s_nop 1")
        for i in range(4):
            a("v_readlane_b32 s%d, v%d, %d" % (52 + i, DD, 16 * i))
        srd(a, 44, P_X, 2048 * 512 * 2)
        a("s_max_u32 s52, s52, s53")
        a("s_max_u32 s54, s54, s55")
        a("s_max_u32 s52, s52, s54")
        a("s_mov_b32 s%d, s52" % S_KEY)
        a("s_cmp_lt_u32 s2, 224")
        a("s_cselect_b32 s32, s32, 0x%x" % (0x80 if PLAN >= 5 else 0xc0))
        only_ffn()
        a("s_and_b32 s52, s52, 0xffff")
        a("s_sub_u32 s52, 0xffff, s52")
        a("s_and_b32 s52, s52, 2047")
        a("s_lshl_b32 s52, s52, 10")
        a("s_and_b32 s53, s2, 7")
        a("s_lshl_b32 s53, s53, 7")
        a("s_add_u32 s52, s52, s53")
        a("v_lshrrev_b32 v5, 4, v0")
        a("v_lshlrev_b32 v5, 4, v5")
        for s_ in range(2):
            a("buffer_load_dwordx4 %s, v5, s[44:47], s52 offen offset:%d" % (vr(XS + 4 * s_, 4), 64 * s_))
    def job_gu(lo, hi):
        only_ffn()
        gu_base()
        a("s_and_b32 s45, s45, 0xffff")
        a("s_mov_b32 s46, 0x%x" % (512 * 1792 * 2))
        a("s_mov_b32 s47, 0x00020000")
        a("v_lshrrev_b32 v5, 2, v0")
        a("v_mul_u32_u24 v5, 3584, v5")
        a("v_and_b32 v252, 3, v0")
        a("v_lshl_add_u32 v5, v252, 4, v5")
        a("s_and_b32 s53, s19, 1")
        a("s_lshl_b32 s53, s53, 6")
        a("s_add_u32 s52, s52, s53")
        a("s_lshl_b32 s54, s19, 12")
        for i in range(lo, hi):
            a("s_add_u32 m0, s54, %d" % (L_FFW + i * 1024))
            a("s_add_u32 s53, s52, %d" % (i * 16 * 3584))
            a("buffer_load_dwordx4 v5, s[44:47], s53 offen lds")
    def job_wd(lo=0, hi=8):
        srd(a, 48, P_WD, 1792 * 512 * 2)
        a("s_lshl_b32 s52, s2, 13")
        a("s_lshl_b32 s53, s19, 8")
        a("s_add_u32 s52, s52, s53")
        a("v_lshlrev_b32 v5, 2, v0")
        a("s_add_u32 s53, s52, 4096")
        for f in range(lo, hi):
            a("buffer_load_dword v%d, v5, s[48:51], s%d offen offset:%d" % (WD + f, 52 + f // 4, (f % 4) * 1024))
    def job_part():
        a("v_lshrrev_b32 v5, 4, v0")
        a("v_lshlrev_b32 v5, 9, v5")
        a("v_bfe_u32 v252, v0, 2, 2")
        a("v_lshl_add_u32 v5, v252, 6, v5")
        a("v_and_b32 v252, 3, v0")
        a("v_lshl_add_u32 v5, v252, 3, v5")
        a("s_lshl_b32 s52, s19, 12")
        a("s_add_u32 s52, s52, %d" % L_FFW)
        a("v_add_u32 v5, s52, v5")
        for ct in range(2):
            for s_ in range(2):
                for half in range(2):
                    a("ds_read_b64_tr_b16 %s, v5 offset:%d" % (vr(BF + 4 * s_ + 2 * half, 2), ct * 32 + s_ * 2048 + half * 256))
            a("s_waitcnt lgkmcnt(0)")
            a("%s %s, %s, %s, 0" % (MF16, vr(DD + 4 * ct, 4), vr(XS, 4), vr(BF, 4)))
            a("%s %s, %s, %s, %s" % (MF16, vr(DD + 4 * ct, 4), vr(XS + 4, 4), vr(BF + 4, 4), vr(DD + 4 * ct, 4)))
        a("v_lshlrev_b32 v5, 3, v0")
        a("s_lshl_b32 s52, s2, 10")
        a("s_lshl_b32 s53, s19, 8")
        a("s_add_u32 s52, s52, s53")
        a("s_add_u32 s52, s52, %d" % WS_PA)
        a("s_nop 3")
        a("v_mov_b32 v%d, s%d" % (DD + 1, S_TAG))
        a("s_mov_b32 exec_hi, 0")
        a("s_mov_b32 exec_lo, 0xffff0000")
        a("v_mov_b32 v%d, v%d" % (DD, DD + 4))
        a("s_mov_b32 exec_lo, -1")
        a("buffer_store_dwordx2 %s, v5, %s, s52 offen sc1" % (vr(DD, 2), WS))
        a("s_mov_b64 exec, -1")
    def ld_part():
        a("v_lshrrev_b32 v5, 3, v0")
        a("v_lshlrev_b32 v5, 10, v5")
        a("v_and_b32 v252, 7, v0")
        a("v_lshl_add_u32 v5, v252, 3, v5")
        a("s_lshr_b32 s3, s2, 3")
        a("s_lshl_b32 s3, s3, 13")
        a("s_and_b32 s54, s2, 7")
        a("s_lshl_b32 s54, s54, 6")
        a("s_add_u32 s3, s3, s54")
        a("s_add_u32 s3, s3, %d" % WS_PA)
        a("buffer_load_dwordx2 %s, v5, %s, s3 offen sc1" % (vr(T, 2), WS))
        a("buffer_load_dwordx2 %s, v5, %s, s3 offen offset:512 sc1" % (vr(T + 2, 2), WS))
    def job_final():
        check_tags("P2_CP", [T + 1, T + 3], ld_part)
        G_, U_ = T, T + 2
        for r in (G_, U_):
            a("v_add_f32_dpp v%d, v%d, v%d row_ror:8 row_mask:0xf bank_mask:0xf" % (r, r, r))
        for op in ("v_permlane16_swap_b32", "v_permlane32_swap_b32"):
            for r in (G_, U_):
                a("v_mov_b32 v%d, v%d" % (r + 1, r))
            a("s_nop 0")
            for r in (G_, U_):
                a("%s v%d, v%d" % (op, r, r + 1))
            for r in (G_, U_):
                a("v_add_f32 v%d, v%d, v%d" % (r, r, r + 1))
        bf16_round_to_f32(a, G_, G_)
        bf16_round_to_f32(a, U_, U_)
        a("v_mul_f32 v%d, 0x%08x, v%d" % (T + 1, f32bits(-LOG2E), G_))
        a("v_exp_f32 v%d, v%d" % (T + 1, T + 1))
        a("v_mov_b32 v%d, 0" % (T + 4))
        a("v_add_f32 v%d, 1.0, v%d" % (T + 1, T + 1))
        a("v_rcp_f32 v%d, v%d" % (T + 1, T + 1))
        a("v_mov_b32 v%d, 0" % (T + 5))
        a("v_mul_f32 v%d, v%d, v%d" % (T + 1, T + 1, G_))
        bf16_round_to_f32(a, T + 1, T + 1)
        a("v_mul_f32 v%d, v%d, v%d" % (T + 1, T + 1, U_))
        a("v_cvt_pk_bf16_f32 v%d, v%d, v%d" % (T + 1, T + 1, T + 4))
        a("v_lshlrev_b32 v5, 2, v0")
        for i in range(8):
            a("v_readlane_b32 s%d, v%d, %d" % (44 + i, T + 1, i))
        a("s_lshl_b32 s60, s19, 9")
        a("s_and_b32 s61, s2, 15")
        a("s_lshl_b32 s61, s61, 11")
        a("s_add_u32 s60, s60, s61")
        a("s_add_u32 s60, s60, %d" % WS_Y)
        for i in range(8):
            a("s_lshl_b32 s%d, s%d, 16" % (52 + i, 44 + i))
        for i in range(8):
            a("v_dot2_f32_bf16 v%d, v%d, s%d, v%d" % (T + 4, WD + i, 44 + i, T + 4))
            a("v_dot2_f32_bf16 v%d, v%d, s%d, v%d" % (T + 5, WD + i, 52 + i, T + 5))
        a("s_nop 3")
        a("buffer_atomic_add_f32 v%d, v5, %s, s60 offen" % (T + 4, WS))
        a("buffer_atomic_add_f32 v%d, v5, %s, s60 offen offset:256" % (T + 5, WS))
    def job_tail():
        a("s_lshl_b32 s3, s2, 7")
        a("s_add_u32 s3, s3, %d" % WS_FL3)
        a("s_waitcnt vmcnt(0)")
        last_wave_flag(a, "P2_FL3", VM, 12, 4, 3, 5)
        srd(a, 44, P_X, 2048 * 512 * 2)
        a("buffer_load_dwordx4 %s, v%d, s[44:47], s6 offen" % (vr(XR, 4), VXO))
        a("buffer_load_dwordx4 %s, v%d, s[44:47], s6 offen offset:16" % (vr(XR + 4, 4), VXO))
        a("v_lshlrev_b32 v252, 3, v6")
        a("buffer_load_dwordx2 %s, v252, %s, s7 offen sc1" % (vr(GR, 2), WS))
    def job_key():
        a("s_cmp_eq_u32 s39, -1")
        a("s_cbranch_scc1 P2_NOKEY")
        a("s_lshl_b32 s3, s39, 3")
        a("s_add_u32 s3, s3, %d" % WS_RK)
        a("v_mov_b32 v%d, s%d" % (DD, S_KEY))
        a("v_mov_b32 v%d, s%d" % (DD + 1, S_TAG))
        a("s_waitcnt vmcnt(0)")
        a("s_mov_b64 exec, 1")
        a("buffer_store_dwordx2 %s, off, %s, s3 sc1" % (vr(DD, 2), WS))
        a("s_mov_b64 exec, -1")
        a.label("P2_NOKEY")
    def job_mark():
        a("s_add_u32 s3, s33, 32768")
        a("v_mov_b64 %s, -1" % vr(XR, 2))
        a("v_mov_b64 %s, -1" % vr(XR + 2, 2))
        a("buffer_store_dwordx4 %s, v2, %s, s33 offen sc1" % (vr(XR, 4), WS))
        a("buffer_store_dwordx4 %s, v2, %s, s3 offen sc1" % (vr(XR, 4), WS))
    def ld_marks():
        assert MAP == 1
        a("v_and_b32 v5, 7, v0")
        a("v_lshlrev_b32 v5, 7, v5")
        a("s_lshl_b32 s3, s62, 10")
        a("s_add_u32 s3, s3, %d" % WS_FL3)
        a("buffer_load_dword v%d, v5, %s, s3 offen sc1" % (T + 34, WS))
    def job_own():
        a("s_and_b32 s52, s%d, 0xffff" % S_KEY)
        a("s_sub_u32 s52, 0xffff, s52")
        a("s_lshr_b32 s52, s52, 5")
        a("s_cmp_lg_u32 s52, s4")
        a("s_cbranch_scc1 P2_HRET")
        ld_fl3()
    def odd(b):
        a("s_bitcmp%d_b32 s2, 3" % b)
        a("s_cbranch_scc1 P2_HRET")
    if NB == 4:
        plans = {
            0: {0: [job_key], 1: [ld_keys, lambda: job_gu(0, 2)], 2: [job_argmax, lambda: job_gu(2, 4)], 3: [job_part, job_wd], 4: [ld_part], 5: [job_final], 6: [job_tail], 7: [job_own]},
            2: {0: [job_key, lambda: job_gu(0, 1)], 1: [ld_keys, lambda: job_gu(1, 3)], 2: [job_argmax, lambda: job_gu(3, 4)], 3: [job_part, job_wd], 4: [ld_part], 5: [job_final], 6: [job_tail], 7: [job_own]},
            3: {0: [job_key], 1: [ld_keys, lambda: job_gu(0, 4), job_wd], 2: [job_argmax], 3: [job_part], 4: [ld_part], 5: [job_final], 6: [job_tail], 7: [job_own]},
            4: {0: [job_key], 1: [ld_keys, lambda: odd(1), lambda: job_gu(0, 4), job_wd], 2: [job_argmax, lambda: odd(0), lambda: job_gu(0, 4), job_wd], 3: [job_part], 4: [ld_part], 5: [job_final], 6: [job_tail], 7: [job_own]},
            5: {0: [job_key], 1: [ld_keys, only_ffn, lambda: warm_gu(0, 14)], 2: [job_argmax, lambda: warm_gu(14, 28)], 3: [lambda: job_gu(0, 4), lambda: warm_wd(0, 14)], 4: [job_part, job_wd], 5: [ld_part], 6: [job_final], 7: [job_tail, job_own]},
            6: {0: [job_key, lambda: job_gu(0, 1)], 1: [ld_keys, lambda: job_gu(1, 2)], 2: [job_argmax, lambda: job_gu(2, 3)], 3: [lambda: job_gu(3, 4)], 4: [job_part, lambda: job_wd(0, 4)], 5: [ld_part, lambda: job_wd(4, 8)], 6: [job_final], 7: [job_tail, job_own]},
            7: {0: [job_key], 1: [ld_keys, lambda: job_gu(0, 1)], 2: [job_argmax, lambda: job_gu(1, 3)], 3: [lambda: job_gu(3, 4), lambda: job_wd(0, 3)], 4: [job_part, lambda: job_wd(3, 6)], 5: [ld_part, lambda: job_wd(6, 8)], 6: [job_final], 7: [job_tail, job_own]},
            1: {1: [ld_keys, lambda: job_gu(0, 1)], 2: [job_argmax, lambda: job_gu(1, 2)], 3: [lambda: job_gu(2, 4)], 4: [job_part], 5: [job_wd], 6: [ld_part], 7: [job_final]},
        }
    else:
        plans = {
            0: {0: [ld_keys], 1: [lambda: job_gu(0, 4)], 2: [job_argmax], 3: [job_wd], 4: [job_part], 5: [ld_part], 7: [job_final]},
        }
    plan = plans[PLAN]
    if SENT:
        plan[0] = plan[0] + [job_mark]
        plan[7] = [ld_marks] + plan[7]
        a.label("P2_MKR")
        check_tags("P2_CM", [T + 34], ld_marks)
        a("s_branch P2_MKD")
    a.label("P2_HOOK")
    delay(a, 2, 15, 0x05)
    for st in plan:
        a("s_cmp_eq_u32 s23, %d" % st)
        a("s_cbranch_scc1 P2_J%d" % st)
    a("s_branch P2_HRET")
    for st, jobs in plan.items():
        a.label("P2_J%d" % st)
        for jb in jobs:
            jb()
        a("s_branch P2_HRET")

    a.label("P2_EXACT")
    a("s_mov_b32 s29, 1")
    a("s_mov_b32 s32, 0")
    a("s_mov_b32 s23, 0xff800000")
    for j in range(2):
        a("v_mov_b32 v%d, s23" % (T + j))
    a("s_mov_b32 s28, s22")
    a("s_mov_b32 s23, 0")
    a("s_waitcnt vmcnt(0) lgkmcnt(0)")
    a.label("P2_EXLOOP")
    a("buffer_load_dwordx4 %s, v2, %s, s28 offen sc1" % (vr(KV, 4), WS))
    a("s_waitcnt vmcnt(0)")
    for j in range(2):
        a("%s %s, %s, %s, 0" % (MF32, vr(S, 16), vr(KV, 4), vr(Q + 4 * j, 4)))
        a("s_nop 15")
        for r in range(0, 16, 2):
            a("v_max3_f32 v%d, v%d, v%d, v%d" % (T + j, T + j, S + r, S + r + 1))
    a("s_add_u32 s28, s28, 2048")
    a("s_add_u32 s23, s23, 1")
    a("s_cmp_lt_u32 s23, 32")
    a("s_cbranch_scc1 P2_EXLOOP")
    a("s_lshl_b32 s23, s19, 9")
    a("s_lshl_b32 s28, s16, 8")
    a("s_add_u32 s23, s23, %d" % L_EX)
    a("v_lshl_add_u32 v5, v0, 2, s23")
    a("v_add_u32 v252, s28, v5")
    a("v_xor_b32 v253, 256, v252")
    a("ds_write_b32 v253, v%d" % T)
    a("ds_write_b32 v252, v%d" % (T + 1))
    a("s_waitcnt lgkmcnt(0)")
    a("s_barrier")
    a("s_lshl_b32 s23, s17, 9")
    a("s_add_u32 s23, s23, %d" % L_EX)
    a("v_lshl_add_u32 v5, v6, 2, s23")
    a("v_add_u32 v252, s28, v5")
    a("v_xor_b32 v253, 256, v252")
    for j in range(2):
        for kh in range(2):
            for hh in range(2):
                a("ds_read_b32 v%d, v%d offset:%d" % (S + kh * 2 + hh, 253 - j, kh * 2048 + hh * 128))
        a("s_waitcnt lgkmcnt(0)")
        a("v_max3_f32 v%d, v%d, v%d, v%d" % (S, S, S + 1, S + 2))
        a("v_max_f32 v%d, v%d, v%d" % (S, S, S + 3))
        a("v_sub_f32 v%d, 0, v%d" % (C + 16 * j, S))
    p2_init()
    a("s_lshl_b32 s28, s14, 11")
    a("s_mov_b32 s21, s28")
    ld_k(0)
    ld_v(0)
    a("s_waitcnt vmcnt(0)")
    a("s_branch P2_START")
    a.label("L_CODE_END")

DOC = """;
;           from two all-ones rows of the V^T operand.  The P.V product uses v_smfmac with the constant 2:4 index {1,3}:
; Hand-offs between workgroups: sc1 (device-scope) stores, drained with vmcnt(0), then a flag or {value, tag} word that
; Workgroup -> tile maps exploit the usual id%8 XCD placement for L2 locality only.
;"""

def main():
    out = sys.argv[1] if len(sys.argv) > 1 else "cdna_kernels/%s.s" % NAME
    a = Asm()
    hdr = open("cdna_kernels/%s.s.ref" % NAME).read().split("\n")
    keep = [l for l in hdr if l.startswith(";") and "@launch" not in l and "Override launch" not in l and "grid=ceil" not in l]
    for l in keep:
        a.raw(l)
    a.raw("; @launch grid=(256,1,1) block=(512,1,1) lds=%d" % LDS_SIZE)
    a.raw(DOC)
    a.raw('.amdgcn_target "amdgcn-amd-amdhsa--gfx950"')
    a.raw(".text")
    gen(a)
    a.raw('.section .rodata,"a"')
    a.raw(""".p2align 6
.amdhsa_kernel %s_kernel
  .amdhsa_next_free_vgpr 256
  .amdhsa_next_free_sgpr 102
  .amdhsa_accum_offset 256
  .amdhsa_group_segment_fixed_size 0
  .amdhsa_kernarg_size 96
  .amdhsa_user_sgpr_count 2
  .amdhsa_user_sgpr_kernarg_segment_ptr 1
  .amdhsa_system_sgpr_workgroup_id_x 1
.end_amdhsa_kernel""" % NAME)
    open(out, "w").write(a.text())

if __name__ == "__main__":
    main()
```

```python
import sys, math, struct, os

NAME = "gated_mix__mha_block__moe_arch_mod__prompt"

WS_KV = 0
WS_O = (4 << 20) + 65536
WS_FL1 = WS_O + (2 << 20)
WS_FL2 = WS_FL1 + 32768
WS_FL3 = WS_FL2 + 32768
WS_RK = WS_FL3 + 32768
WS_PA = WS_RK + 8192
WS_G = WS_PA + 262144
WS_EP = WS_G + 16384
WS_Y = WS_EP + 1024
WS_ST = 7 << 20
WS_SIZE = 8 << 20

STAMP = int(os.environ.get("STAMP", "0"))
NB = int(os.environ.get("NB", "4"))
CPF = int(os.environ.get("CPF", "1"))
SLEEP = int(os.environ.get("SLEEP", "0"))
MAP = int(os.environ.get("MAP", "1"))
PRIO = int(os.environ.get("PRIO", "3"))
TOUCH = int(os.environ.get("TOUCH", "0"))
HMASK = int(os.environ.get("HMASK", "0xff"), 0)
WARM = int(os.environ.get("WARM", "0"))
PLAN = int(os.environ.get("PLAN", "0"))
QF = int(os.environ.get("QF", "20"))
DET = int(os.environ.get("DET", "1"))
EP = 0
HP = int(os.environ.get("HP", "0"))
SMODE = int(os.environ.get("SM", "2"))
SM = SMODE == 1
RAW = SMODE == 2
SPLIT = int(os.environ.get("SPLIT", "1"))
P3POS = int(os.environ.get("P3POS", "9"))
SENT = int(os.environ.get("SENT", "0"))
LW = int(os.environ.get("LW", "0"))
WOT = int(os.environ.get("WOT", "0"))
XLA = int(os.environ.get("XLA", "3"))
PD = int(os.environ.get("PD", "1"))
PGAP = int(os.environ.get("PGAP", "3"))
WQT = int(os.environ.get("WQT", "1"))
INIT = int(os.environ.get("INIT", "3"))
ROT = int(os.environ.get("ROT", "1"))
DELAY = int(os.environ.get("DELAY", "0"))
_dl = [0]
def delay(a, site, mod, wavemask=0xff):
    if not (DELAY >> site) & 1:
        return
    _dl[0] += 1
    a("s_mul_i32 s100, s2, %d" % (7 + 2 * site))
    a("s_and_b32 s100, s100, %d" % mod)
    a("s_cmp_lg_u32 s100, 1")
    a("s_cbranch_scc1 DL%d" % _dl[0])
    a("s_mov_b32 s100, %d" % wavemask)
    a("s_bitcmp1_b32 s100, s19")
    a("s_cbranch_scc0 DL%d" % _dl[0])
    for _ in range(6):
        a("s_sleep 127")
    a.label("DL%d" % _dl[0])
SPWG = int(os.environ.get("SPWG", "77"))
SPANW = int(os.environ.get("SPANW", "0"))
SPAN = os.environ.get("SPAN", "")
def ev(a, i):
    if not SPAN:
        return
    i0, i1 = [int(x) for x in SPAN.split(",")]
    for k, r in (((i0, 58), (i1, 59)) if SPANW else ((i0, 13), (i1, 99))):
        if k == i:
            a("s_memrealtime s[100:101]")
            a("s_waitcnt lgkmcnt(0)")
            a("s_mov_b32 s%d, s100" % r)
NOWO = int(os.environ.get("NOWO", "0"))

def f32bits(x):
    return struct.unpack("<I", struct.pack("<f", x))[0]

import re
_SRC = open(__file__).read().split("\n")

class Asm:
    def __init__(self):
        self.l = []
        self.seen = set()
    def _lead(self, ln):
        k = ln - 2
        while k >= 0 and re.match(r"\s*(for |if |def |[\w, ]+ = )", _SRC[k]) and ln - k < 6:
            k -= 1
        out = []
        while k >= 0 and _SRC[k].strip().startswith("#") and k not in self.seen:
            self.seen.add(k)
            out.append("    ; " + _SRC[k].strip().lstrip("#").strip())
            k -= 1
        self.l.extend(reversed(out))
    def __call__(self, s):
        ln = sys._getframe(1).f_lineno
        self._lead(ln)
        m = re.search(r"\)\s+# (.*)$", _SRC[ln - 1])
        tail = ""
        if m and (ln - 1) not in self.seen:
            self.seen.add(ln - 1)
            tail = "   ; " + m.group(1)
        self.l.append("    " + s.strip() + tail)
    def label(self, s):
        self._lead(sys._getframe(1).f_lineno)
        self.l.append(s + ":")
    def raw(self, s):
        self.l.append(s)
    def text(self):
        return "\n".join(self.l) + "\n"

def vr(b, n):
    return "v[%d:%d]" % (b, b + n - 1)
def sr(b, n):
    return "s[%d:%d]" % (b, b + n - 1)

def srd(a, d, base, nbytes):
    a("s_mov_b32 s%d, s%d" % (d, base))
    a("s_and_b32 s%d, s%d, 0xffff" % (d + 1, base + 1))
    a("s_mov_b32 s%d, 0x%x" % (d + 2, nbytes))
    a("s_mov_b32 s%d, 0x00020000" % (d + 3))

MF32 = "v_mfma_f32_32x32x16_bf16"
MF16 = "v_mfma_f32_16x16x32_bf16"
LOG2E = math.log2(math.e)

P_X, P_WQKV, P_WO, P_WR, P_WG, P_WU, P_WD, P_GW, P_OUT, P_DBG, P_WS = 64, 66, 68, 72, 74, 76, 78, 80, 82, 84, 86
WS = "s[88:91]"
S_TAG, S_KEY = 92, 93

def stamp(a, idx, real=False):
    if not STAMP:
        return
    a("s_memrealtime s[100:101]" if real else "s_memtime s[100:101]")
    a("s_waitcnt lgkmcnt(0)")
    a("v_mov_b32 v255, s100")
    a("s_lshl_b32 s100, s2, 3")
    a("s_add_u32 s100, s100, s19")
    a("s_lshl_b32 s100, s100, 7")
    a("s_add_u32 s100, s100, %d" % (WS_ST + idx * 4))
    a("buffer_store_dword v255, off, %s, s100" % WS)

def bf16_round_to_f32(a, dst, src):
    a("v_cvt_pk_bf16_f32 v%d, v%d, v%d" % (dst, src, src))
    a("v_lshlrev_b32 v%d, 16, v%d" % (dst, dst))

def sigmoid_bf16(a, r):
    a("v_mul_f32 v%d, 0x%08x, v%d" % (r, f32bits(-LOG2E), r))
    a("v_exp_f32 v%d, v%d" % (r, r))
    a("s_nop 0")
    a("v_add_f32 v%d, 1.0, v%d" % (r, r))
    a("v_rcp_f32 v%d, v%d" % (r, r))
    a("s_nop 0")
    bf16_round_to_f32(a, r, r)

def poll(a, name, t0, voff):
    a("s_mov_b32 s94, 0")
    a("s_branch %s_IN" % name)
    a.label(name)
    if SLEEP:
        a("s_sleep %d" % SLEEP)
    a.label(name + "_IN")
    a("buffer_load_dword v%d, v%d, %s, s95 offen sc1" % (t0, voff, WS))
    a("s_add_u32 s94, s94, 1")
    a("s_waitcnt vmcnt(0)")
    a("v_cmp_ne_u32 vcc, s%d, v%d" % (S_TAG, t0))
    a("s_cmp_ge_u32 s94, 0x40000")
    a("s_cbranch_scc1 %s_OUT" % name)
    a("s_cbranch_vccz %s_OUT" % name)
    a("s_mov_b64 exec, vcc")
    a("s_branch %s" % name)
    a.label(name + "_OUT")

def poll_deep(a, name, t0, voff):
    a("s_mov_b32 s94, 0")
    for i in range(PD - 1):
        a("buffer_load_dword v%d, v%d, %s, s95 offen sc1" % (t0 + i, voff, WS))
        a("s_sleep %d" % PGAP)
    a.label(name)
    for i in range(PD):
        a("buffer_load_dword v%d, v%d, %s, s95 offen sc1" % (t0 + (i + PD - 1) % PD, voff, WS))
        a("s_waitcnt vmcnt(%d)" % (PD - 1))
        a("v_cmp_ne_u32 vcc, s%d, v%d" % (S_TAG, t0 + i))
        a("s_add_u32 s94, s94, 1")
        a("s_nop 0")
        a("s_cbranch_vccz %s_OUT" % name)
        a("s_mov_b64 exec, vcc")
    a("s_cmp_lt_u32 s94, 0x10000")
    a("s_cbranch_scc1 %s" % name)
    a.label(name + "_OUT")

def last_wave_flag(a, name, vm, ldsoff, n, soff, t0):
    a("v_mov_b32 v%d, 1" % t0)
    a("s_mov_b64 exec, 1")
    a("ds_add_rtn_u32 v%d, v%d, v%d offset:%d" % (t0, vm, t0, ldsoff))
    a("s_waitcnt lgkmcnt(0)")
    a("v_readfirstlane_b32 s97, v%d" % t0)
    a("v_mov_b32 v%d, s%d" % (t0, S_TAG))
    a("s_nop 1")
    a("s_cmp_lg_u32 s97, %d" % (n - 1))
    a("s_cbranch_scc1 %s" % name)
    a("buffer_store_dword v%d, off, %s, s%d sc1" % (t0, WS, soff))
    a.label(name)
    a("s_mov_b64 exec, -1")

def get_tag(a, name, t0):
    a("s_mov_b32 s94, 0")
    a.label(name + "L")
    a("s_waitcnt vmcnt(0)")
    a("v_readfirstlane_b32 s95, v%d" % (t0 + 1))
    a("s_add_u32 s94, s94, 1")
    a("s_cmp_ge_u32 s94, 0x40000")
    a("s_cbranch_scc1 %sD" % name)
    a("s_cmp_lg_u32 s95, 0")
    a("s_cbranch_scc1 %sD" % name)
    a("buffer_load_dwordx2 %s, off, s[24:27], 0 sc1" % vr(t0, 2))
    a("s_branch %sL" % name)
    a.label(name + "D")
    a("v_readfirstlane_b32 s%d, v%d" % (S_TAG, t0))

def put_flag(a, soff, t0):
    a("v_mov_b32 v%d, s%d" % (t0, S_TAG))
    a("s_mov_b64 exec, 1")
    a("buffer_store_dword v%d, off, %s, s%d sc1" % (t0, WS, soff))
    a("s_mov_b64 exec, -1")

L_X = 0
L_W = 65536
L_FFW = L_X + 32768
L_EX = L_X
L_CMB = 131072
L_RT = L_CMB + 18432
L_MISC = L_RT + 2048
L_QX = L_MISC + 2048
L_MX = L_QX + 8192
LDS_SIZE = L_MX + 1024

def gen(a):
    kn = NAME + "_kernel"
    a.raw(".globl %s" % kn)
    a.raw(".p2align 8")
    a.raw(".type %s,@function" % kn)
    a.label(kn)
    a("s_cmp_ge_u32 s2, 256")
    a("s_cbranch_scc1 L_END")
    a("s_load_dwordx16 s[64:79], s[0:1], 0")
    a("s_load_dwordx8 s[80:87], s[0:1], 64")
    if CPF:
        a("s_getpc_b64 s[22:23]")
        a.label("L_PC")
        a("v_subrev_u32 v2, 256, v0")
        a("v_lshlrev_b32 v2, 7, v2")
        a("v_cmp_gt_u32 vcc, L_CODE_END - L_PC, v2")
        a("s_and_saveexec_b64 s[24:25], vcc")
        a("s_cbranch_execz L_NOPF")
        a("global_load_dword v3, v2, s[22:23]")
        a.label("L_NOPF")
        a("s_mov_b64 exec, -1")
    a("v_lshrrev_b32 v1, 6, v0")
    a("v_and_b32 v0, 63, v0")
    a("v_readfirstlane_b32 s19, v1")
    ev(a, 0)
    delay(a, 0, 7)
    Q, C, O, S, P, KV, T = 8, 16, 48, 80, 112, 120, 216
    VM = 254
    XS, WD, BF, DD = T, T + 8, T + 16, T + 24
    ntb = 32 // MAP
    lt = ntb.bit_length() - 1
    a("s_and_b32 s16, s2, 7")
    a("s_lshr_b32 s17, s2, 3")
    a("s_and_b32 s14, s16, %d" % (MAP - 1))
    a("s_lshl_b32 s14, s14, %d" % lt)
    a("s_and_b32 s18, s17, %d" % (ntb - 1))
    a("s_add_u32 s14, s14, s18")
    a("s_lshr_b32 s15, s16, %d" % (MAP.bit_length() - 1))
    a("s_mul_i32 s15, s15, %d" % MAP)
    a("s_lshr_b32 s17, s17, %d" % lt)
    a("s_add_u32 s15, s15, s17")
    if ROT:
        a("s_mul_i32 s17, s15, %d" % ROT)
    else:
        a("s_mul_i32 s17, s17, %d" % (8 // MAP))
    a("s_add_u32 s16, s17, s18")
    a("s_and_b32 s16, s16, 7")
    a("s_and_b32 s62, s2, 7")
    a("s_lshl_b32 s62, s62, 2")
    a("s_bfe_u32 s38, s2, 0x20003")
    a("s_add_u32 s62, s62, s38")
    a("s_lshr_b32 s63, s2, 5")
    a("s_lshl_b32 s38, s38, 1")
    a("s_add_u32 s38, s38, s63")
    a("s_and_b32 s38, s38, 7")
    a("v_lshlrev_b32 v2, 4, v0")
    a("v_and_b32 v6, 31, v0")
    a("v_lshrrev_b32 v7, 5, v0")
    a("v_mov_b32 v%d, %d" % (VM, L_MISC))
    a("s_and_b32 s20, s19, 1")
    XA = 8
    a("v_bfe_u32 v24, v6, 1, 3")
    a("v_lshlrev_b32 v25, 7, v6")
    a("s_lshl_b32 s18, s20, 12")
    a("v_add_u32 v25, s18, v25")
    for ks in range(4):
        a("v_or_b32 v26, %d, v7" % (2 * ks))
        a("v_xor_b32 v26, v26, v24")
        a("v_lshl_add_u32 v%d, v26, 4, v25" % (XA + ks))
    a("s_lshl_b32 s47, s14, 1")
    a("s_add_u32 s39, s47, s20")
    a("s_cmp_ge_u32 s19, 4")
    a("s_cbranch_scc1 P1_COMPUTE")

    a("v_lshrrev_b32 v4, 3, v0")
    a("v_lshlrev_b32 v5, 10, v4")
    a("v_and_b32 v3, 7, v0")
    a("v_lshrrev_b32 v16, 4, v0")
    a("v_xor_b32 v17, v3, v16")
    a("v_lshl_add_u32 v5, v17, 4, v5")
    a("v_mul_u32_u24 v4, 3072, v4")
    a("v_and_b32 v16, 1, v16")
    a("v_lshlrev_b32 v16, 2, v16")
    a("v_xor_b32 v17, v3, v16")
    a("v_lshl_add_u32 v4, v17, 4, v4")
    a("s_lshl_b32 s18, s15, 7")
    a("v_add_u32 v4, s18, v4")
    a("v_xor_b32 v3, 64, v5")
    a("s_lshl_b32 s40, s14, 16")
    a("s_lshl_b32 s18, s19, 14")
    a("s_add_u32 s40, s40, s18")
    a("s_lshl_b32 s44, s19, 11")
    a("s_lshl_b32 s18, s16, 7")
    a("v_add_u32 v16, s18, v2")
    a("v_and_b32 v16, 1023, v16")
    a("s_mul_i32 s41, s19, 49152")
    a("s_lshl_b32 s45, s19, 12")
    a("s_mul_i32 s42, s20, %d" % (32 * 3072))
    a("s_lshr_b32 s43, s19, 1")
    a("s_waitcnt lgkmcnt(0)")
    srd(a, 20, P_X, 2048 * 512 * 2)
    srd(a, 24, P_WQKV, 512 * 1536 * 2)
    srd(a, 88, P_WS, WS_SIZE)
    stamp(a, 0)
    stamp(a, 24, True)

    order = []
    a("s_mov_b32 s51, s16")
    def issue_x(c):
        a("s_lshl_b32 s46, s51, 7")
        a("s_add_u32 s46, s46, s40")
        a("s_add_u32 m0, s44, %d" % (L_X + c * 8192))
        a("s_add_u32 s48, s46, 8192")
        a("buffer_load_dwordx4 v5, s[20:23], s46 offen lds")
        a("s_add_u32 m0, s44, %d" % (L_X + c * 8192 + 1024))
        a("s_add_u32 s51, s51, 1")
        a("buffer_load_dwordx4 v3, s[20:23], s48 offen lds")
        a("s_and_b32 s51, s51, 7")
        order.extend([c, c])
    def issue_step(c):
        wb = L_W + (c % 4) * 16384
        order.extend([c] * 4)
        if c < 8:
            a("s_mul_i32 s47, s16, %d" % (64 * 3072))
            a("s_add_u32 s47, s47, s41")
            a("s_add_u32 s49, s47, %d" % (8 * 3072))
            for rh in range(2):
                a("s_add_u32 m0, s45, %d" % (wb + rh * 2048 - 1024))
                a("s_add_u32 s16, s16, 1" if rh == 0 else "s_and_b32 s16, s16, 7")
                for t in (1, 2):
                    a("buffer_load_dwordx4 v4, s[24:27], s%d offen offset:%d lds" % (47 + 2 * rh, t * 1024))
        else:
            a("s_add_u32 s46, s16, s43")
            a("s_and_b32 s46, s46, 7")
            a("s_mul_i32 s47, s46, %d" % (64 * 3072))
            a("s_add_u32 s47, s47, s42")
            a("s_add_u32 s16, s16, 2")
            for i in range(4):
                a("s_add_u32 m0, s45, %d" % (wb + i * 1024))
                a("s_add_u32 s48, s47, %d" % (i * 8 * 3072))
                a("buffer_load_dwordx4 v4, s[24:27], s48 offen lds")

    issue_x(0)
    issue_step(0)
    srd(a, 28, P_WR, 1024)
    srd(a, 32, P_GW, 1024)
    a("s_mov_b32 m0, %d" % L_RT)
    a("s_nop 0")
    a("buffer_load_dwordx4 v16, s[32:35], 0 offen lds")
    a("s_mov_b32 m0, %d" % (L_RT + 1024))
    a("s_nop 0")
    a("buffer_load_dwordx4 v16, s[28:31], 0 offen lds")
    order.extend([7, 7])
    for c in range(1, INIT):
        issue_x(c)
        issue_step(c)
    for c in range(INIT, XLA):
        issue_x(c)
    a("s_and_b32 s50, s14, 7")
    a("s_xor_b32 s50, s50, s15")
    a("s_lshr_b32 s57, s19, 1")
    a("s_or_b32 s50, s50, s57")
    a("v_and_b32 v25, 1, v0")
    a("v_lshlrev_b32 v25, 10, v25")
    a("v_lshl_add_u32 v17, v7, 4, v25")
    a("v_add_u32 v17, %d, v17" % L_RT)
    RACC, RF = 32, 48
    for r in range(0, 16, 2):
        a("v_mov_b64 %s, 0" % vr(RACC + r, 2))
    a("ds_write_b128 v%d, %s" % (VM, vr(RACC, 4)))
    for o in (16, 32, 48, 64):
        a("ds_write_b128 v%d, %s offset:%d" % (VM, vr(RACC, 4), o))
    for c in range(12):
        younger = len(order) - 1 - max(i for i, k in enumerate(order) if k <= c)
        a("s_waitcnt vmcnt(%d)%s" % (younger, " lgkmcnt(0)" if c == 0 else ""))
        if STAMP == 3 and c < 8:
            a("s_memtime s[100:101]")
            a("s_waitcnt lgkmcnt(0)")
            a("s_mov_b32 s%d, s100" % (52 + c))
        a("s_barrier")
        if c == 0 and STAMP != 3:
            stamp(a, 1)
        if c + max(XLA, INIT) < 8 and XLA <= 3:
            issue_x(c + max(XLA, INIT))
        if INIT <= c + 3 < 12:
            issue_step(c + 3)
        if c + XLA < 8 and XLA > 3:
            issue_x(c + XLA)
        if c == 0:
            srd(a, 32, P_DBG, 256)
        if c == 9:
            a("buffer_load_dwordx2 v[28:29], off, s[32:35], 0 sc1")
            order.append(99)
        if 8 <= c <= 10:
            a("s_cmp_lg_u32 s50, 0")
            a("s_cbranch_scc1 P1_NR%d" % c)
            k0, k1 = (0, 11, 22, 32)[c - 8], (0, 11, 22, 32)[c - 7]
            def rd_r(kk):
                a("ds_read_b128 %s, v%d offset:%d" % (vr(RF + 8 * (kk % 6), 4), XA + kk % 4, L_X + (kk // 4) * 8192))
                a("ds_read_b128 %s, v17 offset:%d" % (vr(RF + 8 * (kk % 6) + 4, 4), kk * 32))
            if c == 8:
                for kk in range(5):
                    rd_r(kk)
            for kk in range(k0, k1):
                a("s_waitcnt lgkmcnt(%d)" % (2 * min(4, 31 - kk)))
                a("%s %s, %s, %s, %s" % (MF32, vr(RACC, 16), vr(RF + 8 * (kk % 6) + 4, 4), vr(RF + 8 * (kk % 6), 4), vr(RACC, 16)))
                if kk + 5 < 32:
                    rd_r(kk + 5)
            a.label("P1_NR%d" % c)
    if STAMP == 3:
        for c in range(0, 8):
            a("v_mov_b32 v255, s%d" % (52 + c))
            a("s_lshl_b32 s100, s2, 3")
            a("s_add_u32 s100, s100, s19")
            a("s_lshl_b32 s100, s100, 7")
            a("s_add_u32 s100, s100, %d" % (WS_ST + (16 + c) * 4))
            a("buffer_store_dword v255, off, %s, s100" % WS)
    srd(a, 24, P_DBG, 256)
    get_tag(a, "P1_TAGL", 28)
    a("s_mov_b32 s39, -1")
    a("s_cmp_lg_u32 s50, 0")
    a("s_cbranch_scc1 P1_DONE")
    R = RACC
    a("s_nop 9")
    a("s_lshl_b32 s39, s14, 1")
    a("s_add_u32 s39, s39, s19")
    bf16_round_to_f32(a, 100, R)
    sigmoid_bf16(a, 100)
    a("v_sub_f32 v101, 1.0, v100")
    bf16_round_to_f32(a, 101, 101)
    bf16_round_to_f32(a, 102, R + 1)
    a("v_ashrrev_i32 v103, 31, v102")
    a("v_or_b32 v103, 0x80000000, v103")
    a("v_xor_b32 v102, v102, v103")
    a("v_and_b32 v102, 0xffff0000, v102")
    a("s_lshl_b32 s55, s39, 5")
    a("v_add_u32 v103, s55, v6")
    a("v_sub_u32 v103, 0xffff, v103")
    a("v_or_b32 v102, v102, v103")
    for sh in (1, 2, 4, 8):
        a("s_nop 1")
        a("v_max_u32_dpp v102, v102, v102 row_ror:%d row_mask:0xf bank_mask:0xf" % sh)
    a("s_nop 0")
    a("v_readlane_b32 s56, v102, 0")
    a("v_readlane_b32 s57, v102, 16")
    a("s_nop 3")
    a("s_max_u32 s%d, s56, s57" % S_KEY)
    a("s_lshl_b32 s54, s39, 8")
    a("s_add_u32 s54, s54, %d" % WS_G)
    a("v_lshlrev_b32 v27, 3, v6")
    a("buffer_store_dwordx2 v[100:101], v27, %s, s54 offen sc1" % WS)
    a("v_mov_b64 v[84:85], 0")
    a("v_lshlrev_b32 v27, 3, v0")
    a("s_lshl_b32 s55, s39, 9")
    a("s_add_u32 s55, s55, %d" % WS_Y)
    a("buffer_store_dwordx2 v[84:85], v27, %s, s55 offen sc1" % WS)
    a("s_branch P1_DONE")

    a.label("P1_COMPUTE")
    WA, WQA = 16, 17
    a("s_lshl_b32 s22, s2, 3")
    a("s_add_u32 s22, s22, s19")
    a("s_waitcnt lgkmcnt(0)")
    ev(a, 8)
    srd(a, 28, P_WQKV, 512 * 1536 * 2)
    srd(a, 88, P_WS, WS_SIZE)
    stamp(a, 0)
    stamp(a, 24, True)
    a("s_mov_b32 s23, %d" % WS_EP)
    a("s_cmp_lg_u32 s22, 4")
    a("s_cbranch_scc1 P1_NOEP0")
    a("buffer_load_dword v24, off, %s, s23 sc1" % WS)
    a.label("P1_NOEP0")
    def wq_touch():
        a("s_cmp_lg_u32 s19, 5")
        a("s_cbranch_scc1 P1_NOWQ")
        a("s_and_b32 s46, s14, %d" % (ntb - 1))
        a("s_mul_i32 s46, s46, %d" % (512 // ntb * 3072))
        a("s_lshl_b32 s47, s15, 7")
        a("s_add_u32 s46, s46, s47")
        a("v_and_b32 v24, %d, v0" % (512 // ntb - 1))
        a("v_mul_u32_u24 v24, 3072, v24")
        a("buffer_load_dword v28, v24, s[28:31], s46 offen")
        a.label("P1_NOWQ")
    if WQT == 0:
        wq_touch()
    srd(a, 24, P_DBG, 256)
    a("s_bfe_u32 s21, s19, 0x10001")
    a("v_bfe_u32 v27, v0, 2, 2")
    a("v_lshlrev_b32 v26, 7, v27")
    a("v_lshrrev_b32 v27, 1, v27")
    a("v_xor_b32 v27, s21, v27")
    a("v_lshl_add_u32 v26, v27, 6, v26")
    a("v_bfe_u32 v27, v0, 4, 1")
    a("v_lshl_add_u32 v26, v27, 5, v26")
    a("v_and_b32 v27, 3, v0")
    a("v_lshl_add_u32 v26, v27, 3, v26")
    a("v_add_u32 v26, %d, v26" % L_W)
    a("v_lshl_add_u32 v%d, v7, 11, v26" % WA)
    a("v_lshl_add_u32 v%d, v7, 10, v26" % WQA)
    a("s_cmp_lg_u32 s22, 4")
    a("s_cbranch_scc1 P1_NOEP")
    if DELAY & 2:
        for _ in range(8):
            a("s_sleep 127")
    a("s_mov_b32 s22, 1664525")
    a("v_mov_b32 v25, 1")
    a("s_waitcnt vmcnt(0)")
    a("v_mul_lo_u32 v24, v24, s22")
    a("v_add_u32 v24, 1013904223, v24")
    a("s_mov_b64 exec, 1")
    a("buffer_store_dwordx2 v[24:25], off, s[24:27], 0 sc1")
    a("buffer_store_dword v24, off, %s, s23 sc1" % WS)
    a("s_mov_b64 exec, -1")
    a.label("P1_NOEP")
    ACC = 32
    FR = 80
    PK = 104
    XF = 120
    pend = []
    def rd_kv(kk, part):
        if kk >= 32:
            return
        c, ks = kk // 4, kk % 4
        if part == 0:
            a("ds_read_b128 %s, v%d offset:%d" % (vr(XF + 4 * kk, 4), XA + ks, L_X + c * 8192))
            pend.append((kk, 0))
        for half in range(2):
            a("ds_read_b64_tr_b16 %s, v%d offset:%d" % (vr(FR + (kk % 3) * 8 + part * 4 + 2 * half, 2), WA,
                                                       (c % 4) * 16384 + ks * 4096 + part * 1024 + half * 512))
            pend.append((kk, part))
    def rd_q(kk):
        if kk >= 32:
            return
        if kk % 8 == 0 and kk > 0:
            a("s_barrier")
        for half in range(2):
            a("ds_read_b64_tr_b16 %s, v%d offset:%d" % (vr(FR + (kk % 6) * 4 + 2 * half, 2), WQA,
                                                       (kk // 8) * 16384 + (kk % 8) * 2048 + half * 512))
            pend.append((100 + kk, 0))
    def wait_for(kk, part):
        last = max([i for i, (k2, p) in enumerate(pend) if k2 == kk and p == part], default=-1)
        if last >= 0:
            a("s_waitcnt lgkmcnt(%d)" % (len(pend) - 1 - last))
            del pend[:last + 1]
    if STAMP == 3:
        stamp(a, 14)
    a("s_barrier")
    if STAMP != 3:
        stamp(a, 1)
    ev(a, 4)
    for kk in range(2):
        rd_kv(kk, 0); rd_kv(kk, 1)
    if WQT == 1:
        wq_touch()
    for kk in range(32):
        nx = kk + 2
        if nx < 32 and nx % 4 == 0:
            c = nx // 4
            a("s_waitcnt lgkmcnt(0)")
            del pend[:]
            if STAMP == 3:
                a("s_memtime s[100:101]")
                a("s_waitcnt lgkmcnt(0)")
                a("s_mov_b32 s%d, s100" % (50 + c))
            a("s_barrier")
        x = vr(XF + 4 * kk, 4)
        cz = lambda r: ("0" if kk == 0 else vr(r, 16))
        wait_for(kk, 0)
        a("%s %s, %s, %s, %s" % (MF32, vr(ACC, 16), vr(FR + (kk % 3) * 8, 4), x, cz(ACC)))
        rd_kv(nx, 0)
        wait_for(kk, 1)
        a("%s %s, %s, %s, %s" % (MF32, vr(ACC + 16, 16), x, vr(FR + (kk % 3) * 8 + 4, 4), cz(ACC + 16)))
        rd_kv(nx, 1)
    a("s_barrier")
    LQ = 5
    for kk in range(LQ):
        rd_q(kk)
    a("s_lshl_b32 s46, s15, 1")
    a("s_add_u32 s46, s46, s21")
    a("s_lshl_b32 s48, s46, 18")
    a("s_lshl_b32 s49, s20, 16")
    a("s_add_u32 s48, s48, s49")
    a("s_lshl_b32 s49, s14, 11")
    a("s_add_u32 s48, s48, s49")
    a("s_add_u32 s49, s48, 131072")
    a("v_lshrrev_b32 v24, 4, v6")
    a("v_lshlrev_b32 v24, 17, v24")
    a("v_lshl_add_u32 v24, v7, %d, v24" % (9 if SM else 8))
    a("v_and_b32 v25, 15, v0")
    a("v_lshl_add_u32 v24, v25, 4, v24")
    stamp(a, 2)
    ev(a, 5)
    for r in range(8):
        a("v_cvt_pk_bf16_f32 v%d, v%d, v%d" % (PK + r, ACC + 2 * r, ACC + 2 * r + 1))
    a("buffer_store_dwordx4 %s, v2, %s, s48 offen sc1" % (vr(PK, 4), WS))
    a("buffer_store_dwordx4 %s, v2, %s, s49 offen sc1" % (vr(PK + 4, 4), WS))
    V2 = 1280 if SM else 1536
    vdst = (lambda i: PK + 8 + 4 * (i & 1) + (i >> 1)) if SM else (lambda i: PK + 8 + i)
    for r in range(8):
        a("v_cvt_pk_bf16_f32 v%d, v%d, v%d" % (vdst(r), ACC + 16 + 2 * r, ACC + 16 + 2 * r + 1))
    if SM:
        for i in range(4):
            a("v_permlane32_swap_b32 v%d, v%d" % (vdst(i), vdst(4 + i)))
    if RAW:
        for i in (0, 1, 4, 5):
            a("v_permlane32_swap_b32 v%d, v%d" % (PK + 8 + i, PK + 10 + i))
    a("buffer_store_dwordx4 %s, v24, %s, s48 offen offset:1024 sc1" % (vr(PK + 8, 4), WS))
    a("buffer_store_dwordx4 %s, v24, %s, s48 offen offset:%d sc1" % (vr(PK + 12, 4), WS, V2))
    a("buffer_load_dwordx2 v[28:29], off, s[24:27], 0 sc1")
    a("s_lshl_b32 s50, s21, 13")
    a("s_lshl_b32 s51, s20, 11")
    a("s_add_u32 s50, s50, s51")
    a("s_add_u32 s50, s50, %d" % L_CMB)
    a("v_add_u32 v26, s50, v2")
    a("v_lshrrev_b32 v27, 5, v24")
    a("v_and_b32 v27, 4096, v27")
    a("v_and_b32 v25, 1023, v24")
    a("v_add3_u32 v27, v27, v25, s50")
    a("ds_write_b128 v26, %s" % vr(PK, 4))
    a("ds_write_b128 v26, %s offset:4096" % vr(PK + 4, 4))
    a("ds_write_b128 v27, %s offset:1024" % vr(PK + 8, 4))
    a("ds_write_b128 v27, %s offset:%d" % (vr(PK + 12, 4), V2))
    pend.extend([(-1, 0)] * 4)
    a("s_lshl_b32 s96, s15, 12")
    a("s_lshl_b32 s97, s14, 7")
    a("s_add_u32 s96, s96, s97")
    a("s_add_u32 s96, s96, %d" % WS_FL1)
    for kk in range(32):
        if kk == QF:
            get_tag(a, "P1_TAGC", 28)
            last_wave_flag(a, "P1_FL", VM, 0, 4, 96, 30)
            del pend[:]
            stamp(a, 13)
            stamp(a, 29, True)
            ev(a, 6)
        wait_for(100 + kk, 0)
        a("%s %s, %s, %s, %s" % (MF32, vr(ACC + 32, 16), vr(FR + (kk % 6) * 4, 4), vr(XF + 4 * kk, 4), "0" if kk == 0 else vr(ACC + 32, 16)))
        rd_q(kk + LQ)
    CS = LOG2E * 0.25
    if STAMP != 3:
        a("s_mov_b32 s54, 0x%08x" % f32bits(CS))
        a("s_mov_b32 s55, 0x%08x" % f32bits(CS))
    a("s_lshl_b32 s22, s21, 12")
    a("s_lshl_b32 s23, s20, 10")
    a("s_add_u32 s22, s22, s23")
    a("s_add_u32 s22, s22, %d" % L_QX)
    a("v_add_u32 v24, s22, v2")
    a("s_lshl_b32 s22, s21, 9")
    a("s_lshl_b32 s23, s20, 7")
    a("s_add_u32 s22, s22, s23")
    a("s_add_u32 s22, s22, %d" % L_MX)
    a("v_lshl_add_u32 v26, v6, 2, s22")
    a("v_lshl_add_u32 v26, v7, 8, v26")
    stamp(a, 3)
    if STAMP == 3:
        for c in range(1, 8):
            a("v_mov_b32 v255, s%d" % (50 + c))
            a("s_lshl_b32 s100, s2, 3")
            a("s_add_u32 s100, s100, s19")
            a("s_lshl_b32 s100, s100, 7")
            a("s_add_u32 s100, s100, %d" % (WS_ST + (16 + c) * 4))
            a("buffer_store_dword v255, off, %s, s100" % WS)
        a("s_mov_b32 s54, 0x%08x" % f32bits(CS))
        a("s_mov_b32 s55, 0x%08x" % f32bits(CS))
    PQ = FR
    for r in range(0, 16, 2):
        a("v_pk_mul_f32 %s, %s, s[54:55]" % (vr(ACC + 32 + r, 2), vr(ACC + 32 + r, 2)))
    for r in range(8):
        a("v_cvt_pk_bf16_f32 v%d, v%d, v%d" % (PQ + r, ACC + 32 + 2 * r, ACC + 32 + 2 * r + 1))
    a("s_nop 1")
    a("%s %s, %s, %s, 0" % (MF32, vr(ACC, 16), vr(PK, 4), vr(PQ, 4)))
    a("%s %s, %s, %s, 0" % (MF32, vr(ACC + 16, 16), vr(PK + 4, 4), vr(PQ + 4, 4)))
    a("ds_write_b128 v24, %s" % vr(PQ, 4))
    a("ds_write_b128 v24, %s offset:2048" % vr(PQ + 4, 4))
    a("s_nop 9")
    m0, m1 = 92, 93
    for h, m in ((0, m0), (1, m1)):
        SS = ACC + 16 * h
        a("v_max3_f32 v%d, v%d, v%d, v%d" % (m, SS, SS + 1, SS + 2))
        for r in range(3, 15, 2):
            a("v_max3_f32 v%d, v%d, v%d, v%d" % (m, m, SS + r, SS + r + 1))
        a("v_max_f32 v%d, v%d, v%d" % (m, m, SS + 15))
    a("s_nop 1")
    a("v_permlane32_swap_b32 v%d, v%d" % (m0, m1))
    a("v_max_f32 v%d, v%d, v%d" % (m0, m0, m1))
    a("v_sub_f32 v%d, 0, v%d" % (m0, m0))
    a("ds_write_b32 v26, v%d" % m0)

    a.label("P1_DONE")
    stamp(a, 4)
    a("s_and_b32 s17, s19, 3")
    a("s_lshr_b32 s16, s19, 2")
    a("v_and_b32 v3, 15, v0")
    a("v_lshlrev_b32 v3, 4, v3")
    a("v_lshl_add_u32 v3, v7, 8, v3")
    a("s_lshl_b32 s18, s15, 2")
    a("s_add_u32 s18, s18, s17")
    a("s_lshl_b32 s22, s18, 17")
    a("s_lshl_b32 s23, s16, 16")
    a("s_add_u32 s22, s22, s23")
    VKA, VVA = 196, 197
    a("v_add_u32 v%d, s22, v2" % VKA)
    a("v_add_u32 v%d, s22, v3" % VVA)
    a("s_lshl_b32 s23, s17, 12")
    a("s_lshl_b32 s28, s16, 11")
    a("s_add_u32 s23, s23, s28")
    a("s_add_u32 s23, s23, %d" % L_CMB)
    a("v_add_u32 v248, s23, v2")
    a("v_add_u32 v249, s23, v3")
    a("s_lshl_b32 s95, s15, 12")
    a("s_add_u32 s95, s95, %d" % WS_FL1)
    a("s_mov_b32 s30, 0x0000ffff")
    a("s_mov_b32 s31, 0x0000ffff")
    a("s_mov_b32 s29, 0")
    a("s_cmp_lt_u32 s19, 4")
    a("s_cselect_b32 s32, 0x%x, 0" % HMASK)
    CW16, CW4, CR16, CR4, VXO, VWO, VOF, XR, GR, HFL, HLD, F3 = 168, 169, 170, 171, 172, 173, 174, 176, 184, 175, 186, 186
    srd(a, 40, P_WO, 512 * 512 * 2)
    a("v_lshrrev_b32 v4, 3, v0")
    a("v_lshlrev_b32 v4, 10, v4")
    a("v_and_b32 v5, 7, v0")
    a("v_bfe_u32 v192, v0, 4, 1")
    a("v_lshlrev_b32 v192, 2, v192")
    a("v_xor_b32 v5, v5, v192")
    a("v_lshl_add_u32 v4, v5, 4, v4")
    a("s_lshl_b32 s36, s63, 7")
    a("s_lshl_b32 s37, s19, 13")
    a("s_add_u32 s36, s36, s37")
    a("s_lshl_b32 s37, s19, 10")
    a("s_add_u32 s37, s37, %d" % L_W)
    a("s_mul_i32 s23, s19, 2304")
    a("s_add_u32 s23, s23, %d" % L_CMB)
    a("v_add_u32 v%d, s23, v2" % CW16)
    a("v_lshl_add_u32 v%d, v0, 2, s23" % CW4)
    a("s_xor_b32 s23, s19, 4")
    a("s_mul_i32 s23, s23, 2304")
    a("s_add_u32 s23, s23, %d" % L_CMB)
    a("v_add_u32 v%d, s23, v2" % CR16)
    a("v_lshl_add_u32 v%d, v0, 2, s23" % CR4)
    a("s_lshl_b32 s23, s14, 1")
    a("s_add_u32 s23, s23, s16")
    a("s_lshl_b32 s33, s23, 15")
    a("s_lshl_b32 s23, s18, 10")
    a("s_add_u32 s33, s33, s23")
    a("s_add_u32 s33, s33, %d" % WS_O)
    a("s_lshl_b32 s98, s14, 10")
    a("s_lshl_b32 s23, s15, 7")
    a("s_add_u32 s98, s98, s23")
    a("s_add_u32 s98, s98, %d" % WS_FL2)
    a("s_and_b32 s8, s19, 1")
    a("s_bfe_u32 s9, s19, 0x10001")
    a("s_lshl_b32 s4, s62, 1")
    a("s_add_u32 s4, s4, s8")
    a("s_lshl_b32 s5, s63, 7")
    a("s_lshl_b32 s23, s9, 6")
    a("s_add_u32 s5, s5, s23")
    a("s_lshl_b32 s6, s4, 15")
    a("s_add_u32 s6, s6, s5")
    a("s_lshl_b32 s7, s4, 8")
    a("s_add_u32 s7, s7, %d" % WS_G)
    a("v_lshlrev_b32 v%d, 10, v6" % VXO)
    a("v_lshl_add_u32 v%d, v7, 5, v%d" % (VXO, VXO))
    a("v_bfe_u32 v193, v0, 2, 2")
    a("v_lshl_add_u32 v192, v7, 2, v193")
    a("v_lshlrev_b32 v192, 7, v192")
    a("v_lshrrev_b32 v193, 1, v193")
    a("v_xor_b32 v193, s9, v193")
    a("v_lshl_add_u32 v192, v193, 6, v192")
    a("v_and_b32 v193, 1, v0")
    a("v_lshl_add_u32 v192, v193, 5, v192")
    a("v_bfe_u32 v193, v0, 1, 1")
    a("v_bfe_u32 v194, v0, 4, 1")
    a("v_lshl_add_u32 v193, v194, 1, v193")
    a("v_lshl_add_u32 v192, v193, 3, v192")
    a("v_add_u32 v%d, %d, v192" % (VWO, L_W))
    a("s_lshl_b32 s23, s8, 12")
    a("v_add_u32 v%d, s23, v2" % VOF)
    a("s_lshl_b32 s10, s62, 10")
    a("s_lshl_b32 s23, s17, 8")
    a("s_add_u32 s10, s10, s23")
    a("s_add_u32 s10, s10, %d" % WS_FL2)
    a("v_and_b32 v%d, 1, v0" % HFL)
    a("v_lshlrev_b32 v%d, 7, v%d" % (HFL, HFL))
    a("s_lshl_b32 s11, s62, 16")
    a("s_lshl_b32 s23, s17, 13")
    a("s_add_u32 s11, s11, s23")
    a("s_add_u32 s11, s11, %d" % WS_O)
    a("s_lshl_b32 s12, s17, 14")
    a("s_lshl_b32 s23, s17, 3")
    a("v_add_u32 v%d, s23, v%d" % (HLD, VM))
    a("v_lshlrev_b32 v5, 7, v0")
    a("s_lshl_b32 s23, s17, 1")
    a("s_add_u32 s23, s23, s16")
    a("s_lshl_b32 s28, s23, 10")
    a("s_add_u32 s28, s28, %d" % L_QX)
    a("v_add_u32 v252, s28, v2")
    a("v_xor_b32 v250, 1024, v252")
    a("s_lshl_b32 s28, s23, 7")
    a("s_add_u32 s28, s28, %d" % L_MX)
    a("v_lshl_add_u32 v253, v6, 2, s28")
    a("v_xor_b32 v251, 128, v253")
    CW16, CW4, CR16, CR4, VXO, VWO, VOF, XR, GR, HFL, HLD, F3 = 168, 169, 170, 171, 172, 173, 174, 176, 184, 175, 186, 186
    def kvb(t):
        return KV + (8 if SM else 12) * (t % NB)
    PB = (P, 152) if SM else (P, P)
    LA, SA, IXV, IXS = 160, 198, 202, 203
    NLD = 2 if SM else 3
    def p2_init():
      if SM:
        a("v_mov_b64 %s, 0" % vr(kvb(NB - 1) + 4, 2))
        a("v_mov_b64 %s, 0" % vr(kvb(NB - 1) + 6, 2))
        for r in range(0, 8, 2):
            a("v_mov_b64 %s, 0" % vr(PB[1] + r, 2))
            a("v_mov_b64 %s, 0" % vr(LA + r, 2))
        a("v_mov_b64 %s, 0" % vr(SA, 2))
        a("v_mov_b64 %s, 0" % vr(SA + 2, 2))
        a("s_mov_b32 s34, 0x3f803f80")
        a("s_mov_b32 s35, 0x3f803f80")
        a("s_mov_b32 exec_lo, 0x03030303")
        a("s_mov_b32 exec_hi, 0x03030303")
        a("v_mov_b64 %s, s[34:35]" % vr(SA, 2))
        a("s_mov_b32 exec_lo, 0x30303030")
        a("s_mov_b32 exec_hi, 0x30303030")
        a("v_mov_b64 %s, s[34:35]" % vr(SA + 2, 2))
        a("s_mov_b64 exec, -1")
        a("v_bfe_u32 v%d, v0, 4, 1" % IXV)
        a("v_mul_u32_u24 v%d, 0xaaaa, v%d" % (IXV, IXV))
        a("v_add_u32 v%d, 0x4444, v%d" % (IXV, IXV))
        a("v_and_b32 v%d, 1, v0" % IXS)
        a("v_mul_u32_u24 v%d, 0xaaaa, v%d" % (IXS, IXS))
        a("v_add_u32 v%d, 0x4444, v%d" % (IXS, IXS))
      else:
        for b in range(NB):
            for r in range(4, 12, 2):
                a("v_mov_b64 %s, 0" % vr(kvb(b) + r, 2))
        a("s_mov_b32 s34, 0x3f803f80")
        a("s_mov_b32 s35, 0x3f803f80")
        a("s_mov_b32 exec_lo, 0x00110000")
        a("s_mov_b32 exec_hi, 0x00110000")
        for b in range(NB):
            for r in range(4, 12, 2):
                a("v_mov_b64 %s, s[34:35]" % vr(kvb(b) + r, 2))
        a("s_mov_b64 exec, -1")
      if True:
        for r in range(0, 32, 2):
            a("v_mov_b64 %s, 0" % vr(O + r, 2))
        if RAW:
            a("v_mov_b32 v%d, 0xdddd" % IXV)
            for r in range(8, 14, 2):
                a("v_mov_b64 %s, 0" % vr(S + 16 + r, 2))
        else:
            a("v_mov_b64 %s, 0" % vr(P + 4, 2))
            a("v_mov_b64 %s, 0" % vr(P + 6, 2))
        a("v_mov_b64 %s, 0" % vr(S + 16 + 14, 2))
    a("s_waitcnt lgkmcnt(0)")
    p2_init()
    if WOT:
        a("s_cmp_lg_u32 s19, 2")
        a("s_cbranch_scc1 P1_NOWO")
        a("s_lshl_b32 s3, s14, 14")
        a("buffer_load_dword v%d, v5, s[40:43], s3 offen" % T)
        a("s_add_u32 s3, s3, 8192")
        a("buffer_load_dword v%d, v5, s[40:43], s3 offen" % T)
        a.label("P1_NOWO")
    a("s_cmp_lg_u32 s19, 3")
    a("s_cbranch_scc1 H1_WAIT")
    a("s_mov_b32 exec_hi, 0")
    if PD > 1:
        poll_deep(a, "H1_POLL", T, 5)
    else:
        poll(a, "H1_POLL", S, 5)
    a("s_mov_b64 exec, -1")
    a.label("H1_WAIT")
    ev(a, 7)
    a("s_barrier")
    stamp(a, 5)
    stamp(a, 26, True)
    ev(a, 1)
    def ld_k(t):
        a("buffer_load_dwordx4 %s, v%d, %s, s%d offen sc1" % (vr(kvb(t), 4), VKA, WS, 21 if LW else 28))
    def adv():
        if LW:
            a("s_mov_b32 s28, s21")
            a("s_add_u32 s21, s21, 2048")
            a("s_and_b32 s21, s21, 0xffff")
        else:
            a("s_add_u32 s28, s28, 2048")
            a("s_and_b32 s28, s28, 0xffff")
    def ld_v(t):
        if SM:
            a("buffer_load_dwordx4 %s, v%d, %s, s28 offen offset:1024 sc1" % (vr(kvb(t) + 4, 4), VKA, WS))
            adv()
            return
        a("s_mov_b64 exec, s[30:31]")
        a("buffer_load_dwordx4 %s, v%d, %s, s28 offen offset:1024 sc1" % (vr(kvb(t) + 4, 4), VVA, WS))
        a("buffer_load_dwordx4 %s, v%d, %s, s28 offen offset:1536 sc1" % (vr(kvb(t) + 8, 4), VVA, WS))
        a("s_mov_b64 exec, -1")
        adv()
    a("ds_read_b32 v%d, v251" % C)
    a("ds_read_b32 v%d, v253" % (C + 16))
    a("ds_read_b128 %s, v250" % vr(Q, 4))
    a("ds_read_b128 %s, v248" % vr(kvb(0), 4))
    a("ds_read_b128 %s, v252" % vr(Q + 4, 4))
    if SM:
        a("ds_read_b128 %s, v248 offset:1024" % vr(kvb(0) + 4, 4))
    else:
        a("s_mov_b64 exec, s[30:31]")
        a("ds_read_b128 %s, v249 offset:1024" % vr(kvb(0) + 4, 4))
        a("ds_read_b128 %s, v249 offset:1536" % vr(kvb(0) + 8, 4))
        a("s_mov_b64 exec, -1")
    a.label("P2_START")
    r0 = 21 if LW else 28
    a("s_add_u32 s%d, s14, 1" % r0)
    a("s_lshl_b32 s%d, s%d, 11" % (r0, r0))
    a("s_and_b32 s%d, s%d, 0xffff" % (r0, r0))
    if LW:
        ld_k(1)
        adv()
        for i in range(2, NB):
            ld_k(i)
            ld_v(i - 1)
    else:
        for i in range(1, NB - 1):
            ld_k(i)
            ld_v(i)
    a("s_mov_b32 s23, 0")
    if HP:
        a("s_mov_b32 s35, %d" % (4 << 20))
    a("s_waitcnt lgkmcnt(%d)" % (2 + NLD))
    for j in range(2):
        a("v_mov_b32 v%d, v%d" % (C + 16 * j + 1, C + 16 * j))
        for r in range(2, 16, 2):
            a("v_mov_b64 %s, %s" % (vr(C + 16 * j + r, 2), vr(C + 16 * j, 2)))
        if j == 0:
            a("s_waitcnt lgkmcnt(%d)" % NLD)
            a("s_nop 0")
            a("%s %s, %s, %s, %s" % (MF32, vr(S, 16), vr(kvb(0), 4), vr(Q, 4), vr(C, 16)))
    a("s_waitcnt lgkmcnt(0)")
    a("s_nop 2")
    a("v_exp_f32 v%d, v%d" % (S, S))
    if not TOUCH:
        stamp(a, 6)

    def main_loop(sfx, older):
        a.raw(".p2align 6")
        a.label("P2_LOOP" + sfx)
        pos = [0]
        def mark():
            pos[0] += 1
            if older and PRIO and pos[0] % 24 == (24 - PRIO + 1) % 24:
                a("s_setprio 0")
            if older and PRIO and pos[0] % 24 == 1 and pos[0] > 1:
                a("s_setprio 1")
        for t in range(NB):
            for j in range(2):
                cur = S + 16 * j
                prv = S + 16 * (j ^ 1)
                nxt = prv
                E = lambda r: a("v_exp_f32 v%d, v%d" % (cur + r, cur + r))
                CV = lambda r: a("v_cvt_pk_bf16_f32 v%d, v%d, v%d" % (PB[j] + r // 2, cur + r, cur + r + 1))
                pb = kvb(t) if j == 1 else kvb(t - 1)
                nb = kvb(t) if j == 0 else kvb(t + 1)
                if not RAW:
                    a("v_cvt_pk_bf16_f32 v%d, v%d, v%d" % (PB[j ^ 1] + 7, prv + 14, prv + 15))
                def sync_point():
                    back = NB - 1 if LW else NB - 2
                    nwo = 0 if NOWO else sum(1 for k in range(t - back, t) if k % 4 == 0)
                    nh = HP * sum(1 for k in range(t - back, t) if k % 4 == 0) if older else 0
                    a("s_waitcnt vmcnt(%d)" % (NLD * back + nwo + nh + (1 if SM else 0)))
                    if t % 4 == 0:
                        if not NOWO:
                            a("s_lshl_b32 s3, s38, 13")
                            a("s_add_u32 m0, s3, s37")
                            a("s_lshl3_add_u32 s3, s3, s36")
                            a("buffer_load_dwordx4 v4, s[40:43], s3 offen lds")
                            a("s_add_u32 s38, s38, 1")
                            a("s_and_b32 s38, s38, 7")
                        if older and HP:
                            a("s_branch P2_HOOK")
                            a.label("P2_HRET%d" % (t // 4))
                        elif older:
                            a("s_bitcmp1_b32 s32, s23")
                            a("s_cbranch_scc1 P2_HOOK")
                            a.label("P2_HRET%d" % (t // 4))
                        a("s_add_u32 s23, s23, 1")
                if RAW:
                    SPV = lambda jj, av, sv: a("v_smfmac_f32_32x32x32_bf16 %s, %s, %s, v%d" % (vr(O + 16 * jj, 16), vr(av, 4), vr(sv, 8), IXV))
                    E(1)
                    mark()
                    SPV(j ^ 1, pb + 8, prv + 8)
                    if j == 0:
                        ld_k(t - 1)
                        if not SPLIT:
                            ld_v(t - 1)
                    E(2); E(3); E(4)
                    if j == 1:
                        sync_point()
                    mark()
                    a("%s %s, %s, %s, %s" % (MF32, vr(nxt, 16), vr(nb, 4), vr(Q + 4 * (j ^ 1), 4), vr(C + 16 * (j ^ 1), 16)))
                    for r in range(5, P3POS + 1):
                        E(r)
                    mark()
                    SPV(j, kvb(t) + 4, cur)
                    if j == 0 and SPLIT:
                        ld_v(t - 1)
                    for r in range(P3POS + 1, 16):
                        E(r)
                    a("v_exp_f32 v%d, v%d" % (nxt, nxt))
                    continue
                if j == 1 and not LW:
                    sync_point()
                mark()
                a("%s %s, %s, %s, %s" % (MF32, vr(nxt, 16), vr(nb, 4), vr(Q + 4 * (j ^ 1), 4), vr(C + 16 * (j ^ 1), 16)))
                if j == 0:
                    ld_k(t if LW else t - 1)
                E(1); E(2); CV(0); E(3); E(4); CV(2); E(5)
                mark()
                if SM:
                    a("v_smfmac_f32_32x32x32_bf16 %s, %s, %s, v%d" % (vr(O + 16 * (j ^ 1), 16), vr(pb + 4, 4), vr(PB[j ^ 1], 8), IXV))
                else:
                    a("%s %s, %s, %s, %s" % (MF32, vr(O + 16 * (j ^ 1), 16), vr(pb + 8, 4), vr(P + 4, 4), vr(O + 16 * (j ^ 1), 16)))
                if j == 0:
                    ld_v(t - 1)
                E(6); CV(4); E(7); E(8); CV(6); E(9); E(10)
                if j == 0 and LW:
                    sync_point()
                mark()
                if SM:
                    a("v_smfmac_f32_16x16x64_bf16 %s, %s, %s, v%d" % (vr(LA + 4 * (j ^ 1), 4), vr(SA, 4), vr(PB[j ^ 1], 8), IXS))
                else:
                    a("%s %s, %s, %s, %s" % (MF32, vr(O + 16 * j, 16), vr(kvb(t) + 4, 4), vr(P, 4), vr(O + 16 * j, 16)))
                CV(8); E(11); E(12); CV(10); E(13); E(14); CV(12); E(15)
                a("v_exp_f32 v%d, v%d" % (nxt, nxt))
        if older and PRIO:
            a("s_setprio 1")
        if STAMP == 1:
            a("s_memtime s[100:101]")
            a("s_waitcnt lgkmcnt(0)")
            a("v_mov_b32 v255, s100")
            a("s_lshl_b32 s100, s2, 3")
            a("s_add_u32 s100, s100, s19")
            a("s_lshl_b32 s100, s100, 5")
            a("s_add_u32 s100, s100, s23")
            a("s_lshl_b32 s100, s100, 2")
            a("s_add_u32 s100, s100, %d" % (WS_ST + 15 * 4))
            a("buffer_store_dword v255, off, %s, s100" % WS)
        a("s_cmp_lt_u32 s23, 8")
        a("s_cbranch_scc1 P2_LOOP" + sfx)
    if PRIO:
        a("s_setprio 1")
    a("s_cmp_ge_u32 s19, 4")
    a("s_cbranch_scc1 P2_LOOPB")
    main_loop("A", True)
    a("s_branch P2_DRAIN")
    main_loop("B", False)
    a.label("P2_DRAIN")
    delay(a, 3, 7, 0x42)
    if SM:
        a("v_cvt_pk_bf16_f32 v%d, v%d, v%d" % (PB[1] + 7, S + 16 + 14, S + 16 + 15))
        a("v_pk_add_f32 %s, %s, %s" % (vr(O, 2), vr(O, 2), vr(O + 8, 2)))
        a("v_pk_add_f32 %s, %s, %s" % (vr(O + 2, 2), vr(O + 2, 2), vr(O + 10, 2)))
        a("v_smfmac_f32_16x16x64_bf16 %s, %s, %s, v%d" % (vr(LA + 4, 4), vr(SA, 4), vr(PB[1], 8), IXS))
        a("v_smfmac_f32_32x32x32_bf16 %s, %s, %s, v%d" % (vr(O + 16, 16), vr(kvb(NB - 1) + 4, 4), vr(PB[1], 8), IXV))
        a("ds_write_b128 v%d, %s" % (CW16, vr(O, 4)))
        a("v_pk_add_f32 %s, %s, %s" % (vr(O + 4, 2), vr(O + 4, 2), vr(O + 12, 2)))
        a("v_pk_add_f32 %s, %s, %s" % (vr(O + 6, 2), vr(O + 6, 2), vr(O + 14, 2)))
        a("v_add_f32 v%d, v%d, v%d" % (O + 8, LA, LA + 1))
        a("ds_write_b128 v%d, %s offset:1024" % (CW16, vr(O + 4, 4)))
        a("ds_write_b32 v%d, v%d offset:2048" % (CW4, O + 8))
        stamp(a, 7)
        stamp(a, 27, True)
        ev(a, 2)
        a("s_mov_b32 s28, 0x4f800000")
        a("s_nop 5")
        a("v_add_f32 v%d, v%d, v%d" % (LA + 4, LA + 4, LA + 5))
    else:
        if not RAW:
            a("v_cvt_pk_bf16_f32 v%d, v%d, v%d" % (P + 7, S + 16 + 14, S + 16 + 15))
        a("ds_write_b128 v%d, %s" % (CW16, vr(O, 4)))
        a("ds_write_b32 v%d, v%d offset:2048" % (CW4, O + 8))
        if RAW:
            a("v_smfmac_f32_32x32x32_bf16 %s, %s, %s, v%d" % (vr(O + 16, 16), vr(kvb(NB - 1) + 8, 4), vr(S + 24, 8), IXV))
        else:
            a("%s %s, %s, %s, %s" % (MF32, vr(O + 16, 16), vr(kvb(NB - 1) + 8, 4), vr(P + 4, 4), vr(O + 16, 16)))
        a("ds_write_b128 v%d, %s offset:1024" % (CW16, vr(O + 4, 4)))
        stamp(a, 7)
        stamp(a, 27, True)
        ev(a, 2)
        a("s_mov_b32 s28, 0x4f800000")
        a("s_nop 9")
    L1 = LA + 4 if SM else O + 24
    a("v_max_f32 v%d, v%d, v%d" % (S, O + 8, L1))
    a("v_cmp_u_f32 s[56:57], v%d, v%d" % (O + 8, L1))
    a("v_cmp_lt_f32 vcc, s28, v%d" % S)
    a("s_nop 3")
    a("s_or_b64 s[56:57], s[56:57], vcc")
    a("s_cbranch_scc0 P2_NOFLAG")
    a("v_mov_b32 v%d, 1" % S)
    a("ds_write_b32 v%d, v%d offset:8" % (VM, S))
    a.label("P2_NOFLAG")
    if SENT:
        a("s_cmp_eq_u32 s32, 0")
        a("s_cbranch_scc1 P2_MKD")
        a("v_cmp_ne_u32 vcc, s%d, v%d" % (S_TAG, T + 34))
        a("s_nop 3")
        a("s_cbranch_vccnz P2_MKR")
        a.label("P2_MKD")
    if SM:
        for r in range(0, 8, 2):
            a("v_pk_add_f32 %s, %s, %s" % (vr(O + 16 + r, 2), vr(O + 16 + r, 2), vr(O + 24 + r, 2)))
    a("s_waitcnt vmcnt(%d) lgkmcnt(0)" % (3 * NLD))
    a("s_barrier")
    ev(a, 9)
    if EP:
        a("buffer_load_dword v%d, v%d, %s, s10 offen sc1" % (S + 4, HFL, WS))
    a("ds_read_b32 v%d, v%d offset:8" % (S + 1, VM))
    a("ds_read_b32 v%d, v%d offset:2048" % (O + 8, CR4))
    a("ds_read_b128 %s, v%d" % (vr(O, 4), CR16))
    a("ds_read_b128 %s, v%d offset:1024" % (vr(O + 4, 4), CR16))
    a("s_waitcnt lgkmcnt(2)")
    a("v_readfirstlane_b32 s23, v%d" % (S + 1))
    a("v_add_f32 v%d, v%d, v%d" % (O + 8, O + 8, L1))
    a("v_rcp_f32 v%d, v%d" % (O + 8, O + 8))
    a("s_cmp_gt_u32 s23, s29")
    a("s_cbranch_scc1 P2_EXACT")
    a("v_mov_b32 v%d, v%d" % (O + 9, O + 8))
    a("s_waitcnt lgkmcnt(0)")
    for r in range(0, 8, 2):
        a("v_pk_add_f32 %s, %s, %s" % (vr(O + r, 2), vr(O + r, 2), vr(O + 16 + r, 2)))
    for r in range(0, 8, 2):
        a("v_pk_mul_f32 %s, %s, %s" % (vr(O + r, 2), vr(O + r, 2), vr(O + 8, 2)))
    for r in range(4):
        a("v_cvt_pk_bf16_f32 v%d, v%d, v%d" % (O + 16 + r, O + 2 * r, O + 2 * r + 1))
    if SENT:
        for r in range(4):
            a("v_min_u32 v%d, -2, v%d" % (O + 16 + r, O + 16 + r))
    a("buffer_store_dwordx4 %s, v2, %s, s33 offen sc1" % (vr(O + 16, 4), WS))
    stamp(a, 8)
    delay(a, 4, 3, 0x91)

    YR = 96
    a("s_and_b32 s21, s%d, 0xffff" % S_KEY)
    a("s_cmp_lt_u32 s19, 4")
    a("s_cbranch_scc1 P3_MUL")
    if SENT:
        HB = 188
        a("s_add_u32 s20, s11, 32768")
        a("s_add_u32 s13, s11, 4096")
        a("s_add_u32 s28, s20, 4096")
        def ld_quad(q):
            for t in range(2):
                for i in range(4):
                    a("buffer_load_dwordx4 %s, v2, %s, s%d offen offset:%d sc1" % (vr(HB + 32 * q + 16 * t + 4 * i, 4), WS, ((11, 20), (13, 28))[q][t], i * 1024))
        ld_quad(0)
        ld_quad(1)
        a("v_add_u32 v8, s12, v2")
        a("v_mov_b32 v10, 1")
        a("s_mov_b32 s22, 3")
        a("s_mov_b32 s94, 0")
        a.label("P3_HL")
        a("s_add_u32 s94, s94, 1")
        for q in range(2):
            a("s_bitcmp1_b32 s22, %d" % q)
            a("s_cbranch_scc0 P3_HS%d" % q)
            if q == 0:
                a("s_cmp_eq_u32 s22, 3")
                a("s_cbranch_scc1 P3_HW1")
                a("s_waitcnt vmcnt(0)")
                a.label("P3_HW1")
                a("s_waitcnt vmcnt(8)")
            else:
                a("s_waitcnt vmcnt(0)")
            hb = HB + 32 * q
            a("v_max3_u32 v11, v%d, v%d, v%d" % (hb, hb + 1, hb + 2))
            for r in range(3, 31, 2):
                a("v_max3_u32 v11, v11, v%d, v%d" % (hb + r, hb + r + 1))
            a("v_max_u32 v11, v11, v%d" % (hb + 31))
            a("v_cmp_eq_u32 vcc, -1, v11")
            a("s_cmp_ge_u32 s94, 0x40000")
            a("s_cbranch_scc1 P3_HG%d" % q)
            a("s_nop 0")
            a("s_cbranch_vccnz P3_HS%d" % q)
            a.label("P3_HG%d" % q)
            for p in range(8):
                a("ds_write_b128 v8, %s offset:%d" % (vr(hb + 4 * p, 4), L_X + q * 8192 + p * 1024))
            a("ds_write_b32 v%d, v10 offset:%d" % (HLD, 32 + 4 * q))
            a("s_bitset0_b32 s22, %d" % q)
            a.label("P3_HS%d" % q)
        a("s_cmp_eq_u32 s22, 0")
        a("s_cbranch_scc1 P3_HE")
        for q in range(2):
            a("s_bitcmp1_b32 s22, %d" % q)
            a("s_cbranch_scc0 P3_HR%d" % q)
            ld_quad(q)
            a.label("P3_HR%d" % q)
        a("s_branch P3_HL")
        a.label("P3_HE")
        stamp(a, 10)
        stamp(a, 28, True)
    else:
        if not EP:
            a("buffer_load_dword v8, v%d, %s, s10 offen sc1" % (HFL, WS))
        a("v_mov_b32 v10, 1")
        a("s_mov_b32 s22, 0")
        a("s_mov_b32 s13, 0")
        a("s_mov_b32 s94, 0")
        if EP:
            a("s_waitcnt vmcnt(1)")
            a("v_mov_b32 v8, v%d" % (S + 4))
        else:
            a("s_waitcnt vmcnt(0)")
            last_wave_flag(a, "P3_FLB", VM, 16, 8, 98, 12)
            stamp(a, 9)
            stamp(a, 30, True)
        a.label("P3_HL")
        a("v_cmp_eq_u32 vcc, s%d, v8" % S_TAG)
        a("s_add_u32 s94, s94, 1")
        a("s_cmp_ge_u32 s94, 0x40000")
        a("s_cselect_b32 s23, 3, vcc_lo")
        a("s_and_b32 s23, s23, 3")
        a("s_andn2_b32 s23, s23, s22")
        a("s_or_b32 s22, s22, s23")
        a("s_cmp_eq_u32 s22, 3")
        a("s_cbranch_scc1 P3_HN")
        a("buffer_load_dword v8, v%d, %s, s10 offen sc1" % (HFL, WS))
        a.label("P3_HN")
        for q in range(2):
            a("s_bitcmp1_b32 s23, %d" % q)
            a("s_cbranch_scc0 P3_HS%d" % q)
            for t in range(2):
                a("s_add_u32 m0, s12, %d" % (L_X + q * 8192 + t * 4096))
                a("s_add_u32 s3, s11, %d" % (q * 4096 + t * 32768))
                for i in range(4):
                    a("buffer_load_dwordx4 v2, %s, s3 offen offset:%d sc1 lds" % (WS, i * 1024))
            a.label("P3_HS%d" % q)
        if EP:
            a("s_cmp_lg_u32 s94, 1")
            a("s_cbranch_scc1 P3_HC")
            a("s_cmp_eq_u32 s23, 3")
            a("s_cbranch_scc1 P3_HC2")
            a("s_cmp_eq_u32 s23, 0")
            a("s_cbranch_scc1 P3_HC0")
            a("s_waitcnt vmcnt(9)")
            a("s_branch P3_HCD")
            a.label("P3_HC0")
            a("s_waitcnt vmcnt(1)")
            a.label("P3_HC2")
            a("s_waitcnt vmcnt(16)")
            a.label("P3_HCD")
            last_wave_flag(a, "P3_FLB", VM, 16, 8, 98, 12)
            stamp(a, 9)
            stamp(a, 30, True)
            a.label("P3_HC")
        a("s_cmp_eq_u32 s22, 3")
        a("s_cbranch_scc1 P3_HE")
        a("s_cmp_eq_u32 s23, 0")
        a("s_cbranch_scc1 P3_HW")
        a("s_waitcnt vmcnt(8)")
        a("s_branch P3_HL")
        a.label("P3_HW")
        a("s_waitcnt vmcnt(0)")
        a("s_cmp_eq_u32 s13, s22")
        a("s_cbranch_scc1 P3_HL")
        a("s_mov_b32 s13, s22")
        a("s_lshr_b32 s3, s22, 1")
        a("s_lshl_b32 s3, s3, 2")
        a("v_add_u32 v9, s3, v%d" % HLD)
        a("ds_write_b32 v9, v10 offset:32")
        a("s_branch P3_HL")
        a.label("P3_HE")
        stamp(a, 10)
        stamp(a, 28, True)
        a("s_cmp_eq_u32 s23, 1")
        a("s_cselect_b32 s3, 4, 0")
        a("v_add_u32 v9, s3, v%d" % HLD)
        a("s_waitcnt vmcnt(8)")
        a("ds_write_b32 v9, v10 offset:32")
        a("s_waitcnt vmcnt(0)")
        a("ds_write_b32 v%d, v10 offset:32" % HLD)
        a("ds_write_b32 v%d, v10 offset:36" % HLD)
    if SPAN and SPANW:
        a("s_lshl_b32 s3, s2, 3")
        a("s_add_u32 s3, s3, s19")
        a("s_cmp_lg_u32 s3, %d" % (SPWG * 8 + 6))
        a("s_cbranch_scc1 L_END")
        a("s_sub_u32 s13, s59, s58")
        a("s_min_u32 s13, s13, 10000")
        a("s_mul_i32 s13, s13, 10")
        a("s_memrealtime s[20:21]")
        a.label("SP_LOOP")
        a("s_memrealtime s[22:23]")
        a("s_waitcnt lgkmcnt(0)")
        a("s_sub_u32 s17, s22, s20")
        a("s_cmp_lt_u32 s17, s13")
        a("s_cbranch_scc1 SP_LOOP")
    a("s_endpgm")
    a.label("P3_MUL")
    a("s_sub_u32 s21, 0xffff, s21")
    a("s_lshr_b32 s20, s21, 5")
    ACC3, OB, B, YR = 16, 32, 80, 96
    def wof(h):
        return (190 + 4 * h) if h < 16 else (120 + 4 * (h - 16)) if h < 28 else (104 + 4 * (h - 28))
    def rd_wo(h):
        a("ds_read_b64_tr_b16 %s, v%d offset:%d" % (vr(wof(h), 2), VWO, h * 2048))
        a("ds_read_b64_tr_b16 %s, v%d offset:%d" % (vr(wof(h) + 2, 2), VWO, h * 2048 + 1024))
    for h in list(range(16)) + list(range(28, 32)):
        rd_wo(h)
    srd(a, 44, P_OUT, 2048 * 512 * 2)
    for i in range(8):
        a("v_lshlrev_b32 v%d, 16, v%d" % (B + 2 * i, XR + i))
        a("v_and_b32 v%d, 0xffff0000, v%d" % (B + 2 * i + 1, XR + i))
    for r in range(0, 16, 2):
        a("v_mov_b64 %s, 0" % vr(ACC3 + r, 2))
    a("v_and_b32 v5, 7, v0")
    a("v_lshl_add_u32 v5, v5, 2, v%d" % VM)
    if SENT:
        a("s_waitcnt vmcnt(1)")
    else:
        a("s_waitcnt vmcnt(0)")
        last_wave_flag(a, "P3_FLA", VM, 16, 8, 98, 8)
    stamp(a, 9)
    stamp(a, 30, True)
    for h in range(16, 28):
        rd_wo(h)
    a("s_cmp_eq_u32 s20, s4")
    a("s_cbranch_scc1 P3_YJOB")
    a.label("P3_YD")
    for i in range(16):
        a("v_mul_f32 v%d, v%d, v%d" % (B + i, B + i, GR + 1))
    a("s_mov_b32 s22, 0")
    a("s_mov_b32 s94, 0")
    a.label("P3_ROUND")
    a("ds_read_b32 v8, v5 offset:32")
    a("s_add_u32 s94, s94, 1")
    a("s_waitcnt lgkmcnt(0)")
    a("v_cmp_ne_u32 vcc, 0, v8")
    a("s_cmp_ge_u32 s94, 0x2000000")
    a("s_cbranch_scc1 P3_FIN")
    a("s_and_b32 s23, vcc_lo, 0xff")
    if DET:
        a("s_add_u32 s3, s23, 1")
        a("s_xor_b32 s23, s23, s3")
        a("s_lshr_b32 s23, s23, 1")
    a("s_andn2_b32 s23, s23, s22")
    a("s_cbranch_scc0 P3_ROUND")
    def rd_o(g):
        for i in range(4):
            a("ds_read_b128 %s, v%d offset:%d" % (vr(OB + 16 * (g & 1) + 4 * i, 4), VOF, L_X + g * 8192 + i * 1024))
    for g in range(8):
        a("s_bitcmp1_b32 s23, %d" % g)
        a("s_cbranch_scc0 P3_SK%d" % g)
        if g > 0:
            a("s_bitcmp1_b32 s23, %d" % (g - 1))
            a("s_cbranch_scc1 P3_HV%d" % g)
        rd_o(g)
        a.label("P3_HV%d" % g)
        if g < 7:
            rd_o(g + 1)
        for i in range(4):
            a("s_waitcnt lgkmcnt(%d)" % ((4 if g < 7 else 0) + 3 - i))
            a("%s %s, %s, %s, %s" % (MF32, vr(ACC3, 16), vr(wof(4 * g + i), 4), vr(OB + 16 * (g & 1) + 4 * i, 4), vr(ACC3, 16)))
        a.label("P3_SK%d" % g)
    a("s_or_b32 s22, s22, s23")
    a("s_cmp_lg_u32 s22, 0xff")
    a("s_cbranch_scc1 P3_ROUND")
    a.label("P3_FIN")
    stamp(a, 11)
    a("s_nop 10")
    for i in range(16):
        a("v_fma_f32 v%d, v%d, v%d, v%d" % (B + i, ACC3 + i, GR, B + i))
        if i % 2 == 1:
            a("v_cvt_pk_bf16_f32 v%d, v%d, v%d" % (XR + i // 2, B + i - 1, B + i))
        if i == 8:
            a("buffer_store_dwordx4 %s, v%d, s[44:47], s6 offen" % (vr(XR, 4), VXO))
    a("buffer_store_dwordx4 %s, v%d, s[44:47], s6 offen offset:16" % (vr(XR + 4, 4), VXO))
    stamp(a, 12)
    stamp(a, 25, True)
    if SPAN and not SPANW:
        ev(a, 3)
        a("s_lshl_b32 s3, s2, 3")
        a("s_add_u32 s3, s3, s19")
        a("s_cmp_lg_u32 s3, %d" % (SPWG * 8))
        a("s_cbranch_scc1 L_END")
        a("s_sub_u32 s13, s99, s13")
        a("s_min_u32 s13, s13, 10000")
        a("s_mul_i32 s13, s13, 10")
        a("s_memrealtime s[20:21]")
        a.label("SP_LOOP")
        a("s_memrealtime s[22:23]")
        a("s_waitcnt lgkmcnt(0)")
        a("s_sub_u32 s17, s22, s20")
        a("s_cmp_lt_u32 s17, s13")
        a("s_cbranch_scc1 SP_LOOP")
    a.label("L_END")
    a("s_endpgm")

    def ld_fl3(va=252):
        a("v_lshlrev_b32 v%d, 7, v0" % va)
        for i in range(4):
            a("s_mov_b32 s3, %d" % (WS_FL3 + i * 8192))
            a("buffer_load_dword v%d, v%d, %s, s3 offen sc1" % (F3 + i, va, WS))
    a.label("P3_YJOB")
    a("s_mov_b32 s94, 0")
    a.label("P3_ALL")
    for i in range(4):
        a("v_xor_b32 v%d, s%d, v%d" % (F3 + i, S_TAG, F3 + i))
    a("v_or3_b32 v%d, v%d, v%d, v%d" % (F3, F3, F3 + 1, F3 + 2))
    a("v_or_b32 v%d, v%d, v%d" % (F3, F3, F3 + 3))
    a("v_cmp_ne_u32 vcc, 0, v%d" % F3)
    a("s_add_u32 s94, s94, 1")
    a("s_cmp_ge_u32 s94, 0x40000")
    a("s_cbranch_scc1 P3_ALLD")
    a("s_cbranch_vccz P3_ALLD")
    ld_fl3(13)
    a("s_waitcnt vmcnt(0)")
    a("s_branch P3_ALL")
    a.label("P3_ALLD")
    a("v_lshrrev_b32 v12, 2, v0")
    a("v_and_b32 v13, 3, v0")
    a("v_lshlrev_b32 v14, 7, v12")
    a("v_lshl_add_u32 v14, v13, 4, v14")
    a("v_lshlrev_b32 v12, 11, v12")
    a("v_lshl_add_u32 v12, v13, 4, v12")
    a("s_lshr_b32 s30, s5, 8")
    a("s_lshl_b32 s30, s30, 9")
    a("s_and_b32 s31, s5, 255")
    a("s_add_u32 s30, s30, s31")
    a("s_add_u32 s30, s30, %d" % WS_Y)
    a("buffer_load_dwordx4 %s, v12, %s, s30 offen sc1" % (vr(YR, 4), WS))
    a("buffer_load_dwordx4 %s, v12, %s, s30 offen offset:256 sc1" % (vr(YR + 4, 4), WS))
    a("s_mul_i32 s30, s19, 2304")
    a("s_add_u32 s30, s30, %d" % L_QX)
    a("v_add_u32 v14, s30, v14")
    a("s_waitcnt vmcnt(0)")
    a("ds_write_b128 v14, %s" % vr(YR, 4))
    a("ds_write_b128 v14, %s offset:64" % vr(YR + 4, 4))
    a("v_lshlrev_b32 v14, 10, v7")
    a("v_lshl_add_u32 v14, v6, 2, v14")
    a("v_add_u32 v14, s30, v14")
    a("s_waitcnt lgkmcnt(0)")
    for i in range(8):
        a("ds_read_b32 v%d, v14 offset:%d" % (YR + i, i * 128))
    a("s_and_b32 s31, s%d, 0xffff0000" % S_KEY)
    a("s_ashr_i32 s28, s31, 31")
    a("s_not_b32 s28, s28")
    a("s_or_b32 s28, s28, 0x80000000")
    a("s_xor_b32 s31, s31, s28")
    a("s_and_b32 s31, s31, 0xffff0000")
    a("v_mov_b32 v15, s31")
    sigmoid_bf16(a, 15)
    a("s_waitcnt lgkmcnt(0)")
    for i in range(1, 8):
        a("v_add_f32 v%d, v%d, v%d" % (YR, YR, YR + i))
    a("v_mov_b32 v%d, v%d" % (YR + 1, YR))
    a("v_and_b32 v14, 15, v0")
    a("v_lshlrev_b32 v14, 3, v14")
    a("v_permlane32_swap_b32 v%d, v%d" % (YR, YR + 1))
    a("v_add_f32 v%d, v%d, v%d" % (YR, YR, YR + 1))
    bf16_round_to_f32(a, YR, YR)
    a("v_mul_f32 v%d, v%d, v15" % (YR, YR))
    bf16_round_to_f32(a, YR, YR)
    a("v_bfe_u32 v15, v0, 4, 1")
    a("v_lshl_add_u32 v14, v15, 2, v14")
    a("v_add_u32 v14, s30, v14")
    a("ds_write_b32 v14, v%d offset:2048" % YR)
    a("v_lshl_add_u32 v14, v7, 6, s30")
    for i in range(4):
        a("ds_read_b128 %s, v14 offset:%d" % (vr(OB + 4 * i, 4), 2048 + i * 16))
    a("s_and_b32 s30, s21, 31")
    a("v_cmp_eq_u32 vcc, s30, v6")
    a("s_waitcnt lgkmcnt(0)")
    a("s_and_saveexec_b64 s[48:49], vcc")
    for i in range(16):
        a("v_add_f32 v%d, v%d, v%d" % (B + i, B + i, OB + i))
        bf16_round_to_f32(a, B + i, B + i)
    a("s_mov_b64 exec, s[48:49]")
    a("s_branch P3_YD")

    for n in range(HP, 0, -1):
        a.label("P2_PAD%d" % n)
        a("buffer_load_dword v255, off, %s, s35" % WS)
    a.label("P2_PAD0")
    a.label("P2_HRET")
    if NB == 8:
        a("s_bitcmp1_b32 s23, 0")
        a("s_cbranch_scc1 P2_HRET1")
    a("s_branch P2_HRET0")
    def gu_base():
        a("s_cmp_lt_u32 s19, 2")
        a("s_cselect_b32 s44, s%d, s%d" % (P_WG, P_WU))
        a("s_cselect_b32 s45, s%d, s%d" % (P_WG + 1, P_WU + 1))
        a("s_and_b32 s52, s2, 7")
        a("s_mul_i32 s52, s52, %d" % (64 * 3584))
        a("s_lshr_b32 s53, s2, 3")
        a("s_lshl_b32 s53, s53, 7")
        a("s_add_u32 s52, s52, s53")
    def warm_gu(lo, hi):
        if not WARM:
            return
        gu_base()
        a("s_and_b32 s53, s19, 1")
        a("s_mul_i32 s53, s53, %d" % (32 * 3584))
        a("s_add_u32 s52, s52, s53")
        a("s_add_u32 s44, s44, s52")
        a("s_addc_u32 s45, s45, 0")
        for i in range(lo, hi):
            a("s_load_dword s99, s[44:45], 0x%x" % (i * 3584))
    def warm_wd(lo, hi):
        if not WARM:
            return
        a("s_lshl_b32 s52, s2, 13")
        a("s_lshl_b32 s53, s19, 8")
        a("s_add_u32 s52, s52, s53")
        a("s_add_u32 s44, s%d, s52" % P_WD)
        a("s_addc_u32 s45, s%d, 0" % (P_WD + 1))
        for i in range(lo, hi):
            a("s_load_dword s99, s[44:45], 0x%x" % ((i // 2) * 1024 + (i % 2) * 128))
    def issued():
        n = sum(1 for l in a.l[jstart[0]:] if l.strip().startswith("buffer_")) - jstart[1]
        return "P2_PAD%d" % max(HP - n, 0)
    jstart = [0, 0]
    def only_ffn():
        a("s_cmp_ge_u32 s2, 224")
        a("s_cbranch_scc1 %s" % issued())
    def check_tags(name, regs, reload):
        a("s_mov_b32 s94, 0")
        a.label(name + "L")
        a("v_cmp_ne_u32 vcc, s%d, v%d" % (S_TAG, regs[0]))
        for r in regs[1:]:
            a("v_cmp_ne_u32 s[52:53], s%d, v%d" % (S_TAG, r))
            a("s_nop 1")
            a("s_or_b64 vcc, vcc, s[52:53]")
        a("s_add_u32 s94, s94, 1")
        a("s_cmp_ge_u32 s94, 0x40000")
        a("s_cbranch_scc1 %sD" % name)
        a("s_cbranch_vccz %sD" % name)
        n0 = len(a.l)
        reload()
        jstart[1] += sum(1 for l in a.l[n0:] if l.strip().startswith("buffer_"))
        a("s_waitcnt vmcnt(0)")
        a("s_branch %sL" % name)
        a.label(name + "D")
    def ld_keys():
        a("v_lshlrev_b32 v5, 3, v0")
        a("s_mov_b32 s3, %d" % WS_RK)
        a("buffer_load_dwordx2 %s, v5, %s, s3 offen sc1" % (vr(DD, 2), WS))
    def job_argmax():
        check_tags("P2_CK", [DD + 1], ld_keys)
        for sh in (1, 2, 4, 8):
            a("v_max_u32_dpp v%d, v%d, v%d row_ror:%d row_mask:0xf bank_mask:0xf" % (DD, DD, DD, sh))
            a("s_nop 1")
        for i in range(4):
            a("v_readlane_b32 s%d, v%d, %d" % (52 + i, DD, 16 * i))
        srd(a, 44, P_X, 2048 * 512 * 2)
        a("s_max_u32 s52, s52, s53")
        a("s_max_u32 s54, s54, s55")
        a("s_max_u32 s52, s52, s54")
        a("s_mov_b32 s%d, s52" % S_KEY)
        a("s_cmp_lt_u32 s2, 224")
        a("s_cselect_b32 s32, s32, 0x%x" % (0x80 if 5 <= PLAN <= 7 else 0xc0))
        only_ffn()
        a("s_and_b32 s52, s52, 0xffff")
        a("s_sub_u32 s52, 0xffff, s52")
        a("s_and_b32 s52, s52, 2047")
        a("s_lshl_b32 s52, s52, 10")
        a("s_and_b32 s53, s2, 7")
        a("s_lshl_b32 s53, s53, 7")
        a("s_add_u32 s52, s52, s53")
        a("v_lshrrev_b32 v5, 4, v0")
        a("v_lshlrev_b32 v5, 4, v5")
        for s_ in range(2):
            a("buffer_load_dwordx4 %s, v5, s[44:47], s52 offen offset:%d" % (vr(XS + 4 * s_, 4), 64 * s_))
    def job_gu(lo, hi):
        only_ffn()
        gu_base()
        a("s_and_b32 s45, s45, 0xffff")
        a("s_mov_b32 s46, 0x%x" % (512 * 1792 * 2))
        a("s_mov_b32 s47, 0x00020000")
        a("v_lshrrev_b32 v5, 2, v0")
        a("v_mul_u32_u24 v5, 3584, v5")
        a("v_and_b32 v252, 3, v0")
        a("v_lshl_add_u32 v5, v252, 4, v5")
        a("s_and_b32 s53, s19, 1")
        a("s_lshl_b32 s53, s53, 6")
        a("s_add_u32 s52, s52, s53")
        a("s_lshl_b32 s54, s19, 12")
        for i in range(lo, hi):
            a("s_add_u32 m0, s54, %d" % (L_FFW + i * 1024))
            a("s_add_u32 s53, s52, %d" % (i * 16 * 3584))
            a("buffer_load_dwordx4 v5, s[44:47], s53 offen lds")
    def job_wd(lo=0, hi=8):
        srd(a, 48, P_WD, 1792 * 512 * 2)
        a("s_lshl_b32 s52, s2, 13")
        a("s_lshl_b32 s53, s19, 8")
        a("s_add_u32 s52, s52, s53")
        a("v_lshlrev_b32 v5, 2, v0")
        a("s_add_u32 s53, s52, 4096")
        for f in range(lo, hi):
            a("buffer_load_dword v%d, v5, s[48:51], s%d offen offset:%d" % (WD + f, 52 + f // 4, (f % 4) * 1024))
    def job_part():
        a("v_lshrrev_b32 v5, 4, v0")
        a("v_lshlrev_b32 v5, 9, v5")
        a("v_bfe_u32 v252, v0, 2, 2")
        a("v_lshl_add_u32 v5, v252, 6, v5")
        a("v_and_b32 v252, 3, v0")
        a("v_lshl_add_u32 v5, v252, 3, v5")
        a("s_lshl_b32 s52, s19, 12")
        a("s_add_u32 s52, s52, %d" % L_FFW)
        a("v_add_u32 v5, s52, v5")
        for ct in range(2):
            for s_ in range(2):
                for half in range(2):
                    a("ds_read_b64_tr_b16 %s, v5 offset:%d" % (vr(BF + 4 * s_ + 2 * half, 2), ct * 32 + s_ * 2048 + half * 256))
            a("s_waitcnt lgkmcnt(0)")
            a("%s %s, %s, %s, 0" % (MF16, vr(DD + 4 * ct, 4), vr(XS, 4), vr(BF, 4)))
            a("%s %s, %s, %s, %s" % (MF16, vr(DD + 4 * ct, 4), vr(XS + 4, 4), vr(BF + 4, 4), vr(DD + 4 * ct, 4)))
        a("v_lshlrev_b32 v5, 3, v0")
        a("s_lshl_b32 s52, s2, 10")
        a("s_lshl_b32 s53, s19, 8")
        a("s_add_u32 s52, s52, s53")
        a("s_add_u32 s52, s52, %d" % WS_PA)
        a("s_nop 3")
        a("v_mov_b32 v%d, s%d" % (DD + 1, S_TAG))
        a("s_mov_b32 exec_hi, 0")
        a("s_mov_b32 exec_lo, 0xffff0000")
        a("v_mov_b32 v%d, v%d" % (DD, DD + 4))
        a("s_mov_b32 exec_lo, -1")
        a("buffer_store_dwordx2 %s, v5, %s, s52 offen sc1" % (vr(DD, 2), WS))
        a("s_mov_b64 exec, -1")
    def ld_part():
        a("v_lshrrev_b32 v5, 3, v0")
        a("v_lshlrev_b32 v5, 10, v5")
        a("v_and_b32 v252, 7, v0")
        a("v_lshl_add_u32 v5, v252, 3, v5")
        a("s_lshr_b32 s3, s2, 3")
        a("s_lshl_b32 s3, s3, 13")
        a("s_and_b32 s54, s2, 7")
        a("s_lshl_b32 s54, s54, 6")
        a("s_add_u32 s3, s3, s54")
        a("s_add_u32 s3, s3, %d" % WS_PA)
        a("buffer_load_dwordx2 %s, v5, %s, s3 offen sc1" % (vr(T, 2), WS))
        a("buffer_load_dwordx2 %s, v5, %s, s3 offen offset:512 sc1" % (vr(T + 2, 2), WS))
    def job_final():
        check_tags("P2_CP", [T + 1, T + 3], ld_part)
        G_, U_ = T, T + 2
        for r in (G_, U_):
            a("v_add_f32_dpp v%d, v%d, v%d row_ror:8 row_mask:0xf bank_mask:0xf" % (r, r, r))
        for op in ("v_permlane16_swap_b32", "v_permlane32_swap_b32"):
            for r in (G_, U_):
                a("v_mov_b32 v%d, v%d" % (r + 1, r))
            a("s_nop 0")
            for r in (G_, U_):
                a("%s v%d, v%d" % (op, r, r + 1))
            for r in (G_, U_):
                a("v_add_f32 v%d, v%d, v%d" % (r, r, r + 1))
        bf16_round_to_f32(a, G_, G_)
        bf16_round_to_f32(a, U_, U_)
        a("v_mul_f32 v%d, 0x%08x, v%d" % (T + 1, f32bits(-LOG2E), G_))
        a("v_exp_f32 v%d, v%d" % (T + 1, T + 1))
        a("v_mov_b32 v%d, 0" % (T + 4))
        a("v_add_f32 v%d, 1.0, v%d" % (T + 1, T + 1))
        a("v_rcp_f32 v%d, v%d" % (T + 1, T + 1))
        a("v_mov_b32 v%d, 0" % (T + 5))
        a("v_mul_f32 v%d, v%d, v%d" % (T + 1, T + 1, G_))
        bf16_round_to_f32(a, T + 1, T + 1)
        a("v_mul_f32 v%d, v%d, v%d" % (T + 1, T + 1, U_))
        a("v_cvt_pk_bf16_f32 v%d, v%d, v%d" % (T + 1, T + 1, T + 4))
        a("v_lshlrev_b32 v5, 2, v0")
        for i in range(8):
            a("v_readlane_b32 s%d, v%d, %d" % (44 + i, T + 1, i))
        a("s_lshl_b32 s60, s19, 9")
        a("s_and_b32 s61, s2, 15")
        a("s_lshl_b32 s61, s61, 11")
        a("s_add_u32 s60, s60, s61")
        a("s_add_u32 s60, s60, %d" % WS_Y)
        for i in range(8):
            a("s_lshl_b32 s%d, s%d, 16" % (52 + i, 44 + i))
        for i in range(8):
            a("v_dot2_f32_bf16 v%d, v%d, s%d, v%d" % (T + 4, WD + i, 44 + i, T + 4))
            a("v_dot2_f32_bf16 v%d, v%d, s%d, v%d" % (T + 5, WD + i, 52 + i, T + 5))
        a("s_nop 3")
        a("buffer_atomic_add_f32 v%d, v5, %s, s60 offen" % (T + 4, WS))
        a("buffer_atomic_add_f32 v%d, v5, %s, s60 offen offset:256" % (T + 5, WS))
    def job_tail():
        a("s_lshl_b32 s3, s2, 7")
        a("s_add_u32 s3, s3, %d" % WS_FL3)
        a("s_waitcnt vmcnt(0)")
        last_wave_flag(a, "P2_FL3", VM, 12, 4, 3, 5)
        jstart[1] += 1
        srd(a, 44, P_X, 2048 * 512 * 2)
        a("buffer_load_dwordx4 %s, v%d, s[44:47], s6 offen" % (vr(XR, 4), VXO))
        a("buffer_load_dwordx4 %s, v%d, s[44:47], s6 offen offset:16" % (vr(XR + 4, 4), VXO))
        a("v_lshlrev_b32 v252, 3, v6")
        a("buffer_load_dwordx2 %s, v252, %s, s7 offen sc1" % (vr(GR, 2), WS))
    def job_key():
        a("s_cmp_eq_u32 s39, -1")
        a("s_cbranch_scc1 P2_NOKEY")
        a("s_lshl_b32 s3, s39, 3")
        a("s_add_u32 s3, s3, %d" % WS_RK)
        a("v_mov_b32 v%d, s%d" % (DD, S_KEY))
        a("v_mov_b32 v%d, s%d" % (DD + 1, S_TAG))
        a("s_waitcnt vmcnt(0)")
        a("s_mov_b64 exec, 1")
        a("buffer_store_dwordx2 %s, off, %s, s3 sc1" % (vr(DD, 2), WS))
        jstart[1] += 1
        a("s_mov_b64 exec, -1")
        a.label("P2_NOKEY")
    def job_mark():
        a("s_add_u32 s3, s33, 32768")
        a("v_mov_b64 %s, -1" % vr(XR, 2))
        a("v_mov_b64 %s, -1" % vr(XR + 2, 2))
        a("buffer_store_dwordx4 %s, v2, %s, s33 offen sc1" % (vr(XR, 4), WS))
        a("buffer_store_dwordx4 %s, v2, %s, s3 offen sc1" % (vr(XR, 4), WS))
    def ld_marks():
        assert MAP == 1
        a("v_and_b32 v5, 7, v0")
        a("v_lshlrev_b32 v5, 7, v5")
        a("s_lshl_b32 s3, s62, 10")
        a("s_add_u32 s3, s3, %d" % WS_FL3)
        a("buffer_load_dword v%d, v5, %s, s3 offen sc1" % (T + 34, WS))
    def job_own():
        a("s_and_b32 s52, s%d, 0xffff" % S_KEY)
        a("s_sub_u32 s52, 0xffff, s52")
        a("s_lshr_b32 s52, s52, 5")
        a("s_cmp_lg_u32 s52, s4")
        a("s_cbranch_scc1 %s" % issued())
        ld_fl3()
    def odd(b):
        a("s_bitcmp%d_b32 s2, 3" % b)
        a("s_cbranch_scc1 P2_HRET")
    if NB == 4:
        plans = {
            0: {0: [job_key], 1: [ld_keys, lambda: job_gu(0, 2)], 2: [job_argmax, lambda: job_gu(2, 4)], 3: [job_part, job_wd], 4: [ld_part], 5: [job_final], 6: [job_tail], 7: [job_own]},
            2: {0: [job_key, lambda: job_gu(0, 1)], 1: [ld_keys, lambda: job_gu(1, 3)], 2: [job_argmax, lambda: job_gu(3, 4)], 3: [job_part, job_wd], 4: [ld_part], 5: [job_final], 6: [job_tail], 7: [job_own]},
            3: {0: [job_key], 1: [ld_keys, lambda: job_gu(0, 4), job_wd], 2: [job_argmax], 3: [job_part], 4: [ld_part], 5: [job_final], 6: [job_tail], 7: [job_own]},
            4: {0: [job_key], 1: [ld_keys, lambda: odd(1), lambda: job_gu(0, 4), job_wd], 2: [job_argmax, lambda: odd(0), lambda: job_gu(0, 4), job_wd], 3: [job_part], 4: [ld_part], 5: [job_final], 6: [job_tail], 7: [job_own]},
            5: {0: [job_key], 1: [ld_keys, only_ffn, lambda: warm_gu(0, 14)], 2: [job_argmax, lambda: warm_gu(14, 28)], 3: [lambda: job_gu(0, 4), lambda: warm_wd(0, 14)], 4: [job_part, job_wd], 5: [ld_part], 6: [job_final], 7: [job_tail, job_own]},
            6: {0: [job_key, lambda: job_gu(0, 1)], 1: [ld_keys, lambda: job_gu(1, 2)], 2: [job_argmax, lambda: job_gu(2, 3)], 3: [lambda: job_gu(3, 4)], 4: [job_part, lambda: job_wd(0, 4)], 5: [ld_part, lambda: job_wd(4, 8)], 6: [job_final], 7: [job_tail, job_own]},
            7: {0: [job_key], 1: [ld_keys, lambda: job_gu(0, 1)], 2: [job_argmax, lambda: job_gu(1, 3)], 3: [lambda: job_gu(3, 4), lambda: job_wd(0, 3)], 4: [job_part, lambda: job_wd(3, 6)], 5: [ld_part, lambda: job_wd(6, 8)], 6: [job_final], 7: [job_tail, job_own]},
            8: {0: [job_key, only_ffn, lambda: job_wd(0, 4)], 1: [ld_keys, lambda: job_gu(0, 2), lambda: job_wd(4, 5)], 2: [job_argmax, lambda: job_gu(2, 4)], 3: [job_part, lambda: job_wd(5, 8)], 4: [ld_part], 5: [job_final], 6: [job_tail], 7: [job_own]},
            9: {0: [job_key], 1: [ld_keys, lambda: job_gu(0, 2), lambda: job_wd(0, 1)], 2: [job_argmax, lambda: job_gu(2, 4)], 3: [job_part, lambda: job_wd(1, 5)], 4: [ld_part, lambda: job_wd(5, 8)], 5: [job_final], 6: [job_tail], 7: [job_own]},
            1: {1: [ld_keys, lambda: job_gu(0, 1)], 2: [job_argmax, lambda: job_gu(1, 2)], 3: [lambda: job_gu(2, 4)], 4: [job_part], 5: [job_wd], 6: [ld_part], 7: [job_final]},
        }
    else:
        plans = {
            0: {0: [ld_keys], 1: [lambda: job_gu(0, 4)], 2: [job_argmax], 3: [job_wd], 4: [job_part], 5: [ld_part], 7: [job_final]},
        }
    plan = plans[PLAN]
    if SENT:
        plan[0] = plan[0] + [job_mark]
        plan[7] = [ld_marks] + plan[7]
        a.label("P2_MKR")
        check_tags("P2_CM", [T + 34], ld_marks)
        a("s_branch P2_MKD")
    a.label("P2_HOOK")
    delay(a, 2, 15, 0x05)
    if HP:
        a("s_bitcmp1_b32 s32, s23")
        a("s_cbranch_scc0 P2_PAD%d" % HP)
    for st in plan:
        a("s_cmp_eq_u32 s23, %d" % st)
        a("s_cbranch_scc1 P2_J%d" % st)
    a("s_branch P2_PAD%d" % HP)
    for st, jobs in plan.items():
        a.label("P2_J%d" % st)
        jstart[0], jstart[1] = len(a.l), 0
        for jb in jobs:
            jb()
        a("s_branch %s" % issued())

    a.label("P2_EXACT")
    a("s_mov_b32 s29, 1")
    a("s_mov_b32 s32, 0")
    a("s_mov_b32 s23, 0xff800000")
    for j in range(2):
        a("v_mov_b32 v%d, s23" % (T + j))
    a("s_mov_b32 s28, s22")
    a("s_mov_b32 s23, 0")
    a("s_waitcnt vmcnt(0) lgkmcnt(0)")
    a.label("P2_EXLOOP")
    a("buffer_load_dwordx4 %s, v2, %s, s28 offen sc1" % (vr(KV, 4), WS))
    a("s_waitcnt vmcnt(0)")
    for j in range(2):
        a("%s %s, %s, %s, 0" % (MF32, vr(S, 16), vr(KV, 4), vr(Q + 4 * j, 4)))
        a("s_nop 15")
        for r in range(0, 16, 2):
            a("v_max3_f32 v%d, v%d, v%d, v%d" % (T + j, T + j, S + r, S + r + 1))
    a("s_add_u32 s28, s28, 2048")
    a("s_add_u32 s23, s23, 1")
    a("s_cmp_lt_u32 s23, 32")
    a("s_cbranch_scc1 P2_EXLOOP")
    a("s_lshl_b32 s23, s19, 9")
    a("s_lshl_b32 s28, s16, 8")
    a("s_add_u32 s23, s23, %d" % L_EX)
    a("v_lshl_add_u32 v5, v0, 2, s23")
    a("v_add_u32 v252, s28, v5")
    a("v_xor_b32 v253, 256, v252")
    a("ds_write_b32 v253, v%d" % T)
    a("ds_write_b32 v252, v%d" % (T + 1))
    a("s_waitcnt lgkmcnt(0)")
    a("s_barrier")
    a("s_lshl_b32 s23, s17, 9")
    a("s_add_u32 s23, s23, %d" % L_EX)
    a("v_lshl_add_u32 v5, v6, 2, s23")
    a("v_add_u32 v252, s28, v5")
    a("v_xor_b32 v253, 256, v252")
    for j in range(2):
        for kh in range(2):
            for hh in range(2):
                a("ds_read_b32 v%d, v%d offset:%d" % (S + kh * 2 + hh, 253 - j, kh * 2048 + hh * 128))
        a("s_waitcnt lgkmcnt(0)")
        a("v_max3_f32 v%d, v%d, v%d, v%d" % (S, S, S + 1, S + 2))
        a("v_max_f32 v%d, v%d, v%d" % (S, S, S + 3))
        a("v_sub_f32 v%d, 0, v%d" % (C + 16 * j, S))
    p2_init()
    a("s_lshl_b32 s28, s14, 11")
    a("s_mov_b32 s21, s28")
    ld_k(0)
    ld_v(0)
    a("s_waitcnt vmcnt(0)")
    a("s_branch P2_START")
    a.label("L_CODE_END")

DOC = """;
;           from two all-ones rows of the V^T operand.  The P.V product uses v_smfmac with the constant 2:4 index {1,3}:
; Hand-offs between workgroups: sc1 (device-scope) stores, drained with vmcnt(0), then a flag or {value, tag} word that
; Workgroup -> tile maps exploit the usual id%8 XCD placement for L2 locality only.
;"""

def main():
    out = sys.argv[1] if len(sys.argv) > 1 else "cdna_kernels/%s.s" % NAME
    a = Asm()
    hdr = open("cdna_kernels/%s.s.ref" % NAME).read().split("\n")
    keep = [l for l in hdr if l.startswith(";") and "@launch" not in l and "Override launch" not in l and "grid=ceil" not in l]
    for l in keep:
        a.raw(l)
    a.raw("; @launch grid=(256,1,1) block=(512,1,1) lds=%d" % LDS_SIZE)
    a.raw(DOC)
    a.raw('.amdgcn_target "amdgcn-amd-amdhsa--gfx950"')
    a.raw(".text")
    gen(a)
    a.raw('.section .rodata,"a"')
    a.raw(""".p2align 6
.amdhsa_kernel %s_kernel
  .amdhsa_next_free_vgpr 256
  .amdhsa_next_free_sgpr 102
  .amdhsa_accum_offset 256
  .amdhsa_group_segment_fixed_size 0
  .amdhsa_kernarg_size 96
  .amdhsa_user_sgpr_count 2
  .amdhsa_user_sgpr_kernarg_segment_ptr 1
  .amdhsa_system_sgpr_workgroup_id_x 1
.end_amdhsa_kernel""" % NAME)
    open(out, "w").write(a.text())

if __name__ == "__main__":
    main()
```
